```python
import torch

def _softmax(x, axis=-1):
    return torch.softmax(x, dim=axis)
def _gelu(x):
    return torch.nn.functional.gelu(x, approximate="tanh")
def _silu(x):
    return torch.nn.functional.silu(x)
def _sigmoid(x):
    return torch.sigmoid(x)
def _layernorm(x, axis=-1, eps=1e-5):
    m = x.mean(dim=axis, keepdim=True)
    v = x.var(dim=axis, keepdim=True, unbiased=False)
    return (x - m) / torch.sqrt(v + eps)
def _scatter_add(tgt, idx, src, axis=0):
    return tgt.clone().index_add_(axis, idx, src)
def _segment_sum(src, seg, n):
    out = torch.zeros((n,) + src.shape[1:], dtype=src.dtype)
    return out.index_add_(0, seg, src)
def _pad(x, pw):
    flat = tuple(v for pair in reversed(pw) for v in pair)
    return torch.nn.functional.pad(x, flat)

kernel_name = 'interleave_layers__ssm_conv_h3__glu_gated_bilinear__prompt'

def setup_inputs():

    _w = (lambda a: (lambda t: t.to(torch.bfloat16) if t.is_floating_point() else t)(torch.as_tensor(a)))
    def _A_setup():
        B, S, D = 1, 2048, 1024
        ks = 4
        return {
            "q": _w((lambda *s: torch.randn(*s, dtype=torch.bfloat16) * 0.05)(B, S, D)),
            "k": _w((lambda *s: torch.randn(*s, dtype=torch.bfloat16) * 0.2)(B, S, D)),
            "v": _w((lambda *s: torch.randn(*s, dtype=torch.bfloat16) * 0.2)(B, S, D)),
            "shift_k": _w((lambda *s: torch.randn(*s, dtype=torch.bfloat16) * 0.2)(D, ks) * 0.5),
            "ssm_k": _w((lambda *s: torch.randn(*s, dtype=torch.bfloat16) * 0.4)(D, S) * (1.0 / S ** 0.5)),
            "ssm_D": _w((lambda *s: torch.randn(*s, dtype=torch.bfloat16) * 0.2)(D)),
        }
    _A_in = _A_setup()

    def _B_setup():
        B, S, D, F = 1, 2048, 1024, 3584
        return {
            "x": _w((lambda *s: torch.randn(*s, dtype=torch.bfloat16) * 0.05)(B, S, D)),
            "w_gate": _w((lambda *s: torch.randn(*s, dtype=torch.bfloat16) * 0.4)(D, F) * (D ** -0.5)),
            "w_up": _w((lambda *s: torch.randn(*s, dtype=torch.bfloat16) * 0.4)(D, F) * (D ** -0.5)),
            "w_down": _w((lambda *s: torch.randn(*s, dtype=torch.bfloat16) * 0.4)(F, D) * (F ** -0.5)),
        }
    _B_in = _B_setup()

    return {
        "A_q": _A_in["q"],
        "A_k": _A_in["k"],
        "A_v": _A_in["v"],
        "A_shift_k": _A_in["shift_k"],
        "A_ssm_k": _A_in["ssm_k"],
        "A_ssm_D": _A_in["ssm_D"],
        "B_x": _B_in["x"],
        "B_w_gate": _B_in["w_gate"],
        "B_w_up": _B_in["w_up"],
        "B_w_down": _B_in["w_down"],
    }

def reference(A_q, A_k, A_v, A_shift_k, A_ssm_k, A_ssm_D, B_x, B_w_gate, B_w_up, B_w_down):
    def _A_ref(q, k, v, shift_k, ssm_k, ssm_D):
        B, S, D = q.shape
        ks = shift_k.shape[-1]
        k_pad = _pad(k, ((0, 0), (ks - 1, 0), (0, 0)))
        k_shift = torch.zeros_like(k)
        for t in range(ks):
            k_shift = k_shift + k_pad[:, t:t + S, :] * shift_k[:, ks - 1 - t][None, None, :]
        kv = k_shift * v
        L = 2 * S
        kv_pad = _pad(kv, ((0, 0), (0, S), (0, 0)))
        kf_pad = _pad(ssm_k, ((0, 0), (0, S)))
        kv_f = (lambda x, axes=(-2,-1): torch.fft.rfft2(x.float(), dim=axes))(kv_pad[:, None, :, :], axes=(1, 2))
        kf_f = (lambda x, axes=(-2,-1): torch.fft.rfft2(x.float(), dim=axes))(kf_pad[:, None, :], axes=(1, 2))
        kf_f = (lambda x, *d: x.permute(*d))(kf_f, 1, 2, 0)
        y_f = kv_f * kf_f[None, :, :, :]
        y = (lambda x, s, axes=(-2,-1): torch.fft.irfft2(x, s=s, dim=axes).to(torch.bfloat16))(y_f, (1, L), axes=(1, 2))[:, 0, :S, :]
        y = y + kv * ssm_D[None, None, :]
        return q * y

    def _B_ref(x, w_gate, w_up, w_down):
        g = torch.einsum("bsd,df->bsf", x, w_gate)
        u = torch.einsum("bsd,df->bsf", x, w_up)
        h = g * u
        return torch.einsum("bsf,fd->bsd", h, w_down)

    x = A_q
    x = x + _A_ref(_layernorm(x, axis=-1), A_k, A_v, A_shift_k, A_ssm_k, A_ssm_D)
    x = x + _B_ref(_layernorm(x, axis=-1), B_w_gate, B_w_up, B_w_down)
    x = x + _A_ref(_layernorm(x, axis=-1), A_k, A_v, A_shift_k, A_ssm_k, A_ssm_D)
    x = x + _B_ref(_layernorm(x, axis=-1), B_w_gate, B_w_up, B_w_down)
    return x
```

```python
class Asm:
    def __init__(self):
        self.lines = []
    def __call__(self, s):
        for l in s.strip("\n").split("\n"):
            l = l.strip()
            if not l: continue
            if l.endswith(":") or l.startswith("."):
                self.lines.append(l)
            else:
                self.lines.append("    " + l)
    def text(self): return "\n".join(self.lines) + "\n"

def kernel_begin(a, name):
    a(f".text\n.globl {name}\n.p2align 8\n.type {name},@function\n{name}:")

def kernel_desc(name, vgpr, sgpr=102, accum=None, wgy=False):
    if accum is None: accum = (min(vgpr,256) + 3) // 4 * 4
    s = f""".section .rodata,"a"
.p2align 6
.amdhsa_kernel {name}
  .amdhsa_next_free_vgpr {vgpr}
  .amdhsa_next_free_sgpr {sgpr}
  .amdhsa_accum_offset {accum}
  .amdhsa_group_segment_fixed_size 0
  .amdhsa_kernarg_size 104
  .amdhsa_user_sgpr_count 2
  .amdhsa_user_sgpr_kernarg_segment_ptr 1
  .amdhsa_system_sgpr_workgroup_id_x 1
"""
    if wgy: s += "  .amdhsa_system_sgpr_workgroup_id_y 1\n"
    s += """  .amdhsa_float_denorm_mode_32 3
  .amdhsa_float_denorm_mode_16_64 3
.end_amdhsa_kernel
"""
    return s
HEADER = '.amdgcn_target "amdgcn-amd-amdhsa--gfx950"\n'
```

```python
S, D, F = 2048, 1024, 3584
WS_UT = 0x0000000
WS_Y  = 0x0400000
WS_XR = 0x0800000
WS_XN = 0x0C00000
WS_H  = 0x1000000
WS_TS = 0x3000000
H_BYTES = S * F * 2
def kperm():
    out = []
    for P in range(16):
        for kap in range(7):
            for q in range(4):
                for e in range(8):
                    if kap < 4:
                        hb, wc = kap >> 1, kap & 1
                        phi = 112*hb + 64*wc + 16*(e >> 2) + 4*q + (e & 3)
                    elif kap < 6:
                        hb = kap - 4; wc = q >> 1; qq = q & 1
                        phi = 112*hb + 64*wc + 32 + 8*(e >> 2) + 4*qq + (e & 3)
                    else:
                        hb, wc = q >> 1, q & 1
                        phi = 112*hb + 48 + 8*wc + e
                    out.append(224*P + phi)
    assert sorted(out) == list(range(F))
    return out
```

```python
from asmlib import *
from common import *

STAGE = 32768 + 256
UOFF = 8192 + 16

def stamp(a, idx, on):
    if on: a(f"s_memtime s[{60+2*idx}:{61+2*idx}]")

def gen_g1(name="g1_kernel", mapping='A', ts=False, dma_pos=None, rd_pos=None, store_aux="", order='tj', abl=''):
    a = Asm()
    kernel_begin(a, name)
    L = name
    ACC = 32
    def acc(t, j): return ACC + (t*7 + j)*4
    def xf(s, t): return s*60 + t*4
    def wf(s, j): return s*60 + 32 + j*4
    vXA = [8, 9]; vWA = [[10,11,12,13],[14,15,16,17]]; vDX = 18; vDW = [19,20,21,22]
    stamp(a, 0, ts)
    if ts: a("s_memrealtime s[80:81]")
    a(f"""
    s_cmp_ge_u32 s2, 256
    s_cbranch_scc1 {L}_end
    s_load_dwordx4 s[4:7], s[0:1], 56
    s_load_dwordx2 s[16:17], s[0:1], 96    ; ws
    v_lshrrev_b32 v1, 6, v0
    v_and_b32 v2, 63, v0                   ; lane
    v_readfirstlane_b32 s20, v1            ; wave
    s_and_b32 s21, s2, 7
    s_lshr_b32 s22, s2, 3
    """)
    if mapping == 'A':
        a("""
        s_lshl_b32 s21, s21, 2
        s_and_b32 s23, s22, 3
        s_add_u32 s21, s21, s23            ; fb
        s_lshr_b32 s22, s22, 2             ; tb
        """)
    else:
        a("""
        s_and_b32 s23, s21, 1
        s_lshl_b32 s23, s23, 2
        s_lshr_b32 s21, s21, 1
        s_lshl_b32 s21, s21, 3
        s_lshr_b32 s24, s22, 2
        s_add_u32 s21, s21, s24            ; fb
        s_and_b32 s22, s22, 3
        s_add_u32 s22, s22, s23            ; tb
        """)
    a(f"""
    s_and_b32 s23, s20, 1
    s_lshr_b32 s24, s20, 1
    s_and_b32 s25, s21, 1                  ; fb&1
    s_lshl_b32 s26, s22, 19
    s_lshl_b32 s28, s20, 12
    s_add_u32 s26, s26, s28
    s_mul_i32 s27, s23, {16*7168}
    s_mul_i32 s30, s21, 224
    s_add_u32 s27, s27, s30
    s_lshl_b32 s30, s25, 5
    s_sub_u32 s27, s27, s30
    s_mul_i32 s29, s24, {UOFF}
    s_lshl_b32 s30, s23, 12
    s_add_u32 s29, s29, s30
    s_add_u32 s29, s29, 16384
    v_lshlrev_b32 v{vDX}, 4, v2            ; lane*16
    v_lshrrev_b32 v3, 4, v2                ; q
    v_bfe_u32 v4, v2, 1, 3
    v_xor_b32 v4, v4, v3                   ; ^ (l>>4)
    v_and_b32 v5, 1, v2
    v_lshlrev_b32 v5, 4, v5
    v_mul_u32_u24 v6, 7168, v3
    v_add_u32 v6, v6, v5
    v_lshl_add_u32 v{vDW[0]}, v4, 5, v6
    v_xor_b32 v4, 4, v4
    v_lshl_add_u32 v{vDW[2]}, v4, 5, v6
    v_add_u32 v{vDW[1]}, {4*7168-1024}, v{vDW[0]}
    v_add_u32 v{vDW[3]}, {3*(4*7168-1024)}, v{vDW[2]}
    v_add_u32 v{vDW[2]}, {2*(4*7168-1024)}, v{vDW[2]}
    s_waitcnt lgkmcnt(0)
    s_cmp_eq_u32 s24, 0
    s_cselect_b32 s8, s4, s6
    s_cselect_b32 s9, s5, s7
    s_mov_b32 s10, {D*F*2}
    s_mov_b32 s11, 0x20000
    s_add_u32 s12, s16, {WS_XN}
    s_addc_u32 s13, s17, 0
    s_mov_b32 s14, {S*D*2}
    s_mov_b32 s15, 0x20000
    """)
    def dma_ops(slot):
        ops = []
        ops.append([f"s_add_u32 m0, s28, {slot*STAGE}", "s_nop 0", f"buffer_load_dwordx4 v{vDX}, s[12:15], s26 offen lds"])
        for i in range(1,4): ops.append([f"buffer_load_dwordx4 v{vDX}, s[12:15], s26 offen offset:{1024*i} lds"])
        ops[-1].append("s_add_u32 s26, s26, 16384")
        ops.append([f"s_add_u32 m0, s29, {slot*STAGE}", "s_nop 0", f"buffer_load_dwordx4 v{vDW[0]}, s[8:11], s27 offen lds"])
        for i in range(1,4): ops.append([f"buffer_load_dwordx4 v{vDW[i]}, s[8:11], s27 offen offset:{1024*i} lds"])
        ops[-1].append(f"s_add_u32 s27, s27, {32*7168}")
        return ops
    for slot in range(4):
        for op in dma_ops(slot):
            for l in op: a(l)
    a(f"""
    s_lshl_b32 s30, s24, 13                ; wr*8192
    v_bfe_u32 v4, v2, 2, 2
    v_lshlrev_b32 v4, 1, v4
    v_mov_b32 v5, 0x78
    v_lshrrev_b32 v4, v4, v5
    v_xor_b32 v4, v4, v3
    v_and_b32 v4, 3, v4
    v_and_b32 v5, 15, v2
    v_lshlrev_b32 v5, 6, v5
    v_lshl_add_u32 v4, v4, 4, v5
    v_add_u32 v{vXA[0]}, s30, v4
    v_add_u32 v{vXA[1]}, {2*STAGE}, v{vXA[0]}
    v_bfe_u32 v4, v2, 2, 2                 ; r4
    v_and_b32 v5, 1, v3
    v_lshl_or_b32 v5, v5, 2, v4            ; sigma
    v_lshl_add_u32 v6, v3, 3, v4           ; row = 8q + r4
    v_lshlrev_b32 v6, 8, v6
    v_add_u32 v6, 16384, v6
    v_and_b32 v7, 3, v2                    ; c
    v_lshl_add_u32 v23, v7, 3, v6          ; + c*8
    s_lshl_b32 s30, s23, 2
    s_add_u32 s30, s30, s25
    """)
    for p in range(3):
        a(f"""
        s_add_u32 s31, s30, {p}
        v_xor_b32 v4, s31, v5
        v_lshl_add_u32 v{vWA[0][p]}, v4, 5, v23
        """)
    a(f"""
    s_add_u32 s31, s25, 3
    v_xor_b32 v4, s31, v5
    v_lshl_add_u32 v6, v4, 5, v6
    v_and_b32 v4, 1, v7
    v_lshl_add_u32 v6, v4, 3, v6
    v_lshrrev_b32 v4, 1, v7
    v_mul_u32_u24 v4, {UOFF}, v4
    s_lshl_b32 s31, s23, 4
    v_add3_u32 v{vWA[0][3]}, v6, v4, s31
    """)
    for p in range(4): a(f"v_add_u32 v{vWA[1][p]}, {2*STAGE}, v{vWA[0][p]}")
    for i in range(112): a(f"v_mov_b64 v[{ACC+2*i}:{ACC+2*i+1}], 0")
    def read_ops(slot, s):
        h = slot >> 1; so = (slot & 1)*STAGE
        W = []
        for j in range(7):
            va = vWA[h][j % 3] if j < 6 else vWA[h][3]
            off = so + (UOFF if 3 <= j < 6 else 0)
            r = wf(s, j)
            W.append(f"ds_read_b64_tr_b16 a[{r}:{r+1}], v{va} offset:{off}")
            W.append(f"ds_read_b64_tr_b16 a[{r+2}:{r+3}], v{va} offset:{off+1024}")
        X = [f"ds_read_b128 a[{xf(s,t)}:{xf(s,t)+3}], v{vXA[h]} offset:{so+t*1024}" for t in range(8)]
        return X[:1] + W + X[1:]
    a("s_waitcnt vmcnt(24)\ns_barrier")
    for l in read_ops(0, 0): a(l)
    if abl:
        for l in read_ops(0, 1): a(l)
    stamp(a, 1, ts)
    if dma_pos is None: dma_pos = [3 + 7*i for i in range(8)]
    if rd_pos is None: rd_pos = [2*i for i in range(22)]
    def step(i4, dma, rd, vm):
        s = i4 & 1
        a(f"s_waitcnt vmcnt({vm}) lgkmcnt(0)")
        if rd and 'B' not in abl: a("s_barrier")
        R = read_ops((i4+1) % 4, s ^ 1) if rd else []
        Dm = dma_ops(i4) if dma else []
        if 'R' in abl: R = []
        if 'W' in abl: R = [(l if 'b128' in l else 's_nop 0') for l in R]
        if 'X' in abl: R = [(l if 'b128' not in l else 's_nop 0') for l in R]
        if 'D' in abl: Dm = []
        if 'd' in abl: Dm = [[l for l in op if 's26, s26' not in l and 's27, s27' not in l] for op in Dm]
        if order == 'tj': seq = [(t, (j if t % 2 == 0 else 6-j)) for t in range(8) for j in range(7)]
        else: seq = [((t if j % 2 == 0 else 7-t), j) for j in range(7) for t in range(8)]
        for n, (t, j) in enumerate(seq):
            c = acc(t, j)
            a(f"v_mfma_f32_16x16x32_bf16 v[{c}:{c+3}], a[{wf(s,j)}:{wf(s,j)+3}], a[{xf(s,t)}:{xf(s,t)+3}], v[{c}:{c+3}]")
            for k, pos in enumerate(rd_pos):
                if pos == n and R: a(R[k])
            for k, pos in enumerate(dma_pos):
                if pos == n and Dm:
                    for l in Dm[k]: a(l)
    a(f"s_mov_b32 s32, 7\n{L}_loop:")
    for i4 in range(4): step(i4, True, True, 16)
    a(f"s_sub_u32 s32, s32, 1\ns_cmp_lg_u32 s32, 0\ns_cbranch_scc1 {L}_loop")
    step(0, False, True, 16); step(1, False, True, 8); step(2, False, True, 0); step(3, False, False, 0)
    stamp(a, 2, ts)
    a(f"""
    s_add_u32 s12, s16, {WS_H}
    s_addc_u32 s13, s17, 0
    s_mov_b32 s14, {H_BYTES}
    s_lshl_b32 s33, s22, 3
    s_lshl_b32 s30, s24, 2
    s_add_u32 s33, s33, s30
    s_mul_i32 s33, s33, 229376
    s_lshr_b32 s30, s21, 1
    s_mul_i32 s30, s30, {7*2048}
    s_add_u32 s33, s33, s30
    s_lshl_b32 s34, s25, 1
    s_add_u32 s34, s34, s23                ; wv
    s_lshl_b32 s30, s34, 11
    v_add_u32 v8, s30, v{vDX}
    v_and_b32 v4, 15, v2
    v_lshlrev_b32 v4, 4, v4                ; tok*16
    v_lshrrev_b32 v5, 1, v3                ; q>>1
    v_lshl_add_u32 v4, v5, 10, v4          ; + (q>>1)*1024
    v_and_b32 v5, 1, v3                    ; q&1
    s_add_u32 s30, s25, 4
    s_lshl_b32 s30, s30, 11
    s_lshl_b32 s31, s23, 9
    s_add_u32 s30, s30, s31
    v_lshl_add_u32 v9, v5, 8, v4
    v_add_u32 v9, s30, v9                  ; B addr
    s_lshl_b32 s30, s34, 8
    s_add_u32 s30, s30, {6*2048}
    v_mul_u32_u24 v5, 229376, v5
    v_add3_u32 v10, v4, v5, s30
    s_nop 4
    """)
    for t in range(8):
        for p in range(3):
            g, u = acc(t, p), acc(t, 3+p)
            a(f"v_pk_mul_f32 v[{g}:{g+1}], v[{g}:{g+1}], v[{u}:{u+1}]")
            a(f"v_pk_mul_f32 v[{g+2}:{g+3}], v[{g+2}:{g+3}], v[{u+2}:{u+3}]")
        d = acc(t, 3)
        g0, g1, g2 = acc(t,0), acc(t,1), acc(t,2)
        a(f"v_cvt_pk_bf16_f32 v{d}, v{g0}, v{g0+1}\nv_cvt_pk_bf16_f32 v{d+1}, v{g0+2}, v{g0+3}")
        a(f"v_cvt_pk_bf16_f32 v{d+2}, v{g1}, v{g1+1}\nv_cvt_pk_bf16_f32 v{d+3}, v{g1+2}, v{g1+3}")
        a(f"buffer_store_dwordx4 v[{d}:{d+3}], v8, s[12:15], s33 offen offset:{(t&1)*1024} {store_aux}")
        b = acc(t & ~1, 4) + 2*(t & 1)
        a(f"v_cvt_pk_bf16_f32 v{b}, v{g2}, v{g2+1}\nv_cvt_pk_bf16_f32 v{b+1}, v{g2+2}, v{g2+3}")
        if t & 1:
            b = acc(t & ~1, 4)
            o0, o1 = acc(t-1, 6), acc(t, 6)
            for r in range(4): a(f"v_permlane32_swap_b32 v{o0+r}, v{o1+r}")
            a(f"v_permlane32_swap_b32 v{b}, v{b+2}\nv_permlane32_swap_b32 v{b+1}, v{b+3}")
            a(f"v_pk_mul_f32 v[{o0}:{o0+1}], v[{o0}:{o0+1}], v[{o1}:{o1+1}]")
            a(f"v_pk_mul_f32 v[{o0+2}:{o0+3}], v[{o0+2}:{o0+3}], v[{o1+2}:{o1+3}]")
            a(f"buffer_store_dwordx4 v[{b}:{b+3}], v9, s[12:15], s33 offen {store_aux}")
            od = acc(t & ~3, 5) + ((t >> 1) & 1)*2
            a(f"v_cvt_pk_bf16_f32 v{od}, v{o0}, v{o0+1}\nv_cvt_pk_bf16_f32 v{od+1}, v{o0+2}, v{o0+3}")
            if t & 3 == 3:
                od = acc(t & ~3, 5)
                a(f"s_sub_u32 s35, s33, 229376\ns_nop 0")
                a(f"v_permlane16_swap_b32 v{od}, v{od+2}\nv_permlane16_swap_b32 v{od+1}, v{od+3}")
                a(f"buffer_store_dwordx4 v[{od}:{od+3}], v10, s[12:15], s35 offen {store_aux}")
            a("s_add_u32 s33, s33, 229376")
    if ts:
        stamp(a, 3, ts)
        a("s_waitcnt vmcnt(0)")
        stamp(a, 4, ts)
        a(f"""
        s_memrealtime s[82:83]
        s_waitcnt lgkmcnt(0)
        s_add_u32 s12, s16, {WS_TS}
        s_addc_u32 s13, s17, 0
        s_mov_b32 s14, 0x100000
        s_lshl_b32 s30, s2, 2
        s_add_u32 s30, s30, s20
        s_lshl_b32 s30, s30, 5
        s_sub_u32 s62, s62, s60
        s_sub_u32 s64, s64, s60
        s_sub_u32 s66, s66, s60
        s_sub_u32 s68, s68, s60
        v_mov_b32 v4, s62
        v_mov_b32 v5, s64
        v_mov_b32 v6, s66
        v_mov_b32 v7, s68
        v_mov_b32 v1, s30
        buffer_store_dwordx4 v[4:7], v1, s[12:15], 0 offen
        s_nop 1
        v_mov_b32 v4, s80
        v_mov_b32 v5, s82
        buffer_store_dwordx2 v[4:5], v1, s[12:15], 0 offen offset:16
        """)
    a(f"{L}_end:\ns_endpgm")
    return a.text(), kernel_desc(name, 256+120, accum=256), 4*STAGE
```

```python
from asmlib import *
from common import *

def ts_begin(a, ts):
    if ts: a("s_memtime s[60:61]\ns_memrealtime s[80:81]")
def stamp(a, idx, on):
    if on: a(f"s_memtime s[{60+2*idx}:{61+2*idx}]")
def ts_end(a, ts, wsreg=16, wavereg=20, nw_log2=2):
    if not ts: return
    a(f"""
    s_memrealtime s[82:83]
    s_waitcnt lgkmcnt(0)
    s_add_u32 s12, s{wsreg}, {WS_TS}
    s_addc_u32 s13, s{wsreg+1}, 0
    s_mov_b32 s14, 0x100000
    s_mov_b32 s15, 0x20000
    s_lshl_b32 s30, s2, {nw_log2}
    s_add_u32 s30, s30, s{wavereg}
    s_lshl_b32 s30, s30, 5
    s_sub_u32 s62, s62, s60
    s_sub_u32 s64, s64, s60
    s_sub_u32 s66, s66, s60
    s_sub_u32 s68, s68, s60
    v_mov_b32 v4, s62
    v_mov_b32 v5, s64
    v_mov_b32 v6, s66
    v_mov_b32 v7, s68
    v_mov_b32 v1, s30
    buffer_store_dwordx4 v[4:7], v1, s[12:15], 0 offen
    s_nop 1
    v_mov_b32 v4, s80
    v_mov_b32 v5, s82
    buffer_store_dwordx2 v[4:5], v1, s[12:15], 0 offen offset:16
    """)

def gen_g2(name="g2_kernel", ts=False, bars=(6, 13), store_aux="nt", mapping='A', abl=''):
    a = Asm()
    kernel_begin(a, name)
    L = name
    ACC = 32; HR = 64; WF = 176; RES = 208
    def acc(t, ct): return ACC + (t*4 + ct)*4
    def hf(n, t): return HR + (n*2 + t)*4
    def wf(s, ct): return WF + (s*4 + ct)*4
    vDW = list(range(8, 15)); vRA = [16, 17, 18, 19]; vL16 = 20; vO = 21
    ts_begin(a, ts)
    a(f"""
    s_cmp_ge_u32 s2, 256
    s_cbranch_scc1 {L}_end
    s_load_dwordx4 s[4:7], s[0:1], 72
    s_load_dwordx2 s[16:17], s[0:1], 96    ; ws
    v_lshrrev_b32 v1, 6, v0
    v_and_b32 v2, 63, v0                   ; lane
    v_readfirstlane_b32 s20, v1            ; wave
    s_and_b32 s21, s2, 7
    s_lshr_b32 s22, s2, 3
    """)
    if mapping == 'A':
        a("""
        s_lshr_b32 s23, s21, 1
        s_lshl_b32 s23, s23, 2
        s_and_b32 s21, s21, 1
        s_lshl_b32 s21, s21, 3
        s_lshr_b32 s24, s22, 2
        s_add_u32 s21, s21, s24            ; cb
        s_and_b32 s22, s22, 3
        s_add_u32 s22, s22, s23            ; tb
        """)
    else:
        a("""
        s_lshl_b32 s23, s21, 1
        s_lshr_b32 s21, s22, 1             ; cb
        s_and_b32 s22, s22, 1
        s_add_u32 s22, s22, s23            ; tb
        """)
    a(f"""
    s_and_b32 s23, s20, 1                  ; w&1
    s_lshr_b32 s24, s20, 1                 ; w>>1
    s_lshl_b32 s26, s22, 2
    s_add_u32 s26, s26, s20                ; 4tb + w
    s_lshl_b32 s33, s26, 16
    s_mul_i32 s26, s26, 229376             ; H soffset
    s_lshl_b32 s27, s21, 7
    s_add_u32 s33, s33, s27
    s_lshl_b32 s28, s20, 10                ; m0 base = w*1024
    v_lshlrev_b32 v{vL16}, 4, v2
    v_lshrrev_b32 v3, 3, v2                ; e
    v_bfe_u32 v4, v2, 1, 2
    v_bfe_u32 v5, v2, 4, 1
    s_lshl_b32 s30, s23, 1
    v_or_b32 v5, s30, v5                   ; sigma
    v_xor_b32 v4, v4, v5
    v_and_b32 v5, 1, v2
    v_lshlrev_b32 v5, 4, v5
    v_lshl_add_u32 v4, v4, 5, v5
    v_and_b32 v5, 3, v3                    ; e&3
    v_lshrrev_b32 v6, 2, v3                ; e>>2
    ; kap<4: 16*(e>>2) + 4*w + (e&3) + [0,64,112,176]
    s_lshl_b32 s30, s20, 2
    v_lshl_add_u32 v7, v6, 4, v5
    v_add_u32 v7, s30, v7
    v_lshl_add_u32 v{vDW[0]}, v7, 11, v4
    v_add_u32 v{vDW[1]}, {64*2048}, v{vDW[0]}
    v_add_u32 v{vDW[2]}, {112*2048}, v{vDW[0]}
    v_add_u32 v{vDW[3]}, {176*2048}, v{vDW[0]}
    ; kap 4,5: 64*(w>>1) + 32 + 8*(e>>2) + 4*(w&1) + (e&3) + [0,112]
    s_lshl_b32 s30, s24, 6
    s_lshl_b32 s31, s23, 2
    s_add_u32 s30, s30, s31
    s_add_u32 s30, s30, 32
    v_lshl_add_u32 v7, v6, 3, v5
    v_add_u32 v7, s30, v7
    v_lshl_add_u32 v{vDW[4]}, v7, 11, v4
    v_add_u32 v{vDW[5]}, {112*2048}, v{vDW[4]}
    ; kap 6: 112*(w>>1) + 48 + 8*(w&1) + e
    s_mul_i32 s30, s24, 112
    s_lshl_b32 s31, s23, 3
    s_add_u32 s30, s30, s31
    s_add_u32 s30, s30, 48
    v_add_u32 v7, s30, v3
    v_lshl_add_u32 v{vDW[6]}, v7, 11, v4
    s_waitcnt lgkmcnt(0)
    s_mov_b32 s8, s4
    s_mov_b32 s9, s5
    s_mov_b32 s10, {F*D*2}
    s_mov_b32 s11, 0x20000
    s_add_u32 s12, s16, {WS_H}
    s_addc_u32 s13, s17, 0
    s_mov_b32 s14, {H_BYTES}
    s_mov_b32 s15, 0x20000
    """)
    def ld_w(n):
        ops = [f"s_add_u32 m0, s28, {(n//7)*32768 + (n%7)*4096}", f"buffer_load_dwordx4 v{vDW[n%7]}, s[8:11], s27 offen lds"]
        return ops
    def ld_h(n, t):
        return f"buffer_load_dwordx4 v[{hf(n,t)}:{hf(n,t)+3}], v{vL16}, s[12:15], s26 offen offset:{(n&1)*2048 + t*1024}"
    if 'H' in abl: a("s_mov_b32 s14, 0")
    if 'W' in abl: a("s_mov_b32 s10, 0")
    for n in range(14):
        o = ld_w(n); a(o[0]); a("s_nop 0"); a(o[1])
        a(ld_h(n, 0)); a(ld_h(n, 1))
        if n & 1: a("s_add_u32 s26, s26, 4096")
        if n % 7 == 6: a(f"s_add_u32 s27, s27, {224*2048}")
    a(f"""
    s_xor_b32 s28, s28, 0x10000
    v_and_b32 v4, 15, v2
    v_lshrrev_b32 v3, 4, v2                ; q
    v_lshlrev_b32 v4, 11, v4
    v_and_b32 v5, 1, v3
    v_lshl_add_u32 v4, v5, 5, v4
    v_lshrrev_b32 v6, 1, v3
    v_lshl_add_u32 v{vO}, v6, 4, v4
    s_add_u32 s36, s16, {WS_XR}
    s_addc_u32 s37, s17, 0
    s_mov_b32 s38, {S*D*2}
    s_mov_b32 s39, 0x20000
    s_add_u32 s34, s33, {16*2048}
    v_bfe_u32 v4, v2, 2, 2
    v_lshl_add_u32 v6, v3, 3, v4
    v_lshlrev_b32 v6, 7, v6
    v_lshrrev_b32 v4, 1, v4
    v_lshl_or_b32 v4, v5, 1, v4            ; sigma
    v_and_b32 v7, 3, v2
    v_lshl_add_u32 v6, v7, 3, v6
    """)
    for ct in range(4):
        a(f"v_xor_b32 v7, {ct}, v4\nv_lshl_add_u32 v{vRA[ct]}, v7, 5, v6")
    for i in range(16): a(f"v_mov_b64 v[{ACC+2*i}:{ACC+2*i+1}], 0")
    def rd(n, s):
        off = (n//7)*32768 + (n%7)*4096
        out = []
        for ct in range(4):
            r = wf(s, ct)
            out.append(f"ds_read_b64_tr_b16 v[{r}:{r+1}], v{vRA[ct]} offset:{off}")
            out.append(f"ds_read_b64_tr_b16 v[{r+2}:{r+3}], v{vRA[ct]} offset:{off+512}")
        return out
    bars = sorted(bars)
    first = bars[0]
    a(f"s_waitcnt vmcnt({(13-first)*3+2})\ns_barrier")
    for l in rd(0, 0): a(l)
    stamp(a, 1, ts)
    a(f"s_mov_b32 s32, 8\n{L}_loop:")
    a(f"""
    s_cmp_eq_u32 s32, 1
    s_cselect_b32 s10, 0, s10
    s_cselect_b32 s14, 0, s14
    """)
    for n in range(14):
        s = n & 1
        if n in bars:
            nxt = [b for b in bars if b > n]
            gap = (nxt[0] - n) if nxt else (bars[0] + 14 - n)
            a(f"s_waitcnt vmcnt({min(39,(13-gap)*3+2)}) lgkmcnt(0)\ns_barrier")
        else:
            a("s_waitcnt vmcnt(39) lgkmcnt(0)")
        if n == 13:
            for ct in range(4): a(f"v_xor_b32 v{vRA[ct]}, 0x10000, v{vRA[ct]}")
        R = rd((n+1) % 14, s ^ 1)
        W = ld_w(n)
        k = 0
        for t in range(2):
            for c in range(4):
                ct = c if t == 0 else 3-c
                cc = acc(t, ct)
                if 'M' not in abl: a(f"v_mfma_f32_16x16x32_bf16 v[{cc}:{cc+3}], v[{wf(s,ct)}:{wf(s,ct)+3}], v[{hf(n,t)}:{hf(n,t)+3}], v[{cc}:{cc+3}]")
                if k < 4 and 'R' not in abl: a(R[2*k]); a(R[2*k+1])
                if k == 0: a(W[0])
                if k == 1: a(W[1])
                k += 1
            a(ld_h(n, t))
        if n & 1: a("s_add_u32 s26, s26, 4096")
        if n % 7 == 6: a(f"s_add_u32 s27, s27, {224*2048}")
    a(f"""
    s_xor_b32 s28, s28, 0x10000
    s_cmp_eq_u32 s32, 2
    s_cbranch_scc0 {L}_nores
    """)
    for t in range(2):
        for p in range(2):
            r = RES + (t*2+p)*4
            a(f"buffer_load_dwordx4 v[{r}:{r+3}], v{vO}, s[36:39], s{33+t} offen offset:{p*64}")
    a(f"""
    {L}_nores:
    s_sub_u32 s32, s32, 1
    s_cmp_lg_u32 s32, 0
    s_cbranch_scc1 {L}_loop
    """)
    stamp(a, 2, ts)
    a(f"""
    s_mov_b32 s8, s6
    s_mov_b32 s9, s7
    s_mov_b32 s10, {S*D*2}
    s_mov_b32 s35, 0xffff0000
    s_nop 3
    """)
    for t in range(2):
        for p in range(2):
            c0, c1 = acc(t, 2*p), acc(t, 2*p+1)
            r = RES + (t*2+p)*4
            for i in range(4): a(f"v_permlane16_swap_b32 v{c0+i}, v{c1+i}")
            for i in range(4):
                c = (c0 if i < 2 else c1) + (i & 1)*2
                a(f"v_lshlrev_b32 v4, 16, v{r+i}\nv_and_b32 v5, s35, v{r+i}")
                a(f"v_add_f32 v4, v4, v{c}\nv_add_f32 v5, v5, v{c+1}")
                a(f"v_cvt_pk_bf16_f32 v{r+i}, v4, v5")
            a(f"buffer_store_dwordx4 v[{r}:{r+3}], v{vO}, s[8:11], s{33+t} offen offset:{p*64} {store_aux}")
    if ts:
        stamp(a, 3, ts)
        a("s_waitcnt vmcnt(0)")
        stamp(a, 4, ts)
        ts_end(a, ts)
    a(f"{L}_end:\ns_endpgm")
    return a.text(), kernel_desc(name, 224), 131072
```

```python
from asmlib import *
from common import *
from g2 import ts_begin, stamp, ts_end

def srd(a, d, lo, hi, size, off=0):
    if off:
        a(f"s_add_u32 s{d}, s{lo}, {off}\ns_addc_u32 s{d+1}, s{hi}, 0")
    else:
        a(f"s_mov_b32 s{d}, s{lo}\ns_mov_b32 s{d+1}, s{hi}")
    a(f"s_mov_b32 s{d+2}, {size}\ns_mov_b32 s{d+3}, 0x20000")

def gen_k0(name="k0_kernel", ts=False, store_aux="nt"):
    a = Asm(); kernel_begin(a, name); L = name
    K = 16; V = 44; TP = 60; KF = 76; TF = 132; T = 164; O = 196
    ts_begin(a, ts)
    a(f"""
    s_cmp_ge_u32 s2, 256
    s_cbranch_scc1 {L}_end
    s_load_dwordx4 s[4:7], s[0:1], 8       ; k, v
    s_load_dwordx2 s[18:19], s[0:1], 24    ; shift_k
    s_load_dwordx2 s[16:17], s[0:1], 96    ; ws
    v_lshrrev_b32 v1, 6, v0
    v_and_b32 v2, 7, v0                    ; cg
    v_readfirstlane_b32 s20, v1
    v_lshrrev_b32 v3, 3, v0
    s_and_b32 s21, s2, 7
    s_lshr_b32 s22, s2, 3
    s_lshr_b32 s23, s22, 4
    s_and_b32 s22, s22, 15                 ; cbk
    s_lshl_b32 s21, s21, 1
    s_add_u32 s21, s21, s23
    s_add_u32 s21, s21, s22
    s_and_b32 s21, s21, 15                 ; tokblk
    s_lshl_b32 s23, s21, 18
    s_lshl_b32 s24, s22, 7
    s_add_u32 s23, s23, s24
    s_sub_u32 s23, s23, {3*2048}
    v_lshlrev_b32 v4, 13, v3
    v_lshl_add_u32 v4, v2, 4, v4
    v_add_u32 v8, s23, v4
    """)
    for i in range(1, 7): a(f"v_add_u32 v{8+i}, {2048*i}, v8")
    a(f"""
    s_lshl_b32 s24, s22, 9
    v_lshlrev_b32 v5, 6, v2
    s_waitcnt lgkmcnt(0)
    """)
    srd(a, 8, 4, 5, S*D*2); srd(a, 12, 6, 7, S*D*2); srd(a, 28, 18, 19, D*8)
    for i in range(7): a(f"buffer_load_dwordx4 v[{K+4*i}:{K+4*i+3}], v{8+i}, s[8:11], 0 offen")
    for i in range(4): a(f"buffer_load_dwordx4 v[{TP+4*i}:{TP+4*i+3}], v5, s[28:31], s24 offen offset:{16*i}")
    for i in range(4): a(f"buffer_load_dwordx4 v[{V+4*i}:{V+4*i+3}], v{11+i}, s[12:15], 0 offen")
    a(f"""
    s_mov_b32 s35, 0xffff0000
    v_mul_u32_u24 v6, 2064, v2
    v_sub_u32 v7, 31, v3
    v_lshl_add_u32 v6, v7, 3, v6
    v_lshrrev_b32 v7, 7, v0
    v_add_u32 v7, v7, v0
    v_lshlrev_b32 v7, 4, v7
    v_lshrrev_b32 v4, 4, v0
    v_and_b32 v5, 15, v0
    v_lshlrev_b32 v5, 4, v5
    v_lshl_add_u32 v15, v4, 12, v5
    s_lshl_b32 s24, s22, 18
    s_sub_u32 s25, 15, s21
    s_lshl_b32 s25, s25, 8
    s_add_u32 s24, s24, s25
    """)
    srd(a, 8, 16, 17, S*D*2, WS_UT)
    stamp(a, 1, ts)
    for i in range(7):
        a(f"s_waitcnt vmcnt({14-i})")
        for j in range(4):
            a(f"v_lshlrev_b32 v{KF+8*i+2*j}, 16, v{K+4*i+j}\nv_and_b32 v{KF+8*i+2*j+1}, s35, v{K+4*i+j}")
    a("s_waitcnt vmcnt(4)")
    for ch in range(8):
        for h in range(2):
            r = TP + 2*ch + h
            a(f"v_lshlrev_b32 v{TF+(2*h)*8+ch}, 16, v{r}\nv_and_b32 v{TF+(2*h+1)*8+ch}, s35, v{r}")
    for t in range(4):
        for tap in range(4):
            for p in range(4):
                d = T + 8*t + 2*p; kk = KF + 8*(t+3-tap) + 2*p; w = TF + 8*tap + 2*p
                if tap == 0: a(f"v_pk_mul_f32 v[{d}:{d+1}], v[{kk}:{kk+1}], v[{w}:{w+1}]")
                else: a(f"v_pk_fma_f32 v[{d}:{d+1}], v[{kk}:{kk+1}], v[{w}:{w+1}], v[{d}:{d+1}]")
    for t in range(4):
        a(f"s_waitcnt vmcnt({3-t})")
        for j in range(4):
            a(f"v_lshlrev_b32 v{KF+2*j}, 16, v{V+4*t+j}\nv_and_b32 v{KF+2*j+1}, s35, v{V+4*t+j}")
        for p in range(4):
            d = T + 8*t + 2*p
            a(f"v_pk_mul_f32 v[{d}:{d+1}], v[{d}:{d+1}], v[{KF+2*p}:{KF+2*p+1}]")
    for ch in range(8):
        a(f"v_cvt_pk_bf16_f32 v{O+2*ch}, v{T+24+ch}, v{T+16+ch}\nv_cvt_pk_bf16_f32 v{O+2*ch+1}, v{T+8+ch}, v{T+ch}")
        a(f"ds_write_b64 v6, v[{O+2*ch}:{O+2*ch+1}] offset:{256*ch}")
    a("s_waitcnt lgkmcnt(0)\ns_barrier")
    stamp(a, 2, ts)
    for i in range(4): a(f"ds_read_b128 v[{K+4*i}:{K+4*i+3}], v7 offset:{i*2*2064}")
    for i in range(4):
        a(f"s_waitcnt lgkmcnt({3-i})")
        a(f"buffer_store_dwordx4 v[{K+4*i}:{K+4*i+3}], v15, s[8:11], s24 offen {store_aux}")
        a(f"s_add_u32 s24, s24, {16*4096}")
    if ts:
        stamp(a, 3, ts); a("s_waitcnt vmcnt(0)"); stamp(a, 4, ts); ts_end(a, ts)
    a(f"{L}_end:\ns_endpgm")
    return a.text(), kernel_desc(name, 212), 8*2064

CW = 12928; C_O = 4192; C_U = 8320
def gen_conv(name="conv_kernel", ts=False, store_aux="nt"):
    a = Asm(); kernel_begin(a, name); L = name
    ACC = 32; FA = 64; FB = 128
    def fa(s, i): return FA + (s*8 + i)*4
    def fb(s, i): return FB + (s*8 + i)*4
    vA = [8, 9, 10, 11]; vB = 12; AD = 16
    ts_begin(a, ts)
    a(f"""
    s_cmp_ge_u32 s2, 256
    s_cbranch_scc1 {L}_end
    s_load_dwordx4 s[4:7], s[0:1], 32
    s_load_dwordx2 s[16:17], s[0:1], 96    ; ws
    v_lshrrev_b32 v1, 6, v0
    v_and_b32 v2, 63, v0
    v_readfirstlane_b32 s20, v1
    s_and_b32 s21, s2, 7
    s_lshl_b32 s21, s21, 5
    s_lshr_b32 s22, s2, 3
    s_add_u32 s21, s21, s22
    s_lshl_b32 s22, s21, 2
    s_add_u32 s22, s22, s20                ; channel d
    s_mul_i32 s28, s20, {CW}
    s_lshl_b32 s23, s22, 12
    v_lshlrev_b32 v3, 4, v2                ; lane*16
    v_subrev_u32 v4, 4, v3                 ; lane*16-4
    v_add_u32 v5, 1020, v3
    s_lshr_b32 s24, s22, 1
    s_lshl_b32 s24, s24, 2
    s_waitcnt lgkmcnt(0)
    s_load_dword s25, s[6:7], s24
    s_add_u32 s8, s4, s23
    s_addc_u32 s9, s5, 0
    s_mov_b32 s10, 4096
    s_mov_b32 s11, 0x20000
    """)
    srd(a, 12, 16, 17, S*D*2, WS_UT)
    for i in range(4):
        a(f"buffer_load_dwordx4 v[{FA+4*i}:{FA+4*i+3}], v3, s[8:11], 0 offen offset:{1024*i}")
    a(f"buffer_load_dword v{FA+16}, v4, s[8:11], 0 offen")
    for i in range(1, 4):
        a(f"buffer_load_dword v{FA+16+i}, v5, s[8:11], 0 offen offset:{1024*(i-1)}")
    a(f"s_add_u32 m0, s28, {C_U}\ns_nop 0")
    for i in range(4):
        a(f"buffer_load_dwordx4 v3, s[12:15], s23 offen offset:{1024*i} lds")
    a(f"""
    v_min_u32 v6, 33, v2
    v_lshlrev_b32 v6, 4, v6
    v_cmp_lt_u32 vcc, 1, v2
    v_mov_b32 v7, {C_O-32-32}
    v_mov_b32 v13, {C_U+4096-64}
    v_cndmask_b32 v7, 0, v7, vcc
    v_cmp_lt_u32 vcc, 3, v2
    v_mov_b64 v[20:21], 0
    v_mov_b64 v[22:23], 0
    v_cndmask_b32 v7, v7, v13, vcc
    v_add3_u32 v6, v6, v7, s28
    ds_write_b128 v6, v[20:23]
    v_and_b32 v6, 15, v2                   ; b
    v_lshrrev_b32 v7, 4, v2                ; q
    v_add_u32 v13, 1, v6
    v_lshrrev_b32 v13, 1, v13
    v_lshl_add_u32 v13, v7, 2, v13
    v_lshlrev_b32 v13, 2, v13
    v_and_b32 v14, 1, v6
    v_xor_b32 v14, 1, v14
    v_mul_u32_u24 v14, {C_O-28}, v14
    v_add3_u32 v{vA[0]}, v13, v14, s28
    v_add_u32 v{vA[1]}, 1024, v{vA[0]}
    v_add_u32 v{vA[2]}, 2048, v{vA[0]}
    v_add_u32 v{vA[3]}, 3072, v{vA[0]}
    v_lshlrev_b32 v13, 5, v6
    v_lshlrev_b32 v14, 4, v7
    v_sub_u32 v13, v14, v13
    s_add_u32 s26, s28, {C_U + 2*(S-16) - 512*7}
    v_add_u32 v{vB}, s26, v13
    v_lshl_add_u32 v13, v7, 3, v6
    v_sub_u32 v13, 15, v13
    v_and_b32 v14, 1, v13
    v_lshlrev_b32 v14, 4, v14
    v_ashrrev_i32 v13, 1, v13
    v_add_u32 v15, s28, v3
    s_and_b32 s26, s22, 1
    s_lshl_b32 s26, s26, 4
    s_waitcnt lgkmcnt(0)
    s_lshr_b32 s25, s25, s26
    s_and_b32 s25, s25, 0xffff
    v_lshlrev_b32 v14, v14, s25
    """)
    for i in range(4):
        a(f"v_cmp_eq_u32 vcc, {i}, v13\ns_nop 1\nv_cndmask_b32 v{AD+i}, 0, v14, vcc")
    a("s_waitcnt vmcnt(4)")
    for i in range(4):
        r = FA + 4*i; o = FA + 32 + 4*i
        a(f"v_alignbit_b32 v{o}, v{r}, v{FA+16+i}, 16")
        for j in range(1, 4): a(f"v_alignbit_b32 v{o+j}, v{r+j}, v{r+j-1}, 16")
        a(f"ds_write_b128 v15, v[{r}:{r+3}] offset:{32+1024*i}")
        a(f"ds_write_b128 v15, v[{o}:{o+3}] offset:{C_O+1024*i}")
    def reads(s, j):
        out = []
        for i in range(8):
            out.append(f"ds_read_b128 v[{fb(s,i)}:{fb(s,i)+3}], v{vB} offset:{512*(7-i)+64*j}")
        A = []
        for i in range(8):
            o = (i & 1)*128 + 16*j; r = fa(s, i)
            A.append(f"ds_read2_b32 v[{r}:{r+1}], v{vA[i>>1]} offset0:{o} offset1:{o+1}")
            A.append(f"ds_read2_b32 v[{r+2}:{r+3}], v{vA[i>>1]} offset0:{o+2} offset1:{o+3}")
        return out + A
    a("s_waitcnt vmcnt(0) lgkmcnt(0)")
    stamp(a, 1, ts)
    R = reads(0, 0)
    for l in R[:8]: a(l)
    for l in R[8:15]: a(l)
    a("s_waitcnt lgkmcnt(7)")
    for n in range(8):
        c = ACC + 4*n
        a(f"v_mfma_f32_16x16x32_bf16 v[{c}:{c+3}], v[{AD}:{AD+3}], v[{fb(0,n)}:{fb(0,n)+3}], 0")
        a(R[15+n])
    a(R[23])
    a(f"s_mov_b32 s32, 4\n{L}_loop:")
    for j in range(2):
        a("s_waitcnt lgkmcnt(0)")
        R = reads(j ^ 1, j + 1)
        k = 0
        for i in range(8):
            for n in range(i, 8):
                c = ACC + 4*n
                a(f"v_mfma_f32_16x16x32_bf16 v[{c}:{c+3}], v[{fa(j,i)}:{fa(j,i)+3}], v[{fb(j,n-i)}:{fb(j,n-i)+3}], v[{c}:{c+3}]")
                if k < 24: a(R[k])
                if j == 1 and 24 <= k < 29:
                    r = (vA + [vB])[k-24]; a(f"v_add_u32 v{r}, 128, v{r}")
                k += 1
    a(f"s_sub_u32 s32, s32, 1\ns_cmp_lg_u32 s32, 0\ns_cbranch_scc1 {L}_loop")
    stamp(a, 2, ts)
    a(f"""
    v_mul_u32_u24 v13, 160, v7
    v_lshl_add_u32 v13, v6, 3, v13
    v_add_u32 v13, s28, v13
    v_bfe_u32 v14, v2, 1, 2
    v_mul_u32_u24 v14, 160, v14
    v_lshrrev_b32 v15, 3, v2
    v_lshl_add_u32 v14, v15, 3, v14
    v_and_b32 v4, 1, v2
    v_lshl_add_u32 v14, v4, 2, v14
    s_mul_i32 s26, s20, 1280
    v_add_u32 v14, s26, v14
    v_and_b32 v4, 7, v2
    v_lshlrev_b32 v4, 4, v4
    v_lshl_add_u32 v15, v15, 15, v4
    s_lshl_b32 s26, s20, 20
    s_lshl_b32 s27, s21, 7
    s_add_u32 s26, s26, s27
    s_mov_b32 s34, 0x05040100
    s_mov_b32 s35, 0x07060302
    s_waitcnt lgkmcnt(0)
    """)
    srd(a, 12, 16, 17, S*D*2, WS_Y)
    for n in range(8):
        c = ACC + 4*n
        a(f"v_cvt_pk_bf16_f32 v{c}, v{c}, v{c+1}\nv_cvt_pk_bf16_f32 v{c+1}, v{c+2}, v{c+3}")
        a(f"ds_write_b64 v13, v[{c}:{c+1}] offset:{640*n}")
    a("s_waitcnt lgkmcnt(0)\ns_barrier")
    for g in range(4):
        for ch in range(4):
            a(f"ds_read_b32 v{FA+4*g+ch}, v14 offset:{ch*CW + (g>>1)*640 + (g&1)*64}")
    for g in range(4):
        r = FA + 4*g; o = FB + 4*g
        a(f"s_waitcnt lgkmcnt({12-4*g})")
        a(f"v_perm_b32 v{o}, v{r+1}, v{r}, s34\nv_perm_b32 v{o+1}, v{r+3}, v{r+2}, s34")
        a(f"v_perm_b32 v{o+2}, v{r+1}, v{r}, s35\nv_perm_b32 v{o+3}, v{r+3}, v{r+2}, s35")
        a(f"buffer_store_dwordx4 v[{o}:{o+3}], v15, s[12:15], s26 offen {store_aux}")
        a(f"s_add_u32 s26, s26, {8*32768}")
    if ts:
        stamp(a, 3, ts); a("s_waitcnt vmcnt(0)"); stamp(a, 4, ts); ts_end(a, ts)
    a(f"{L}_end:\ns_endpgm")
    return a.text(), kernel_desc(name, 192), 4*CW + 64

def gen_ln(names=("ln1_kernel", "ln2_kernel"), ts=False, store_aux="nt"):
    a = Asm(); L = names[0]
    X = 16; Y = 24; XF = 32; YF = 48; O = 64
    RED = 16384
    for i, name in enumerate(names[::-1]):
        kernel_begin(a, name)
        ts_begin(a, ts)
        a(f"s_load_dwordx2 s[4:5], s[0:1], {80 if i == 0 else 0}")
        if i == 0: a(f"s_branch {L}_go")
    a(f"""
    {L}_go:
    s_cmp_ge_u32 s2, 256
    s_cbranch_scc1 {L}_end
    s_load_dwordx2 s[16:17], s[0:1], 96
    v_lshrrev_b32 v1, 6, v0
    v_and_b32 v2, 63, v0
    v_readfirstlane_b32 s20, v1
    s_and_b32 s21, s2, 7
    s_lshl_b32 s21, s21, 5
    s_lshr_b32 s22, s2, 3
    s_add_u32 s21, s21, s22
    v_lshrrev_b32 v3, 3, v2                ; tok
    v_and_b32 v4, 7, v2                    ; c
    v_lshlrev_b32 v5, 4, v4
    v_lshl_add_u32 v5, v3, 11, v5
    s_lshl_b32 s23, s21, 14
    s_lshl_b32 s24, s20, 8
    s_add_u32 s23, s23, s24                ; x soff = g8*16384 + w*256
    v_lshrrev_b32 v6, 2, v2
    v_and_b32 v7, 3, v2
    v_lshlrev_b32 v7, 4, v7
    v_lshl_add_u32 v6, v6, 7, v7
    v_add_u32 v7, 1024, v6
    s_lshr_b32 s24, s21, 1
    s_lshl_b32 s24, s24, 15
    s_and_b32 s25, s21, 1
    s_lshl_b32 s26, s25, 6
    s_add_u32 s24, s24, s26
    s_lshl_b32 s26, s20, 12
    s_add_u32 s24, s24, s26
    s_lshl_b32 s28, s20, 11
    s_mov_b32 m0, s28
    s_waitcnt lgkmcnt(0)
    """)
    srd(a, 8, 4, 5, S*D*2); srd(a, 12, 16, 17, S*D*2, WS_Y)
    a(f"""
    buffer_load_dwordx4 v[{X}:{X+3}], v5, s[8:11], s23 offen
    buffer_load_dwordx4 v[{X+4}:{X+7}], v5, s[8:11], s23 offen offset:128
    buffer_load_dwordx4 v6, s[12:15], s24 offen lds
    buffer_load_dwordx4 v7, s[12:15], s24 offen offset:1024 lds
    s_mov_b32 s35, 0xffff0000
    v_lshlrev_b32 v6, 7, v4
    v_lshl_add_u32 v6, v3, 3, v6
    v_add_u32 v6, s28, v6
    s_lshl_b32 s26, s20, 3
    v_lshl_add_u32 v7, v3, 6, s26
    v_lshlrev_b32 v8, 3, v2
    s_lshl_b32 s26, s25, 3
    v_add_u32 v9, s26, v3
    v_lshrrev_b32 v10, 2, v9
    v_lshlrev_b32 v10, 1, v10
    v_mov_b32 v11, 0x78
    v_lshrrev_b32 v10, v10, v11
    v_xor_b32 v10, v10, v4
    v_and_b32 v10, 3, v10
    v_lshlrev_b32 v10, 4, v10
    v_lshl_add_u32 v9, v9, 6, v10
    v_lshrrev_b32 v10, 2, v4
    v_lshl_add_u32 v9, v10, 14, v9
    s_lshr_b32 s26, s21, 5
    s_lshl_b32 s26, s26, 19
    s_lshl_b32 s27, s20, 16
    s_add_u32 s26, s26, s27
    s_bfe_u32 s27, s21, 0x40001
    s_lshl_b32 s27, s27, 10
    s_add_u32 s26, s26, s27
    s_add_u32 s27, s26, 32768
    """)
    srd(a, 8, 16, 17, S*D*2, WS_XR); srd(a, 12, 16, 17, S*D*2, WS_XN)
    def dpp_red(r):
        for m in ["quad_perm:[1,0,3,2]", "quad_perm:[2,3,0,1]", "row_half_mirror"]:
            a("s_nop 0")
            a(f"v_add_f32_dpp v{r}, v{r}, v{r} {m} row_mask:0xf bank_mask:0xf")
            a(f"v_add_f32_dpp v{r+1}, v{r+1}, v{r+1} {m} row_mask:0xf bank_mask:0xf")
    def stats(off):
        a(f"v_pk_add_f32 v[12:13], v[{XF}:{XF+1}], v[{XF+2}:{XF+3}]")
        a(f"v_pk_mul_f32 v[14:15], v[{XF}:{XF+1}], v[{XF}:{XF+1}]")
        a(f"v_pk_fma_f32 v[14:15], v[{XF+2}:{XF+3}], v[{XF+2}:{XF+3}], v[14:15]")
        for i in range(2, 8):
            a(f"v_pk_add_f32 v[12:13], v[12:13], v[{XF+2*i}:{XF+2*i+1}]")
            a(f"v_pk_fma_f32 v[14:15], v[{XF+2*i}:{XF+2*i+1}], v[{XF+2*i}:{XF+2*i+1}], v[14:15]")
        a("v_add_f32 v12, v12, v13\nv_add_f32 v13, v14, v15")
        dpp_red(12)
        a(f"ds_write_b64 v7, v[12:13] offset:{off}\ns_waitcnt lgkmcnt(0)\ns_barrier")
        a(f"ds_read_b64 v[12:13], v8 offset:{off}\ns_waitcnt lgkmcnt(0)\ns_nop 0")
        dpp_red(12)
        a(f"""
        v_mul_f32 v12, 0x3a800000, v12
        v_mul_f32 v13, 0x3a800000, v13
        v_fma_f32 v13, -v12, v12, v13
        v_max_f32 v13, 0, v13
        v_cvt_pk_bf16_f32 v12, v12, v13
        v_and_b32 v13, s35, v12
        v_lshlrev_b32 v12, 16, v12
        v_add_f32 v13, 0x3727c5ac, v13
        v_cvt_pk_bf16_f32 v13, v13, v13
        v_and_b32 v13, s35, v13
        v_sqrt_f32 v13, v13
        s_nop 0
        v_cvt_pk_bf16_f32 v13, v13, v13
        v_and_b32 v13, s35, v13
        v_rcp_f32 v13, v13
        s_nop 0
        """)
    stamp(a, 1, ts)
    for i in range(2):
        a(f"s_waitcnt vmcnt({3-i})")
        for j in range(4):
            a(f"v_lshlrev_b32 v{XF+8*i+2*j}, 16, v{X+4*i+j}\nv_and_b32 v{XF+8*i+2*j+1}, s35, v{X+4*i+j}")
    a("s_waitcnt vmcnt(0)")
    for i in range(4): a(f"ds_read_b64 v[{Y+2*i}:{Y+2*i+1}], v6 offset:{(i>>1)*1024 + (i&1)*64}")
    stats(RED)
    for j in range(8):
        a(f"v_lshlrev_b32 v{YF+2*j}, 16, v{Y+j}\nv_and_b32 v{YF+2*j+1}, s35, v{Y+j}")
    for j in range(8):
        x = XF + 2*j; y = YF + 2*j
        a(f"v_pk_mul_f32 v[{y}:{y+1}], v[{y}:{y+1}], v[12:13] op_sel:[0,1] op_sel_hi:[1,1]")
        a(f"v_pk_add_f32 v[14:15], v[{x}:{x+1}], v[12:13] op_sel_hi:[1,0] neg_lo:[0,1] neg_hi:[0,1]")
        a(f"v_pk_fma_f32 v[{x}:{x+1}], v[14:15], v[{y}:{y+1}], v[{x}:{x+1}]")
        a(f"v_cvt_pk_bf16_f32 v{O+j}, v{x}, v{x+1}")
    for j in range(8):
        a(f"v_lshlrev_b32 v{XF+2*j}, 16, v{O+j}\nv_and_b32 v{XF+2*j+1}, s35, v{O+j}")
    a(f"buffer_store_dwordx4 v[{O}:{O+3}], v5, s[8:11], s23 offen {store_aux}")
    a(f"buffer_store_dwordx4 v[{O+4}:{O+7}], v5, s[8:11], s23 offen offset:128 {store_aux}")
    stamp(a, 2, ts)
    stats(RED + 512)
    for j in range(8):
        x = XF + 2*j
        a(f"v_pk_add_f32 v[{x}:{x+1}], v[{x}:{x+1}], v[12:13] op_sel_hi:[1,0] neg_lo:[0,1] neg_hi:[0,1]")
        a(f"v_pk_mul_f32 v[{x}:{x+1}], v[{x}:{x+1}], v[12:13] op_sel:[0,1] op_sel_hi:[1,1]")
        a(f"v_cvt_pk_bf16_f32 v{O+8+j}, v{x}, v{x+1}")
        if j == 3: a(f"buffer_store_dwordx4 v[{O+8}:{O+11}], v9, s[12:15], s26 offen {store_aux}")
    a(f"buffer_store_dwordx4 v[{O+12}:{O+15}], v9, s[12:15], s27 offen {store_aux}")
    if ts:
        stamp(a, 3, ts); a("s_waitcnt vmcnt(0)"); stamp(a, 4, ts); ts_end(a, ts, nw_log2=3)
    a(f"{L}_end:\ns_endpgm")
    return a.text(), "".join(kernel_desc(n, 80) for n in names), RED + 1024
```

```python
import sys
from asmlib import *
from g1 import gen_g1
from g2 import gen_g2
from small import *
REF = open("interleave_layers__ssm_conv_h3__glu_gated_bilinear__prompt.s.ref").read()
def build(ts=False, **kw):
    cm = [l for l in REF.split("\n") if l.startswith(";") and "@launch" not in l and "Override" not in l and "grid=ceil" not in l]
    k0 = gen_k0(ts=ts); cv = gen_conv(ts=ts); ln = gen_ln(ts=ts)
    g1 = gen_g1(ts=ts, mapping='B', dma_pos=[30+3*i for i in range(8)], rd_pos=list(range(22)), store_aux="nt")
    g2 = gen_g2(ts=ts)
    L = [("k0_kernel",256,k0[2]),("conv_kernel",256,cv[2]),("ln1_kernel",512,ln[2]),("g1_kernel",256,g1[2]),("g2_kernel",256,g2[2]),
         ("ln2_kernel",512,ln[2]),("g1_kernel",256,g1[2]),("g2_kernel",256,g2[2])]
    hdr = "\n".join(cm) + "\n" + "".join(f"; @launch kernel={n} grid=(256,1,1) block=({b},1,1) lds={l}\n" for n,b,l in L)
    return hdr + HEADER + "".join(k[0] for k in (k0,cv,ln,g1,g2)) + "".join(k[1] for k in (k0,cv,ln,g1,g2))
if __name__ == "__main__":
    open("interleave_layers__ssm_conv_h3__glu_gated_bilinear__prompt.s","w").write(build())
    open("full_ts.s","w").write(build(ts=True))
```

```python
S, D, F = 2048, 1024, 3584
MB = 1 << 20
WS_UT = 0*MB
WS_Y  = 4*MB
WS_XR = 8*MB
WS_X2 = 12*MB
WS_FL = 16*MB
WS_L0 = 18*MB
LSTRIDE = 28*MB
L_XN = 0
L_EX = 4*MB
L_H  = 12*MB
WS_XN = WS_L0 + L_XN
WS_H  = WS_L0 + L_H
WS_USED = WS_L0 + 2*LSTRIDE + 7*MB
WS_TS = 96*MB
H_BYTES = S * F * 2
def kperm():
    out = []
    for P in range(16):
        for kap in range(7):
            for q in range(4):
                for e in range(8):
                    if kap < 4:
                        hb, wc = kap >> 1, kap & 1
                        phi = 112*hb + 64*wc + 16*(e >> 2) + 4*q + (e & 3)
                    elif kap < 6:
                        hb = kap - 4; wc = q >> 1; qq = q & 1
                        phi = 112*hb + 64*wc + 32 + 8*(e >> 2) + 4*qq + (e & 3)
                    else:
                        hb, wc = q >> 1, q & 1
                        phi = 112*hb + 48 + 8*wc + e
                    out.append(224*P + phi)
    assert sorted(out) == list(range(F))
    return out
```

```python
from asmlib import *
from common import *
import re

sW, sTB, sM, sLAY, sLB = 3, 4, 5, 6, 7
SRD_W, SRD_WS, SRD_WD, SRD_OUT, SRD_T, SRD_T2 = "s[8:11]", "s[12:15]", "s[16:19]", "s[20:23]", "s[24:27]", "s[28:31]"
sG8 = 60
sMASK = 61
vLANE, vL16 = 2, 3
aX, aY = 224, 240
MF = "v_mfma_f32_16x16x32_bf16"
SPIN = 300000
FL_A, FL_B, FL_LN, FL_G1, FL_G2, FL_PAIR = 0, 256, 512, 640, 768, 1536
STAGE = 32768 + 256
UOFF = 8192 + 16
LDS_RED = 4*STAGE
LDS_TOTAL = LDS_RED + 1024

class Ctx:
    def __init__(self, name, ts=False, **opt):
        self.a = Asm(); self.name = name; self.ts = ts; self.nl = 0; self.ool = []; self.opt = opt
    def lab(self, s):
        self.nl += 1
        return f"{self.name[:6]}_{s}{self.nl}"

def stamp(c):
    if not c.ts: return
    c.a("""
    s_memrealtime s[98:99]
    s_memtime s[100:101]
    s_mov_b32 m0, s97
    s_add_u32 s97, s97, 1
    s_waitcnt lgkmcnt(0)
    v_writelane_b32 v30, s98, m0
    v_writelane_b32 v31, s100, m0
    """)
def ts_dump(c):
    if not c.ts: return
    c.a(f"""
    s_load_dword s96, s[0:1], 88
    s_lshl_b32 s32, s2, 2
    s_add_u32 s32, s32, s{sW}
    s_lshl_b32 s32, s32, 9
    s_waitcnt lgkmcnt(0)
    s_bfe_u32 s96, s96, 0x60009
    s_lshl_b32 s96, s96, 19
    s_add_u32 s32, s32, s96
    s_add_u32 s32, s32, {WS_TS}
    v_lshlrev_b32 v4, 3, v{vLANE}
    buffer_store_dwordx2 v[30:31], v4, {SRD_WS}, s32 offen
    """)

def srd(a, d, lo, size):
    a(f"s_mov_b32 s{d}, s{lo}\ns_mov_b32 s{d+1}, s{lo+1}\ns_mov_b32 s{d+2}, {size}\ns_mov_b32 s{d+3}, 0x20000")

def signal(c, sline, nrep, shift=7, pre=""):
    l = c.lab("sig")
    c.a(f"""
    s_waitcnt vmcnt(0)
    s_barrier
    s_cmp_lg_u32 s{sW}, 0
    s_cbranch_scc1 {l}
    {pre}
    v_lshlrev_b32 v4, {shift}, v{vLANE}
    v_mov_b32 v5, 1
    s_mov_b64 exec, {(1<<nrep)-1}
    buffer_atomic_add v5, v4, {SRD_WS}, s{sline} offen sc1
    s_mov_b64 exec, -1
    {l}:
    """)
def poll(c, srdn, sline, n, target):
    p = c.lab("poll"); d = c.lab("pd")
    return f"""
    v_lshlrev_b32 v4, 7, v{vLANE}
    s_mov_b64 exec, {(1<<n)-1}
    s_mov_b32 s62, {SPIN}
    {p}:
    buffer_load_dword v5, v4, {srdn}, {sline} offen sc1
    s_sub_u32 s62, s62, 1
    s_cbranch_scc1 {d}
    s_waitcnt vmcnt(0)
    v_cmp_ne_u32 vcc, {target}, v5
    s_cbranch_vccnz {p}
    {d}:
    s_mov_b64 exec, -1
    """
def wait(c, sline, n, target):
    l = c.lab("wt")
    c.a(f"s_cmp_lg_u32 s{sW}, 0\ns_cbranch_scc1 {l}")
    c.a(poll(c, SRD_WS, f"s{sline}", n, target))
    c.a(f"{l}:\ns_barrier")

def prolog(c):
    a = c.a
    kernel_begin(a, c.name)
    if c.ts: a("s_mov_b32 s97, 0\nv_mov_b32 v30, 0\nv_mov_b32 v31, 0")
    stamp(c)
    a(f"""
    s_cmp_ge_u32 s2, 256
    s_cbranch_scc1 {c.name}_end
    s_load_dwordx16 s[64:79], s[0:1], 0
    s_load_dwordx8 s[80:87], s[0:1], 64
    s_load_dwordx2 s[12:13], s[0:1], 96      ; ws
    v_lshrrev_b32 v1, 6, v0
    v_and_b32 v{vLANE}, 63, v0
    v_readfirstlane_b32 s{sW}, v1
    v_lshlrev_b32 v{vL16}, 4, v{vLANE}
    s_mov_b32 s14, {256*MB if c.ts else WS_USED}
    s_mov_b32 s15, 0x20000
    s_mov_b32 s{sMASK}, 0xffff0000
    """)
def prolog2(c):
    c.a(f"""
    s_and_b32 s40, s2, 1
    s_lshl_b32 s40, s40, 2
    s_bfe_u32 s{sTB}, s2, 0x20003
    s_add_u32 s{sTB}, s{sTB}, s40
    s_bfe_u32 s40, s2, 0x20001
    s_lshl_b32 s40, s40, 3
    s_lshr_b32 s{sM}, s2, 5
    s_add_u32 s{sM}, s{sM}, s40
    s_lshl_b32 s{sG8}, s{sTB}, 5
    s_bfe_u32 s40, s{sM}, 0x10003
    s_lshl_b32 s40, s40, 4
    s_add_u32 s{sG8}, s{sG8}, s40
    s_lshr_b32 s40, s{sM}, 4
    s_lshl_b32 s40, s40, 3
    s_add_u32 s{sG8}, s{sG8}, s40
    s_and_b32 s40, s{sM}, 7
    s_add_u32 s{sG8}, s{sG8}, s40
    s_mov_b32 s{sLAY}, 0
    s_mov_b32 s{sLB}, {WS_L0}
    s_cmp_lt_u32 s{sW}, 2
    s_cselect_b32 s8, s78, s80
    s_cselect_b32 s9, s79, s81
    s_mov_b32 s10, {D*F*2}
    s_mov_b32 s11, 0x20000
    """)
    srd(c.a, 16, 82, D*F*2); srd(c.a, 20, 84, S*D*2)

def epilog(c):
    ts_dump(c)
    c.a(f"{c.name}_end:\ns_endpgm")
    for o in c.ool: c.a(o)

CW = 12928; C_O = 4192; C_U = 8320
A_LDS = 4*CW + 64
vQ = 232; vHK = 212
def front(c):
    a = c.a
    K = 32; V = 60; TP = 76; KF = 92; TF = 148; T = 180; O = KF + 16
    a(f"""
    v_and_b32 v4, 7, v0                    ; cg
    v_lshrrev_b32 v5, 3, v0
    s_and_b32 s33, s2, 7
    s_lshr_b32 s34, s2, 3
    s_lshr_b32 s35, s34, 4
    s_and_b32 s34, s34, 15                 ; cbk
    s_lshl_b32 s33, s33, 1
    s_add_u32 s33, s33, s35
    s_add_u32 s33, s33, s34
    s_and_b32 s33, s33, 15                 ; tokblk
    s_lshl_b32 s35, s33, 18
    s_lshl_b32 s36, s34, 7
    s_add_u32 s35, s35, s36
    s_sub_u32 s35, s35, {3*2048}
    v_lshlrev_b32 v6, 13, v5
    v_lshl_add_u32 v6, v4, 4, v6
    v_add_u32 v8, s35, v6
    """)
    for i in range(1, 7): a(f"v_add_u32 v{8+i}, {2048*i}, v8")
    z = c.lab("nz")
    a(f"""
    s_lshl_b32 s36, s34, 9
    v_lshlrev_b32 v6, 6, v4
    v_mov_b32 v16, 0
    v_lshlrev_b32 v17, 7, v0
    s_cmp_lg_u32 s2, 0
    s_waitcnt lgkmcnt(0)
    s_cbranch_scc1 {z}
    s_mov_b32 s37, {WS_FL}
    s_mov_b32 s38, {WS_FL + 256*128}
    buffer_store_dword v16, v17, {SRD_WS}, s37 offen sc1
    buffer_store_dword v16, v17, {SRD_WS}, s38 offen sc1
    {z}:
    """)
    srd(a, 24, 66, S*D*2); srd(a, 28, 68, S*D*2); srd(a, 88, 70, D*8)
    for i in range(7): a(f"buffer_load_dwordx4 v[{K+4*i}:{K+4*i+3}], v{8+i}, {SRD_T}, 0 offen nt")
    for i in range(4): a(f"buffer_load_dwordx4 v[{TP+4*i}:{TP+4*i+3}], v6, s[88:91], s36 offen offset:{16*i}")
    for i in range(4): a(f"buffer_load_dwordx4 v[{V+4*i}:{V+4*i+3}], v{11+i}, {SRD_T2}, 0 offen nt")
    z = c.lab("nz")
    srd(a, 88, 86, 256)
    a(f"""
    s_cmp_lg_u32 s2, 0
    s_cbranch_scc1 {z}
    v_mov_b32 v18, 1
    s_waitcnt vmcnt(15)
    s_mov_b64 exec, 1
    buffer_atomic_add v18, v16, s[88:91], 0 offen sc1
    s_mov_b64 exec, -1
    {z}:
    s_lshl_b32 s41, s34, 4
    s_add_u32 s41, s41, s33                ; g
    s_lshl_b32 s42, s41, 2
    s_add_u32 s42, s42, s{sW}              ; d
    s_lshl_b32 s43, s42, 12
    s_lshr_b32 s44, s42, 1
    s_lshl_b32 s44, s44, 2
    s_load_dword s45, s[74:75], s44
    s_add_u32 s24, s72, s43
    s_addc_u32 s25, s73, 0
    s_mov_b32 s26, 4096
    v_subrev_u32 v18, 4, v{vL16}
    v_add_u32 v19, 1020, v{vL16}
    """)
    for i in range(4):
        a(f"buffer_load_dwordx4 v[{vHK+4*i}:{vHK+4*i+3}], v{vL16}, {SRD_T}, 0 offen offset:{1024*i} nt")
    a(f"buffer_load_dword v{vHK+16}, v18, {SRD_T}, 0 offen nt")
    for i in range(1, 4):
        a(f"buffer_load_dword v{vHK+16+i}, v19, {SRD_T}, 0 offen offset:{1024*(i-1)} nt")
    prolog2(c)
    NX = 8
    a(f"""
    v_mul_u32_u24 v6, 2064, v4
    v_sub_u32 v7, 31, v5
    v_lshl_add_u32 v6, v7, 3, v6
    v_add_u32 v6, {A_LDS}, v6
    v_lshrrev_b32 v7, 7, v0
    v_add_u32 v7, v7, v0
    v_lshlrev_b32 v7, 4, v7
    v_add_u32 v7, {A_LDS}, v7
    ; global store addr: ch*4096 + (tid&15)*16 ; soffset = cbk*64*4096 + (15-tokblk)*256
    v_lshrrev_b32 v4, 4, v0
    v_and_b32 v5, 15, v0
    v_lshlrev_b32 v5, 4, v5
    v_lshl_add_u32 v15, v4, 12, v5
    s_lshl_b32 s36, s34, 18
    s_sub_u32 s37, 15, s33
    s_lshl_b32 s37, s37, 8
    s_add_u32 s36, s36, s37
    s_add_u32 s36, s36, {WS_UT}
    """)
    stamp(c)
    for i in range(7):
        a(f"s_waitcnt vmcnt({14-i+NX})")
        for j in range(4):
            a(f"v_lshlrev_b32 v{KF+8*i+2*j}, 16, v{K+4*i+j}\nv_and_b32 v{KF+8*i+2*j+1}, s{sMASK}, v{K+4*i+j}")
    a(f"s_waitcnt vmcnt({4+NX})")
    for ch in range(8):
        for h in range(2):
            r = TP + 2*ch + h
            a(f"v_lshlrev_b32 v{TF+(2*h)*8+ch}, 16, v{r}\nv_and_b32 v{TF+(2*h+1)*8+ch}, s{sMASK}, v{r}")
    for t in range(4):
        for tap in range(4):
            for p in range(4):
                d = T + 8*t + 2*p; kk = KF + 8*(t+3-tap) + 2*p; w = TF + 8*tap + 2*p
                if tap == 0: a(f"v_pk_mul_f32 v[{d}:{d+1}], v[{kk}:{kk+1}], v[{w}:{w+1}]")
                else: a(f"v_pk_fma_f32 v[{d}:{d+1}], v[{kk}:{kk+1}], v[{w}:{w+1}], v[{d}:{d+1}]")
    for t in range(4):
        a(f"s_waitcnt vmcnt({3-t+NX})")
        for j in range(4):
            a(f"v_lshlrev_b32 v{KF+2*j}, 16, v{V+4*t+j}\nv_and_b32 v{KF+2*j+1}, s{sMASK}, v{V+4*t+j}")
        for p in range(4):
            d = T + 8*t + 2*p
            a(f"v_pk_mul_f32 v[{d}:{d+1}], v[{d}:{d+1}], v[{KF+2*p}:{KF+2*p+1}]")
    for ch in range(8):
        a(f"v_cvt_pk_bf16_f32 v{O+2*ch}, v{T+24+ch}, v{T+16+ch}\nv_cvt_pk_bf16_f32 v{O+2*ch+1}, v{T+8+ch}, v{T+ch}")
        a(f"ds_write_b64 v6, v[{O+2*ch}:{O+2*ch+1}] offset:{256*ch}")
    a("s_waitcnt lgkmcnt(0)\ns_barrier")
    stamp(c)
    for i in range(4): a(f"ds_read_b128 v[{K+4*i}:{K+4*i+3}], v7 offset:{i*2*2064}")
    for i in range(4):
        a(f"s_waitcnt lgkmcnt({3-i})")
        a(f"buffer_store_dwordx4 v[{K+4*i}:{K+4*i+3}], v15, {SRD_WS}, s36 offen sc1")
        a(f"s_add_u32 s36, s36, {16*4096}")
    a(f"""
    buffer_load_dword v20, v16, s[88:91], 0 offen sc1
    s_lshl_b32 s37, s2, 10
    s_add_u32 s37, s37, {WS_FL + 512*128}
    v_and_b32 v17, 0x380, v17
    buffer_store_dword v16, v17, {SRD_WS}, s37 offen sc1
    s_lshl_b32 s46, s34, 9
    s_add_u32 s46, s46, {WS_FL + FL_A*128}
    """)
    ok = c.lab("boot")
    signal(c, 46, 4, pre=f"v_cmp_eq_u32 vcc, 4, v20\ns_cbranch_vccnz {ok}\n" + poll(c, "s[88:91]", "0", 1, 4) + f"{ok}:")
    stamp(c)
    ACC = 32; FA = 64; FB = 128
    def fa(s, i): return FA + (s*8 + i)*4
    def fb(s, i): return FB + (s*8 + i)*4
    vA = [8, 9, 10, 11]; vB = 12; AD = 16
    a(f"""
    s_mul_i32 s47, s{sW}, {CW}
    v_min_u32 v6, 33, v{vLANE}
    v_lshlrev_b32 v6, 4, v6
    v_cmp_lt_u32 vcc, 1, v{vLANE}
    v_mov_b32 v7, {C_O-32-32}
    v_mov_b32 v13, {C_U+4096-64}
    v_cndmask_b32 v7, 0, v7, vcc
    v_cmp_lt_u32 vcc, 3, v{vLANE}
    v_mov_b64 v[20:21], 0
    v_mov_b64 v[22:23], 0
    v_cndmask_b32 v7, v7, v13, vcc
    v_add3_u32 v6, v6, v7, s47
    ds_write_b128 v6, v[20:23]
    v_add_u32 v15, s47, v{vL16}
    """)
    for i in range(4):
        r = vHK + 4*i; o = FA + 4*i
        a(f"v_alignbit_b32 v{o}, v{r}, v{vHK+16+i}, 16")
        for j in range(1, 4): a(f"v_alignbit_b32 v{o+j}, v{r+j}, v{r+j-1}, 16")
        a(f"ds_write_b128 v15, v[{r}:{r+3}] offset:{32+1024*i}")
        a(f"ds_write_b128 v15, v[{o}:{o+3}] offset:{C_O+1024*i}")
    a(f"""
    v_and_b32 v6, 15, v{vLANE}             ; b
    v_lshrrev_b32 v7, 4, v{vLANE}          ; q
    v_add_u32 v13, 1, v6
    v_lshrrev_b32 v13, 1, v13
    v_lshl_add_u32 v13, v7, 2, v13
    v_lshlrev_b32 v13, 2, v13
    v_and_b32 v14, 1, v6
    v_xor_b32 v14, 1, v14
    v_mul_u32_u24 v14, {C_O-28}, v14
    v_add3_u32 v{vA[0]}, v13, v14, s47
    v_add_u32 v{vA[1]}, 1024, v{vA[0]}
    v_add_u32 v{vA[2]}, 2048, v{vA[0]}
    v_add_u32 v{vA[3]}, 3072, v{vA[0]}
    v_lshlrev_b32 v13, 5, v6
    v_lshlrev_b32 v14, 4, v7
    v_sub_u32 v13, v14, v13
    s_add_u32 s37, s47, {C_U + 2*(S-16) - 512*7}
    v_add_u32 v{vB}, s37, v13
    v_lshl_add_u32 v13, v7, 3, v6
    v_sub_u32 v13, 15, v13
    v_and_b32 v14, 1, v13
    v_lshlrev_b32 v14, 4, v14
    v_ashrrev_i32 v13, 1, v13
    s_and_b32 s37, s42, 1
    s_lshl_b32 s37, s37, 4
    s_lshr_b32 s45, s45, s37
    s_and_b32 s45, s45, 0xffff
    v_lshlrev_b32 v14, v14, s45
    """)
    for i in range(4):
        a(f"v_cmp_eq_u32 vcc, {i}, v13\ns_nop 1\nv_cndmask_b32 v{AD+i}, 0, v14, vcc")
    def reads(s, j):
        B = [f"ds_read_b128 v[{fb(s,i)}:{fb(s,i)+3}], v{vB} offset:{512*(7-i)+64*j}" for i in range(8)]
        A = []
        for i in range(8):
            o = (i & 1)*128 + 16*j; r = fa(s, i)
            A.append(f"ds_read2_b32 v[{r}:{r+1}], v{vA[i>>1]} offset0:{o} offset1:{o+1}")
            A.append(f"ds_read2_b32 v[{r+2}:{r+3}], v{vA[i>>1]} offset0:{o+2} offset1:{o+3}")
        return B + A
    R = reads(0, 0)
    a("s_waitcnt lgkmcnt(0)")
    for l in R[8:]: a(l)
    a(f"""
    s_and_b32 s37, s33, 3
    s_lshl_b32 s37, s37, 7
    s_add_u32 s46, s46, s37
    s_add_u32 s43, s43, {WS_UT}
    """)
    wait(c, 46, 1, 16)
    stamp(c)
    a(f"s_add_u32 m0, s47, {C_U}\ns_nop 0")
    for i in range(4):
        a(f"buffer_load_dwordx4 v{vL16}, {SRD_WS}, s43 offen offset:{1024*i} sc1 lds")
    srd(a, 24, 64, S*D*2)
    a(f"""
    v_and_b32 v13, 7, v{vLANE}
    v_lshrrev_b32 v14, 3, v{vLANE}
    v_lshlrev_b32 v14, 4, v14
    v_lshl_add_u32 v13, v13, 11, v14
    s_lshl_b32 s37, s{sG8}, 14
    s_lshl_b32 s38, s{sW}, 9
    s_add_u32 s37, s37, s38
    s_waitcnt vmcnt(0)
    """)
    for l in R[:8]: a(l)
    for i in range(4): a(f"buffer_load_dwordx4 v[{vQ+4*i}:{vQ+4*i+3}], v13, {SRD_T}, s37 offen offset:{128*i} nt")
    npf = c.opt.get('pf_front', 1)
    if npf:
        a(f"""
        s_lshl_b32 s37, s2, 1
        s_and_b32 s38, s{sW}, 1
        s_add_u32 s37, s37, s38
        s_lshl_b32 s37, s37, {c.opt.get('pf_shift', 12)}
        v_lshlrev_b32 v14, 7, v{vLANE}
        v_and_b32 v14, {(1 << c.opt.get('pf_shift', 12)) - 1}, v14
        buffer_load_dword v21, v14, {SRD_W}, s37 offen
        """)
    stamp(c)
    a("s_waitcnt lgkmcnt(0)")
    for n in range(8):
        cc = ACC + 4*n
        a(f"{MF} v[{cc}:{cc+3}], v[{AD}:{AD+3}], v[{fb(0,n)}:{fb(0,n)+3}], 0")
    lp = c.lab("cv")
    a(f"s_mov_b32 s48, 4\n{lp}:")
    for j in range(2):
        a("s_waitcnt lgkmcnt(0)")
        R = reads(j ^ 1, j + 1)
        k = 0
        for i in range(8):
            for n in range(i, 8):
                cc = ACC + 4*n
                a(f"{MF} v[{cc}:{cc+3}], v[{fa(j,i)}:{fa(j,i)+3}], v[{fb(j,n-i)}:{fb(j,n-i)+3}], v[{cc}:{cc+3}]")
                if k < 24: a(R[k])
                if j == 1 and 24 <= k < 29:
                    r = (vA + [vB])[k-24]; a(f"v_add_u32 v{r}, 128, v{r}")
                if j == 1 and k == 30: a("s_sub_u32 s48, s48, 1")
                if j == 1 and k == 31: a("s_cmp_lg_u32 s48, 0")
                k += 1
    a(f"s_cbranch_scc1 {lp}")
    stamp(c)
    a(f"""
    v_mul_u32_u24 v13, 160, v7
    v_lshl_add_u32 v13, v6, 3, v13
    v_add_u32 v13, s47, v13
    v_bfe_u32 v14, v{vLANE}, 1, 2
    v_mul_u32_u24 v14, 160, v14
    v_lshrrev_b32 v15, 3, v{vLANE}
    v_lshl_add_u32 v14, v15, 3, v14
    v_and_b32 v4, 1, v{vLANE}
    v_lshl_add_u32 v14, v4, 2, v14
    s_mul_i32 s37, s{sW}, 1280
    v_add_u32 v14, s37, v14
    s_waitcnt lgkmcnt(0)
    """)
    for n in range(8):
        cc = ACC + 4*n
        a(f"v_cvt_pk_bf16_f32 v{cc}, v{cc}, v{cc+1}\nv_cvt_pk_bf16_f32 v{cc+1}, v{cc+2}, v{cc+3}")
        a(f"ds_write_b64 v13, v[{cc}:{cc+1}] offset:{640*n}")
    a(f"""
    v_and_b32 v4, 7, v{vLANE}
    v_lshlrev_b32 v4, 4, v4
    v_lshl_add_u32 v15, v15, 15, v4
    s_lshl_b32 s37, s{sW}, 20
    s_lshl_b32 s38, s41, 7
    s_add_u32 s37, s37, s38
    s_add_u32 s37, s37, {WS_Y}
    s_mov_b32 s38, 0x05040100
    s_mov_b32 s39, 0x07060302
    s_waitcnt lgkmcnt(0)
    s_barrier
    """)
    for g in range(4):
        for ch in range(4):
            a(f"ds_read_b32 v{FA+4*g+ch}, v14 offset:{ch*CW + (g>>1)*640 + (g&1)*64}")
    for g in range(4):
        r = FA + 4*g; o = FB + 4*g
        a(f"s_waitcnt lgkmcnt({12-4*g})")
        a(f"v_perm_b32 v{o}, v{r+1}, v{r}, s38\nv_perm_b32 v{o+1}, v{r+3}, v{r+2}, s38")
        a(f"v_perm_b32 v{o+2}, v{r+1}, v{r}, s39\nv_perm_b32 v{o+3}, v{r+3}, v{r+2}, s39")
        a(f"buffer_store_dwordx4 v[{o}:{o+3}], v15, {SRD_WS}, s37 offen sc1")
        a(f"s_add_u32 s37, s37, {8*32768}")
    a(f"""
    s_lshl_b32 s46, s34, 7
    s_add_u32 s46, s46, {WS_FL + FL_B*128}
    s_lshl_b32 s63, s33, 11
    s_add_u32 s63, s63, {WS_FL + FL_B*128}
    """)
    stamp(c)
    signal(c, 46, 16, shift=11)
    stamp(c)

XF, YF, RW, LO = 32, 64, 96, 128
def ln_stats(c, off):
    a = c.a
    a(f"v_pk_add_f32 v[28:29], v[{XF}:{XF+1}], v[{XF+2}:{XF+3}]")
    a(f"v_pk_mul_f32 v[6:7], v[{XF}:{XF+1}], v[{XF}:{XF+1}]")
    a(f"v_pk_fma_f32 v[6:7], v[{XF+2}:{XF+3}], v[{XF+2}:{XF+3}], v[6:7]")
    for i in range(2, 16):
        a(f"v_pk_add_f32 v[28:29], v[28:29], v[{XF+2*i}:{XF+2*i+1}]")
        a(f"v_pk_fma_f32 v[6:7], v[{XF+2*i}:{XF+2*i+1}], v[{XF+2*i}:{XF+2*i+1}], v[6:7]")
    a(f"""
    v_add_f32 v28, v28, v29
    v_add_f32 v29, v6, v7
    s_nop 1
    v_permlane32_swap_b32 v28, v29
    v_add_f32 v28, v28, v29
    v_mov_b32 v29, v28
    s_nop 1
    v_permlane16_swap_b32 v28, v29
    v_add_f32 v28, v28, v29
    s_nop 1
    v_add_f32_dpp v28, v28, v28 row_ror:8 row_mask:0xf bank_mask:0xf
    ds_write_b32 v26, v28 offset:{off}
    s_waitcnt lgkmcnt(0)
    s_barrier
    ds_read_b128 v[4:7], v27 offset:{off}
    ds_read_b128 v[{LO+16}:{LO+19}], v27 offset:{off+128}
    s_waitcnt lgkmcnt(1)
    v_pk_add_f32 v[4:5], v[4:5], v[6:7]
    s_waitcnt lgkmcnt(0)
    v_pk_add_f32 v[6:7], v[{LO+16}:{LO+17}], v[{LO+18}:{LO+19}]
    v_add_f32 v28, v4, v5
    v_add_f32 v29, v6, v7
    v_mul_f32 v28, 0x3a800000, v28
    v_mul_f32 v29, 0x3a800000, v29
    v_fma_f32 v29, -v28, v28, v29
    v_max_f32 v29, 0, v29
    v_cvt_pk_bf16_f32 v28, v28, v29
    v_and_b32 v29, s{sMASK}, v28
    v_lshlrev_b32 v28, 16, v28
    v_add_f32 v29, 0x3727c5ac, v29
    v_cvt_pk_bf16_f32 v29, v29, v29
    v_and_b32 v29, s{sMASK}, v29
    v_sqrt_f32 v29, v29
    s_nop 0
    v_cvt_pk_bf16_f32 v29, v29, v29
    v_and_b32 v29, s{sMASK}, v29
    v_rcp_f32 v29, v29
    s_nop 0
    """)
def unpack(a, dst, src, n):
    for j in range(n):
        a(f"v_lshlrev_b32 v{dst+2*j}, 16, v{src+j}\nv_and_b32 v{dst+2*j+1}, s{sMASK}, v{src+j}")

def ln_phase(c):
    a = c.a
    l1 = c.lab("ln1"); st = c.lab("lnst"); cm = c.lab("lncm")
    a(f"""
    v_and_b32 v4, 7, v{vLANE}              ; tok
    v_lshrrev_b32 v5, 3, v{vLANE}          ; c
    v_lshlrev_b32 v6, 8, v5
    v_lshl_add_u32 v24, v4, 4, v6
    v_lshl_add_u32 v1, v4, 3, v6
    v_and_b32 v6, 0x3ff, v24
    v_lshrrev_b32 v7, 2, v5
    v_lshl_add_u32 v25, v7, 14, v6
    v_lshlrev_b32 v27, 4, v4
    v_add_u32 v27, {LDS_RED}, v27
    s_lshl_b32 s33, s{sW}, 2
    v_lshl_add_u32 v26, v7, 7, v27
    v_add_u32 v26, s33, v26
    s_lshr_b32 s33, s{sG8}, 1
    s_lshl_b32 s33, s33, 15
    s_lshl_b32 s34, s{sW}, 13
    s_add_u32 s33, s33, s34
    s_and_b32 s34, s{sG8}, 1
    s_lshl_b32 s35, s34, 6
    s_add_u32 s33, s33, s35                ; Y offset
    s_add_u32 s36, s33, s35                ; B16 offset
    s_add_u32 s33, s33, {WS_Y}
    s_lshl_b32 s37, s{sTB}, 19
    s_lshl_b32 s35, s{sW}, 17
    s_add_u32 s37, s37, s35
    s_bfe_u32 s35, s{sG8}, 0x40001
    s_lshl_b32 s35, s35, 10
    s_add_u32 s37, s37, s35
    s_lshl_b32 s35, s34, 7
    s_add_u32 s37, s37, s35
    s_add_u32 s37, s37, s{sLB}
    s_cmp_lg_u32 s{sLAY}, 0
    s_cbranch_scc1 {l1}
    """)
    unpack(a, XF, vQ, 16)
    a(f"s_branch {st}\n{l1}:")
    for j in range(16): a(f"v_accvgpr_read_b32 v{LO+j}, a{aX+j}")
    unpack(a, XF, LO, 16)
    for j in range(16): a(f"v_accvgpr_read_b32 v{LO+j}, a{aY+j}")
    unpack(a, YF, LO, 16)
    a(f"s_add_u32 s38, s36, {WS_L0 + L_EX}\ns_mov_b32 s34, 0x3f80\ns_mov_b32 s35, 0x3f800000")
    wait(c, 63, 1, 16)
    stamp(c)
    for h in range(2):
        for p in range(2):
            for i in (2*h, 2*h+1):
                r = RW + 16*p + 4*i
                a(f"buffer_load_dwordx4 v[{r}:{r+3}], v24, {SRD_WS}, s38 offen offset:{(i&1)*2048} sc1")
            a(f"s_add_u32 s38, s38, {4*MB if p == 0 else (4096 - 4*MB) & 0xffffffff}")
    k = 7
    for h in range(2):
        for p in range(2):
            for i in (2*h, 2*h+1):
                a(f"s_waitcnt vmcnt({k})"); k -= 1
                for j in range(4):
                    r = RW + 16*p + 4*i + j; x = XF + 8*i + 2*j
                    a(f"v_dot2_f32_bf16 v{x}, v{r}, s34, v{x}\nv_dot2_f32_bf16 v{x+1}, v{r}, s35, v{x+1}")
    if c.opt.get('round_x2', 1):
        for j in range(16): a(f"v_cvt_pk_bf16_f32 v{LO+j}, v{XF+2*j}, v{XF+2*j+1}")
        unpack(a, XF, LO, 16)
    a(f"{st}:")
    ln_stats(c, 0)
    a(f"s_cmp_lg_u32 s{sLAY}, 0\ns_cbranch_scc1 {cm}")
    wait(c, 63, 16, 16)
    stamp(c)
    for i in range(4):
        for k in range(2):
            r = RW + 4*i + 2*k
            a(f"buffer_load_dwordx2 v[{r}:{r+1}], v1, {SRD_WS}, s33 offen offset:{(i&1)*2048 + k*128} sc1")
        if i == 1: a("s_add_u32 s33, s33, 4096")
    for i in range(4):
        a(f"s_waitcnt vmcnt({6-2*i})")
        unpack(a, YF+8*i, RW+4*i, 4)
    a(f"{cm}:")
    stamp(c)
    for j in range(16):
        x = XF + 2*j; y = YF + 2*j
        a(f"v_pk_mul_f32 v[{y}:{y+1}], v[{y}:{y+1}], v[28:29] op_sel:[0,1] op_sel_hi:[1,1]")
        a(f"v_pk_add_f32 v[6:7], v[{x}:{x+1}], v[28:29] op_sel_hi:[1,0] neg_lo:[0,1] neg_hi:[0,1]")
        a(f"v_pk_fma_f32 v[{x}:{x+1}], v[6:7], v[{y}:{y+1}], v[{x}:{x+1}]")
    if c.opt.get('round_x1', 1):
        for j in range(16): a(f"v_cvt_pk_bf16_f32 v{LO+j}, v{XF+2*j}, v{XF+2*j+1}")
        unpack(a, XF, LO, 16)
    ln_stats(c, 256)
    for j in range(16):
        x = XF + 2*j
        if not c.opt.get('round_x1', 1): a(f"v_cvt_pk_bf16_f32 v{LO+j}, v{x}, v{x+1}")
        a(f"v_pk_add_f32 v[{x}:{x+1}], v[{x}:{x+1}], v[28:29] op_sel_hi:[1,0] neg_lo:[0,1] neg_hi:[0,1]")
        a(f"v_pk_mul_f32 v[{x}:{x+1}], v[{x}:{x+1}], v[28:29] op_sel:[0,1] op_sel_hi:[1,1]")
        a(f"v_cvt_pk_bf16_f32 v{YF+j}, v{x}, v{x+1}")
        if j % 4 == 3:
            a(f"buffer_store_dwordx4 v[{YF+j-3}:{YF+j}], v25, {SRD_WS}, s37 offen sc1\ns_add_u32 s37, s37, 32768")
    a(f"""
    s_lshl_b32 s63, s{sTB}, 10
    s_lshl_b32 s35, s{sLAY}, 13
    s_add_u32 s63, s63, s35
    s_add_u32 s63, s63, {WS_FL + FL_LN*128}
    """)
    stamp(c)
    signal(c, 63, 8)
    stamp(c)
    l2 = c.lab("ln2"); dn = c.lab("lnd")
    a(f"""
    s_and_b32 s35, s{sM}, 7
    s_lshl_b32 s35, s35, 7
    s_add_u32 s63, s63, s35
    s_cmp_lg_u32 s{sLAY}, 0
    s_cbranch_scc1 {l2}
    """)
    for j in range(16): a(f"v_accvgpr_write_b32 a{aX+j}, v{LO+j}\nv_accvgpr_write_b32 a{aY+j}, v{RW+j}")
    a(f"s_branch {dn}\n{l2}:\ns_add_u32 s36, s36, {WS_XR}")
    for i in range(4):
        a(f"buffer_store_dwordx4 v[{LO+4*i}:{LO+4*i+3}], v24, {SRD_WS}, s36 offen offset:{(i&1)*2048} sc1")
        if i == 1: a("s_add_u32 s36, s36, 4096")
    a(f"{dn}:")

ACC1 = 32
def g1_acc(t, j): return ACC1 + (t*7 + j)*4
def g1_xf(s, t): return s*60 + t*4
def g1_wf(s, j): return (s*60 + 32 if s < 2 else 120) + j*4
g1_vXA = [8, 9]; g1_vWA = [[10,11,12,13],[14,15,16,17]]; g1_vDW = [19,20,21,22]; g1_vPF = [18, 23]
def g1_dx(slot):
    return [f"s_add_u32 m0, s42, {slot*STAGE}"] + [f"buffer_load_dwordx4 v{vL16}, {SRD_WS}, s40 offen offset:{1024*i} lds" for i in range(4)] + ["s_add_u32 s40, s40, 16384"]
def g1_dw(slot):
    return [f"s_add_u32 m0, s43, {slot*STAGE}"] + [f"buffer_load_dwordx4 v{g1_vDW[i]}, {SRD_W}, s41 offen offset:{1024*i} lds" for i in range(4)] + [f"s_add_u32 s41, s41, {32*7168}"]
def g1_rw(slot, s):
    h = slot >> 1; so = (slot & 1)*STAGE; W = []
    for j in range(7):
        va = g1_vWA[h][j % 3] if j < 6 else g1_vWA[h][3]
        off = so + (UOFF if 3 <= j < 6 else 0); r = g1_wf(s, j)
        W.append(f"ds_read_b64_tr_b16 a[{r}:{r+1}], v{va} offset:{off}")
        W.append(f"ds_read_b64_tr_b16 a[{r+2}:{r+3}], v{va} offset:{off+1024}")
    return W
def g1_rx(slot, s):
    h = slot >> 1; so = (slot & 1)*STAGE
    return [f"ds_read_b128 a[{g1_xf(s,t)}:{g1_xf(s,t)+3}], v{g1_vXA[h]} offset:{so+t*1024}" for t in range(8)]

def g1_pre(c):
    a = c.a; vDW = g1_vDW; vWA = g1_vWA; vXA = g1_vXA
    a(f"""
    s_and_b32 s44, s{sW}, 1
    s_lshr_b32 s45, s{sW}, 1
    s_and_b32 s46, s{sM}, 1
    s_mul_i32 s41, s44, {16*7168}
    s_mul_i32 s33, s{sM}, 224
    s_add_u32 s41, s41, s33
    s_lshl_b32 s33, s46, 5
    s_sub_u32 s41, s41, s33
    s_mul_i32 s43, s45, {UOFF}
    s_lshl_b32 s33, s44, 12
    s_add_u32 s43, s43, s33
    s_add_u32 s43, s43, 16384
    v_lshrrev_b32 v1, 4, v{vLANE}          ; q
    v_bfe_u32 v4, v{vLANE}, 1, 3
    v_xor_b32 v4, v4, v1
    v_and_b32 v5, 1, v{vLANE}
    v_lshlrev_b32 v5, 4, v5
    v_mul_u32_u24 v6, 7168, v1
    v_add_u32 v6, v6, v5
    v_lshl_add_u32 v{vDW[0]}, v4, 5, v6
    v_xor_b32 v4, 4, v4
    v_lshl_add_u32 v{vDW[2]}, v4, 5, v6
    v_add_u32 v{vDW[1]}, {4*7168-1024}, v{vDW[0]}
    v_add_u32 v{vDW[3]}, {3*(4*7168-1024)}, v{vDW[2]}
    v_add_u32 v{vDW[2]}, {2*(4*7168-1024)}, v{vDW[2]}
    """)
    for slot in range(4):
        o = g1_dw(slot); a(o[0]); a("s_nop 0")
        for l in o[1:]: a(l)
    a(f"""
    s_lshl_b32 s42, s{sW}, 12
    s_lshl_b32 s40, s{sTB}, 19
    s_add_u32 s40, s40, s42
    s_add_u32 s40, s40, s{sLB}
    s_lshl_b32 s33, s45, 13
    v_add_u32 v{vXA[0]}, s33, v{vL16}
    v_add_u32 v{vXA[1]}, {2*STAGE}, v{vXA[0]}
    v_bfe_u32 v4, v{vLANE}, 2, 2           ; r4
    v_and_b32 v5, 1, v1
    v_lshl_or_b32 v5, v5, 2, v4            ; sigma
    v_lshl_add_u32 v6, v1, 3, v4
    v_lshlrev_b32 v6, 8, v6
    v_add_u32 v6, 16384, v6
    v_and_b32 v7, 3, v{vLANE}
    v_lshl_add_u32 v1, v7, 3, v6
    s_lshl_b32 s33, s44, 2
    s_add_u32 s33, s33, s46
    """)
    for p in range(3):
        a(f"s_add_u32 s34, s33, {p}\nv_xor_b32 v4, s34, v5\nv_lshl_add_u32 v{vWA[0][p]}, v4, 5, v1")
    a(f"""
    s_add_u32 s34, s46, 3
    v_xor_b32 v4, s34, v5
    v_lshl_add_u32 v6, v4, 5, v6
    v_and_b32 v4, 1, v7
    v_lshl_add_u32 v6, v4, 3, v6
    v_lshrrev_b32 v4, 1, v7
    v_mul_u32_u24 v4, {UOFF}, v4
    s_lshl_b32 s34, s44, 4
    v_add3_u32 v{vWA[0][3]}, v6, v4, s34
    """)
    for p in range(4): a(f"v_add_u32 v{vWA[1][p]}, {2*STAGE}, v{vWA[0][p]}")
    d = c.opt.get('pf_dist', 2)
    a(f"""
    s_lshl_b32 s33, s2, 1
    s_add_u32 s33, s33, s44
    s_mul_i32 s33, s33, {14*128}
    s_add_u32 s33, s33, {d*128*7168}
    v_lshlrev_b32 v4, 7, v{vLANE}
    v_add_u32 v5, s33, v4
    v_cmp_gt_u32 vcc, 14, v{vLANE}
    s_lshl_b32 s33, s2, 2
    s_add_u32 s33, s33, s{sW}
    v_cndmask_b32 v{g1_vPF[0]}, -1, v5, vcc
    s_lshl_b32 s33, s33, 10
    v_add_u32 v5, s33, v4
    v_cmp_gt_u32 vcc, 8, v{vLANE}
    s_mov_b32 s48, 0
    s_mov_b32 s49, 0
    v_cndmask_b32 v{g1_vPF[1]}, -1, v5, vcc
    """)

class Hz:
    def __init__(self, a): self.a = a; self.n = 0; self.mf = {}; self.va = {}; self.st = {}
    def need(self, kind, rd, wr):
        w = 0
        for r in list(rd) + list(wr): w = max(w, self.mf.get(r, -99) + 9 - self.n)
        if kind == 'perm':
            for r in rd: w = max(w, self.va.get(r, -99) + 3 - self.n)
        if kind != 'store':
            for r in wr: w = max(w, self.st.get(r, -99) + 3 - self.n)
        return w
    def mfma(self, s, d):
        self.a(s)
        for r in range(d, d+4): self.mf[r] = self.n
        self.n += 1
    def raw(self, s): self.a(s); self.n += 1
    def op(self, o):
        kind, s, rd, wr = o
        w = self.need(kind, rd, wr)
        if w > 0: self.a(f"s_nop {w-1}"); self.n += w
        self.a(s)
        if kind == 'store':
            for r in rd: self.st[r] = self.n
        else:
            for r in wr: self.va[r] = self.n
        self.n += 1
def o_mul(d, x, y): return ('valu', f"v_mul_f32 v{d}, v{x}, v{y}", [x, y], [d])
def o_cvt(d, x): return ('valu', f"v_cvt_pk_bf16_f32 v{d}, v{x}, v{x+1}", [x, x+1], [d])
def o_sw(n, x, y): return ('perm', f"v_permlane{n}_swap_b32 v{x}, v{y}", [x, y], [x, y])
def o_st(s, r): return ('store', s, list(range(r, r+4)), [])
def o_s(s): return ('salu', s, [], [])

def g1_main(c):
    a = c.a; acc = g1_acc
    for i in range(112): a(f"v_mov_b64 v[{ACC1+2*i}:{ACC1+2*i+1}], 0")
    wait(c, 63, 1, 32)
    stamp(c)
    for slot in range(4):
        o = g1_dx(slot); a(o[0]); a("s_nop 0")
        for l in o[1:]: a(l)
    a(f"""
    s_lshl_b32 s50, s{sTB}, 3
    s_lshl_b32 s33, s45, 2
    s_add_u32 s50, s50, s33
    s_mul_i32 s50, s50, 229376
    s_lshr_b32 s33, s{sM}, 1
    s_mul_i32 s33, s33, {7*2048}
    s_add_u32 s50, s50, s33
    s_add_u32 s50, s50, s{sLB}
    s_add_u32 s50, s50, {L_H}
    s_lshl_b32 s34, s46, 1
    s_add_u32 s34, s34, s44                ; wv
    s_lshl_b32 s33, s34, 11
    v_add_u32 v24, s33, v{vL16}
    v_and_b32 v4, 15, v{vLANE}
    v_lshlrev_b32 v4, 4, v4
    v_lshrrev_b32 v5, 5, v{vLANE}
    v_lshl_add_u32 v4, v5, 10, v4
    v_bfe_u32 v5, v{vLANE}, 4, 1
    s_add_u32 s33, s46, 4
    s_lshl_b32 s33, s33, 11
    s_lshl_b32 s35, s44, 9
    s_add_u32 s33, s33, s35
    v_lshl_add_u32 v25, v5, 8, v4
    v_add_u32 v25, s33, v25
    s_lshl_b32 s33, s34, 8
    s_add_u32 s33, s33, {6*2048}
    v_mul_u32_u24 v5, 229376, v5
    v_add3_u32 v26, v4, v5, s33
    s_waitcnt vmcnt(12)
    s_barrier
    """)
    X = g1_rx(0, 0)
    for l in X[:1] + g1_rw(0, 0) + X[1:]: a(l)
    a("s_waitcnt vmcnt(8)")
    stamp(c)
    seq = [(t, (j if t % 2 == 0 else 6-j)) for t in range(8) for j in range(7)]
    def step(i4, dma, vm, gx=None):
        s = i4 & 1
        gaps = [[] for _ in range(56)]
        X = g1_rx((i4+1) % 4, s ^ 1)
        for k, l in enumerate(X[:1] + g1_rw((i4+1) % 4, s ^ 1) + X[1:]): gaps[1+k].append(l)
        if dma:
            p0 = c.opt.get('g1_dma0', 26); ds = c.opt.get('g1_dmas', 3)
            dx, dw = g1_dx(i4), g1_dw(i4)
            gaps[p0-1].append(dx[0])
            for i in range(4): gaps[p0+ds*i].append(dx[1+i])
            gaps[p0+ds*3+1].append(dx[5]); gaps[p0+ds*4-1].append(dw[0])
            for i in range(4): gaps[p0+ds*(4+i)].append(dw[1+i])
            gaps[p0+ds*7+1].append(dw[5])
        if gx:
            for g, l in gx: gaps[g].append(l)
        a(f"s_waitcnt vmcnt({vm}) lgkmcnt(0)")
        for n, (t, j) in enumerate(seq):
            cc = acc(t, j)
            a(f"{MF} v[{cc}:{cc+3}], a[{g1_wf(s,j)}:{g1_wf(s,j)+3}], a[{g1_xf(s,t)}:{g1_xf(s,t)+3}], v[{cc}:{cc+3}]")
            if n == 0: a("s_barrier")
            for l in gaps[n]: a(l)
    lp = c.lab("g1l")
    a(f"s_mov_b32 s47, 7\n{lp}:")
    pf = c.opt.get('pf_g1', 1)
    step(0, True, 16 + 2*pf)
    step(1, True, 12, gx=[(51, f"buffer_load_dword v27, v{g1_vPF[0]}, {SRD_W}, s48 offen"), (52, f"s_add_u32 s48, s48, {128*7168}"),
                          (53, f"s_min_u32 s48, s48, {(7-c.opt.get('pf_dist', 2))*128*7168}")] if pf else None)
    step(2, True, 16 + pf)
    step(3, True, 16 + pf, gx=([(50, f"buffer_load_dword v27, v{g1_vPF[1]}, {SRD_WD}, s49 offen"), (51, f"s_add_u32 s49, s49, {MB}")] if pf else []) + [(53, "s_sub_u32 s47, s47, 1"), (54, "s_cmp_lg_u32 s47, 0")])
    a(f"s_cbranch_scc1 {lp}")
    step(0, False, 16 + 2*pf)
    gx = [(24, "s_waitcnt vmcnt(0)"), (25, "s_barrier")]
    for k, l in enumerate(g1_rw(3, 2)): gx.append((26 + k, l))
    X = g1_rx(3, 1)
    for t in range(8): gx.append((max(40 + t, 7*t + 6), X[t]))
    step(1, False, 8, gx=gx)
    stamp(c)
    hz = Hz(a)
    ops = []
    jo = [0, 3, 1, 4, 2, 5, 6]
    st = "sc1"
    for t in range(8):
        base = 14*t
        g0, g1_, g2 = acc(t,0), acc(t,1), acc(t,2); d = acc(t, 3)
        for r in range(4): ops.append((base+3, o_mul(g0+r, g0+r, acc(t,3)+r)))
        ops += [(base+3, o_cvt(d, g0)), (base+3, o_cvt(d+1, g0+2))]
        for r in range(4): ops.append((base+7, o_mul(g1_+r, g1_+r, acc(t,4)+r)))
        ops += [(base+7, o_cvt(d+2, g1_)), (base+7, o_cvt(d+3, g1_+2))]
        ops.append((base+7, o_st(f"buffer_store_dwordx4 v[{d}:{d+3}], v24, {SRD_WS}, s50 offen offset:{(t&1)*1024} {st}", d)))
        for r in range(4): ops.append((base+11, o_mul(g2+r, g2+r, acc(t,5)+r)))
        b = acc(t & ~1, 4) + 2*(t & 1)
        ops += [(base+11, o_cvt(b, g2)), (base+11, o_cvt(b+1, g2+2))]
        if t & 1:
            b = acc(t & ~1, 4); o0, o1 = acc(t-1, 6), acc(t, 6)
            ops += [(base+11, o_sw(32, b, b+2)), (base+11, o_sw(32, b+1, b+3))]
            ops.append((base+11, o_st(f"buffer_store_dwordx4 v[{b}:{b+3}], v25, {SRD_WS}, s50 offen {st}", b)))
            for r in range(4): ops.append((base+13, o_sw(32, o0+r, o1+r)))
            for r in range(4): ops.append((base+13, o_mul(o0+r, o0+r, o1+r)))
            od = acc(t & ~3, 5) + ((t >> 1) & 1)*2
            ops += [(base+13, o_cvt(od, o0)), (base+13, o_cvt(od+1, o0+2))]
            if t & 3 == 3:
                od = acc(t & ~3, 5)
                ops.append((base+13, o_s("s_sub_u32 s35, s50, 229376")))
                ops += [(base+13, o_sw(16, od, od+2)), (base+13, o_sw(16, od+1, od+3))]
                ops.append((base+13, o_st(f"buffer_store_dwordx4 v[{od}:{od+3}], v26, {SRD_WS}, s35 offen {st}", od)))
            ops.append((base+13, o_s("s_add_u32 s50, s50, 229376")))
    hz.raw("s_waitcnt lgkmcnt(2)")
    n = 0; per = c.opt.get('g1_per', 2)
    for t in range(8):
        if t == 1: hz.raw("s_waitcnt lgkmcnt(0)")
        for j in jo:
            for k in range(2):
                cc = acc(t, j); w = g1_wf(0 if k == 0 else 2, j); x = g1_xf(k, t)
                hz.mfma(f"{MF} v[{cc}:{cc+3}], a[{w}:{w+3}], a[{x}:{x+3}], v[{cc}:{cc+3}]", cc)
                for _ in range(per):
                    if ops and ops[0][0] < n and hz.need(ops[0][1][0], ops[0][1][2], ops[0][1][3]) <= 0:
                        hz.op(ops.pop(0)[1])
                n += 1
    stamp(c)
    for _, o in ops: hz.op(o)
    a(f"""
    s_lshl_b32 s63, s{sTB}, 1
    s_lshr_b32 s35, s{sM}, 4
    s_add_u32 s63, s63, s35
    s_lshl_b32 s63, s63, 9
    s_lshl_b32 s35, s{sLAY}, 13
    s_add_u32 s63, s63, s35
    s_add_u32 s63, s63, {WS_FL + FL_G1*128}
    """)
    stamp(c)
    signal(c, 63, 4)
    stamp(c)
    a(f"s_and_b32 s35, s{sM}, 3\ns_lshl_b32 s35, s35, 7\ns_add_u32 s63, s63, s35")

G2_ACC, G2_H, G2_W, G2_RX, G2_RES = 32, 96, 152, 184, 216
g2_vRA = list(range(8, 16)); g2_vDW = 16; g2_vH = [17, 18]; g2_vO = 19; g2_vR = 20
def g2_acc(t, ct): return G2_ACC + (t*8 + ct)*4
def g2_h(k, t): return G2_H + (k*2 + t)*4
def g2_w(ct): return G2_W + ct*4
def g2_ldw(k):
    return [f"s_add_u32 m0, s54, {k*8192}",
            f"buffer_load_dwordx4 v{g2_vDW}, {SRD_WD}, s{40+2*k} offen lds",
            f"buffer_load_dwordx4 v{g2_vDW}, {SRD_WD}, s{41+2*k} offen offset:1024 lds"]
def g2_ldh(k, t):
    r = g2_h(k, t)
    return f"buffer_load_dwordx4 v[{r}:{r+3}], v{g2_vH[t]}, {SRD_WS}, s55 offen"
def g2_rd(k, ct):
    r = g2_w(ct)
    return [f"ds_read_b64_tr_b16 v[{r}:{r+1}], v{g2_vRA[ct]} offset:{k*8192}",
            f"ds_read_b64_tr_b16 v[{r+2}:{r+3}], v{g2_vRA[ct]} offset:{k*8192+1024}"]

def g2_pre(c, J=8):
    a = c.a
    a(f"""
    s_lshr_b32 s57, s{sM}, 4                 ; kh
    s_and_b32 s33, s{sW}, 1
    s_lshr_b32 s34, s{sW}, 1
    s_lshl_b32 s54, s{sW}, 11                ; m0 base = w*2048
    s_lshl_b32 s35, s{sW}, 13                ; 4w rows
    s_add_u32 s40, s35, 0
    s_add_u32 s42, s35, {64*2048}
    s_add_u32 s44, s35, {112*2048}
    s_add_u32 s46, s35, {176*2048}
    s_lshl_b32 s35, s34, 17                  ; 64*(w>>1) rows
    s_lshl_b32 s36, s33, 13                  ; 4*(w&1) rows
    s_add_u32 s35, s35, s36
    s_add_u32 s48, s35, {32*2048}
    s_add_u32 s50, s35, {(32+112)*2048}
    s_mul_i32 s35, s34, {112*2048}
    s_lshl_b32 s36, s33, 14
    s_add_u32 s35, s35, s36
    s_add_u32 s52, s35, {48*2048}
    """)
    for k in range(7):
        a(f"s_add_u32 s{41+2*k}, s{40+2*k}, {(16 if k < 4 else 8 if k < 6 else 4)*2048 - 1024}")
    a(f"""
    v_lshrrev_b32 v4, 4, v{vLANE}            ; q
    v_bfe_u32 v5, v{vLANE}, 1, 3
    s_lshl_b32 s35, s33, 2
    v_or_b32 v6, s35, v4
    v_xor_b32 v5, v5, v6
    v_and_b32 v6, 1, v{vLANE}
    v_lshlrev_b32 v6, 4, v6
    v_lshl_add_u32 v5, v5, 5, v6
    v_lshl_add_u32 v5, v4, 11, v5
    s_and_b32 s35, s{sM}, 7
    s_lshl_b32 s35, s35, 8                   ; cb*256
    s_mul_i32 s36, s57, {(16-J)*224*2048}
    s_add_u32 s35, s35, s36
    v_add_u32 v{g2_vDW}, s35, v5
    """)
    for k in range(7):
        o = g2_ldw(k); a(o[0]); a("s_nop 0"); a(o[1]); a(o[2])
    a(f"""
    s_xor_b32 s54, s54, 0x10000
    v_add_u32 v{g2_vDW}, {224*2048}, v{g2_vDW}
    v_bfe_u32 v5, v{vLANE}, 2, 2
    v_lshl_add_u32 v6, v4, 3, v5
    v_lshlrev_b32 v6, 8, v6
    v_and_b32 v7, 1, v4
    v_lshl_or_b32 v5, v7, 2, v5
    v_and_b32 v7, 3, v{vLANE}
    v_lshl_add_u32 v6, v7, 3, v6
    """)
    for ct in range(8):
        a(f"v_xor_b32 v7, {ct}, v5\nv_lshl_add_u32 v{g2_vRA[ct]}, v7, 5, v6")
    a(f"""
    s_lshl_b32 s58, s{sTB}, 3
    s_bfe_u32 s35, s{sM}, 0x10003
    s_lshl_b32 s35, s35, 2
    s_add_u32 s58, s58, s35
    s_add_u32 s58, s58, s{sW}
    s_mul_i32 s55, s58, 229376
    s_mul_i32 s36, s57, {(16-J)*7*2048}
    s_add_u32 s55, s55, s36
    s_add_u32 s55, s55, s{sLB}
    s_add_u32 s55, s55, {L_H}
    s_lshl_b32 s35, s57, 10
    v_add_u32 v{g2_vH[0]}, s35, v{vL16}
    v_xor_b32 v{g2_vH[1]}, 1024, v{g2_vH[0]}
    """)


def g2_main(c):
    a = c.a; abl = ''
    for i in range(32): a(f"v_mov_b64 v[{G2_ACC+2*i}:{G2_ACC+2*i+1}], 0")
    wait(c, 63, 1, 16)
    stamp(c)
    for k in range(6):
        a(g2_ldh(k, 0)); a(g2_ldh(k, 1)); a("s_add_u32 s55, s55, 2048")
    a(f"""
    s_lshl_b32 s39, s58, 1
    s_add_u32 s39, s39, s57
    s_lshl_b32 s39, s39, 15
    s_and_b32 s35, s{sM}, 7
    v_lshrrev_b32 v4, 4, v{vLANE}
    v_and_b32 v6, 1, v4
    v_lshrrev_b32 v4, 1, v4
    v_lshl_or_b32 v4, v6, 1, v4              ; chunk = [0,2,1,3][q]
    v_and_b32 v6, 15, v{vLANE}
    v_lshlrev_b32 v7, 4, v6
    v_lshl_add_u32 v{g2_vR}, v4, 8, v7
    v_lshlrev_b32 v7, 4, v4
    v_lshl_add_u32 v{g2_vO}, v6, 11, v7
    s_lshl_b32 s36, s35, 12
    s_add_u32 s36, s36, s39                  ; B16 offset
    s_lshl_b32 s35, s35, 8
    s_add_u32 s39, s39, s35
    s_waitcnt vmcnt(10)
    s_barrier
    """)
    for ct in range(8):
        for l in g2_rd(0, ct): a(l)
    stamp(c)
    def step(k, nt, ldh, ldw, vm, extra=None, last=False):
        W = g2_ldw(k) if ldw else []
        kk = (k + 6) % 7
        tog = (k == 6 and not last)
        if nt == 2:
            gaps = [[] for _ in range(16)]
            for ct in range(8):
                if last or 'R' in abl: break
                r = g2_rd((k+1) % 7, ct)
                if tog: gaps[2*ct].append(f"v_xor_b32 v{g2_vRA[ct]}, 0x10000, v{g2_vRA[ct]}")
                gaps[2*ct+1].append(r[0]); gaps[min(2*ct+2, 15)].append(r[1])
            fill = [g2_ldh(kk, t) for t in range(ldh)]
            if ldh: fill.append("s_add_u32 s55, s55, 2048")
            fill += W
            P = [2, 6, 8, 9, 10, 14] if not tog else [1, 5, 5, 9, 13, 13]
            if tog: P = [1, 5, 9, 9, 10, 13]
            for p_, f in zip(P, fill): gaps[p_].append(f)
            if extra:
                for i_, e in enumerate(extra): gaps[4*i_].extend(e)
            for g in (3, 7, 11):
                ct = (g+1)//2
                gaps[g].append(f"s_waitcnt lgkmcnt({11 if not last else 12-2*ct})")
            a(f"s_waitcnt vmcnt({vm}) lgkmcnt(12)")
            for g in range(16):
                ct, t = g >> 1, (g & 1) ^ ((g >> 1) & 1)
                cc = g2_acc(t, ct)
                if 'M' not in abl: a(f"{MF} v[{cc}:{cc+3}], v[{g2_w(ct)}:{g2_w(ct)+3}], v[{g2_h(k,t)}:{g2_h(k,t)+3}], v[{cc}:{cc+3}]")
                if g == 0 and not last: a("s_barrier")
                for l in gaps[g]: a(l)
            return
    loop = c.lab("g2loop")
    a(f"s_mov_b32 s56, 7\ns_mov_b64 vcc, -1\n{loop}:")
    for k in range(7):
        if 1 <= k <= 4:
            o = c.lab("g2f"); b = c.lab("g2b")
            a(f"s_cbranch_vccnz {o}\n{b}:")
            c.ool.append(f"{o}:\ns_waitcnt vmcnt({10+2*k})\n" + ("s_mov_b64 vcc, 0\n" if k == 4 else "") + f"s_branch {b}")
        step(k, 2, 2, True, 20)
    a(f"s_xor_b32 s54, s54, 0x10000\nv_add_u32 v{g2_vDW}, {224*2048}, v{g2_vDW}")
    a(f"s_sub_u32 s56, s56, 1\ns_cmp_lg_u32 s56, 0\ns_cbranch_scc1 {loop}")
    for k in range(7):
        step(k, 2, 2 if k == 0 else 0, False, [20, 18, 14, 10, 6, 2, 0][k], last=(k == 6))
    stamp(c)
    fin = c.lab("g2fin")
    a(f"s_cmp_lg_u32 s{sLAY}, 0\ns_cbranch_scc1 {fin}")
    a(f"""
    s_lshl_b32 s35, s57, 22
    s_add_u32 s35, s35, {WS_L0 + L_EX}
    s_xor_b32 s37, s36, 0x8000
    s_add_u32 s36, s36, s35
    s_add_u32 s37, s37, s35
    """)
    for p in range(4):
        for t in range(2):
            c0, c1 = g2_acc(t, 2*p), g2_acc(t, 2*p+1)
            a(f"v_cvt_pk_bf16_f32 v{c0}, v{c0}, v{c0+1}\nv_cvt_pk_bf16_f32 v{c0+1}, v{c0+2}, v{c0+3}")
            a(f"v_cvt_pk_bf16_f32 v{c0+2}, v{c1}, v{c1+1}\nv_cvt_pk_bf16_f32 v{c0+3}, v{c1+2}, v{c1+3}")
            a(f"s_nop 1\nv_permlane16_swap_b32 v{c0}, v{c0+2}\nv_permlane16_swap_b32 v{c0+1}, v{c0+3}")
            a(f"buffer_store_dwordx4 v[{c0}:{c0+3}], v{g2_vR}, {SRD_WS}, s{36+t} offen offset:{p*1024} sc1")
    a(f"""
    s_lshr_b32 s63, s{sG8}, 4
    s_lshl_b32 s63, s63, 9
    s_add_u32 s63, s63, {WS_FL + FL_G2*128}
    """)
    stamp(c)
    signal(c, 63, 4)
    stamp(c)
    a(f"""
    s_and_b32 s35, s{sM}, 3
    s_lshl_b32 s35, s35, 7
    s_add_u32 s63, s63, s35
    s_mov_b32 s{sLAY}, 1
    s_mov_b32 s{sLB}, {WS_L0 + LSTRIDE}
    s_branch {c.name}_layer
    {fin}:
    s_lshl_b32 s33, s58, 3
    s_and_b32 s35, s{sM}, 7
    s_add_u32 s33, s33, s35
    s_lshl_b32 s33, s33, 1
    s_add_u32 s33, s33, s57
    s_xor_b32 s34, s33, 1
    s_lshl_b32 s37, s33, 7
    s_lshl_b32 s38, s34, 7
    s_lshl_b32 s33, s33, 12
    s_lshl_b32 s34, s34, 12
    s_add_u32 s33, s33, {WS_L0 + LSTRIDE + L_EX}
    s_add_u32 s34, s34, {WS_L0 + LSTRIDE + L_EX}
    s_add_u32 s37, s37, {WS_FL + FL_PAIR*128}
    s_add_u32 s38, s38, {WS_FL + FL_PAIR*128}
    s_add_u32 s36, s36, {WS_XR}
    """)
    for i in range(4):
        r0, r1 = g2_acc(1, 2*i), g2_acc(1, 2*i+1)
        a(f"v_cvt_pk_bf16_f32 v{r0}, v{r0}, v{r0+1}\nv_cvt_pk_bf16_f32 v{r0+1}, v{r0+2}, v{r0+3}")
        a(f"v_cvt_pk_bf16_f32 v{r0+2}, v{r1}, v{r1+1}\nv_cvt_pk_bf16_f32 v{r0+3}, v{r1+2}, v{r1+3}")
        a(f"s_nop 1\nv_permlane16_swap_b32 v{r0}, v{r0+2}\nv_permlane16_swap_b32 v{r0+1}, v{r0+3}")
        a(f"buffer_store_dwordx4 v[{r0}:{r0+3}], v{vL16}, {SRD_WS}, s33 offen offset:{i*1024} sc1")
    for p in range(4):
        c0, c1 = g2_acc(0, 2*p), g2_acc(0, 2*p+1)
        for i in range(4): a(f"v_permlane16_swap_b32 v{c0+i}, v{c1+i}")
    a(f"""
    v_mov_b32 v6, 1
    v_mov_b32 v7, 0
    s_mov_b32 s32, 0x3f80
    s_mov_b32 s35, 0x3f800000
    s_waitcnt vmcnt(0)
    s_mov_b64 exec, 1
    buffer_store_dword v6, v7, {SRD_WS}, s37 offen sc1
    s_mov_b64 exec, -1
    """)
    stamp(c)
    a(poll(c, SRD_WS, "s38", 1, 1))
    stamp(c)
    for p in range(4):
        a(f"buffer_load_dwordx4 v[{G2_RX+4*p}:{G2_RX+4*p+3}], v{vL16}, {SRD_WS}, s34 offen offset:{p*1024} sc1")
        a(f"buffer_load_dwordx4 v[{G2_RES+4*p}:{G2_RES+4*p+3}], v{g2_vR}, {SRD_WS}, s36 offen offset:{p*1024} sc1")
    for p in range(4):
        c0 = g2_acc(0, 2*p)
        a(f"s_waitcnt vmcnt({6-p})")
        for src in (G2_RX, G2_RES):
            for i in range(4):
                a(f"v_dot2_f32_bf16 v{c0+2*i}, v{src+4*p+i}, s32, v{c0+2*i}\nv_dot2_f32_bf16 v{c0+2*i+1}, v{src+4*p+i}, s35, v{c0+2*i+1}")
        r = G2_RES + 4*p
        a("s_nop 0")
        for i in range(4): a(f"v_cvt_pk_bf16_f32 v{r+i}, v{c0+2*i}, v{c0+2*i+1}")
        a(f"buffer_store_dwordx4 v[{r}:{r+3}], v{g2_vO}, {SRD_OUT}, s39 offen offset:{p*64} {c.opt.get('out_aux', 'sc1')}")
    stamp(c)
    if c.ts:
        a("s_waitcnt vmcnt(0)"); stamp(c)

def gen_fused(name, ts=False, **opt):
    c = Ctx(name, ts, **opt)
    prolog(c); front(c)
    c.a(f"{name}_layer:")
    g1_pre(c); ln_phase(c); g1_main(c); g2_pre(c); g2_main(c)
    epilog(c)
    return c.a.text(), kernel_desc(name, 512, accum=256), LDS_TOTAL
```

```python
import sys
from fz2 import *
NAME = "interleave_layers__ssm_conv_h3__glu_gated_bilinear__prompt"
REF = open(f"cdna_kernels/{NAME}.s.ref").read()
def build(ts=False, **opt):
    cm = [l for l in REF.split("\n") if l.startswith(";") and "@launch" not in l]
    t, d, lds = gen_fused(NAME + "_kernel", ts, **opt)
    return "\n".join(cm) + f"\n; @launch grid=(256,1,1) block=(256,1,1) lds={lds}\n" + HEADER + t + d
if __name__ == "__main__":
    open("fused.s","w").write(build())
    open("fused_ts.s","w").write(build(ts=True))
```

```python
from asmlib import *
from common import *
import re

sW, sTB, sM, sLAY, sLB = 3, 4, 5, 6, 7
SRD_W, SRD_WS, SRD_WD, SRD_OUT, SRD_T, SRD_T2 = "s[8:11]", "s[12:15]", "s[16:19]", "s[20:23]", "s[24:27]", "s[28:31]"
sG8 = 60
sMASK = 61
vLANE, vL16 = 2, 3
aX, aY = 224, 240
MF = "v_mfma_f32_16x16x32_bf16"
SPIN = 300000
FL_A, FL_B, FL_LN, FL_G1, FL_G2, FL_PAIR = 0, 256, 512, 640, 768, 1536
STAGE = 32768 + 256
UOFF = 8192 + 16
LDS_RED = 4*STAGE
LDS_TOTAL = LDS_RED + 1024

class Lay:
    pass
LY = Lay()
def set_layout(reuse):
    LY.P = WS_UT if reuse else WS_L0 + L_EX
    LY.EX = WS_UT if reuse else WS_L0 + LSTRIDE + L_EX
    LY.XR = WS_Y if reuse else WS_XR
    LY.L1 = WS_L0 if reuse else WS_L0 + LSTRIDE
    LY.sc = "sc1" if reuse else ""

class Ctx:
    def __init__(self, name, ts=False, **opt):
        self.a = Asm(); self.name = name; self.ts = ts; self.nl = 0; self.ool = []; self.opt = opt
    def lab(self, s):
        self.nl += 1
        return f"{self.name[:6]}_{s}{self.nl}"

def stamp(c):
    if not c.ts: return
    c.a("""
    s_memrealtime s[98:99]
    s_memtime s[100:101]
    s_mov_b32 m0, s97
    s_add_u32 s97, s97, 1
    s_waitcnt lgkmcnt(0)
    v_writelane_b32 v30, s98, m0
    v_writelane_b32 v31, s100, m0
    """)
def ts_dump(c):
    if not c.ts: return
    c.a(f"""
    s_load_dword s96, s[0:1], 88
    s_lshl_b32 s32, s2, 2
    s_add_u32 s32, s32, s{sW}
    s_lshl_b32 s32, s32, 9
    s_waitcnt lgkmcnt(0)
    s_bfe_u32 s96, s96, 0x60009
    s_lshl_b32 s96, s96, 19
    s_add_u32 s32, s32, s96
    s_add_u32 s32, s32, {WS_TS}
    v_lshlrev_b32 v4, 3, v{vLANE}
    buffer_store_dwordx2 v[30:31], v4, {SRD_WS}, s32 offen
    """)

def srd(a, d, lo, size):
    a(f"s_mov_b32 s{d}, s{lo}\ns_mov_b32 s{d+1}, s{lo+1}\ns_mov_b32 s{d+2}, {size}\ns_mov_b32 s{d+3}, 0x20000")

sPH, sFL, sFB, vFL = 63, 94, 95, 0
def signal(c, pre="", vm=0):
    l = c.lab("sig")
    c.a(f"""
    s_add_u32 s{sPH}, s{sPH}, 1
    v_mov_b32 v4, 0
    v_mov_b32 v5, s{sPH}
    s_cmp_lg_u32 s{sW}, 0
    s_waitcnt vmcnt({vm})
    s_barrier
    s_cbranch_scc1 {l}
    {pre}
    s_mov_b64 exec, 1
    buffer_store_dword v5, v4, {SRD_WS}, s{sFL} offen sc1
    s_mov_b64 exec, -1
    {l}:
    """)
def poll(c, srdn, va, soff, mask, target, slp=0):
    p = c.lab("poll"); d = c.lab("pd")
    return f"""
    {mask}
    s_mov_b32 s62, {SPIN}
    {p}:
    buffer_load_dword v7, v{va}, {srdn}, {soff} offen sc1
    s_sub_u32 s62, s62, 1
    s_cbranch_scc1 {d}
    s_waitcnt vmcnt(0)
    v_cmp_gt_u32 vcc, {target}, v7
    s_cbranch_vccz {d}
    {f"s_sleep {slp}" if slp else ""}
    s_branch {p}
    {d}:
    s_mov_b64 exec, -1
    """
def wait(c, va, mask, pre="", every=False):
    l = c.lab("wt")
    if not every: c.a(f"s_cmp_lg_u32 s{sW}, 0\ns_cbranch_scc1 {l}")
    if pre: c.a(pre)
    c.a(poll(c, SRD_WS, va, f"s{sFB}", mask, f"s{sPH}", c.opt.get('slp', 0)))
    c.a(f"{l}:\ns_barrier")
M_ALL = "s_mov_b32 exec_hi, 0"
M_KH = f"s_and_b32 s62, s{sM}, 16\ns_lshl_b32 exec_lo, 0xffff, s62\ns_mov_b32 exec_hi, 0"
M_TH = f"s_and_b32 s62, s{sM}, 8\ns_lshl_b32 exec_lo, 0x00ff00ff, s62\ns_mov_b32 exec_hi, 0"
M_PAIR = f"s_xor_b32 s62, s{sM}, 16\ns_lshl_b32 exec_lo, 1, s62\ns_mov_b32 exec_hi, 0"

def prolog(c):
    a = c.a
    kernel_begin(a, c.name)
    if c.ts: a("s_mov_b32 s97, 0\nv_mov_b32 v30, 0\nv_mov_b32 v31, 0")
    stamp(c)
    a(f"""
    s_cmp_ge_u32 s2, 256
    s_cbranch_scc1 {c.name}_end
    s_load_dwordx16 s[64:79], s[0:1], 0
    s_load_dwordx8 s[80:87], s[0:1], 64
    s_load_dwordx2 s[12:13], s[0:1], 96      ; ws
    v_lshrrev_b32 v1, 6, v0
    v_and_b32 v{vLANE}, 63, v0
    v_readfirstlane_b32 s{sW}, v1
    v_lshlrev_b32 v{vL16}, 4, v{vLANE}
    s_mov_b32 s14, {256*MB if c.ts else WS_USED}
    s_mov_b32 s15, 0x20000
    s_mov_b32 s{sMASK}, 0xffff0000
    """)
def prolog2(c):
    c.a(f"""
    s_and_b32 s40, s2, 1
    s_lshl_b32 s40, s40, 2
    s_bfe_u32 s{sTB}, s2, 0x20003
    s_add_u32 s{sTB}, s{sTB}, s40
    s_bfe_u32 s40, s2, 0x20001
    s_lshl_b32 s40, s40, 3
    s_lshr_b32 s{sM}, s2, 5
    s_add_u32 s{sM}, s{sM}, s40
    s_lshl_b32 s{sG8}, s{sTB}, 5
    s_bfe_u32 s40, s{sM}, 0x10003
    s_lshl_b32 s40, s40, 4
    s_add_u32 s{sG8}, s{sG8}, s40
    s_lshr_b32 s40, s{sM}, 4
    s_lshl_b32 s40, s40, 3
    s_add_u32 s{sG8}, s{sG8}, s40
    s_and_b32 s40, s{sM}, 7
    s_add_u32 s{sG8}, s{sG8}, s40
    s_mov_b32 s{sLAY}, 0
    s_mov_b32 s{sLB}, {WS_L0}
    s_mov_b32 s{sPH}, 0
    s_mov_b32 s{sFB}, {WS_FL}
    s_lshl_b32 s{sFL}, s2, 7
    s_add_u32 s{sFL}, s{sFL}, s{sFB}
    s_cmp_lt_u32 s{sW}, 2
    s_cselect_b32 s8, s78, s80
    s_cselect_b32 s9, s79, s81
    s_mov_b32 s10, {D*F*2}
    s_mov_b32 s11, 0x20000
    """)
    srd(c.a, 16, 82, D*F*2); srd(c.a, 20, 84, S*D*2)

def epilog(c):
    ts_dump(c)
    c.a(f"{c.name}_end:\ns_endpgm")
    for o in c.ool: c.a(o)

CW = 12928; C_O = 4192; C_U = 8320
A_LDS = 4*CW + 64
K_LDS = 70*1024
vQ = 232; vHK = 212
def pf_addr(a, vd, rows, base):
    a(f"""
    s_lshr_b32 s37, s2, 3
    s_lshl_b32 s37, s37, 1
    s_and_b32 s38, s{sW}, 1
    s_add_u32 s37, s37, s38
    s_mul_i32 s37, s37, {rows*7168}
    s_lshr_b32 s38, s{sM}, 3
    s_mul_i32 s38, s38, 1792
    s_add_u32 s37, s37, s38
    s_add_u32 s37, s37, {base}
    v_mul_u32_u24 v4, 4682, v{vLANE}
    v_lshrrev_b32 v4, 16, v4
    v_mul_u32_u24 v4, {7168 - 14*128}, v4
    v_lshl_add_u32 v4, v{vLANE}, 7, v4
    v_cmp_gt_u32 vcc, {rows*14}, v{vLANE}
    v_add_u32 v4, s37, v4
    s_nop 0
    v_cndmask_b32 v{vd}, -1, v4, vcc
    """)

def front(c):
    a = c.a
    K = 32; V = 60; TP = 76; KF = 92; TF = 148; T = 180; O = KF + 16
    a(f"""
    v_and_b32 v4, 7, v0                    ; cg
    v_lshrrev_b32 v5, 3, v0
    s_and_b32 s33, s2, 7
    s_lshr_b32 s34, s2, 3
    s_lshr_b32 s35, s34, 4
    s_and_b32 s34, s34, 15                 ; cbk
    s_lshl_b32 s33, s33, 1
    s_add_u32 s33, s33, s35
    s_add_u32 s33, s33, s34
    s_and_b32 s33, s33, 15                 ; tokblk
    s_lshl_b32 s35, s33, 18
    s_lshl_b32 s36, s34, 7
    s_add_u32 s35, s35, s36
    v_lshlrev_b32 v6, 13, v5
    v_lshl_add_u32 v6, v4, 4, v6
    v_add_u32 v11, s35, v6
    v_add_u32 v12, 4096, v11
    v_lshrrev_b32 v7, 3, v{vLANE}
    v_lshlrev_b32 v6, 11, v7
    v_lshl_add_u32 v6, v4, 4, v6
    s_lshl_b32 s36, s{sW}, 16
    s_add_u32 s35, s35, s36
    v_add_u32 v9, s35, v6
    v_cmp_lt_u32 vcc, 4, v7
    v_subrev_u32 v8, 16384, v9
    s_mul_i32 s52, s{sW}, 5120
    v_cndmask_b32 v8, -1, v8, vcc          ; k rows -3..-1
    s_add_u32 s52, s52, {K_LDS}
    s_mov_b32 m0, s52
    s_mov_b32 s53, {16384-1024}
    s_mov_b32 s54, {2*(16384-1024)}
    s_mov_b32 s55, {3*(16384-1024)}
    """)
    z = c.lab("nz")
    a(f"""
    s_lshl_b32 s36, s34, 9
    v_lshlrev_b32 v6, 6, v4
    v_mov_b64 v[16:17], 0
    v_mov_b64 v[18:19], 0
    s_lshl_b32 s46, s34, 10
    s_add_u32 s46, s46, {WS_FL}
    s_add_u32 s47, s46, {128*128}
    s_or_b32 s48, s33, s{sW}
    s_waitcnt lgkmcnt(0)
    s_cbranch_scc1 {z}
    buffer_store_dwordx4 v[16:19], v{vL16}, {SRD_WS}, s46 offen sc1
    buffer_store_dwordx4 v[16:19], v{vL16}, {SRD_WS}, s47 offen sc1
    {z}:
    """)
    srd(a, 88, 70, D*8); srd(a, 24, 66, S*D*2); srd(a, 28, 68, S*D*2)
    for i in range(4): a(f"buffer_load_dwordx4 v[{TP+4*i}:{TP+4*i+3}], v6, s[88:91], s36 offen offset:{16*i}")
    a(f"buffer_load_dwordx4 v8, {SRD_T}, 0 offen nt lds\ns_add_u32 m0, s52, 1024\ns_nop 0")
    for i in range(4): a(f"buffer_load_dwordx4 v9, {SRD_T}, {['0','s53','s54','s55'][i]} offen offset:{1024*i} nt lds")
    for i in range(4): a(f"buffer_load_dwordx4 v[{V+4*i}:{V+4*i+3}], v{11+(i>>1)}, {SRD_T2}, 0 offen offset:{2048*(i&1)} nt")
    z = c.lab("nz")
    srd(a, 88, 86, 256)
    a(f"""
    s_lshl_b32 s49, s34, 2
    s_cmp_lg_u32 s48, 0
    s_cbranch_scc1 {z}
    v_mov_b32 v20, 1
    s_waitcnt vmcnt(13)
    s_mov_b64 exec, 1
    buffer_store_dword v20, v16, s[88:91], s49 offen sc1
    s_mov_b64 exec, -1
    {z}:
    s_lshl_b32 s41, s34, 4
    s_add_u32 s41, s41, s33                ; g
    s_lshl_b32 s42, s41, 2
    s_add_u32 s42, s42, s{sW}              ; d
    s_lshl_b32 s43, s42, 12
    s_lshr_b32 s44, s42, 1
    s_lshl_b32 s44, s44, 2
    s_load_dword s45, s[74:75], s44
    s_mul_i32 s47, s{sW}, {CW}
    """)
    srd(a, 24, 72, S*D*2)
    prolog2(c)
    tl = c.opt.get('tlb', 0)
    if tl:
        a(f"""
        v_lshlrev_b32 v21, {tl}, v0
        s_lshl_b32 s37, s2, 7
        buffer_load_dword v25, v21, {SRD_WS}, s37 offen nt
        """)
    a(f"""
    v_lshrrev_b32 v7, 3, v{vLANE}
    v_lshlrev_b32 v7, 9, v7
    v_lshl_add_u32 v7, v4, 4, v7
    v_add_u32 v10, s52, v7
    v_mul_u32_u24 v6, 2064, v4
    v_sub_u32 v7, 31, v5
    v_lshl_add_u32 v6, v7, 3, v6
    v_add_u32 v6, {A_LDS}, v6
    v_lshrrev_b32 v7, 7, v0
    v_add_u32 v7, v7, v0
    v_lshlrev_b32 v7, 4, v7
    v_add_u32 v7, {A_LDS}, v7
    ; global store addr: ch*4096 + (tid&15)*16 ; soffset = cbk*64*4096 + (15-tokblk)*256
    v_lshrrev_b32 v4, 4, v0
    v_and_b32 v5, 15, v0
    v_lshlrev_b32 v5, 4, v5
    v_lshl_add_u32 v15, v4, 12, v5
    s_lshl_b32 s36, s34, 18
    s_sub_u32 s37, 15, s33
    s_lshl_b32 s37, s37, 8
    s_add_u32 s36, s36, s37
    s_add_u32 s36, s36, {WS_UT}
    """)
    stamp(c)
    a(f"s_waitcnt vmcnt({9 + (1 if tl else 0)})")
    for ch in range(8):
        for h in range(2):
            r = TP + 2*ch + h
            a(f"v_lshlrev_b32 v{TF+(2*h)*8+ch}, 16, v{r}\nv_and_b32 v{TF+(2*h+1)*8+ch}, s{sMASK}, v{r}")
    a(f"s_waitcnt vmcnt({4 + (1 if tl else 0)}) lgkmcnt(0)")
    for i in range(7): a(f"ds_read_b128 v[{K+4*i}:{K+4*i+3}], v10 offset:{(5+i)*128}")
    for i in range(7):
        a(f"s_waitcnt lgkmcnt({6-i})")
        for j in range(4):
            a(f"v_lshlrev_b32 v{KF+8*i+2*j}, 16, v{K+4*i+j}\nv_and_b32 v{KF+8*i+2*j+1}, s{sMASK}, v{K+4*i+j}")
    NX = 1 if tl else 0
    for t in range(4):
        for tap in range(4):
            for p in range(4):
                d = T + 8*t + 2*p; kk = KF + 8*(t+3-tap) + 2*p; w = TF + 8*tap + 2*p
                if tap == 0: a(f"v_pk_mul_f32 v[{d}:{d+1}], v[{kk}:{kk+1}], v[{w}:{w+1}]")
                else: a(f"v_pk_fma_f32 v[{d}:{d+1}], v[{kk}:{kk+1}], v[{w}:{w+1}], v[{d}:{d+1}]")
    for t in range(4):
        a(f"s_waitcnt vmcnt({3-t+NX})")
        for j in range(4):
            a(f"v_lshlrev_b32 v{KF+2*j}, 16, v{V+4*t+j}\nv_and_b32 v{KF+2*j+1}, s{sMASK}, v{V+4*t+j}")
        for p in range(4):
            d = T + 8*t + 2*p
            a(f"v_pk_mul_f32 v[{d}:{d+1}], v[{d}:{d+1}], v[{KF+2*p}:{KF+2*p+1}]")
    for ch in range(8):
        a(f"v_cvt_pk_bf16_f32 v{O+2*ch}, v{T+24+ch}, v{T+16+ch}\nv_cvt_pk_bf16_f32 v{O+2*ch+1}, v{T+8+ch}, v{T+ch}")
        a(f"ds_write_b64 v6, v[{O+2*ch}:{O+2*ch+1}] offset:{256*ch}")
    a("s_waitcnt lgkmcnt(0)\ns_barrier")
    stamp(c)
    for i in range(4): a(f"ds_read_b128 v[{K+4*i}:{K+4*i+3}], v7 offset:{i*2*2064}")
    for i in range(4):
        a(f"s_waitcnt lgkmcnt({3-i})")
        a(f"buffer_store_dwordx4 v[{K+4*i}:{K+4*i+3}], v15, {SRD_WS}, s36 offen sc1")
        a(f"s_add_u32 s36, s36, {16*4096}")
    if c.opt.get('x_nodbg'): a("v_mov_b32 v20, 1")
    else: a(f"buffer_load_dword v20, v16, s[88:91], s49 offen sc1")
    if c.opt.get('x_st'): a("s_waitcnt vmcnt(0)"); stamp(c)
    a("s_add_u32 m0, s47, 32\ns_nop 0")
    for i in range(4): a(f"buffer_load_dwordx4 v{vL16}, {SRD_T}, s43 offen offset:{1024*i} nt lds")
    NX = 4
    if c.opt.get('pf_code', 1):
        NX = 5
        a(f"""
        v_lshlrev_b32 v22, 7, v0
        s_getpc_b64 s[50:51]
        {c.name[:6]}_pc:
        v_min_u32 v22, {c.name}_end-{c.name[:6]}_pc, v22
        v_mov_b32 v23, s51
        v_add_co_u32 v22, vcc, s50, v22
        s_nop 1
        v_addc_co_u32 v23, vcc, 0, v23, vcc
        global_load_dword v24, v[22:23], off
        """)
    ok = c.lab("boot")
    signal(c, vm=NX, pre=f"v_cmp_ne_u32 vcc, 0, v20\ns_cbranch_vccnz {ok}\n" + poll(c, "s[88:91]", 4, "s49", "", 1) + f"{ok}:")
    stamp(c)
    ACC = 32; FA = 64; FB = 128
    def fa(s, i): return FA + (s*8 + i)*4
    def fb(s, i): return FB + (s*8 + i)*4
    vA = [8, 9, 10, 11]; vB = 12; AD = 16
    a(f"""
    v_min_u32 v6, 33, v{vLANE}
    v_lshlrev_b32 v6, 4, v6
    v_cmp_lt_u32 vcc, 1, v{vLANE}
    v_mov_b32 v7, {C_O-32-32}
    v_mov_b32 v13, {C_U+4096-64}
    v_cndmask_b32 v7, 0, v7, vcc
    v_cmp_lt_u32 vcc, 3, v{vLANE}
    v_mov_b64 v[20:21], 0
    v_mov_b64 v[22:23], 0
    v_cndmask_b32 v7, v7, v13, vcc
    v_add3_u32 v6, v6, v7, s47
    ds_write_b128 v6, v[20:23]
    v_add_u32 v15, s47, v{vL16}
    """)
    a(f"""
    v_and_b32 v6, 15, v{vLANE}             ; b
    v_lshrrev_b32 v7, 4, v{vLANE}          ; q
    v_add_u32 v13, 1, v6
    v_lshrrev_b32 v13, 1, v13
    v_lshl_add_u32 v13, v7, 2, v13
    v_lshlrev_b32 v13, 2, v13
    v_and_b32 v14, 1, v6
    v_xor_b32 v14, 1, v14
    v_mul_u32_u24 v14, {C_O-28}, v14
    v_add3_u32 v{vA[0]}, v13, v14, s47
    v_add_u32 v{vA[1]}, 1024, v{vA[0]}
    v_add_u32 v{vA[2]}, 2048, v{vA[0]}
    v_add_u32 v{vA[3]}, 3072, v{vA[0]}
    v_lshlrev_b32 v13, 5, v6
    v_lshlrev_b32 v14, 4, v7
    v_sub_u32 v13, v14, v13
    s_add_u32 s37, s47, {C_U + 2*(S-16) - 512*7}
    v_add_u32 v{vB}, s37, v13
    v_lshl_add_u32 v13, v7, 3, v6
    v_sub_u32 v13, 15, v13
    v_and_b32 v14, 1, v13
    v_lshlrev_b32 v14, 4, v14
    v_ashrrev_i32 v13, 1, v13
    s_and_b32 s37, s42, 1
    s_lshl_b32 s37, s37, 4
    s_lshr_b32 s45, s45, s37
    s_and_b32 s45, s45, 0xffff
    v_lshlrev_b32 v14, v14, s45
    """)
    for i in range(4):
        a(f"v_cmp_eq_u32 vcc, {i}, v13\ns_nop 1\nv_cndmask_b32 v{AD+i}, 0, v14, vcc")
    def reads(s, j):
        B = [f"ds_read_b128 v[{fb(s,i)}:{fb(s,i)+3}], v{vB} offset:{512*(7-i)+64*j}" for i in range(8)]
        A = []
        for i in range(8):
            o = (i & 1)*128 + 16*j; r = fa(s, i)
            A.append(f"ds_read2_b32 v[{r}:{r+1}], v{vA[i>>1]} offset0:{o} offset1:{o+1}")
            A.append(f"ds_read2_b32 v[{r+2}:{r+3}], v{vA[i>>1]} offset0:{o+2} offset1:{o+3}")
        return B + A
    R = reads(0, 0)
    a(f"s_waitcnt vmcnt({NX-4})")
    for i in range(4):
        a(f"ds_read_b128 v[{vHK+4*i}:{vHK+4*i+3}], v15 offset:{32+1024*i}\nds_read_b32 v{vHK+16+i}, v15 offset:{28+1024*i}")
    a("s_waitcnt lgkmcnt(0)")
    for i in range(4):
        r = vHK + 4*i; o = FB + 4*i
        a(f"v_alignbit_b32 v{o}, v{r}, v{vHK+16+i}, 16")
        for j in range(1, 4): a(f"v_alignbit_b32 v{o+j}, v{r+j}, v{r+j-1}, 16")
        a(f"ds_write_b128 v15, v[{o}:{o+3}] offset:{C_O+1024*i}")
    for l in R[8:]: a(l)
    a(f"""
    s_add_u32 s43, s43, {WS_UT}
    v_and_b32 v4, 7, v{vLANE}
    v_lshrrev_b32 v5, 3, v{vLANE}
    v_lshl_add_u32 v4, v5, 7, v4
    v_lshlrev_b32 v4, 7, v4
    s_lshl_b32 s37, s34, 10
    v_add_u32 v4, s37, v4
    v_mov_b32 v20, v7
    """)
    wait(c, 4, "s_mov_b64 exec, 0xffff")
    a("v_mov_b32 v7, v20")
    stamp(c)
    a(f"s_add_u32 m0, s47, {C_U}\ns_nop 0")
    for i in range(4):
        a(f"buffer_load_dwordx4 v{vL16}, {SRD_WS}, s43 offen offset:{1024*i} sc1 lds")
    srd(a, 24, 64, S*D*2)
    a(f"""
    v_and_b32 v13, 7, v{vLANE}
    v_lshrrev_b32 v14, 3, v{vLANE}
    v_lshlrev_b32 v14, 4, v14
    v_lshl_add_u32 v13, v13, 11, v14
    s_lshl_b32 s37, s{sG8}, 14
    s_lshl_b32 s38, s{sW}, 9
    s_add_u32 s37, s37, s38
    s_waitcnt vmcnt(0)
    """)
    for l in R[:8]: a(l)
    amain = a; a = Asm()
    for i in range(4): a(f"buffer_load_dwordx4 v[{vQ+4*i}:{vQ+4*i+3}], v13, {SRD_T}, s37 offen offset:{128*i} nt")
    npf = c.opt.get('pf_front', 1)
    if c.opt.get('pf_x', 0):
        pf_addr(a, 14, 4, 0)
        a(f"buffer_load_dword v21, v14, {SRD_W}, 0 offen {c.opt.get('pf_aux', '')}")
    elif npf:
        a(f"""
        s_lshl_b32 s37, s2, 1
        s_and_b32 s38, s{sW}, 1
        s_add_u32 s37, s37, s38
        s_lshl_b32 s37, s37, {c.opt.get('pf_shift', 12)}
        v_lshlrev_b32 v14, 7, v{vLANE}
        v_and_b32 v14, {(1 << c.opt.get('pf_shift', 12)) - 1}, v14
        buffer_load_dword v21, v14, {SRD_W}, s37 offen
        """)
        if npf == 2: a(f"v_add_u32 v14, s37, v14\nv_add_u32 v14, {4*MB}, v14\nbuffer_load_dword v21, v14, {SRD_W}, 0 offen")
    late = a.text(); a = amain
    pit = c.opt.get('pf_it', 1)
    if pit == 0: a(late)
    stamp(c)
    a("s_waitcnt lgkmcnt(0)")
    for n in range(8):
        cc = ACC + 4*n
        a(f"{MF} v[{cc}:{cc+3}], v[{AD}:{AD+3}], v[{fb(0,n)}:{fb(0,n)+3}], 0")
    lp = c.lab("cv")
    a("s_mov_b64 vcc, 0")
    a(f"s_mov_b32 s48, 4\n{lp}:")
    if pit:
        o = c.lab("cvo"); b = c.lab("cvb")
        a(f"s_cbranch_vccnz {o}\n{b}:")
        c.ool.append(f"{o}:\n{late}\ns_branch {b}")
    for j in range(2):
        a("s_waitcnt lgkmcnt(0)")
        R = reads(j ^ 1, j + 1)
        k = 0
        for i in range(8):
            for n in range(i, 8):
                cc = ACC + 4*n
                a(f"{MF} v[{cc}:{cc+3}], v[{fa(j,i)}:{fa(j,i)+3}], v[{fb(j,n-i)}:{fb(j,n-i)+3}], v[{cc}:{cc+3}]")
                if k < 24: a(R[k])
                if j == 1 and 24 <= k < 29:
                    r = (vA + [vB])[k-24]; a(f"v_add_u32 v{r}, 128, v{r}")
                if j == 1 and k == 29: a("s_sub_u32 s48, s48, 1")
                if j == 1 and k == 30: a(f"s_cmp_eq_u32 s48, {4-pit}")
                if j == 1 and k == 31: a("s_cselect_b64 vcc, -1, 0")
                if j == 1 and k == 32: a("s_cmp_lg_u32 s48, 0")
                k += 1
    a(f"s_cbranch_scc1 {lp}")
    stamp(c)
    a(f"""
    v_mul_u32_u24 v13, 160, v7
    v_lshl_add_u32 v13, v6, 3, v13
    v_add_u32 v13, s47, v13
    v_bfe_u32 v14, v{vLANE}, 1, 2
    v_mul_u32_u24 v14, 160, v14
    v_lshrrev_b32 v15, 3, v{vLANE}
    v_lshl_add_u32 v14, v15, 3, v14
    v_and_b32 v4, 1, v{vLANE}
    v_lshl_add_u32 v14, v4, 2, v14
    s_mul_i32 s37, s{sW}, 1280
    v_add_u32 v14, s37, v14
    s_waitcnt lgkmcnt(0)
    """)
    for n in range(8):
        cc = ACC + 4*n
        a(f"v_cvt_pk_bf16_f32 v{cc}, v{cc}, v{cc+1}\nv_cvt_pk_bf16_f32 v{cc+1}, v{cc+2}, v{cc+3}")
        a(f"ds_write_b64 v13, v[{cc}:{cc+1}] offset:{640*n}")
    a(f"""
    v_and_b32 v4, 7, v{vLANE}
    v_lshlrev_b32 v4, 4, v4
    v_lshl_add_u32 v15, v15, 15, v4
    s_lshl_b32 s37, s{sW}, 20
    s_lshl_b32 s38, s41, 7
    s_add_u32 s37, s37, s38
    s_add_u32 s37, s37, {WS_Y}
    s_mov_b32 s38, 0x05040100
    s_mov_b32 s39, 0x07060302
    s_waitcnt lgkmcnt(0)
    s_barrier
    """)
    for g in range(4):
        for ch in range(4):
            a(f"ds_read_b32 v{FA+4*g+ch}, v14 offset:{ch*CW + (g>>1)*640 + (g&1)*64}")
    for g in range(4):
        r = FA + 4*g; o = FB + 4*g
        a(f"s_waitcnt lgkmcnt({12-4*g})")
        a(f"v_perm_b32 v{o}, v{r+1}, v{r}, s38\nv_perm_b32 v{o+1}, v{r+3}, v{r+2}, s38")
        a(f"v_perm_b32 v{o+2}, v{r+1}, v{r}, s39\nv_perm_b32 v{o+3}, v{r+3}, v{r+2}, s39")
        a(f"buffer_store_dwordx4 v[{o}:{o+3}], v15, {SRD_WS}, s37 offen sc1")
        a(f"s_add_u32 s37, s37, {8*32768}")
    a(f"""
    v_and_b32 v4, 15, v{vLANE}
    v_lshlrev_b32 v249, 2, v4
    buffer_load_dword v248, v249, s[88:91], 0 offen sc1
    v_lshlrev_b32 v250, 7, v0
    v_and_b32 v4, 7, v{vLANE}
    v_bfe_u32 v5, v{vLANE}, 3, 2
    v_lshlrev_b32 v4, 5, v4
    v_lshl_or_b32 v4, v5, 1, v4
    s_and_b32 s37, s2, 0x19
    v_or_b32 v4, s37, v4
    v_lshlrev_b32 v{vFL}, 7, v4
    """)
    stamp(c)

XF, YF, RW, LO = 32, 64, 96, 128
def ln_stats(c, off):
    a = c.a
    a(f"v_pk_add_f32 v[28:29], v[{XF}:{XF+1}], v[{XF+2}:{XF+3}]")
    a(f"v_pk_mul_f32 v[6:7], v[{XF}:{XF+1}], v[{XF}:{XF+1}]")
    a(f"v_pk_fma_f32 v[6:7], v[{XF+2}:{XF+3}], v[{XF+2}:{XF+3}], v[6:7]")
    for i in range(2, 16):
        a(f"v_pk_add_f32 v[28:29], v[28:29], v[{XF+2*i}:{XF+2*i+1}]")
        a(f"v_pk_fma_f32 v[6:7], v[{XF+2*i}:{XF+2*i+1}], v[{XF+2*i}:{XF+2*i+1}], v[6:7]")
    a(f"""
    v_add_f32 v28, v28, v29
    v_add_f32 v29, v6, v7
    s_nop 1
    v_permlane32_swap_b32 v28, v29
    v_add_f32 v28, v28, v29
    v_mov_b32 v29, v28
    s_nop 1
    v_permlane16_swap_b32 v28, v29
    v_add_f32 v28, v28, v29
    s_nop 1
    v_add_f32_dpp v28, v28, v28 row_ror:8 row_mask:0xf bank_mask:0xf
    ds_write_b32 v26, v28 offset:{off}
    s_waitcnt lgkmcnt(0)
    s_barrier
    ds_read_b128 v[4:7], v27 offset:{off}
    ds_read_b128 v[{LO+16}:{LO+19}], v27 offset:{off+128}
    s_waitcnt lgkmcnt(1)
    v_pk_add_f32 v[4:5], v[4:5], v[6:7]
    s_waitcnt lgkmcnt(0)
    v_pk_add_f32 v[6:7], v[{LO+16}:{LO+17}], v[{LO+18}:{LO+19}]
    v_add_f32 v28, v4, v5
    v_add_f32 v29, v6, v7
    v_mul_f32 v28, 0x3a800000, v28
    v_mul_f32 v29, 0x3a800000, v29
    v_fma_f32 v29, -v28, v28, v29
    v_max_f32 v29, 0, v29
    v_cvt_pk_bf16_f32 v28, v28, v29
    v_and_b32 v29, s{sMASK}, v28
    v_lshlrev_b32 v28, 16, v28
    v_add_f32 v29, 0x3727c5ac, v29
    v_cvt_pk_bf16_f32 v29, v29, v29
    v_and_b32 v29, s{sMASK}, v29
    v_sqrt_f32 v29, v29
    s_nop 0
    v_cvt_pk_bf16_f32 v29, v29, v29
    v_and_b32 v29, s{sMASK}, v29
    v_rcp_f32 v29, v29
    s_nop 0
    """)
def unpack(a, dst, src, n):
    for j in range(n):
        a(f"v_lshlrev_b32 v{dst+2*j}, 16, v{src+j}\nv_and_b32 v{dst+2*j+1}, s{sMASK}, v{src+j}")

def ln_phase(c):
    a = c.a
    l1 = c.lab("ln1"); st = c.lab("lnst"); cm = c.lab("lncm")
    a(f"""
    v_and_b32 v4, 7, v{vLANE}              ; tok
    v_lshrrev_b32 v5, 3, v{vLANE}          ; c
    v_lshlrev_b32 v6, 8, v5
    v_lshl_add_u32 v24, v4, 4, v6
    v_lshl_add_u32 v1, v4, 3, v6
    v_and_b32 v6, 0x3ff, v24
    v_lshrrev_b32 v7, 2, v5
    v_lshl_add_u32 v25, v7, 14, v6
    v_lshlrev_b32 v27, 4, v4
    v_add_u32 v27, {LDS_RED}, v27
    s_lshl_b32 s33, s{sW}, 2
    v_lshl_add_u32 v26, v7, 7, v27
    v_add_u32 v26, s33, v26
    s_lshr_b32 s33, s{sG8}, 1
    s_lshl_b32 s33, s33, 15
    s_lshl_b32 s34, s{sW}, 13
    s_add_u32 s33, s33, s34
    s_and_b32 s34, s{sG8}, 1
    s_lshl_b32 s35, s34, 6
    s_add_u32 s33, s33, s35                ; Y offset
    s_add_u32 s36, s33, s35                ; B16 offset
    s_add_u32 s33, s33, {WS_Y}
    s_lshl_b32 s37, s{sTB}, 19
    s_lshl_b32 s35, s{sW}, 17
    s_add_u32 s37, s37, s35
    s_bfe_u32 s35, s{sG8}, 0x40001
    s_lshl_b32 s35, s35, 10
    s_add_u32 s37, s37, s35
    s_lshl_b32 s35, s34, 7
    s_add_u32 s37, s37, s35
    s_add_u32 s37, s37, s{sLB}
    s_cmp_lg_u32 s{sLAY}, 0
    s_cbranch_scc1 {l1}
    """)
    unpack(a, XF, vQ, 16)
    a(f"s_branch {st}\n{l1}:")
    for j in range(16): a(f"v_accvgpr_read_b32 v{LO+j}, a{aX+j}")
    unpack(a, XF, LO, 16)
    for j in range(16): a(f"v_accvgpr_read_b32 v{LO+j}, a{aY+j}")
    unpack(a, YF, LO, 16)
    a(f"s_add_u32 s38, s36, {LY.P}\ns_mov_b32 s34, 0x3f80\ns_mov_b32 s35, 0x3f800000")
    wait(c, vFL, M_TH)
    stamp(c)
    for h in range(2):
        for p in range(2):
            for i in (2*h, 2*h+1):
                r = RW + 16*p + 4*i
                a(f"buffer_load_dwordx4 v[{r}:{r+3}], v24, {SRD_WS}, s38 offen offset:{(i&1)*2048} sc1")
            a(f"s_add_u32 s38, s38, {4*MB if p == 0 else (4096 - 4*MB) & 0xffffffff}")
    k = 7
    for h in range(2):
        for p in range(2):
            for i in (2*h, 2*h+1):
                a(f"s_waitcnt vmcnt({k})"); k -= 1
                for j in range(4):
                    r = RW + 16*p + 4*i + j; x = XF + 8*i + 2*j
                    a(f"v_dot2_f32_bf16 v{x}, v{r}, s34, v{x}\nv_dot2_f32_bf16 v{x+1}, v{r}, s35, v{x+1}")
    if c.opt.get('round_x2', 1):
        for j in range(16): a(f"v_cvt_pk_bf16_f32 v{LO+j}, v{XF+2*j}, v{XF+2*j+1}")
        unpack(a, XF, LO, 16)
    a(f"{st}:")
    ln_stats(c, 0)
    a(f"s_cmp_lg_u32 s{sLAY}, 0\ns_cbranch_scc1 {cm}")
    ok = c.lab("boot")
    wait(c, 250, "", every=True, pre=f"v_cmp_eq_u32 vcc, 0, v248\ns_cbranch_vccz {ok}\n" + poll(c, "s[88:91]", 249, "0", "", 1) + f"{ok}:")
    stamp(c)
    for i in range(4):
        for k in range(2):
            r = RW + 4*i + 2*k
            a(f"buffer_load_dwordx2 v[{r}:{r+1}], v1, {SRD_WS}, s33 offen offset:{(i&1)*2048 + k*128} sc1")
        if i == 1: a("s_add_u32 s33, s33, 4096")
    for i in range(4):
        a(f"s_waitcnt vmcnt({6-2*i})")
        unpack(a, YF+8*i, RW+4*i, 4)
    a(f"{cm}:")
    stamp(c)
    for j in range(16):
        x = XF + 2*j; y = YF + 2*j
        a(f"v_pk_mul_f32 v[{y}:{y+1}], v[{y}:{y+1}], v[28:29] op_sel:[0,1] op_sel_hi:[1,1]")
        a(f"v_pk_add_f32 v[6:7], v[{x}:{x+1}], v[28:29] op_sel_hi:[1,0] neg_lo:[0,1] neg_hi:[0,1]")
        a(f"v_pk_fma_f32 v[{x}:{x+1}], v[6:7], v[{y}:{y+1}], v[{x}:{x+1}]")
        if c.opt.get('round_x1', 1):
            a(f"v_cvt_pk_bf16_f32 v{LO+j}, v{XF+2*j}, v{XF+2*j+1}")
            unpack(a, XF+2*j, LO+j, 1)
    ln_stats(c, 256)
    for j in range(16):
        x = XF + 2*j
        if not c.opt.get('round_x1', 1): a(f"v_cvt_pk_bf16_f32 v{LO+j}, v{x}, v{x+1}")
        a(f"v_pk_add_f32 v[{x}:{x+1}], v[{x}:{x+1}], v[28:29] op_sel_hi:[1,0] neg_lo:[0,1] neg_hi:[0,1]")
        a(f"v_pk_mul_f32 v[{x}:{x+1}], v[{x}:{x+1}], v[28:29] op_sel:[0,1] op_sel_hi:[1,1]")
        a(f"v_cvt_pk_bf16_f32 v{YF+j}, v{x}, v{x+1}")
        if j % 4 == 3:
            a(f"buffer_store_dwordx4 v[{YF+j-3}:{YF+j}], v25, {SRD_WS}, s37 offen sc1\ns_add_u32 s37, s37, 32768")
    stamp(c)
    signal(c)
    stamp(c)
    dn = c.lab("lnd")
    a(f"""
    s_add_u32 s92, s36, {LY.XR}
    s_add_u32 s93, s36, {LY.XR + 4096}
    s_sub_u32 s35, s{sLAY}, 1
    v_or_b32 v28, s35, v24
    """)
    for j in range(16): a(f"v_accvgpr_write_b32 a{aX+j}, v{LO+j}")
    a(f"s_cbranch_scc0 {dn}")
    for j in range(16): a(f"v_accvgpr_write_b32 a{aY+j}, v{RW+j}")
    a(f"{dn}:")

ACC1 = 32
def g1_acc(t, j): return ACC1 + (t*7 + j)*4
def g1_xf(s, t): return s*60 + t*4
def g1_wf(s, j): return (s*60 + 32 if s < 2 else 120) + j*4
g1_vXA = [8, 9]; g1_vWA = [[10,11,12,13],[14,15,16,17]]; g1_vDW = [19,20,21,22]; g1_vPF = [18, 23]
def g1_dx(slot):
    return [f"s_add_u32 m0, s42, {slot*STAGE}"] + [f"buffer_load_dwordx4 v{vL16}, {SRD_WS}, s40 offen offset:{1024*i} {LY.sc} lds" for i in range(4)] + ["s_add_u32 s40, s40, 16384"]
def g1_dw(slot):
    return [f"s_add_u32 m0, s43, {slot*STAGE}"] + [f"buffer_load_dwordx4 v{g1_vDW[i]}, {SRD_W}, s41 offen offset:{1024*i} lds" for i in range(4)] + [f"s_add_u32 s41, s41, {32*7168}"]
def g1_rw(slot, s):
    h = slot >> 1; so = (slot & 1)*STAGE; W = []
    for j in range(7):
        va = g1_vWA[h][j % 3] if j < 6 else g1_vWA[h][3]
        off = so + (UOFF if 3 <= j < 6 else 0); r = g1_wf(s, j)
        W.append(f"ds_read_b64_tr_b16 a[{r}:{r+1}], v{va} offset:{off}")
        W.append(f"ds_read_b64_tr_b16 a[{r+2}:{r+3}], v{va} offset:{off+1024}")
    return W
def g1_rx(slot, s):
    h = slot >> 1; so = (slot & 1)*STAGE
    return [f"ds_read_b128 a[{g1_xf(s,t)}:{g1_xf(s,t)+3}], v{g1_vXA[h]} offset:{so+t*1024}" for t in range(8)]

def g1_pre(c):
    a = c.a; vDW = g1_vDW; vWA = g1_vWA; vXA = g1_vXA
    a(f"""
    s_and_b32 s44, s{sW}, 1
    s_lshr_b32 s45, s{sW}, 1
    s_and_b32 s46, s{sM}, 1
    s_mul_i32 s41, s44, {16*7168}
    s_mul_i32 s33, s{sM}, 224
    s_add_u32 s41, s41, s33
    s_lshl_b32 s33, s46, 5
    s_sub_u32 s41, s41, s33
    s_mul_i32 s43, s45, {UOFF}
    s_lshl_b32 s33, s44, 12
    s_add_u32 s43, s43, s33
    s_add_u32 s43, s43, 16384
    v_lshrrev_b32 v1, 4, v{vLANE}          ; q
    v_bfe_u32 v4, v{vLANE}, 1, 3
    v_xor_b32 v4, v4, v1
    v_and_b32 v5, 1, v{vLANE}
    v_lshlrev_b32 v5, 4, v5
    v_mul_u32_u24 v6, 7168, v1
    v_add_u32 v6, v6, v5
    v_lshl_add_u32 v{vDW[0]}, v4, 5, v6
    v_xor_b32 v4, 4, v4
    v_lshl_add_u32 v{vDW[2]}, v4, 5, v6
    v_add_u32 v{vDW[1]}, {4*7168-1024}, v{vDW[0]}
    v_add_u32 v{vDW[3]}, {3*(4*7168-1024)}, v{vDW[2]}
    v_add_u32 v{vDW[2]}, {2*(4*7168-1024)}, v{vDW[2]}
    s_barrier
    """)
    nb = c.opt.get('w_before', 0)
    for slot in range(4):
        if slot == nb:
            signal(c, vm=4*nb); stamp(c)
        o = g1_dw(slot); a(o[0]); a("s_nop 0")
        for l in o[1:]: a(l)
    if nb == 4:
        signal(c, vm=16); stamp(c)
    a(f"v_lshrrev_b32 v1, 4, v{vLANE}")
    a(f"""
    s_lshl_b32 s42, s{sW}, 12
    s_lshl_b32 s40, s{sTB}, 19
    s_add_u32 s40, s40, s42
    s_add_u32 s40, s40, s{sLB}
    s_lshl_b32 s33, s45, 13
    v_add_u32 v{vXA[0]}, s33, v{vL16}
    v_add_u32 v{vXA[1]}, {2*STAGE}, v{vXA[0]}
    v_bfe_u32 v4, v{vLANE}, 2, 2           ; r4
    v_and_b32 v5, 1, v1
    v_lshl_or_b32 v5, v5, 2, v4            ; sigma
    v_lshl_add_u32 v6, v1, 3, v4
    v_lshlrev_b32 v6, 8, v6
    v_add_u32 v6, 16384, v6
    v_and_b32 v7, 3, v{vLANE}
    v_lshl_add_u32 v1, v7, 3, v6
    s_lshl_b32 s33, s44, 2
    s_add_u32 s33, s33, s46
    """)
    for p in range(3):
        a(f"s_add_u32 s34, s33, {p}\nv_xor_b32 v4, s34, v5\nv_lshl_add_u32 v{vWA[0][p]}, v4, 5, v1")
    a(f"""
    s_add_u32 s34, s46, 3
    v_xor_b32 v4, s34, v5
    v_lshl_add_u32 v6, v4, 5, v6
    v_and_b32 v4, 1, v7
    v_lshl_add_u32 v6, v4, 3, v6
    v_lshrrev_b32 v4, 1, v7
    v_mul_u32_u24 v4, {UOFF}, v4
    s_lshl_b32 s34, s44, 4
    v_add3_u32 v{vWA[0][3]}, v6, v4, s34
    """)
    for p in range(4): a(f"v_add_u32 v{vWA[1][p]}, {2*STAGE}, v{vWA[0][p]}")
    d = c.opt.get('pf_dist', 2)
    who = c.opt.get('pf_who', 0)
    if who:
        a(f"""
        s_add_u32 s34, s{sM}, 1
        s_bfe_u32 s34, s34, 0x10001
        s_sub_u32 s34, s34, 1
        s_lshr_b32 s35, s{sM}, 1
        s_lshl_b32 s35, s35, 3
        s_add_u32 s35, s35, s{sTB}             ; 0..127
        """)
    else: a("s_mov_b32 s34, -1\ns_mov_b32 s35, s2")
    a(f"""
    s_lshl_b32 s33, s35, 1
    s_add_u32 s33, s33, s44
    s_mul_i32 s33, s33, {14*128 << who}
    s_add_u32 s33, s33, {d*128*7168}
    v_lshlrev_b32 v4, 7, v{vLANE}
    v_add_u32 v5, s33, v4
    s_and_b32 s33, s34, {14 << who}
    v_cmp_gt_u32 vcc, s33, v{vLANE}
    s_lshl_b32 s33, s35, 2
    s_add_u32 s33, s33, s{sW}
    v_cndmask_b32 v{g1_vPF[0]}, -1, v5, vcc
    s_lshl_b32 s33, s33, {10 + who}
    v_add_u32 v5, s33, v4
    s_and_b32 s33, s34, {8 << who}
    v_cmp_gt_u32 vcc, s33, v{vLANE}
    s_mov_b32 s48, 0
    s_mov_b32 s49, 0
    v_cndmask_b32 v{g1_vPF[1]}, -1, v5, vcc
    """)
    if c.opt.get('pf_x', 0): pf_addr(a, g1_vPF[0], 2, d*128*7168)

class Hz:
    def __init__(self, a): self.a = a; self.n = 0; self.mf = {}; self.va = {}; self.st = {}
    def need(self, kind, rd, wr):
        w = 0
        for r in list(rd) + list(wr): w = max(w, self.mf.get(r, -99) + 9 - self.n)
        if kind == 'perm':
            for r in rd: w = max(w, self.va.get(r, -99) + 3 - self.n)
        if kind != 'store':
            for r in wr: w = max(w, self.st.get(r, -99) + 3 - self.n)
        return w
    def mfma(self, s, d):
        self.a(s)
        for r in range(d, d+4): self.mf[r] = self.n
        self.n += 1
    def raw(self, s): self.a(s); self.n += 1
    def op(self, o):
        kind, s, rd, wr = o
        w = self.need(kind, rd, wr)
        if w > 0: self.a(f"s_nop {w-1}"); self.n += w
        self.a(s)
        if kind == 'store':
            for r in rd: self.st[r] = self.n
        else:
            for r in wr: self.va[r] = self.n
        self.n += 1
def o_mul(d, x, y): return ('valu', f"v_mul_f32 v{d}, v{x}, v{y}", [x, y], [d])
def o_cvt(d, x): return ('valu', f"v_cvt_pk_bf16_f32 v{d}, v{x}, v{x+1}", [x, x+1], [d])
def o_sw(n, x, y): return ('perm', f"v_permlane{n}_swap_b32 v{x}, v{y}", [x, y], [x, y])
def o_st(s, r): return ('store', s, list(range(r, r+4)), [])
def o_s(s): return ('salu', s, [], [])

def g1_main(c):
    a = c.a; acc = g1_acc
    for i in range(112): a(f"v_mov_b64 v[{ACC1+2*i}:{ACC1+2*i+1}], 0")
    wait(c, vFL, M_ALL)
    stamp(c)
    for slot in range(4):
        o = g1_dx(slot); a(o[0]); a("s_nop 0")
        for l in o[1:]: a(l)
    a(f"""
    s_lshl_b32 s59, s{sTB}, 3
    s_lshl_b32 s33, s45, 2
    s_add_u32 s59, s59, s33
    s_mul_i32 s59, s59, 229376
    s_lshr_b32 s33, s{sM}, 1
    s_mul_i32 s33, s33, {7*2048}
    s_add_u32 s59, s59, s33
    s_add_u32 s59, s59, s{sLB}
    s_add_u32 s59, s59, {L_H}
    s_lshl_b32 s34, s46, 1
    s_add_u32 s34, s34, s44                ; wv
    s_lshl_b32 s33, s34, 11
    v_add_u32 v24, s33, v{vL16}
    v_and_b32 v4, 15, v{vLANE}
    v_lshlrev_b32 v4, 4, v4
    v_lshrrev_b32 v5, 5, v{vLANE}
    v_lshl_add_u32 v4, v5, 10, v4
    v_bfe_u32 v5, v{vLANE}, 4, 1
    s_add_u32 s33, s46, 4
    s_lshl_b32 s33, s33, 11
    s_lshl_b32 s35, s44, 9
    s_add_u32 s33, s33, s35
    v_lshl_add_u32 v25, v5, 8, v4
    v_add_u32 v25, s33, v25
    s_lshl_b32 s33, s34, 8
    s_add_u32 s33, s33, {6*2048}
    v_mul_u32_u24 v5, 229376, v5
    v_add3_u32 v26, v4, v5, s33
    s_waitcnt vmcnt(12)
    s_barrier
    """)
    X = g1_rx(0, 0)
    for l in X[:1] + g1_rw(0, 0) + X[1:]: a(l)
    a("s_waitcnt vmcnt(8)")
    stamp(c)
    seq = [(t, (j if t % 2 == 0 else 6-j)) for t in range(8) for j in range(7)]
    def step(i4, dma, vm, gx=None):
        s = i4 & 1
        gaps = [[] for _ in range(56)]
        X = g1_rx((i4+1) % 4, s ^ 1)
        for k, l in enumerate(X[:1] + g1_rw((i4+1) % 4, s ^ 1) + X[1:]): gaps[1+k].append(l)
        if dma:
            p0 = c.opt.get('g1_dma0', 26); ds = c.opt.get('g1_dmas', 3)
            dx, dw = g1_dx(i4), g1_dw(i4)
            gaps[p0-1].append(dx[0])
            for i in range(4): gaps[p0+ds*i].append(dx[1+i])
            gaps[p0+ds*3+1].append(dx[5]); gaps[p0+ds*4-1].append(dw[0])
            for i in range(4): gaps[p0+ds*(4+i)].append(dw[1+i])
            gaps[p0+ds*7+1].append(dw[5])
        if gx:
            for g, l in gx: gaps[g].append(l)
        a(f"s_waitcnt vmcnt({vm}) lgkmcnt(0)")
        for n, (t, j) in enumerate(seq):
            cc = acc(t, j)
            a(f"{MF} v[{cc}:{cc+3}], a[{g1_wf(s,j)}:{g1_wf(s,j)+3}], a[{g1_xf(s,t)}:{g1_xf(s,t)+3}], v[{cc}:{cc+3}]")
            if n == 0: a("s_barrier")
            for l in gaps[n]: a(l)
    lp = c.lab("g1l")
    a(f"s_mov_b32 s47, 7\n{lp}:")
    pfm = c.opt.get('pf_g1', 1)
    pw = [(51, f"buffer_load_dword v27, v{g1_vPF[0]}, {SRD_W}, s48 offen {c.opt.get('pf_aux', '')}"), (52, f"s_add_u32 s48, s48, {128*7168}"),
          (53, f"s_min_u32 s48, s48, {(7-c.opt.get('pf_dist', 2))*128*7168}")]
    pd = [(50, f"buffer_load_dword v27, v{g1_vPF[1]}, {SRD_WD}, s49 offen"), (51, f"s_add_u32 s49, s49, {MB}")]
    p1 = [0, 1, 2, 1][pfm]; pf = [0, 1, 0, 0][pfm]
    step(0, True, 16 + p1 + pf)
    step(1, True, 12, gx=[[], pw, pw + pd, pd][pfm])
    step(2, True, 16 + p1)
    step(3, True, 16 + p1, gx=(pd if pfm == 1 else []) + [(53, "s_sub_u32 s47, s47, 1"), (54, "s_cmp_lg_u32 s47, 0")])
    a(f"s_cbranch_scc1 {lp}")
    gx = []
    for k, l in enumerate(g2_pre1(c)): gx.append((1 + k*22//40, l)) if False else gx.append((min(2 + k*3//4, 33), l))
    for k in range(4):
        o = g2_ldw(k); gx += [(34+5*k, o[0]), (35+5*k, o[1]), (37+5*k, o[2])]
    step(0, False, 16 + p1 + pf, gx=gx + [(24+2*i, f"buffer_store_dwordx4 a[{aX+4*i}:{aX+4*i+3}], v28, {SRD_WS}, s{92+(i>>1)} offen offset:{(i&1)*2048} sc1") for i in range(4)])
    gx = [(24, f"s_waitcnt vmcnt({12+pf})"), (25, "s_barrier")]
    for k in range(4, 7):
        o = g2_ldw(k); gx += [(6+6*k, o[0]), (7+6*k, o[1]), (10+6*k, o[2])]
    for k, l in enumerate(g1_rw(3, 2)): gx.append((26 + k, l))
    X = g1_rx(3, 1)
    for t in range(8): gx.append((max(40 + t, 7*t + 6), X[t]))
    step(1, False, 20 + pf, gx=gx)
    stamp(c)
    hz = Hz(a)
    ops = []
    jo = [0, 3, 1, 4, 2, 5, 6]
    st = "sc1"
    for t in range(8):
        base = 14*t
        g0, g1_, g2 = acc(t,0), acc(t,1), acc(t,2); d = acc(t, 3)
        for r in range(4): ops.append((base+3, o_mul(g0+r, g0+r, acc(t,3)+r)))
        ops += [(base+3, o_cvt(d, g0)), (base+3, o_cvt(d+1, g0+2))]
        for r in range(4): ops.append((base+7, o_mul(g1_+r, g1_+r, acc(t,4)+r)))
        ops += [(base+7, o_cvt(d+2, g1_)), (base+7, o_cvt(d+3, g1_+2))]
        ops.append((base+7, o_st(f"buffer_store_dwordx4 v[{d}:{d+3}], v24, {SRD_WS}, s59 offen offset:{(t&1)*1024} {st}", d)))
        for r in range(4): ops.append((base+11, o_mul(g2+r, g2+r, acc(t,5)+r)))
        b = acc(t & ~1, 4) + 2*(t & 1)
        ops += [(base+11, o_cvt(b, g2)), (base+11, o_cvt(b+1, g2+2))]
        if t & 1:
            b = acc(t & ~1, 4); o0, o1 = acc(t-1, 6), acc(t, 6)
            ops += [(base+11, o_sw(32, b, b+2)), (base+11, o_sw(32, b+1, b+3))]
            ops.append((base+11, o_st(f"buffer_store_dwordx4 v[{b}:{b+3}], v25, {SRD_WS}, s59 offen {st}", b)))
            for r in range(4): ops.append((base+13, o_sw(32, o0+r, o1+r)))
            for r in range(4): ops.append((base+13, o_mul(o0+r, o0+r, o1+r)))
            od = acc(t & ~3, 5) + ((t >> 1) & 1)*2
            ops += [(base+13, o_cvt(od, o0)), (base+13, o_cvt(od+1, o0+2))]
            if t & 3 == 3:
                od = acc(t & ~3, 5)
                ops.append((base+13, o_s("s_sub_u32 s32, s59, 229376")))
                ops += [(base+13, o_sw(16, od, od+2)), (base+13, o_sw(16, od+1, od+3))]
                ops.append((base+13, o_st(f"buffer_store_dwordx4 v[{od}:{od+3}], v26, {SRD_WS}, s32 offen {st}", od)))
            ops.append((base+13, o_s("s_add_u32 s59, s59, 229376")))
    hz.raw("s_waitcnt lgkmcnt(2)")
    n = 0; per = c.opt.get('g1_per', 2)
    for t in range(8):
        if t == 1: hz.raw("s_waitcnt lgkmcnt(0)")
        for j in jo:
            for k in range(2):
                cc = acc(t, j); w = g1_wf(0 if k == 0 else 2, j); x = g1_xf(k, t)
                hz.mfma(f"{MF} v[{cc}:{cc+3}], a[{w}:{w+3}], a[{x}:{x+3}], v[{cc}:{cc+3}]", cc)
                for _ in range(per):
                    if ops and ops[0][0] < n and hz.need(ops[0][1][0], ops[0][1][2], ops[0][1][3]) <= 0:
                        hz.op(ops.pop(0)[1])
                n += 1
    stamp(c)
    for _, o in ops: hz.op(o)
    stamp(c)
    signal(c)
    stamp(c)

G2_ACC, G2_H, G2_W, G2_RX, G2_RES = 32, 96, 152, 184, 216
g2_vRA = list(range(8, 16)); g2_vDW = 29; g2_vH = [17, 18]; g2_vO = 24; g2_vR = 25
def g2_acc(t, ct): return G2_ACC + (t*8 + ct)*4
def g2_h(k, t): return G2_H + (k*2 + t)*4
def g2_w(ct): return G2_W + ct*4
def g2_ldw(k):
    return [f"s_add_u32 m0, s54, {k*8192}",
            f"buffer_load_dwordx4 v{g2_vDW}, {SRD_WD}, s{40+2*k} offen lds",
            f"buffer_load_dwordx4 v{g2_vDW}, {SRD_WD}, s{41+2*k} offen offset:1024 lds"]
def g2_ldh(k, t):
    r = g2_h(k, t)
    return f"buffer_load_dwordx4 v[{r}:{r+3}], v{g2_vH[t]}, {SRD_WS}, s55 offen {LY.sc}"
def g2_rd(k, ct):
    r = g2_w(ct)
    return [f"ds_read_b64_tr_b16 v[{r}:{r+1}], v{g2_vRA[ct]} offset:{k*8192}",
            f"ds_read_b64_tr_b16 v[{r+2}:{r+3}], v{g2_vRA[ct]} offset:{k*8192+1024}"]

def g2_pre1(c, J=8):
    a = Asm()
    a(f"""
    s_lshr_b32 s57, s{sM}, 4                 ; kh
    s_and_b32 s33, s{sW}, 1
    s_lshr_b32 s34, s{sW}, 1
    s_lshl_b32 s54, s{sW}, 11                ; m0 base = w*2048
    s_lshl_b32 s35, s{sW}, 13                ; 4w rows
    s_add_u32 s40, s35, 0
    s_add_u32 s42, s35, {64*2048}
    s_add_u32 s44, s35, {112*2048}
    s_add_u32 s46, s35, {176*2048}
    s_lshl_b32 s35, s34, 17                  ; 64*(w>>1) rows
    s_lshl_b32 s36, s33, 13                  ; 4*(w&1) rows
    s_add_u32 s35, s35, s36
    s_add_u32 s48, s35, {32*2048}
    s_add_u32 s50, s35, {(32+112)*2048}
    s_mul_i32 s35, s34, {112*2048}
    s_lshl_b32 s36, s33, 14
    s_add_u32 s35, s35, s36
    s_add_u32 s52, s35, {48*2048}
    """)
    for k in range(7):
        a(f"s_add_u32 s{41+2*k}, s{40+2*k}, {(16 if k < 4 else 8 if k < 6 else 4)*2048 - 1024}")
    a(f"""
    v_lshrrev_b32 v4, 4, v{vLANE}            ; q
    v_bfe_u32 v5, v{vLANE}, 1, 3
    s_lshl_b32 s35, s33, 2
    v_or_b32 v6, s35, v4
    v_xor_b32 v5, v5, v6
    v_and_b32 v6, 1, v{vLANE}
    v_lshlrev_b32 v6, 4, v6
    v_lshl_add_u32 v5, v5, 5, v6
    v_lshl_add_u32 v5, v4, 11, v5
    s_and_b32 s35, s{sM}, 7
    s_lshl_b32 s35, s35, 8                   ; cb*256
    s_mul_i32 s36, s57, {(16-J)*224*2048}
    s_add_u32 s35, s35, s36
    v_add_u32 v{g2_vDW}, s35, v5
    """)
    return [l.strip() for l in a.lines]

def g2_pre(c, J=8):
    a = c.a
    a(f"v_lshrrev_b32 v4, 4, v{vLANE}")
    a(f"""
    s_xor_b32 s54, s54, 0x10000
    v_add_u32 v{g2_vDW}, {224*2048}, v{g2_vDW}
    v_bfe_u32 v5, v{vLANE}, 2, 2
    v_lshl_add_u32 v6, v4, 3, v5
    v_lshlrev_b32 v6, 8, v6
    v_and_b32 v7, 1, v4
    v_lshl_or_b32 v5, v7, 2, v5
    v_and_b32 v7, 3, v{vLANE}
    v_lshl_add_u32 v6, v7, 3, v6
    """)
    for ct in range(8):
        a(f"v_xor_b32 v7, {ct}, v5\nv_lshl_add_u32 v{g2_vRA[ct]}, v7, 5, v6")
    a(f"""
    s_lshl_b32 s58, s{sTB}, 3
    s_bfe_u32 s35, s{sM}, 0x10003
    s_lshl_b32 s35, s35, 2
    s_add_u32 s58, s58, s35
    s_add_u32 s58, s58, s{sW}
    s_mul_i32 s55, s58, 229376
    s_mul_i32 s36, s57, {(16-J)*7*2048}
    s_add_u32 s55, s55, s36
    s_add_u32 s55, s55, s{sLB}
    s_add_u32 s55, s55, {L_H}
    s_lshl_b32 s35, s57, 10
    v_add_u32 v{g2_vH[0]}, s35, v{vL16}
    v_xor_b32 v{g2_vH[1]}, 1024, v{g2_vH[0]}
    """)


def g2_main(c):
    a = c.a; abl = ''
    for i in range(32): a(f"v_mov_b64 v[{G2_ACC+2*i}:{G2_ACC+2*i+1}], 0")
    wait(c, vFL, M_KH)
    stamp(c)
    for k in range(6):
        a(g2_ldh(k, 0)); a(g2_ldh(k, 1)); a("s_add_u32 s55, s55, 2048")
    a(f"""
    s_lshl_b32 s39, s58, 1
    s_add_u32 s39, s39, s57
    s_lshl_b32 s39, s39, 15
    s_and_b32 s35, s{sM}, 7
    v_lshrrev_b32 v4, 4, v{vLANE}
    v_and_b32 v6, 1, v4
    v_lshrrev_b32 v4, 1, v4
    v_lshl_or_b32 v4, v6, 1, v4              ; chunk = [0,2,1,3][q]
    v_and_b32 v6, 15, v{vLANE}
    v_lshlrev_b32 v7, 4, v6
    v_lshl_add_u32 v{g2_vR}, v4, 8, v7
    v_lshlrev_b32 v7, 4, v4
    v_lshl_add_u32 v{g2_vO}, v6, 11, v7
    s_lshl_b32 s36, s35, 12
    s_add_u32 s36, s36, s39                  ; B16 offset
    s_lshl_b32 s35, s35, 8
    s_add_u32 s39, s39, s35
    s_waitcnt vmcnt(10)
    s_barrier
    """)
    for ct in range(8):
        for l in g2_rd(0, ct): a(l)
    stamp(c)
    def step(k, nt, ldh, ldw, vm, extra=None, last=False):
        W = g2_ldw(k) if ldw else []
        kk = (k + 6) % 7
        tog = (k == 6 and not last)
        if nt == 2:
            gaps = [[] for _ in range(16)]
            for ct in range(8):
                if last or 'R' in abl: break
                r = g2_rd((k+1) % 7, ct)
                if tog: gaps[2*ct].append(f"v_xor_b32 v{g2_vRA[ct]}, 0x10000, v{g2_vRA[ct]}")
                gaps[2*ct+1].append(r[0]); gaps[min(2*ct+2, 15)].append(r[1])
            fill = [g2_ldh(kk, t) for t in range(ldh)]
            if ldh: fill.append("s_add_u32 s55, s55, 2048")
            fill += W
            P = [2, 6, 8, 9, 10, 14] if not tog else [1, 5, 5, 9, 13, 13]
            if tog: P = [1, 5, 9, 9, 10, 13]
            for p_, f in zip(P, fill): gaps[p_].append(f)
            if extra:
                for i_, e in enumerate(extra): gaps[4*i_].extend(e)
            for g in (3, 7, 11):
                ct = (g+1)//2
                gaps[g].append(f"s_waitcnt lgkmcnt({11 if not last else 12-2*ct})")
            a(f"s_waitcnt vmcnt({vm}) lgkmcnt(12)")
            for g in range(16):
                ct, t = g >> 1, (g & 1) ^ ((g >> 1) & 1)
                cc = g2_acc(t, ct)
                if 'M' not in abl: a(f"{MF} v[{cc}:{cc+3}], v[{g2_w(ct)}:{g2_w(ct)+3}], v[{g2_h(k,t)}:{g2_h(k,t)+3}], v[{cc}:{cc+3}]")
                if g == 0 and not last: a("s_barrier")
                for l in gaps[g]: a(l)
            return
    loop = c.lab("g2loop")
    a(f"s_mov_b32 s56, 7\ns_mov_b64 vcc, -1\n{loop}:")
    for k in range(7):
        if 1 <= k <= 4:
            o = c.lab("g2f"); b = c.lab("g2b")
            a(f"s_cbranch_vccnz {o}\n{b}:")
            c.ool.append(f"{o}:\ns_waitcnt vmcnt({10+2*k})\n" + ("s_mov_b64 vcc, 0\n" if k == 4 else "") + f"s_branch {b}")
        step(k, 2, 2, True, 20)
    a(f"s_xor_b32 s54, s54, 0x10000\nv_add_u32 v{g2_vDW}, {224*2048}, v{g2_vDW}")
    a(f"s_sub_u32 s56, s56, 1\ns_cmp_lg_u32 s56, 0\ns_cbranch_scc1 {loop}")
    for k in range(7):
        step(k, 2, 2 if k == 0 else 0, False, [20, 18, 14, 10, 6, 2, 0][k], last=(k == 6))
    stamp(c)
    fin = c.lab("g2fin")
    a(f"s_cmp_lg_u32 s{sLAY}, 0\ns_cbranch_scc1 {fin}")
    a(f"""
    s_lshl_b32 s35, s57, 22
    s_add_u32 s35, s35, {LY.P}
    s_xor_b32 s37, s36, 0x8000
    s_add_u32 s36, s36, s35
    s_add_u32 s37, s37, s35
    """)
    for p in range(4):
        for t in range(2):
            c0, c1 = g2_acc(t, 2*p), g2_acc(t, 2*p+1)
            a(f"v_cvt_pk_bf16_f32 v{c0}, v{c0}, v{c0+1}\nv_cvt_pk_bf16_f32 v{c0+1}, v{c0+2}, v{c0+3}")
            a(f"v_cvt_pk_bf16_f32 v{c0+2}, v{c1}, v{c1+1}\nv_cvt_pk_bf16_f32 v{c0+3}, v{c1+2}, v{c1+3}")
            a(f"s_nop 1\nv_permlane16_swap_b32 v{c0}, v{c0+2}\nv_permlane16_swap_b32 v{c0+1}, v{c0+3}")
            a(f"buffer_store_dwordx4 v[{c0}:{c0+3}], v{g2_vR}, {SRD_WS}, s{36+t} offen offset:{p*1024} sc1")
    stamp(c)
    a(f"""
    s_mov_b32 s{sLAY}, 1
    s_mov_b32 s{sLB}, {LY.L1}
    s_branch {c.name}_layer
    {fin}:
    s_lshl_b32 s33, s58, 3
    s_and_b32 s35, s{sM}, 7
    s_add_u32 s33, s33, s35
    s_lshl_b32 s33, s33, 1
    s_add_u32 s33, s33, s57
    s_xor_b32 s34, s33, 1
    s_lshl_b32 s33, s33, 12
    s_lshl_b32 s34, s34, 12
    s_add_u32 s33, s33, {LY.EX}
    s_add_u32 s34, s34, {LY.EX}
    s_add_u32 s36, s36, {LY.XR}
    """)
    for i in range(4):
        r0, r1 = g2_acc(1, 2*i), g2_acc(1, 2*i+1)
        a(f"v_cvt_pk_bf16_f32 v{r0}, v{r0}, v{r0+1}\nv_cvt_pk_bf16_f32 v{r0+1}, v{r0+2}, v{r0+3}")
        a(f"v_cvt_pk_bf16_f32 v{r0+2}, v{r1}, v{r1+1}\nv_cvt_pk_bf16_f32 v{r0+3}, v{r1+2}, v{r1+3}")
        a(f"s_nop 1\nv_permlane16_swap_b32 v{r0}, v{r0+2}\nv_permlane16_swap_b32 v{r0+1}, v{r0+3}")
        a(f"buffer_store_dwordx4 v[{r0}:{r0+3}], v{vL16}, {SRD_WS}, s33 offen offset:{i*1024} sc1")
    for p in range(4):
        c0, c1 = g2_acc(0, 2*p), g2_acc(0, 2*p+1)
        for i in range(4): a(f"v_permlane16_swap_b32 v{c0+i}, v{c1+i}")
    a("s_mov_b32 s32, 0x3f80\ns_mov_b32 s35, 0x3f800000")
    signal(c)
    stamp(c)
    wait(c, vFL, M_PAIR)
    stamp(c)
    for p in range(4):
        a(f"buffer_load_dwordx4 v[{G2_RX+4*p}:{G2_RX+4*p+3}], v{vL16}, {SRD_WS}, s34 offen offset:{p*1024} sc1")
        a(f"buffer_load_dwordx4 v[{G2_RES+4*p}:{G2_RES+4*p+3}], v{g2_vR}, {SRD_WS}, s36 offen offset:{p*1024} sc1")
    for p in range(4):
        c0 = g2_acc(0, 2*p)
        a(f"s_waitcnt vmcnt({6-p})")
        for src in (G2_RX, G2_RES):
            for i in range(4):
                a(f"v_dot2_f32_bf16 v{c0+2*i}, v{src+4*p+i}, s32, v{c0+2*i}\nv_dot2_f32_bf16 v{c0+2*i+1}, v{src+4*p+i}, s35, v{c0+2*i+1}")
        r = G2_RES + 4*p
        a("s_nop 0")
        for i in range(4): a(f"v_cvt_pk_bf16_f32 v{r+i}, v{c0+2*i}, v{c0+2*i+1}")
        a(f"buffer_store_dwordx4 v[{r}:{r+3}], v{g2_vO}, {SRD_OUT}, s39 offen offset:{p*64} {c.opt.get('out_aux', 'sc1')}")
    stamp(c)
    if c.ts:
        a("s_waitcnt vmcnt(0)"); stamp(c)

def gen_fused(name, ts=False, **opt):
    c = Ctx(name, ts, **opt)
    set_layout(opt.get('reuse', 1))
    prolog(c); front(c)
    c.a(f"{name}_layer:")
    g1_pre(c); ln_phase(c); g1_main(c); g2_pre(c); g2_main(c)
    epilog(c)
    return c.a.text(), kernel_desc(name, 512, accum=256), LDS_TOTAL
```

```python
import sys
from fz4 import *
NAME = "interleave_layers__ssm_conv_h3__glu_gated_bilinear__prompt"
REF = open(f"cdna_kernels/{NAME}.s.ref").read()
DOC = """; One persistent launch, 256 workgroups x 4 waves (one workgroup per CU), phases separated by flag hand-offs in d_ws:
"""
def build(ts=False, **opt):
    cm = [l for l in REF.split("\n") if l.startswith(";") and "@launch" not in l]
    t, d, lds = gen_fused(NAME + "_kernel", ts, **opt)
    return "\n".join(cm) + f"\n; @launch grid=(256,1,1) block=(256,1,1) lds={lds}\n" + HEADER + DOC + t + d
if __name__ == "__main__":
    import json
    open("fused.s","w").write(build())
    open("fused_ts.s","w").write(build(ts=True))
    for i, o in enumerate(sys.argv[1:]):
        open(f"v{i}_ts.s","w").write(build(ts=True, **eval("dict(" + o + ")")))
        open(f"v{i}.s","w").write(build(**eval("dict(" + o + ")")))
```

```python
from asmlib import *
from common import *
import re

sW, sTB, sM, sLAY, sLB = 3, 4, 5, 6, 7
SRD_W, SRD_WS, SRD_WD, SRD_OUT, SRD_T, SRD_T2 = "s[8:11]", "s[12:15]", "s[16:19]", "s[20:23]", "s[24:27]", "s[28:31]"
sG8 = 60
sMASK = 61
vLANE, vL16 = 2, 3
aX, aY = 224, 240
MF = "v_mfma_f32_16x16x32_bf16"
SPIN = 300000
FL_A, FL_B, FL_LN, FL_G1, FL_G2, FL_PAIR = 0, 256, 512, 640, 768, 1536
STAGE = 32768 + 256
UOFF = 8192 + 16
LDS_RED = 4*STAGE
LDS_TOTAL = LDS_RED + 1024

class Lay:
    pass
LY = Lay()
def set_layout(reuse):
    LY.P = WS_UT if reuse else WS_L0 + L_EX
    LY.EX = WS_UT if reuse else WS_L0 + LSTRIDE + L_EX
    LY.XR = WS_Y if reuse else WS_XR
    LY.L1 = WS_L0 if reuse else WS_L0 + LSTRIDE
    LY.sc = "sc1" if reuse else ""

class Ctx:
    def __init__(self, name, ts=False, **opt):
        self.a = Asm(); self.name = name; self.ts = ts; self.nl = 0; self.ool = []; self.opt = opt
    def lab(self, s):
        self.nl += 1
        return f"{self.name[:6]}_{s}{self.nl}"

def stamp(c, name=""):
    if not c.ts: return
    c.a("""
    s_memrealtime s[98:99]
    s_memtime s[100:101]
    s_mov_b32 m0, s97
    s_add_u32 s97, s97, 1
    s_waitcnt lgkmcnt(0)
    v_writelane_b32 v30, s98, m0
    v_writelane_b32 v31, s100, m0
    """)
def ts_dump(c):
    if not c.ts: return
    if 'pad' in c.opt:
        l = c.lab("pad")
        c.a(f"""
        v_readlane_b32 s32, v30, {c.opt['pad']}
        {l}:
        s_memrealtime s[98:99]
        s_waitcnt lgkmcnt(0)
        s_sub_u32 s33, s98, s32
        s_cmp_lt_u32 s33, 15000
        s_cbranch_scc1 {l}
        """)
        return
    if c.opt.get('dbgts'):
        sel = c.opt['dbgts']; z = c.lab("nd")
        c.a(f"s_cmp_lg_u32 s2, {c.opt.get('dbgwg', 37)}\ns_cbranch_scc1 {z}\ns_cmp_lg_u32 s{sW}, 1\ns_cbranch_scc1 {z}\nv_readlane_b32 s32, v30, 0\nv_readlane_b32 s34, v31, 0\nv_mov_b32 v5, 0")
        for i, k in enumerate(sel):
            src, b = (30, 32) if k >= 0 else (31, 34)
            c.a(f"v_readlane_b32 s33, v{src}, {abs(k)}\ns_nop 3\ns_sub_u32 s33, s33, s{b}\nv_writelane_b32 v5, s33, {i}")
        c.a(f"v_lshlrev_b32 v4, 2, v{vLANE}\ns_mov_b64 exec, 0xffff\nbuffer_store_dword v5, v4, s[88:91], 0 offen sc1\n{z}:")
        return
    c.a(f"""
    s_load_dword s96, s[0:1], 88
    s_lshl_b32 s32, s2, 2
    s_add_u32 s32, s32, s{sW}
    s_lshl_b32 s32, s32, 9
    s_waitcnt lgkmcnt(0)
    s_bfe_u32 s96, s96, 0x60009
    s_lshl_b32 s96, s96, 19
    s_add_u32 s32, s32, s96
    s_add_u32 s32, s32, {WS_TS}
    v_lshlrev_b32 v4, 3, v{vLANE}
    buffer_store_dwordx2 v[30:31], v4, {SRD_WS}, s32 offen
    """)

def srd(a, d, lo, size):
    a(f"s_mov_b32 s{d}, s{lo}\ns_mov_b32 s{d+1}, s{lo+1}\ns_mov_b32 s{d+2}, {size}\ns_mov_b32 s{d+3}, 0x20000")

sPH, sFL, sFB, vFL = 63, 94, 95, 0
def signal(c, pre="", vm=0):
    l = c.lab("sig")
    c.a(f"""
    s_add_u32 s{sPH}, s{sPH}, 1
    v_mov_b32 v4, 0
    v_mov_b32 v5, s{sPH}
    s_cmp_lg_u32 s{sW}, 0
    s_waitcnt vmcnt({vm})
    s_barrier
    s_cbranch_scc1 {l}
    {pre}
    s_mov_b64 exec, 1
    {c.opt.get('flag_op', 'buffer_store_dword')} v5, v4, {SRD_WS}, s{sFL} offen {c.opt.get('flag_aux', 'sc1')}
    s_mov_b64 exec, -1
    {l}:
    """)
def poll(c, srdn, va, soff, mask, target, slp=0):
    p = c.lab("poll"); d = c.lab("pd"); to = d
    if c.opt.get('diag'):
        to = c.lab("to")
        c.ool.append(f"""{to}:
        s_waitcnt vmcnt(0)
        s_lshl_b32 s62, s2, 2
        s_add_u32 s62, s62, s{sW}
        s_lshl_b32 s62, s62, 3
        s_add_u32 s62, s62, s{sPH}
        s_lshl_b32 s62, s62, 8
        s_add_u32 s62, s62, {WS_X2}
        v_or_b32 v7, 0x{0x40000000 if srdn == SRD_WS else 0x20000000:x}, v7
        v_lshlrev_b32 v6, 2, v{vLANE}
        buffer_store_dword v7, v6, {SRD_WS}, s62 offen sc1
        s_branch {d}""")
    return f"""
    {mask}
    s_mov_b32 s62, {SPIN}
    {p}:
    buffer_load_dword v7, v{va}, {srdn}, {soff} offen {c.opt.get('poll_aux', 'sc1')}
    s_sub_u32 s62, s62, 1
    s_cbranch_scc1 {to}
    s_waitcnt vmcnt(0)
    v_cmp_gt_u32 vcc, {target}, v7
    s_cbranch_vccz {d}
    {f"s_sleep {slp}" if slp else ""}
    s_branch {p}
    {d}:
    s_mov_b64 exec, -1
    """
def wait(c, va, mask, pre="", every=False):
    l = c.lab("wt")
    if not every: c.a(f"s_cmp_lg_u32 s{sW}, 0\ns_cbranch_scc1 {l}")
    if pre: c.a(pre)
    c.a(poll(c, SRD_WS, va, f"s{sFB}", mask, f"s{sPH}", c.opt.get('slp', 0)))
    c.a(f"{l}:\ns_barrier")
M_ALL = "s_mov_b32 exec_hi, 0"
M_KH = f"s_and_b32 s62, s{sM}, 16\ns_lshl_b32 exec_lo, 0xffff, s62\ns_mov_b32 exec_hi, 0"
M_TH = f"s_and_b32 s62, s{sM}, 8\ns_lshl_b32 exec_lo, 0x00ff00ff, s62\ns_mov_b32 exec_hi, 0"
M_PAIR = f"s_xor_b32 s62, s{sM}, 16\ns_lshl_b32 exec_lo, 1, s62\ns_mov_b32 exec_hi, 0"

def prolog(c):
    a = c.a
    kernel_begin(a, c.name)
    if c.ts: a("s_mov_b32 s97, 0\nv_mov_b32 v30, 0\nv_mov_b32 v31, 0")
    stamp(c)
    a(f"""
    s_cmp_ge_u32 s2, 256
    s_cbranch_scc1 {c.name}_end
    s_load_dwordx16 s[64:79], s[0:1], 0
    s_load_dwordx8 s[80:87], s[0:1], 64
    s_load_dwordx2 s[12:13], s[0:1], 96      ; ws
    v_lshrrev_b32 v1, 6, v0
    v_and_b32 v{vLANE}, 63, v0
    v_readfirstlane_b32 s{sW}, v1
    v_lshlrev_b32 v{vL16}, 4, v{vLANE}
    s_mov_b32 s14, {256*MB if c.ts else WS_USED}
    s_mov_b32 s15, 0x20000
    s_mov_b32 s{sMASK}, 0xffff0000
    """)
def prolog2(c):
    c.a(f"""
    s_and_b32 s40, s2, 1
    s_lshl_b32 s40, s40, 2
    s_bfe_u32 s{sTB}, s2, 0x20003
    s_add_u32 s{sTB}, s{sTB}, s40
    s_bfe_u32 s40, s2, 0x20001
    s_lshl_b32 s40, s40, 3
    s_lshr_b32 s{sM}, s2, 5
    s_add_u32 s{sM}, s{sM}, s40
    s_lshl_b32 s{sG8}, s{sTB}, 5
    s_bfe_u32 s40, s{sM}, 0x10003
    s_lshl_b32 s40, s40, 4
    s_add_u32 s{sG8}, s{sG8}, s40
    s_lshr_b32 s40, s{sM}, 4
    s_lshl_b32 s40, s40, 3
    s_add_u32 s{sG8}, s{sG8}, s40
    s_and_b32 s40, s{sM}, 7
    s_add_u32 s{sG8}, s{sG8}, s40
    s_mov_b32 s{sLAY}, 0
    s_mov_b32 s{sLB}, {WS_L0}
    s_mov_b32 s{sPH}, 0
    s_mov_b32 s{sFB}, {WS_FL}
    s_lshl_b32 s{sFL}, s2, 7
    s_add_u32 s{sFL}, s{sFL}, s{sFB}
    s_cmp_lt_u32 s{sW}, 2
    s_cselect_b32 s8, s78, s80
    s_cselect_b32 s9, s79, s81
    s_mov_b32 s10, {D*F*2}
    s_mov_b32 s11, 0x20000
    """)
    srd(c.a, 16, 82, D*F*2); srd(c.a, 20, 84, S*D*2)

def epilog(c):
    ts_dump(c)
    c.a(f"{c.name}_end:\ns_endpgm")
    for o in c.ool: c.a(o)

class Hz:
    def __init__(self, a): self.a = a; self.n = 0; self.mf = {}; self.va = {}; self.st = {}
    def need(self, kind, rd, wr):
        w = 0
        for r in list(rd) + list(wr): w = max(w, self.mf.get(r, -99) + 9 - self.n)
        if kind == 'perm':
            for r in rd: w = max(w, self.va.get(r, -99) + 3 - self.n)
        if kind != 'store':
            for r in wr: w = max(w, self.st.get(r, -99) + 3 - self.n)
        return w
    def mfma(self, s, d):
        self.a(s)
        for r in range(d, d+4): self.mf[r] = self.n
        self.n += 1
    def raw(self, s): self.a(s); self.n += 1
    def op(self, o):
        kind, s, rd, wr = o
        w = self.need(kind, rd, wr)
        if w > 0: self.a(f"s_nop {w-1}"); self.n += w
        self.a(s)
        if kind == 'store':
            for r in rd: self.st[r] = self.n
        else:
            for r in wr: self.va[r] = self.n
        self.n += 1
def fill(hz, ops, n, per):
    for i in range(per):
        if not ops or ops[0][0] >= n + 1: return
        w = hz.need(ops[0][1][0], ops[0][1][2], ops[0][1][3])
        if w <= 0: hz.op(ops.pop(0)[1])
        else:
            k = min(w, per - i)
            hz.a(f"s_nop {k-1}"); hz.n += k
            if k == per - i: return
def o_mul(d, x, y): return ('valu', f"v_mul_f32 v{d}, v{x}, v{y}", [x, y], [d])
def o_cvt(d, x): return ('valu', f"v_cvt_pk_bf16_f32 v{d}, v{x}, v{x+1}", [x, x+1], [d])
def o_sw(n, x, y): return ('perm', f"v_permlane{n}_swap_b32 v{x}, v{y}", [x, y], [x, y])
def o_st(s, r): return ('store', s, list(range(r, r+4)), [])
def o_s(s): return ('salu', s, [], [])


def unpack(a, dst, src, n):
    for j in range(n):
        a(f"v_lshlrev_b32 v{dst+2*j}, 16, v{src+j}\nv_and_b32 v{dst+2*j+1}, s{sMASK}, v{src+j}")
```

```python
from fcore import *
CW = 12928; C_O = 4192; C_U = 8320
A_LDS = 4*CW + 64
K_LDS = 70*1024
vQ = 232
def front(c):
    a = c.a; opt = c.opt
    K = 32; V = 60; TP = 76; KF = 92; TF = 148; T = 180; O = KF + 16
    ACC = 32; FA = 64; FB = 128; AD = 252
    vA = [22, 23, 24, 25]; vB = 26; vE = 27; vF0 = 28; vQA = 29; vSW, vSR, vY, vPF = 212, 213, 214, 215
    def fa(s, i): return FA + (s*8 + i)*4
    def fb(s, i): return FB + (s*8 + i)*4
    z = c.lab("nz")
    a(f"""
    v_and_b32 v4, 7, v0                    ; cg
    v_lshrrev_b32 v5, 3, v0
    s_and_b32 s33, s2, 7
    s_lshr_b32 s34, s2, 3
    s_lshr_b32 s35, s34, 4
    s_and_b32 s34, s34, 15                 ; cbk
    s_lshl_b32 s33, s33, 1
    s_add_u32 s33, s33, s35
    s_add_u32 s33, s33, s34
    s_and_b32 s33, s33, 15                 ; tokblk
    s_lshl_b32 s35, s33, 18
    s_lshl_b32 s36, s34, 7
    s_add_u32 s35, s35, s36
    v_lshlrev_b32 v6, 13, v5
    v_lshl_add_u32 v6, v4, 4, v6
    v_add_u32 v11, s35, v6
    v_add_u32 v12, 4096, v11
    v_lshrrev_b32 v7, 3, v{vLANE}
    v_lshlrev_b32 v6, 11, v7
    v_lshl_add_u32 v6, v4, 4, v6
    s_lshl_b32 s36, s{sW}, 16
    s_add_u32 s35, s35, s36
    v_add_u32 v9, s35, v6
    v_cmp_lt_u32 vcc, 4, v7
    v_subrev_u32 v8, 16384, v9
    v_bfrev_b32 v6, 1
    s_mul_i32 s52, s{sW}, 6144
    v_cndmask_b32 v8, v6, v8, vcc          ; k rows -3..-1
    s_add_u32 s52, s52, {K_LDS}
    s_mov_b32 m0, s52
    s_mov_b32 s53, {16384-1024}
    s_mov_b32 s54, {2*(16384-1024)}
    s_mov_b32 s55, {3*(16384-1024)}
    s_lshl_b32 s36, s34, 9
    v_mov_b64 v[16:17], 0
    v_mov_b64 v[18:19], 0
    s_mov_b32 s90, {D*8}
    s_mov_b32 s91, 0x20000
    s_mov_b32 s26, {S*D*2}
    s_mov_b32 s27, 0x20000
    s_mov_b32 s30, {S*D*2}
    s_mov_b32 s31, 0x20000
    s_lshl_b32 s46, s34, 10
    s_add_u32 s46, s46, {WS_FL}
    s_add_u32 s47, s46, {128*128}
    s_or_b32 s48, s33, s{sW}
    s_waitcnt lgkmcnt(0)
    s_mov_b64 s[88:89], s[70:71]
    s_mov_b64 s[24:25], s[66:67]
    s_mov_b64 s[28:29], s[68:69]
    s_cbranch_scc1 {z}
    buffer_store_dwordx4 v[16:19], v{vL16}, {SRD_WS}, s46 offen sc1
    buffer_store_dwordx4 v[16:19], v{vL16}, {SRD_WS}, s47 offen sc1
    {z}:
    buffer_load_dwordx4 v{vL16}, s[88:91], s36 offen lds
    s_add_u32 m0, s52, 1024
    s_lshl_b32 s49, s34, 2
    buffer_load_dwordx4 v8, {SRD_T}, 0 offen nt lds
    s_add_u32 m0, s52, 2048
    s_add_u32 s49, s49, 64
    """)
    for i in range(4): a(f"buffer_load_dwordx4 v9, {SRD_T}, {['0','s53','s54','s55'][i]} offen offset:{1024*i} nt lds")
    for i in range(4): a(f"buffer_load_dwordx4 v[{V+4*i}:{V+4*i+3}], v{11+(i>>1)}, {SRD_T2}, 0 offen offset:{2048*(i&1)} nt")
    NX = 0
    if opt.get('pf_code', 1):
        NX = 1
        a(f"""
        s_lshr_b32 s37, s2, 3
        s_lshl_b32 s37, s37, 2
        s_add_u32 s37, s37, s{sW}
        v_and_b32 v6, 1, v0
        v_lshl_add_u32 v6, s37, 1, v6
        v_lshlrev_b32 v6, 7, v6
        s_getpc_b64 s[50:51]
        {c.name[:6]}_pc:
        v_min_u32 v6, {c.name}_last-{c.name[:6]}_pc, v6
        v_mov_b32 v7, s51
        v_add_co_u32 v6, vcc, s50, v6
        s_nop 1
        v_addc_co_u32 v7, vcc, 0, v7, vcc
        global_load_dword v251, v[6:7], off
        """)
    z = c.lab("nz")
    a(f"""
    s_mov_b64 s[88:89], s[86:87]
    s_mov_b32 s90, 256
    s_cmp_lg_u32 s48, 0
    s_cbranch_scc1 {z}
    v_mov_b32 v20, 1
    s_waitcnt vmcnt({10+NX})
    s_mov_b64 exec, 1
    buffer_store_dword v20, v16, s[88:91], s49 offen sc1
    s_mov_b64 exec, -1
    {z}:
    s_lshl_b32 s41, s34, 4
    s_add_u32 s41, s41, s33
    s_lshl_b32 s42, s41, 2
    s_add_u32 s42, s42, s{sW}              ; channel d
    s_lshl_b32 s43, s42, 12
    s_lshr_b32 s44, s42, 1
    s_lshl_b32 s44, s44, 2
    s_load_dword s45, s[74:75], s44
    s_mul_i32 s47, s{sW}, {CW}
    s_mov_b64 s[24:25], s[72:73]
    s_mov_b64 s[28:29], s[64:65]
    """)
    prolog2(c)
    a(f"""
    v_lshrrev_b32 v7, 3, v{vLANE}
    v_lshlrev_b32 v7, 9, v7
    v_lshl_add_u32 v7, v4, 4, v7
    v_add_u32 v10, s52, v7
    v_lshl_add_u32 v21, v4, 6, s52
    v_mul_u32_u24 v6, 2064, v4
    v_sub_u32 v7, 31, v5
    v_lshl_add_u32 v6, v7, 3, v6
    v_add_u32 v13, {A_LDS}, v6
    v_lshrrev_b32 v7, 7, v0
    v_add_u32 v7, v7, v0
    v_lshlrev_b32 v7, 4, v7
    v_add_u32 v14, {A_LDS}, v7
    v_lshrrev_b32 v6, 4, v0
    v_and_b32 v7, 15, v0
    v_lshl_add_u32 v249, v7, 2, 64
    v_lshlrev_b32 v7, 4, v7
    v_lshl_add_u32 v15, v6, 12, v7         ; u^T store
    s_lshl_b32 s36, s34, 18
    s_sub_u32 s37, 15, s33
    s_lshl_b32 s37, s37, 8
    s_add_u32 s36, s36, s37
    s_add_u32 s36, s36, {WS_UT}
    v_lshrrev_b32 v5, 3, v{vLANE}
    v_lshl_add_u32 v6, v5, 7, v4
    v_lshlrev_b32 v6, 7, v6
    s_lshl_b32 s37, s34, 10
    v_add_u32 v{vF0}, s37, v6
    v_lshlrev_b32 v250, 7, v0
    v_and_b32 v6, 3, v5
    v_lshlrev_b32 v7, 5, v4
    v_lshl_or_b32 v6, v6, 1, v7
    s_and_b32 s37, s2, 0x19
    v_or_b32 v6, s37, v6
    v_lshlrev_b32 v{vFL}, 7, v6
    v_lshlrev_b32 v6, 4, v5
    v_lshl_add_u32 v{vQA}, v4, 11, v6
    s_lshl_b32 s56, s{sG8}, 14
    s_lshl_b32 s38, s{sW}, 9
    s_add_u32 s56, s56, s38
    v_lshlrev_b32 v6, 4, v4
    v_lshl_add_u32 v{vY}, v5, 15, v6
    s_lshl_b32 s57, s{sW}, 20
    s_lshl_b32 s38, s41, 7
    s_add_u32 s57, s57, s38
    s_add_u32 s57, s57, {WS_Y}
    v_bfe_u32 v6, v{vLANE}, 1, 2
    v_mul_u32_u24 v6, 160, v6
    v_lshl_add_u32 v6, v5, 3, v6
    v_and_b32 v7, 1, v{vLANE}
    v_lshl_add_u32 v6, v7, 2, v6
    s_mul_i32 s37, s{sW}, 1280
    v_add_u32 v{vSR}, s37, v6
    v_min_u32 v6, 33, v{vLANE}
    v_lshlrev_b32 v6, 4, v6
    v_cmp_lt_u32 vcc, 1, v{vLANE}
    v_mov_b32 v7, {C_O-32-32}
    v_mov_b32 v5, {C_U+4096-64}
    v_cndmask_b32 v7, 0, v7, vcc
    v_cmp_lt_u32 vcc, 3, v{vLANE}
    v_add_u32 v{vE}, s47, v{vL16}
    v_and_b32 v4, 15, v{vLANE}             ; b
    v_cndmask_b32 v7, v7, v5, vcc
    v_add3_u32 v6, v6, v7, s47
    ds_write_b128 v6, v[16:19]
    v_lshrrev_b32 v5, 4, v{vLANE}          ; q
    v_add_u32 v6, 1, v4
    v_lshrrev_b32 v6, 1, v6
    v_lshl_add_u32 v6, v5, 2, v6
    v_lshlrev_b32 v6, 2, v6
    v_and_b32 v7, 1, v4
    v_xor_b32 v7, 1, v7
    v_mul_u32_u24 v7, {C_O-28}, v7
    v_add3_u32 v{vA[0]}, v6, v7, s47
    v_add_u32 v{vA[1]}, 1024, v{vA[0]}
    v_add_u32 v{vA[2]}, 2048, v{vA[0]}
    v_add_u32 v{vA[3]}, 3072, v{vA[0]}
    v_lshlrev_b32 v6, 5, v4
    v_lshlrev_b32 v7, 4, v5
    v_sub_u32 v6, v7, v6
    s_add_u32 s37, s47, {C_U + 2*(S-16) - 512*7}
    v_add_u32 v{vB}, s37, v6
    v_mul_u32_u24 v6, 160, v5
    v_lshl_add_u32 v6, v4, 3, v6
    v_add_u32 v{vSW}, s47, v6
    s_lshl_b32 s58, s2, 1
    s_and_b32 s38, s{sW}, 1
    s_add_u32 s58, s58, s38
    s_lshl_b32 s58, s58, {opt.get('pf_shift', 12)}
    v_lshlrev_b32 v6, 7, v{vLANE}
    v_and_b32 v{vPF}, {(1 << opt.get('pf_shift', 12)) - 1}, v6
    v_lshl_add_u32 v6, v5, 3, v4
    v_sub_u32 v6, 15, v6
    v_and_b32 v7, 1, v6
    v_lshlrev_b32 v7, 4, v7
    v_ashrrev_i32 v6, 1, v6
    s_and_b32 s37, s42, 1
    s_lshl_b32 s37, s37, 4
    s_waitcnt lgkmcnt(0)
    s_lshr_b32 s45, s45, s37
    s_and_b32 s45, s45, 0xffff
    v_lshlrev_b32 v7, v7, s45
    """)
    for i in range(4):
        a(f"v_cmp_eq_u32 vcc, {i}, v6\ns_nop 1\nv_cndmask_b32 v{AD+i}, 0, v7, vcc")
    stamp(c, "setup")
    a(f"s_waitcnt vmcnt({9+NX})")
    for i in range(4): a(f"ds_read_b128 v[{TP+4*i}:{TP+4*i+3}], v21 offset:{16*i}")
    for ch in range(8):
        if ch % 2 == 0: a(f"s_waitcnt lgkmcnt({3-ch//2})")
        for h in range(2):
            r = TP + 2*ch + h
            a(f"v_lshlrev_b32 v{TF+(2*h)*8+ch}, 16, v{r}\nv_and_b32 v{TF+(2*h+1)*8+ch}, s{sMASK}, v{r}")
    a(f"s_waitcnt vmcnt({4+NX})")
    for i in range(7): a(f"ds_read_b128 v[{K+4*i}:{K+4*i+3}], v10 offset:{1024+(5+i)*128}")
    for i in range(7):
        a(f"s_waitcnt lgkmcnt({6-i})")
        unpack(a, KF+8*i, K+4*i, 4)
    for t in range(4):
        for tap in range(4):
            for p in range(4):
                d = T + 8*t + 2*p; kk = KF + 8*(t+3-tap) + 2*p; w = TF + 8*tap + 2*p
                if tap == 0: a(f"v_pk_mul_f32 v[{d}:{d+1}], v[{kk}:{kk+1}], v[{w}:{w+1}]")
                else: a(f"v_pk_fma_f32 v[{d}:{d+1}], v[{kk}:{kk+1}], v[{w}:{w+1}], v[{d}:{d+1}]")
    a("s_add_u32 m0, s47, 32")
    for t in range(4):
        a(f"s_waitcnt vmcnt({3-t+NX})")
        if t == 3:
            for i in range(4): a(f"buffer_load_dwordx4 v{vL16}, {SRD_T}, s43 offen offset:{1024*i} nt lds")
        unpack(a, KF, V+4*t, 4)
        for p in range(4):
            d = T + 8*t + 2*p
            a(f"v_pk_mul_f32 v[{d}:{d+1}], v[{d}:{d+1}], v[{KF+2*p}:{KF+2*p+1}]")
    for ch in range(8):
        a(f"v_cvt_pk_bf16_f32 v{O+2*ch}, v{T+24+ch}, v{T+16+ch}\nv_cvt_pk_bf16_f32 v{O+2*ch+1}, v{T+8+ch}, v{T+ch}")
        a(f"ds_write_b64 v13, v[{O+2*ch}:{O+2*ch+1}] offset:{256*ch}")
    a("s_waitcnt lgkmcnt(0)\ns_barrier")
    stamp(c, "A done")
    for i in range(4): a(f"ds_read_b128 v[{K+4*i}:{K+4*i+3}], v14 offset:{i*2*2064}")
    for i in range(4):
        a(f"s_waitcnt lgkmcnt({3-i})")
        a(f"buffer_store_dwordx4 v[{K+4*i}:{K+4*i+3}], v15, {SRD_WS}, s36 offen sc1")
        a(f"s_add_u32 s36, s36, {16*4096}")
    a(f"buffer_load_dword v20, v16, s[88:91], s49 offen sc1\ns_waitcnt vmcnt(5)")
    HK = 96
    for i in range(4):
        a(f"ds_read_b128 v[{HK+4*i}:{HK+4*i+3}], v{vE} offset:{32+1024*i}\nds_read_b32 v{HK+16+i}, v{vE} offset:{28+1024*i}")
    for i in range(4):
        r = HK + 4*i; o = 160 + 4*i
        a(f"s_waitcnt lgkmcnt({6-i})")
        a(f"v_alignbit_b32 v{o}, v{r}, v{HK+16+i}, 16")
        for j in range(1, 4): a(f"v_alignbit_b32 v{o+j}, v{r+j}, v{r+j-1}, 16")
        a(f"ds_write_b128 v{vE}, v[{o}:{o+3}] offset:{C_O+1024*i}")
    def reads(s, j):
        B = [f"ds_read_b128 v[{fb(s,i)}:{fb(s,i)+3}], v{vB} offset:{512*(7-i)+64*j}" for i in range(8)]
        A = []
        for i in range(8):
            o = (i & 1)*128 + 16*j; r = fa(s, i)
            A.append(f"ds_read2_b32 v[{r}:{r+1}], v{vA[i>>1]} offset0:{o} offset1:{o+1}")
            A.append(f"ds_read2_b32 v[{r+2}:{r+3}], v{vA[i>>1]} offset0:{o+2} offset1:{o+3}")
        return B + A
    R = reads(0, 0)
    ok = c.lab("boot")
    signal(c, pre=f"v_cmp_ne_u32 vcc, 0, v20\ns_cbranch_vccnz {ok}\n" + poll(c, "s[88:91]", 4, "s49", "", 1) + f"{ok}:")
    stamp(c, "sig0")
    for l in R[8:]: a(l)
    a(f"s_add_u32 s43, s43, {WS_UT}")
    wait(c, vF0, "s_mov_b64 exec, 0xffff")
    stamp(c, "wait0")
    a(f"s_add_u32 m0, s47, {C_U}\ns_mov_b64 vcc, {-1 if opt.get('pf_it', 1) == 0 else 0}")
    for i in range(4):
        a(f"buffer_load_dwordx4 v{vL16}, {SRD_WS}, s43 offen offset:{1024*i} sc1 lds")
    a("s_mov_b32 s38, 0x05040100\ns_mov_b32 s39, 0x07060302\ns_mov_b32 s48, 4")
    for i in range(4):
        a(f"s_waitcnt vmcnt({max(2-i, 0)})")
        a(R[7-2*i]); a(R[6-2*i])
    late = "".join(f"buffer_load_dwordx4 v[{vQ+4*i}:{vQ+4*i+3}], v{vQA}, {SRD_T2}, s56 offen offset:{128*i} nt\n" for i in range(4))
    if opt.get('pf_front', 1): late += f"buffer_load_dword v251, v{vPF}, {SRD_W}, s58 offen\n"
    if opt.get('pf_front', 1) >= 2: late += f"v_add_u32 v{vPF}, s58, v{vPF}\nv_add_u32 v4, {4*MB}, v{vPF}\nbuffer_load_dword v251, v4, {SRD_W}, 0 offen\n"
    if opt.get('pf_front', 1) >= 3: late += f"s_lshr_b32 s58, s{sW}, 1\ns_lshl_b32 s58, s58, 22\nv_add_u32 v4, s58, v{vPF}\nbuffer_load_dword v251, v4, {SRD_WD}, 0 offen\n"
    late += f"buffer_load_dword v248, v249, s[88:91], 0 offen sc1\n"
    pit = opt.get('pf_it', 1)
    stamp(c, "ur")
    for n in range(7, -1, -1):
        cc = ACC + 4*n
        a(f"s_waitcnt lgkmcnt({n})")
        a(f"{MF} v[{cc}:{cc+3}], v[{AD}:{AD+3}], v[{fb(0,n)}:{fb(0,n)+3}], 0")
    lp = c.lab("cv"); o = c.lab("cvo"); b = c.lab("cvb")
    a(f"{lp}:")
    c.ool.append(f"{o}:\n{late}s_branch {b}")
    for j in range(2):
        a("s_waitcnt lgkmcnt(0)")
        R = reads(j ^ 1, j + 1)
        k = 0
        for i in range(8):
            for n in range(i, 8):
                cc = ACC + 4*n
                a(f"{MF} v[{cc}:{cc+3}], v[{fa(j,i)}:{fa(j,i)+3}], v[{fb(j,n-i)}:{fb(j,n-i)+3}], v[{cc}:{cc+3}]")
                if k < 24: a(R[k])
                if j == 0 and k == 24: a(f"s_cbranch_vccnz {o}\n{b}:")
                if j == 1 and 24 <= k < 29:
                    r = (vA + [vB])[k-24]; a(f"v_add_u32 v{r}, 128, v{r}")
                if j == 1 and k == 29: a("s_sub_u32 s48, s48, 1")
                if j == 1 and k == 30: a(f"s_cmp_eq_u32 s48, {4-pit}")
                if j == 1 and k == 31: a("s_cselect_b64 vcc, -1, 0")
                if j == 1 and k == 32: a("s_cmp_lg_u32 s48, 0")
                k += 1
    a(f"s_cbranch_scc1 {lp}")
    stamp(c, "conv")
    a("s_waitcnt lgkmcnt(0)")
    for n in range(8):
        cc = ACC + 4*n
        a(f"v_cvt_pk_bf16_f32 v{cc}, v{cc}, v{cc+1}\nv_cvt_pk_bf16_f32 v{cc+1}, v{cc+2}, v{cc+3}")
        a(f"ds_write_b64 v{vSW}, v[{cc}:{cc+1}] offset:{640*n}")
    a("s_waitcnt lgkmcnt(0)\ns_barrier")
    for g in range(4):
        for ch in range(4):
            a(f"ds_read_b32 v{FA+4*g+ch}, v{vSR} offset:{ch*CW + (g>>1)*640 + (g&1)*64}")
    for g in range(4):
        r = FA + 4*g; o = FB + 4*g
        a(f"s_waitcnt lgkmcnt({12-4*g})")
        a(f"v_perm_b32 v{o}, v{r+1}, v{r}, s38\nv_perm_b32 v{o+1}, v{r+3}, v{r+2}, s38")
        a(f"v_perm_b32 v{o+2}, v{r+1}, v{r}, s39\nv_perm_b32 v{o+3}, v{r+3}, v{r+2}, s39")
        a(f"buffer_store_dwordx4 v[{o}:{o+3}], v{vY}, {SRD_WS}, s57 offen sc1")
        a(f"s_add_u32 s57, s57, {8*32768}")
    stamp(c, "y out")
```

```python
from fcore import *
from fg2 import g2_pre1, g2_ldw
ACC1 = 32
def g1_acc(t, j): return ACC1 + (t*7 + j)*4
def g1_xf(s, t): return s*60 + t*4
def g1_wf(s, j): return (s*60 + 32 if s < 2 else 120) + j*4
g1_vXA = [8, 9]; g1_vWA = [[10,11,12,13],[14,15,16,17]]; g1_vDW = [19,20,21,22]; g1_vPF = [18, 23]
def g1_dx(slot):
    return [f"s_add_u32 m0, s42, {slot*STAGE}"] + [f"buffer_load_dwordx4 v{vL16}, {SRD_WS}, s40 offen offset:{1024*i} {LY.sc} lds" for i in range(4)] + ["s_add_u32 s40, s40, 16384"]
def g1_dw(slot):
    return [f"s_add_u32 m0, s43, {slot*STAGE}"] + [f"buffer_load_dwordx4 v{g1_vDW[i]}, {SRD_W}, s41 offen offset:{1024*i} lds" for i in range(4)] + [f"s_add_u32 s41, s41, {32*7168}"]
def g1_rw(slot, s):
    h = slot >> 1; so = (slot & 1)*STAGE; W = []
    for j in range(7):
        va = g1_vWA[h][j % 3] if j < 6 else g1_vWA[h][3]
        off = so + (UOFF if 3 <= j < 6 else 0); r = g1_wf(s, j)
        W.append(f"ds_read_b64_tr_b16 a[{r}:{r+1}], v{va} offset:{off}")
        W.append(f"ds_read_b64_tr_b16 a[{r+2}:{r+3}], v{va} offset:{off+1024}")
    return W
def g1_rx(slot, s):
    h = slot >> 1; so = (slot & 1)*STAGE
    return [f"ds_read_b128 a[{g1_xf(s,t)}:{g1_xf(s,t)+3}], v{g1_vXA[h]} offset:{so+t*1024}" for t in range(8)]

def g1_pre(c):
    a = c.a; vDW = g1_vDW; vWA = g1_vWA; vXA = g1_vXA
    a(f"""
    s_and_b32 s44, s{sW}, 1
    s_lshr_b32 s45, s{sW}, 1
    s_and_b32 s46, s{sM}, 1
    s_mul_i32 s41, s44, {16*7168}
    s_mul_i32 s33, s{sM}, 224
    s_add_u32 s41, s41, s33
    s_lshl_b32 s33, s46, 5
    s_sub_u32 s41, s41, s33
    s_mul_i32 s43, s45, {UOFF}
    s_lshl_b32 s33, s44, 12
    s_add_u32 s43, s43, s33
    s_add_u32 s43, s43, 16384
    v_lshrrev_b32 v1, 4, v{vLANE}          ; q
    v_bfe_u32 v4, v{vLANE}, 1, 3
    v_xor_b32 v4, v4, v1
    v_and_b32 v5, 1, v{vLANE}
    v_lshlrev_b32 v5, 4, v5
    v_mul_u32_u24 v6, 7168, v1
    v_add_u32 v6, v6, v5
    v_lshl_add_u32 v{vDW[0]}, v4, 5, v6
    v_xor_b32 v4, 4, v4
    v_lshl_add_u32 v{vDW[2]}, v4, 5, v6
    v_add_u32 v{vDW[1]}, {4*7168-1024}, v{vDW[0]}
    v_add_u32 v{vDW[3]}, {3*(4*7168-1024)}, v{vDW[2]}
    v_add_u32 v{vDW[2]}, {2*(4*7168-1024)}, v{vDW[2]}
    """)
    a(f"""
    s_lshl_b32 s42, s{sW}, 12
    s_lshl_b32 s40, s{sTB}, 19
    s_add_u32 s40, s40, s42
    s_add_u32 s40, s40, s{sLB}
    s_lshl_b32 s33, s45, 13
    v_add_u32 v{vXA[0]}, s33, v{vL16}
    v_add_u32 v{vXA[1]}, {2*STAGE}, v{vXA[0]}
    v_bfe_u32 v4, v{vLANE}, 2, 2           ; r4
    v_and_b32 v5, 1, v1
    v_lshl_or_b32 v5, v5, 2, v4            ; sigma
    v_lshl_add_u32 v6, v1, 3, v4
    v_lshlrev_b32 v6, 8, v6
    v_add_u32 v6, 16384, v6
    v_and_b32 v7, 3, v{vLANE}
    v_lshl_add_u32 v1, v7, 3, v6
    s_lshl_b32 s33, s44, 2
    s_add_u32 s33, s33, s46
    """)
    for p in range(3):
        a(f"s_add_u32 s34, s33, {p}\nv_xor_b32 v4, s34, v5\nv_lshl_add_u32 v{vWA[0][p]}, v4, 5, v1")
    a(f"""
    s_add_u32 s34, s46, 3
    v_xor_b32 v4, s34, v5
    v_lshl_add_u32 v6, v4, 5, v6
    v_and_b32 v4, 1, v7
    v_lshl_add_u32 v6, v4, 3, v6
    v_lshrrev_b32 v4, 1, v7
    v_mul_u32_u24 v4, {UOFF}, v4
    s_lshl_b32 s34, s44, 4
    v_add3_u32 v{vWA[0][3]}, v6, v4, s34
    """)
    for p in range(4): a(f"v_add_u32 v{vWA[1][p]}, {2*STAGE}, v{vWA[0][p]}")
    d = c.opt.get('pf_dist', 2)
    a(f"""
    s_sub_u32 s34, s{sLAY}, 1
    s_lshl_b32 s33, s2, 1
    s_add_u32 s33, s33, s44
    s_mul_i32 s33, s33, {14*128}
    s_add_u32 s33, s33, {d*128*7168}
    v_lshlrev_b32 v4, 7, v{vLANE}
    v_bfrev_b32 v6, 1
    v_add_u32 v5, s33, v4
    s_and_b32 s33, s34, 14
    v_cmp_gt_u32 vcc, s33, v{vLANE}
    s_lshl_b32 s33, s2, 2
    s_add_u32 s33, s33, s{sW}
    v_cndmask_b32 v{g1_vPF[0]}, v6, v5, vcc
    s_lshl_b32 s33, s33, 10
    v_add_u32 v5, s33, v4
    s_and_b32 s33, s34, 8
    v_cmp_gt_u32 vcc, s33, v{vLANE}
    s_mov_b32 s48, 0
    s_mov_b32 s49, 0
    v_cndmask_b32 v{g1_vPF[1]}, v6, v5, vcc
    """)

def g1_main(c):
    a = c.a; acc = g1_acc
    for i in range(112): a(f"v_mov_b64 v[{ACC1+2*i}:{ACC1+2*i+1}], 0")
    a(f"""
    s_lshl_b32 s59, s{sTB}, 3
    s_lshl_b32 s33, s45, 2
    s_add_u32 s59, s59, s33
    s_mul_i32 s59, s59, 229376
    s_lshr_b32 s33, s{sM}, 1
    s_mul_i32 s33, s33, {7*2048}
    s_add_u32 s59, s59, s33
    s_add_u32 s59, s59, s{sLB}
    s_add_u32 s59, s59, {L_H}
    s_lshl_b32 s34, s46, 1
    s_add_u32 s34, s34, s44                ; wv
    s_lshl_b32 s33, s34, 11
    v_add_u32 v24, s33, v{vL16}
    v_and_b32 v4, 15, v{vLANE}
    v_lshlrev_b32 v4, 4, v4
    v_lshrrev_b32 v5, 5, v{vLANE}
    v_lshl_add_u32 v4, v5, 10, v4
    v_bfe_u32 v5, v{vLANE}, 4, 1
    s_add_u32 s33, s46, 4
    s_lshl_b32 s33, s33, 11
    s_lshl_b32 s35, s44, 9
    s_add_u32 s33, s33, s35
    v_lshl_add_u32 v25, v5, 8, v4
    v_add_u32 v25, s33, v25
    s_lshl_b32 s33, s34, 8
    s_add_u32 s33, s33, {6*2048}
    v_mul_u32_u24 v5, 229376, v5
    v_add3_u32 v26, v4, v5, s33
    """)
    for l in g1_rw(0, 0): a(l)
    wait(c, vFL, M_ALL)
    stamp(c, "waitX")
    nx = c.opt.get('x_first', 4)
    for slot in range(4):
        if slot == nx:
            a(f"s_waitcnt vmcnt({4*nx-4})\ns_barrier")
            for l in g1_rx(0, 0): a(l)
        o = g1_dx(slot); a(o[0]); a("s_nop 0")
        for l in o[1:]: a(l)
    if nx == 4:
        a("s_waitcnt vmcnt(12)\ns_barrier")
        for l in g1_rx(0, 0): a(l)
    a("s_mov_b64 vcc, -1\ns_waitcnt vmcnt(8)")
    stamp(c, "g1 go")
    seq = [(t, (j if t % 2 == 0 else 6-j)) for t in range(8) for j in range(7)]
    def step(i4, dma, vm, gx=None):
        s = i4 & 1
        gaps = [[] for _ in range(56)]
        X = g1_rx((i4+1) % 4, s ^ 1)
        for k, l in enumerate(X[:1] + g1_rw((i4+1) % 4, s ^ 1) + X[1:]): gaps[1+k].append(l)
        if dma:
            p0 = c.opt.get('g1_dma0', 26); ds = c.opt.get('g1_dmas', 3)
            dx, dw = g1_dx(i4), g1_dw(i4)
            gaps[p0-1].append(dx[0])
            for i in range(4): gaps[p0+ds*i].append(dx[1+i])
            gaps[p0+ds*3+1].append(dx[5]); gaps[p0+ds*4-1].append(dw[0])
            for i in range(4): gaps[p0+ds*(4+i)].append(dw[1+i])
            gaps[p0+ds*7+1].append(dw[5])
        if gx:
            for g, l in gx: gaps[g].append(l)
        a(f"s_waitcnt vmcnt({vm}) lgkmcnt(0)")
        for n, (t, j) in enumerate(seq):
            cc = acc(t, j)
            a(f"{MF} v[{cc}:{cc+3}], a[{g1_wf(s,j)}:{g1_wf(s,j)+3}], a[{g1_xf(s,t)}:{g1_xf(s,t)+3}], v[{cc}:{cc+3}]")
            if n == 0: a("s_barrier")
            for l in gaps[n]: a(l)
    lp = c.lab("g1l")
    a(f"s_mov_b32 s47, 7\n{lp}:")
    pfm = c.opt.get('pf_g1', 1)
    pw = [(51, f"buffer_load_dword v27, v{g1_vPF[0]}, {SRD_W}, s48 offen {c.opt.get('pf_aux', '')}"), (52, f"s_add_u32 s48, s48, {128*7168}"),
          (53, f"s_min_u32 s48, s48, {(7-c.opt.get('pf_dist', 2))*128*7168}")]
    pd = [(50, f"buffer_load_dword v27, v{g1_vPF[1]}, {SRD_WD}, s49 offen"), (51, f"s_add_u32 s49, s49, {MB}")]
    p1 = [0, 1, 2, 1][pfm]; pf = [0, 1, 0, 0][pfm]
    o = c.lab("g1f"); b = c.lab("g1b")
    c.ool.append(f"{o}:\ns_waitcnt vmcnt(12)\ns_mov_b64 vcc, 0\ns_branch {b}")
    step(0, True, 16 + p1 + pf, gx=[(54, f"s_cbranch_vccnz {o}\n{b}:")])
    step(1, True, 16 + pf, gx=[[], pw, pw + pd, pd][pfm])
    step(2, True, 16 + p1)
    step(3, True, 16 + p1, gx=(pd if pfm == 1 else []) + [(53, "s_sub_u32 s47, s47, 1"), (54, "s_cmp_lg_u32 s47, 0")])
    a(f"s_cbranch_scc1 {lp}")
    gx = []
    for k, l in enumerate(g2_pre1(c)): gx.append((1 + k if k < 22 else 23 + (k-22)//2, l))
    for k in range(4):
        o = g2_ldw(k); gx += [(34+5*k, o[0]), (35+5*k, o[1]), (37+5*k, o[2])]
    step(0, False, 16 + p1 + pf, gx=gx + [(36+5*i, f"buffer_store_dwordx4 a[{aX+4*i}:{aX+4*i+3}], v28, {SRD_WS}, s{92+(i>>1)} offen offset:{(i&1)*2048} sc1") for i in range(4)])
    gx = [(24, f"s_waitcnt vmcnt({12+pf})"), (25, "s_barrier")]
    for k in range(4, 7):
        o = g2_ldw(k); gx += [(6+6*k, o[0]), (7+6*k, o[1]), (10+6*k, o[2])]
    for k, l in enumerate(g1_rw(3, 2)): gx.append((26 + k, l))
    X = g1_rx(3, 1)
    for t in range(8): gx.append((max(40 + t, 7*t + 6), X[t]))
    step(1, False, 20 + pf, gx=gx)
    stamp(c)
    hz = Hz(a)
    ops = []
    jo = [0, 3, 1, 4, 2, 5, 6]
    st = "sc1"
    for t in range(8):
        base = 14*t
        g0, g1_, g2 = acc(t,0), acc(t,1), acc(t,2); d = acc(t, 3)
        for r in range(4): ops.append((base+3, o_mul(g0+r, g0+r, acc(t,3)+r)))
        ops += [(base+3, o_cvt(d, g0)), (base+3, o_cvt(d+1, g0+2))]
        for r in range(4): ops.append((base+7, o_mul(g1_+r, g1_+r, acc(t,4)+r)))
        ops += [(base+7, o_cvt(d+2, g1_)), (base+7, o_cvt(d+3, g1_+2))]
        ops.append((base+7, o_st(f"buffer_store_dwordx4 v[{d}:{d+3}], v24, {SRD_WS}, s59 offen offset:{(t&1)*1024} {st}", d)))
        for r in range(4): ops.append((base+11, o_mul(g2+r, g2+r, acc(t,5)+r)))
        b = acc(t & ~1, 4) + 2*(t & 1)
        ops += [(base+11, o_cvt(b, g2)), (base+11, o_cvt(b+1, g2+2))]
        if t & 1:
            b = acc(t & ~1, 4); o0, o1 = acc(t-1, 6), acc(t, 6)
            ops += [(base+11, o_sw(32, b, b+2)), (base+11, o_sw(32, b+1, b+3))]
            ops.append((base+11, o_st(f"buffer_store_dwordx4 v[{b}:{b+3}], v25, {SRD_WS}, s59 offen {st}", b)))
            for r in range(4): ops.append((base+13, o_sw(32, o0+r, o1+r)))
            for r in range(4): ops.append((base+13, o_mul(o0+r, o0+r, o1+r)))
            od = acc(t & ~3, 5) + ((t >> 1) & 1)*2
            ops += [(base+13, o_cvt(od, o0)), (base+13, o_cvt(od+1, o0+2))]
            if t & 3 == 3:
                od = acc(t & ~3, 5)
                ops.append((base+13, o_s("s_sub_u32 s32, s59, 229376")))
                ops += [(base+13, o_sw(16, od, od+2)), (base+13, o_sw(16, od+1, od+3))]
                ops.append((base+13, o_st(f"buffer_store_dwordx4 v[{od}:{od+3}], v26, {SRD_WS}, s32 offen {st}", od)))
            ops.append((base+13, o_s("s_add_u32 s59, s59, 229376")))
    hz.raw("s_waitcnt lgkmcnt(2)")
    n = 0; per = c.opt.get('g1_per', 2)
    for t in range(8):
        if t == 1: hz.raw("s_waitcnt lgkmcnt(0)")
        for j in jo:
            for k in range(2):
                cc = acc(t, j); w = g1_wf(0 if k == 0 else 2, j); x = g1_xf(k, t)
                hz.mfma(f"{MF} v[{cc}:{cc+3}], a[{w}:{w+3}], a[{x}:{x+3}], v[{cc}:{cc+3}]", cc)
                fill(hz, ops, n, per)
                n += 1
    stamp(c)
    for _, o in ops: hz.op(o)
    stamp(c)
    signal(c)
    stamp(c)
```

```python
from fcore import *
G2_ACC, G2_H, G2_W, G2_RX, G2_RES = 32, 96, 152, 184, 216
g2_vRA = list(range(8, 16)); g2_vDW = 29; g2_vH = [17, 18]; g2_vO = 24; g2_vR = 25
def g2_acc(t, ct): return G2_ACC + (t*8 + ct)*4
def g2_h(k, t): return G2_H + (k*2 + t)*4
def g2_w(ct): return G2_W + ct*4
def g2_ldw(k):
    return [f"s_add_u32 m0, s54, {k*8192}",
            f"buffer_load_dwordx4 v{g2_vDW}, {SRD_WD}, s{40+2*k} offen lds",
            f"buffer_load_dwordx4 v{g2_vDW}, {SRD_WD}, s{41+2*k} offen offset:1024 lds"]
def g2_ldh(k, t):
    r = g2_h(k, t)
    return f"buffer_load_dwordx4 v[{r}:{r+3}], v{g2_vH[t]}, {SRD_WS}, s55 offen {LY.sc}"
def g2_rd(k, ct):
    r = g2_w(ct)
    return [f"ds_read_b64_tr_b16 v[{r}:{r+1}], v{g2_vRA[ct]} offset:{k*8192}",
            f"ds_read_b64_tr_b16 v[{r+2}:{r+3}], v{g2_vRA[ct]} offset:{k*8192+1024}"]

def g2_pre1(c, J=8):
    a = Asm()
    a(f"""
    s_lshr_b32 s57, s{sM}, 4                 ; kh
    s_and_b32 s33, s{sW}, 1
    s_lshr_b32 s34, s{sW}, 1
    s_lshl_b32 s54, s{sW}, 11                ; m0 base = w*2048
    s_lshl_b32 s35, s{sW}, 13                ; 4w rows
    s_add_u32 s40, s35, 0
    s_add_u32 s42, s35, {64*2048}
    s_add_u32 s44, s35, {112*2048}
    s_add_u32 s46, s35, {176*2048}
    s_lshl_b32 s35, s34, 17                  ; 64*(w>>1) rows
    s_lshl_b32 s36, s33, 13                  ; 4*(w&1) rows
    s_add_u32 s35, s35, s36
    s_add_u32 s48, s35, {32*2048}
    s_add_u32 s50, s35, {(32+112)*2048}
    s_mul_i32 s35, s34, {112*2048}
    s_lshl_b32 s36, s33, 14
    s_add_u32 s35, s35, s36
    s_add_u32 s52, s35, {48*2048}
    """)
    for k in range(7):
        a(f"s_add_u32 s{41+2*k}, s{40+2*k}, {(16 if k < 4 else 8 if k < 6 else 4)*2048 - 1024}")
    a(f"""
    v_lshrrev_b32 v4, 4, v{vLANE}            ; q
    v_bfe_u32 v5, v{vLANE}, 1, 3
    s_lshl_b32 s35, s33, 2
    v_or_b32 v6, s35, v4
    v_xor_b32 v5, v5, v6
    v_and_b32 v6, 1, v{vLANE}
    v_lshlrev_b32 v6, 4, v6
    v_lshl_add_u32 v5, v5, 5, v6
    v_lshl_add_u32 v5, v4, 11, v5
    s_and_b32 s35, s{sM}, 7
    s_lshl_b32 s35, s35, 8                   ; cb*256
    s_mul_i32 s36, s57, {(16-J)*224*2048}
    s_add_u32 s35, s35, s36
    v_add_u32 v{g2_vDW}, s35, v5
    """)
    return [l.strip() for l in a.lines]

def g2_pre(c, J=8):
    a = c.a
    a(f"v_lshrrev_b32 v4, 4, v{vLANE}")
    a(f"""
    s_xor_b32 s54, s54, 0x10000
    v_add_u32 v{g2_vDW}, {224*2048}, v{g2_vDW}
    v_bfe_u32 v5, v{vLANE}, 2, 2
    v_lshl_add_u32 v6, v4, 3, v5
    v_lshlrev_b32 v6, 8, v6
    v_and_b32 v7, 1, v4
    v_lshl_or_b32 v5, v7, 2, v5
    v_and_b32 v7, 3, v{vLANE}
    v_lshl_add_u32 v6, v7, 3, v6
    """)
    for ct in range(8):
        a(f"v_xor_b32 v7, {ct}, v5\nv_lshl_add_u32 v{g2_vRA[ct]}, v7, 5, v6")
    a(f"""
    s_lshl_b32 s58, s{sTB}, 3
    s_bfe_u32 s35, s{sM}, 0x10003
    s_lshl_b32 s35, s35, 2
    s_add_u32 s58, s58, s35
    s_add_u32 s58, s58, s{sW}
    s_mul_i32 s55, s58, 229376
    s_mul_i32 s36, s57, {(16-J)*7*2048}
    s_add_u32 s55, s55, s36
    s_add_u32 s55, s55, s{sLB}
    s_add_u32 s55, s55, {L_H}
    s_lshl_b32 s35, s57, 10
    v_add_u32 v{g2_vH[0]}, s35, v{vL16}
    v_xor_b32 v{g2_vH[1]}, 1024, v{g2_vH[0]}
    """)


def g2_main(c):
    a = c.a
    for i in range(32): a(f"v_mov_b64 v[{G2_ACC+2*i}:{G2_ACC+2*i+1}], 0")
    a(f"""
    s_lshl_b32 s39, s58, 1
    s_add_u32 s39, s39, s57
    s_lshl_b32 s39, s39, 15
    s_and_b32 s35, s{sM}, 7
    v_lshrrev_b32 v4, 4, v{vLANE}
    v_and_b32 v6, 1, v4
    v_lshrrev_b32 v4, 1, v4
    v_lshl_or_b32 v4, v6, 1, v4              ; chunk = [0,2,1,3][q]
    v_and_b32 v6, 15, v{vLANE}
    v_lshlrev_b32 v7, 4, v6
    v_lshl_add_u32 v{g2_vR}, v4, 8, v7
    v_lshlrev_b32 v7, 4, v4
    v_lshl_add_u32 v{g2_vO}, v6, 11, v7
    s_lshl_b32 s36, s35, 12
    s_add_u32 s36, s36, s39
    s_lshl_b32 s35, s35, 8
    s_add_u32 s39, s39, s35
    s_lshl_b32 s35, s{sLAY}, 31
    v_or_b32 v26, s35, v{g2_vR}
    v_xor_b32 v27, 0x80000000, v26
    s_add_u32 s33, s36, {LY.XR}
    s_add_u32 s34, s36, {LY.EX}
    s_lshl_b32 s35, s57, 22
    s_add_u32 s35, s35, {LY.P}
    s_cmp_eq_u32 s{sLAY}, 0
    s_cselect_b32 s35, s35, {LY.EX}
    s_xor_b32 s37, s36, 0x8000
    s_add_u32 s36, s36, s35
    s_add_u32 s37, s37, s35
    """)
    for ct in range(8):
        for l in g2_rd(0, ct): a(l)
    wait(c, vFL, M_KH)
    stamp(c, "waitH")
    for k in range(6):
        a(g2_ldh(k, 0)); a(g2_ldh(k, 1)); a("s_add_u32 s55, s55, 2048")
    a("s_waitcnt vmcnt(10)")
    stamp(c, "g2 go")
    NB = 3
    M = [(ct, k) for ct in range(8) for k in range(7-NB, 7)]
    def mrd(i):
        ct, k = M[i]
        return [f"ds_read_b64_tr_b16 a[{4*i}:{4*i+1}], v{g2_vRA[ct]} offset:{k*8192}",
                f"ds_read_b64_tr_b16 a[{4*i+2}:{4*i+3}], v{g2_vRA[ct]} offset:{k*8192+1024}"]
    def step(k, ldh, ldw, vm, extra=(), merge=False):
        W = g2_ldw(k) if ldw else []
        kk = (k + 6) % 7
        tog = (k == 6)
        gaps = [[] for _ in range(16)]
        for ct in range(8):
            r = mrd(ct) if merge else g2_rd((k+1) % 7, ct)
            if tog: gaps[2*ct].append(f"v_xor_b32 v{g2_vRA[ct]}, 0x10000, v{g2_vRA[ct]}")
            gaps[2*ct+1].append(r[0]); gaps[min(2*ct+2, 15)].append(r[1])
        fill = [g2_ldh(kk, t) for t in range(ldh)]
        if ldh: fill.append("s_add_u32 s55, s55, 2048")
        fill += W
        P = [1, 5, 9, 9, 10, 13] if tog else [2, 6, 8, 9, 10, 14]
        for p_, f in zip(P, fill): gaps[p_].append(f)
        for g, l in extra: gaps[g].append(l)
        for g in (3, 7, 11): gaps[g].append("s_waitcnt lgkmcnt(11)")
        a(f"s_waitcnt vmcnt({vm}) lgkmcnt(12)")
        for g in range(16):
            ct, t = g >> 1, (g & 1) ^ ((g >> 1) & 1)
            cc = g2_acc(t, ct)
            a(f"{MF} v[{cc}:{cc+3}], v[{g2_w(ct)}:{g2_w(ct)+3}], v[{g2_h(k,t)}:{g2_h(k,t)+3}], v[{cc}:{cc+3}]")
            if g == 0: a("s_barrier")
            for l in gaps[g]: a(l)
    loop = c.lab("g2loop")
    a(f"s_mov_b32 s56, 7\ns_mov_b64 vcc, -1\n{loop}:")
    for k in range(7):
        ex = []
        if 0 <= k <= 3:
            o = c.lab("g2f"); b = c.lab("g2b")
            ex.append((14, f"s_cbranch_vccnz {o}\n{b}:"))
            c.ool.append(f"{o}:\ns_waitcnt vmcnt({12+2*k})\n" + ("s_mov_b64 vcc, 0\n" if k == 3 else "") + f"s_branch {b}")
        if k == 5: ex += [(4, "s_sub_u32 s56, s56, 1")]
        if k == 6: ex += [(12, "s_xor_b32 s54, s54, 0x10000"), (14, "s_cmp_lg_u32 s56, 0"), (14, f"v_add_u32 v{g2_vDW}, {224*2048}, v{g2_vDW}")]
        step(k, 2, True, 20, ex)
    a(f"s_cbranch_scc1 {loop}")
    step(0, 2, False, 20)
    step(1, 0, False, 18, [(4, f"buffer_load_dword v7, v{vFL}, {SRD_WS}, s{sFB} offen sc1")])
    step(2, 0, False, 15)
    step(3, 0, False, 3, merge=True)
    o = c.lab("g2x"); b = c.lab("g2y")
    a(f"s_waitcnt vmcnt(0)\nv_cmp_gt_u32 vcc, s{sPH}, v7\ns_cbranch_vccnz {o}\n{b}:")
    c.ool.append(f"{o}:\n" + poll(c, SRD_WS, vFL, f"s{sFB}", "", f"s{sPH}") + f"s_branch {b}")
    hz = Hz(a); ops = []
    n2 = len(M)
    for p in range(4):
        ops.append((p, ('salu', f"buffer_load_dwordx4 v[{G2_RES+4*p}:{G2_RES+4*p+3}], v27, {SRD_WS}, s33 offen offset:{p*1024} sc1", [], [])))
    for ti, t in enumerate((1, 0)):
        for p in range(4):
            rdy = ti*n2 + 2*NB*(p+1) - 1
            c0, c1 = g2_acc(t, 2*p), g2_acc(t, 2*p+1); e = G2_RX + 16*ti + 4*p
            ops += [(rdy-NB, o_cvt(e, c0)), (rdy-NB, o_cvt(e+1, c0+2)), (rdy, o_cvt(e+2, c1)), (rdy, o_cvt(e+3, c1+2)),
                    (rdy, o_sw(16, e, e+2)), (rdy, o_sw(16, e+1, e+3)),
                    (rdy, o_st(f"buffer_store_dwordx4 v[{e}:{e+3}], v{g2_vR if t else 26}, {SRD_WS}, s{36+t} offen offset:{p*1024} sc1", e))]
    n = 0
    for ti, t in enumerate((1, 0)):
        for i, (ct, k) in enumerate(M):
            if ti == 0 and i % 2 == 0: hz.raw(f"s_waitcnt lgkmcnt({2*min(6, n2-2-i)})")
            cc = g2_acc(t, ct)
            hz.mfma(f"{MF} v[{cc}:{cc+3}], a[{4*i}:{4*i+3}], v[{g2_h(k,t)}:{g2_h(k,t)+3}], v[{cc}:{cc+3}]", cc)
            per = 2
            if ti == 0 and i + 8 < n2:
                for l in mrd(i+8): hz.raw(l)
                per = 1
            fill(hz, ops, n, per)
            n += 1
    stamp(c, "g2 mm")
    fin = c.lab("g2fin")
    hz.raw(f"s_cmp_lg_u32 s{sLAY}, 0"); hz.raw(f"s_cbranch_scc1 {fin}")
    assert all(o[0] >= n2 for o in ops)
    n0 = hz.n
    for _, o in ops: hz.op(o)
    stamp(c, "p out")
    a(f"""
    s_mov_b32 s{sLAY}, 1
    s_mov_b32 s{sLB}, {LY.L1}
    s_branch {c.name}_layer
    {fin}:
    s_mov_b32 s32, 0x3f80
    s_mov_b32 s35, 0x3f800000
    """)
    signal(c)
    stamp(c, "sigE")
    for p in range(4):
        c0, c1 = g2_acc(0, 2*p), g2_acc(0, 2*p+1)
        for i in range(4): a(f"v_permlane16_swap_b32 v{c0+i}, v{c1+i}")
        for i in range(4):
            a(f"v_dot2_f32_bf16 v{c0+2*i}, v{G2_RES+4*p+i}, s32, v{c0+2*i}\nv_dot2_f32_bf16 v{c0+2*i+1}, v{G2_RES+4*p+i}, s35, v{c0+2*i+1}")
    wait(c, vFL, M_PAIR)
    stamp(c, "waitE")
    for p in range(4):
        a(f"buffer_load_dwordx4 v[{G2_RX+4*p}:{G2_RX+4*p+3}], v{g2_vR}, {SRD_WS}, s34 offen offset:{p*1024} sc1")
    for p in range(4):
        c0 = g2_acc(0, 2*p)
        a(f"s_waitcnt vmcnt(3)")
        for i in range(4):
            a(f"v_dot2_f32_bf16 v{c0+2*i}, v{G2_RX+4*p+i}, s32, v{c0+2*i}\nv_dot2_f32_bf16 v{c0+2*i+1}, v{G2_RX+4*p+i}, s35, v{c0+2*i+1}")
        r = G2_RES + 4*p
        a("s_nop 0")
        for i in range(4): a(f"v_cvt_pk_bf16_f32 v{r+i}, v{c0+2*i}, v{c0+2*i+1}")
        a(f"buffer_store_dwordx4 v[{r}:{r+3}], v{g2_vO}, {SRD_OUT}, s39 offen offset:{p*64} {c.opt.get('out_aux', 'sc1')}")
    stamp(c, "out")
    if c.ts:
        a("s_waitcnt vmcnt(0)"); stamp(c, "end")
```

```python
from fcore import *
from ffront import vQ
from fg1 import g1_dw
XF, YF, RW, LO, TT = 32, 64, 96, 128, 160
def ln_stats(c, off):
    a = c.a
    a(f"v_pk_add_f32 v[28:29], v[{XF}:{XF+1}], v[{XF+2}:{XF+3}]")
    a(f"v_pk_mul_f32 v[6:7], v[{XF}:{XF+1}], v[{XF}:{XF+1}]")
    a(f"v_pk_fma_f32 v[6:7], v[{XF+2}:{XF+3}], v[{XF+2}:{XF+3}], v[6:7]")
    for i in range(2, 16):
        a(f"v_pk_add_f32 v[28:29], v[28:29], v[{XF+2*i}:{XF+2*i+1}]")
        a(f"v_pk_fma_f32 v[6:7], v[{XF+2*i}:{XF+2*i+1}], v[{XF+2*i}:{XF+2*i+1}], v[6:7]")
    a(f"""
    v_add_f32 v28, v28, v29
    v_add_f32 v29, v6, v7
    s_nop 1
    v_permlane32_swap_b32 v28, v29
    v_add_f32 v28, v28, v29
    v_mov_b32 v29, v28
    s_nop 1
    v_permlane16_swap_b32 v28, v29
    v_add_f32 v28, v28, v29
    s_nop 1
    v_add_f32_dpp v28, v28, v28 row_ror:8 row_mask:0xf bank_mask:0xf
    ds_write_b32 v26, v28 offset:{off}
    s_waitcnt lgkmcnt(0)
    s_barrier
    ds_read_b128 v[4:7], v27 offset:{off}
    ds_read_b128 v[{LO+16}:{LO+19}], v27 offset:{off+128}
    s_waitcnt lgkmcnt(1)
    v_pk_add_f32 v[4:5], v[4:5], v[6:7]
    v_add_f32 v29, v4, v5
    v_mul_f32 v29, 0x3a800000, v29
    s_waitcnt lgkmcnt(0)
    v_pk_add_f32 v[6:7], v[{LO+16}:{LO+17}], v[{LO+18}:{LO+19}]
    v_add_f32 v28, v6, v7
    v_mul_f32 v28, 0x3a800000, v28
    v_fma_f32 v28, -v29, v29, v28
    v_max_f32 v28, 0, v28
    """)
    if c.opt.get('mimic', 0):
        a(f"""
        v_cvt_pk_bf16_f32 v29, v29, v28
        v_and_b32 v28, s{sMASK}, v29
        v_lshlrev_b32 v29, 16, v29
        v_add_f32 v28, 0x3727c5ac, v28
        v_cvt_pk_bf16_f32 v28, v28, v28
        v_and_b32 v28, s{sMASK}, v28
        v_sqrt_f32 v28, v28
        s_nop 0
        v_cvt_pk_bf16_f32 v28, v28, v28
        v_and_b32 v28, s{sMASK}, v28
        v_rcp_f32 v28, v28
        """)
    else:
        a("v_add_f32 v28, 0x3727c5ac, v28\nv_rsq_f32 v28, v28")
    a("s_nop 0\nv_mul_f32 v29, -v29, v28")
def norm(d, x): return f"v_pk_fma_f32 v[{d}:{d+1}], v[{x}:{x+1}], v[28:29], v[28:29] op_sel:[0,0,1] op_sel_hi:[1,0,1]"
def w_stage(a, slot):
    o = g1_dw(slot); a(o[0]); a("s_nop 0")
    for l in o[1:]: a(l)

def ln_phase(c):
    a = c.a
    l1 = c.lab("ln1"); st = c.lab("lnst"); cm = c.lab("lncm")
    a(f"""
    v_and_b32 v4, 7, v{vLANE}              ; tok
    v_lshrrev_b32 v5, 3, v{vLANE}          ; c
    v_lshlrev_b32 v6, 8, v5
    v_lshl_add_u32 v24, v4, 4, v6
    v_lshl_add_u32 v1, v4, 3, v6
    v_and_b32 v6, 0x3ff, v24
    v_lshrrev_b32 v7, 2, v5
    v_lshl_add_u32 v25, v7, 14, v6
    v_lshlrev_b32 v27, 4, v4
    v_add_u32 v27, {LDS_RED}, v27
    s_lshl_b32 s33, s{sW}, 2
    v_lshl_add_u32 v26, v7, 7, v27
    v_add_u32 v26, s33, v26
    s_lshr_b32 s33, s{sG8}, 1
    s_lshl_b32 s33, s33, 15
    s_lshl_b32 s34, s{sW}, 13
    s_add_u32 s33, s33, s34
    s_and_b32 s34, s{sG8}, 1
    s_lshl_b32 s35, s34, 6
    s_add_u32 s33, s33, s35                ; Y offset
    s_add_u32 s36, s33, s35                ; B16 offset
    s_add_u32 s33, s33, {WS_Y}
    s_lshl_b32 s37, s{sTB}, 19
    s_lshl_b32 s35, s{sW}, 17
    s_add_u32 s37, s37, s35
    s_bfe_u32 s35, s{sG8}, 0x40001
    s_lshl_b32 s35, s35, 10
    s_add_u32 s37, s37, s35
    s_lshl_b32 s35, s34, 7
    s_add_u32 s37, s37, s35
    s_add_u32 s37, s37, s{sLB}
    s_cmp_lg_u32 s{sLAY}, 0
    s_cbranch_scc1 {l1}
    """)
    unpack(a, XF, vQ, 16)
    a(f"s_branch {st}\n{l1}:")
    for j in range(16): a(f"v_accvgpr_read_b32 v{LO+j}, a{aX+j}")
    unpack(a, XF, LO, 16)
    a(f"s_add_u32 s38, s36, {LY.P}\ns_mov_b32 s34, 0x3f80\ns_mov_b32 s35, 0x3f800000")
    wait(c, vFL, M_TH)
    stamp(c, "waitP")
    for h in range(2):
        for p in range(2):
            for i in (2*h, 2*h+1):
                r = RW + 16*p + 4*i
                a(f"buffer_load_dwordx4 v[{r}:{r+3}], v24, {SRD_WS}, s38 offen offset:{(i&1)*2048} sc1")
            a(f"s_add_u32 s38, s38, {4*MB if p == 0 else (4096 - 4*MB) & 0xffffffff}")
    for j in range(16): a(f"v_accvgpr_read_b32 v{LO+j}, a{aY+j}")
    unpack(a, YF, LO, 16)
    w_stage(a, 0); w_stage(a, 1)
    k = 15
    for h in range(2):
        for p in range(2):
            for i in (2*h, 2*h+1):
                a(f"s_waitcnt vmcnt({k})"); k -= 1
                for j in range(4):
                    r = RW + 16*p + 4*i + j; x = XF + 8*i + 2*j
                    a(f"v_dot2_f32_bf16 v{x}, v{r}, s34, v{x}\nv_dot2_f32_bf16 v{x+1}, v{r}, s35, v{x+1}")
    a(f"{st}:")
    ln_stats(c, 0)
    for j in range(16): a(norm(TT+2*j, XF+2*j))
    a(f"s_cmp_lg_u32 s{sLAY}, 0\ns_cbranch_scc1 {cm}")
    ok = c.lab("boot")
    wait(c, 250, "", every=True, pre=f"v_cmp_eq_u32 vcc, 0, v248\ns_cbranch_vccz {ok}\n" + poll(c, "s[88:91]", 249, "0", "", 1) + f"{ok}:")
    stamp(c, "waitY")
    for i in range(4):
        for k in range(2):
            r = RW + 4*i + 2*k
            a(f"buffer_load_dwordx2 v[{r}:{r+1}], v1, {SRD_WS}, s33 offen offset:{(i&1)*2048 + k*128} sc1")
        if i == 1: a("s_add_u32 s33, s33, 4096")
    w_stage(a, 0); w_stage(a, 1)
    for i in range(4):
        a(f"s_waitcnt vmcnt({14-2*i})")
        unpack(a, YF+8*i, RW+4*i, 4)
    a(f"{cm}:")
    stamp(c, "ln in")
    for j in range(16):
        x = XF + 2*j
        a(f"v_pk_fma_f32 v[{x}:{x+1}], v[{TT+2*j}:{TT+2*j+1}], v[{YF+2*j}:{YF+2*j+1}], v[{x}:{x+1}]")
    ln_stats(c, 256)
    for j in range(16):
        a(norm(TT+2*j, XF+2*j))
        a(f"v_cvt_pk_bf16_f32 v{YF+j}, v{TT+2*j}, v{TT+2*j+1}")
        if j % 4 == 3:
            a(f"buffer_store_dwordx4 v[{YF+j-3}:{YF+j}], v25, {SRD_WS}, s37 offen sc1\ns_add_u32 s37, s37, 32768")
    stamp(c, "xn out")
    w_stage(a, 2); w_stage(a, 3)
    signal(c, vm=8)
    stamp(c, "sigX")
    dn = c.lab("lnd")
    a(f"""
    s_add_u32 s92, s36, {LY.XR}
    s_add_u32 s93, s36, {LY.XR + 4096}
    s_xor_b32 s35, s{sLAY}, 1
    s_lshl_b32 s35, s35, 31
    v_or_b32 v28, s35, v24
    """)
    for j in range(16): a(f"v_cvt_pk_bf16_f32 v{LO+j}, v{XF+2*j}, v{XF+2*j+1}")
    for j in range(16): a(f"v_accvgpr_write_b32 a{aX+j}, v{LO+j}")
    a(f"s_cbranch_scc0 {dn}")
    for j in range(16): a(f"v_accvgpr_write_b32 a{aY+j}, v{RW+j}")
    a(f"{dn}:")
```

```python
from fcore import *
from ffront import front
from fln import ln_phase
from fg1 import g1_pre, g1_main
from fg2 import g2_pre, g2_main
def gen_fused(name, ts=False, **opt):
    c = Ctx(name, ts, **opt)
    set_layout(opt.get('reuse', 0))
    prolog(c); front(c)
    c.a(f"{name}_layer:")
    signal(c); stamp(c, "sig")
    g1_pre(c); ln_phase(c); g1_main(c); g2_pre(c); g2_main(c)
    epilog(c)
    c.a(f"{name}_last:\ns_endpgm")
    t = c.a.text()
    return t, kernel_desc(name, 512, accum=256), LDS_TOTAL
```

```python
from fcore import *
LDS_PK = LDS_RED + 1024
WS_WDP = 74*MB
CW = 12928; C_O = 4192; C_U = 8320
A_LDS = 4*CW + 64
K_LDS = 70*1024
vQ = 232
def front(c):
    a = c.a; opt = c.opt
    K = 32; V = 60; TP = 76; KF = 92; TF = 148; T = 180; O = KF + 16
    ACC = 32; FA = 64; FB = 128; AD = 252
    vA = [22, 23, 24, 25]; vB = 26; vE = 27; vF0 = 28; vQA = 29; vSW, vSR, vY, vPF = 212, 213, 214, 215
    def fa(s, i): return FA + (s*8 + i)*4
    def fb(s, i): return FB + (s*8 + i)*4
    z = c.lab("nz")
    a(f"""
    v_and_b32 v4, 7, v0                    ; cg
    v_lshrrev_b32 v5, 3, v0
    s_and_b32 s33, s2, 7
    s_lshr_b32 s34, s2, 3
    s_lshr_b32 s35, s34, 4
    s_and_b32 s34, s34, 15                 ; cbk
    s_lshl_b32 s33, s33, 1
    s_add_u32 s33, s33, s35
    s_add_u32 s33, s33, s34
    s_and_b32 s33, s33, 15                 ; tokblk
    s_lshl_b32 s35, s33, 18
    s_lshl_b32 s36, s34, 7
    s_add_u32 s35, s35, s36
    v_lshlrev_b32 v6, 13, v5
    v_lshl_add_u32 v6, v4, 4, v6
    v_add_u32 v11, s35, v6
    v_add_u32 v12, 4096, v11
    v_lshrrev_b32 v7, 3, v{vLANE}
    v_lshlrev_b32 v6, 11, v7
    v_lshl_add_u32 v6, v4, 4, v6
    s_lshl_b32 s36, s{sW}, 16
    s_add_u32 s35, s35, s36
    v_add_u32 v9, s35, v6
    v_cmp_lt_u32 vcc, 4, v7
    v_subrev_u32 v8, 16384, v9
    v_bfrev_b32 v6, 1
    s_mul_i32 s52, s{sW}, 6144
    v_cndmask_b32 v8, v6, v8, vcc          ; k rows -3..-1
    s_add_u32 s52, s52, {K_LDS}
    s_mov_b32 m0, s52
    s_mov_b32 s53, {16384-1024}
    s_mov_b32 s54, {2*(16384-1024)}
    s_mov_b32 s55, {3*(16384-1024)}
    s_lshl_b32 s36, s34, 9
    v_mov_b64 v[16:17], 0
    v_mov_b64 v[18:19], 0
    s_mov_b32 s90, {D*8}
    s_mov_b32 s91, 0x20000
    s_mov_b32 s26, {S*D*2}
    s_mov_b32 s27, 0x20000
    s_mov_b32 s30, {S*D*2}
    s_mov_b32 s31, 0x20000
    s_lshl_b32 s46, s34, 10
    s_add_u32 s46, s46, {WS_FL}
    s_add_u32 s47, s46, {128*128}
    s_or_b32 s48, s33, s{sW}
    s_waitcnt lgkmcnt(0)
    s_mov_b64 s[88:89], s[70:71]
    s_mov_b64 s[24:25], s[66:67]
    s_mov_b64 s[28:29], s[68:69]
    s_cbranch_scc1 {z}
    buffer_store_dwordx4 v[16:19], v{vL16}, {SRD_WS}, s46 offen sc1
    buffer_store_dwordx4 v[16:19], v{vL16}, {SRD_WS}, s47 offen sc1
    {z}:
    buffer_load_dwordx4 v{vL16}, s[88:91], s36 offen lds
    s_add_u32 m0, s52, 1024
    s_lshl_b32 s49, s34, 2
    buffer_load_dwordx4 v8, {SRD_T}, 0 offen nt lds
    s_add_u32 m0, s52, 2048
    s_add_u32 s49, s49, 64
    """)
    for i in range(4): a(f"buffer_load_dwordx4 v9, {SRD_T}, {['0','s53','s54','s55'][i]} offen offset:{1024*i} nt lds")
    for i in range(4): a(f"buffer_load_dwordx4 v[{V+4*i}:{V+4*i+3}], v{11+(i>>1)}, {SRD_T2}, 0 offen offset:{2048*(i&1)} nt")
    NX = 0
    if opt.get('pf_code', 1):
        NX = 1
        a(f"""
        s_lshr_b32 s37, s2, 3
        s_lshl_b32 s37, s37, 2
        s_add_u32 s37, s37, s{sW}
        v_and_b32 v6, 1, v0
        v_lshl_add_u32 v6, s37, 1, v6
        v_lshlrev_b32 v6, 7, v6
        s_getpc_b64 s[50:51]
        {c.name[:6]}_pc:
        v_min_u32 v6, {c.name}_last-{c.name[:6]}_pc, v6
        v_mov_b32 v7, s51
        v_add_co_u32 v6, vcc, s50, v6
        s_nop 1
        v_addc_co_u32 v7, vcc, 0, v7, vcc
        global_load_dword v251, v[6:7], off
        """)
    z = c.lab("nz")
    a(f"""
    s_mov_b64 s[88:89], s[86:87]
    s_mov_b32 s90, 256
    s_cmp_lg_u32 s48, 0
    s_cbranch_scc1 {z}
    v_mov_b32 v20, 1
    s_waitcnt vmcnt({10+NX})
    s_mov_b64 exec, 1
    buffer_store_dword v20, v16, s[88:91], s49 offen sc1
    s_mov_b64 exec, -1
    {z}:
    s_lshl_b32 s41, s34, 4
    s_add_u32 s41, s41, s33
    s_lshl_b32 s42, s41, 2
    s_add_u32 s42, s42, s{sW}              ; channel d
    s_lshl_b32 s43, s42, 12
    s_lshr_b32 s44, s42, 1
    s_lshl_b32 s44, s44, 2
    s_load_dword s45, s[74:75], s44
    s_mul_i32 s47, s{sW}, {CW}
    s_mov_b64 s[24:25], s[72:73]
    s_mov_b64 s[28:29], s[64:65]
    """)
    prolog2(c)
    rot = "s_lshr_b32 s38, s2, 3\n"
    for k in range(7):
        rot += f"""s_and_b32 s39, s38, 15
        s_lshl_b32 s39, s39, 7
        s_add_u32 s{64+k}, s{64+k}, s39
        s_bfe_u32 s39, s38, 0x30001
        s_mul_i32 s39, s39, {112*8192}
        s_add_u32 s{76+k}, s59, s39
        s_and_b32 s39, s38, 1
        s_lshl_b32 s39, s39, 12
        s_add_u32 s{76+k}, s{76+k}, s39
        s_add_u32 s59, s59, 8192
        s_add_u32 s38, s38, {opt.get('pk_rot', 1)}
        """
    a(f"""
    v_lshrrev_b32 v7, 3, v{vLANE}
    v_lshlrev_b32 v7, 9, v7
    v_lshl_add_u32 v7, v4, 4, v7
    v_add_u32 v10, s52, v7
    v_lshl_add_u32 v21, v4, 6, s52
    v_mul_u32_u24 v6, 2064, v4
    v_sub_u32 v7, 31, v5
    v_lshl_add_u32 v6, v7, 3, v6
    v_add_u32 v13, {A_LDS}, v6
    v_lshrrev_b32 v7, 7, v0
    v_add_u32 v7, v7, v0
    v_lshlrev_b32 v7, 4, v7
    v_add_u32 v14, {A_LDS}, v7
    v_lshrrev_b32 v6, 4, v0
    v_and_b32 v7, 15, v0
    v_lshl_add_u32 v249, v7, 2, 64
    v_lshlrev_b32 v7, 4, v7
    v_lshl_add_u32 v15, v6, 12, v7         ; u^T store
    s_lshl_b32 s36, s34, 18
    s_sub_u32 s37, 15, s33
    s_lshl_b32 s37, s37, 8
    s_add_u32 s36, s36, s37
    s_add_u32 s36, s36, {WS_UT}
    v_lshrrev_b32 v5, 3, v{vLANE}
    v_lshl_add_u32 v6, v5, 7, v4
    v_lshlrev_b32 v6, 7, v6
    s_lshl_b32 s37, s34, 10
    v_add_u32 v{vF0}, s37, v6
    v_lshlrev_b32 v250, 7, v0
    v_and_b32 v6, 3, v5
    v_lshlrev_b32 v7, 5, v4
    v_lshl_or_b32 v6, v6, 1, v7
    s_and_b32 s37, s2, 0x19
    v_or_b32 v6, s37, v6
    v_lshlrev_b32 v{vFL}, 7, v6
    v_lshlrev_b32 v6, 4, v5
    v_lshl_add_u32 v{vQA}, v4, 11, v6
    s_lshl_b32 s56, s{sG8}, 14
    s_lshl_b32 s38, s{sW}, 9
    s_add_u32 s56, s56, s38
    v_lshlrev_b32 v6, 4, v4
    v_lshl_add_u32 v{vY}, v5, 15, v6
    s_lshl_b32 s57, s{sW}, 20
    s_lshl_b32 s38, s41, 7
    s_add_u32 s57, s57, s38
    s_add_u32 s57, s57, {WS_Y}
    v_bfe_u32 v6, v{vLANE}, 1, 2
    v_mul_u32_u24 v6, 160, v6
    v_lshl_add_u32 v6, v5, 3, v6
    v_and_b32 v7, 1, v{vLANE}
    v_lshl_add_u32 v6, v7, 2, v6
    s_mul_i32 s37, s{sW}, 1280
    v_add_u32 v{vSR}, s37, v6
    v_min_u32 v6, 33, v{vLANE}
    v_lshlrev_b32 v6, 4, v6
    v_cmp_lt_u32 vcc, 1, v{vLANE}
    v_mov_b32 v7, {C_O-32-32}
    v_mov_b32 v5, {C_U+4096-64}
    v_cndmask_b32 v7, 0, v7, vcc
    v_cmp_lt_u32 vcc, 3, v{vLANE}
    v_add_u32 v{vE}, s47, v{vL16}
    v_and_b32 v4, 15, v{vLANE}             ; b
    v_cndmask_b32 v7, v7, v5, vcc
    v_add3_u32 v6, v6, v7, s47
    ds_write_b128 v6, v[16:19]
    v_lshrrev_b32 v5, 4, v{vLANE}          ; q
    v_add_u32 v6, 1, v4
    v_lshrrev_b32 v6, 1, v6
    v_lshl_add_u32 v6, v5, 2, v6
    v_lshlrev_b32 v6, 2, v6
    v_and_b32 v7, 1, v4
    v_xor_b32 v7, 1, v7
    v_mul_u32_u24 v7, {C_O-28}, v7
    v_add3_u32 v{vA[0]}, v6, v7, s47
    v_add_u32 v{vA[1]}, 1024, v{vA[0]}
    v_add_u32 v{vA[2]}, 2048, v{vA[0]}
    v_add_u32 v{vA[3]}, 3072, v{vA[0]}
    v_lshlrev_b32 v6, 5, v4
    v_lshlrev_b32 v7, 4, v5
    v_sub_u32 v6, v7, v6
    s_add_u32 s37, s47, {C_U + 2*(S-16) - 512*7}
    v_add_u32 v{vB}, s37, v6
    v_mul_u32_u24 v6, 160, v5
    v_lshl_add_u32 v6, v4, 3, v6
    v_add_u32 v{vSW}, s47, v6
    s_lshl_b32 s58, s2, 1
    s_and_b32 s38, s{sW}, 1
    s_add_u32 s58, s58, s38
    s_mul_i32 s58, s58, {35*128}
    v_min_u32 v6, 34, v{vLANE}
    v_lshlrev_b32 v{vPF}, 7, v6
    v_lshl_add_u32 v6, v5, 3, v4
    v_sub_u32 v6, 15, v6
    v_and_b32 v7, 1, v6
    v_lshlrev_b32 v7, 4, v7
    v_ashrrev_i32 v6, 1, v6
    s_and_b32 s37, s42, 1
    s_lshl_b32 s37, s37, 4
    s_waitcnt lgkmcnt(0)
    s_lshr_b32 s45, s45, s37
    s_and_b32 s45, s45, 0xffff
    v_lshlrev_b32 v7, v7, s45
    """)
    for i in range(4):
        a(f"v_cmp_eq_u32 vcc, {i}, v6\ns_nop 1\nv_cndmask_b32 v{AD+i}, 0, v7, vcc")
    stamp(c, "setup")
    a(f"s_waitcnt vmcnt({9+NX})")
    for i in range(4): a(f"ds_read_b128 v[{TP+4*i}:{TP+4*i+3}], v21 offset:{16*i}")
    for ch in range(8):
        if ch % 2 == 0: a(f"s_waitcnt lgkmcnt({3-ch//2})")
        for h in range(2):
            r = TP + 2*ch + h
            a(f"v_lshlrev_b32 v{TF+(2*h)*8+ch}, 16, v{r}\nv_and_b32 v{TF+(2*h+1)*8+ch}, s{sMASK}, v{r}")
    ep = opt.get('e_pos', 3)
    eld = "s_add_u32 m0, s47, 32\ns_nop 0\n" + "".join(f"buffer_load_dwordx4 v{vL16}, {SRD_T}, s43 offen offset:{1024*i} nt lds\n" for i in range(4))
    if ep == -2: a(eld); NX += 4
    a(f"s_waitcnt vmcnt({4+NX})")
    if ep == -1: a(eld); NX += 4
    for i in range(7): a(f"ds_read_b128 v[{K+4*i}:{K+4*i+3}], v10 offset:{1024+(5+i)*128}")
    for i in range(7):
        a(f"s_waitcnt lgkmcnt({6-i})")
        unpack(a, KF+8*i, K+4*i, 4)
    for t in range(4):
        for tap in range(4):
            for p in range(4):
                d = T + 8*t + 2*p; kk = KF + 8*(t+3-tap) + 2*p; w = TF + 8*tap + 2*p
                if tap == 0: a(f"v_pk_mul_f32 v[{d}:{d+1}], v[{kk}:{kk+1}], v[{w}:{w+1}]")
                else: a(f"v_pk_fma_f32 v[{d}:{d+1}], v[{kk}:{kk+1}], v[{w}:{w+1}], v[{d}:{d+1}]")
    for t in range(4):
        a(f"s_waitcnt vmcnt({3-t+NX})")
        if t == ep: a(eld); NX += 4
        unpack(a, KF, V+4*t, 4)
        for p in range(4):
            d = T + 8*t + 2*p
            a(f"v_pk_mul_f32 v[{d}:{d+1}], v[{d}:{d+1}], v[{KF+2*p}:{KF+2*p+1}]")
    for ch in range(8):
        a(f"v_cvt_pk_bf16_f32 v{O+2*ch}, v{T+24+ch}, v{T+16+ch}\nv_cvt_pk_bf16_f32 v{O+2*ch+1}, v{T+8+ch}, v{T+ch}")
        a(f"ds_write_b64 v13, v[{O+2*ch}:{O+2*ch+1}] offset:{256*ch}")
    a("s_waitcnt lgkmcnt(0)\ns_barrier")
    stamp(c, "A done")
    for i in range(4): a(f"ds_read_b128 v[{K+4*i}:{K+4*i+3}], v14 offset:{i*2*2064}")
    for i in range(4):
        a(f"s_waitcnt lgkmcnt({3-i})")
        a(f"buffer_store_dwordx4 v[{K+4*i}:{K+4*i+3}], v15, {SRD_WS}, s36 offen sc1")
        a(f"s_add_u32 s36, s36, {16*4096}")
    a(f"buffer_load_dword v20, v16, s[88:91], s49 offen sc1\ns_waitcnt vmcnt(5)")
    HK = 96
    for i in range(4):
        a(f"ds_read_b128 v[{HK+4*i}:{HK+4*i+3}], v{vE} offset:{32+1024*i}\nds_read_b32 v{HK+16+i}, v{vE} offset:{28+1024*i}")
    for i in range(4):
        r = HK + 4*i; o = 160 + 4*i
        a(f"s_waitcnt lgkmcnt({6-i})")
        a(f"v_alignbit_b32 v{o}, v{r}, v{HK+16+i}, 16")
        for j in range(1, 4): a(f"v_alignbit_b32 v{o+j}, v{r+j}, v{r+j-1}, 16")
        a(f"ds_write_b128 v{vE}, v[{o}:{o+3}] offset:{C_O+1024*i}")
    def reads(s, j):
        B = [f"ds_read_b128 v[{fb(s,i)}:{fb(s,i)+3}], v{vB} offset:{512*(7-i)+64*j}" for i in range(8)]
        A = []
        for i in range(8):
            o = (i & 1)*128 + 16*j; r = fa(s, i)
            A.append(f"ds_read2_b32 v[{r}:{r+1}], v{vA[i>>1]} offset0:{o} offset1:{o+1}")
            A.append(f"ds_read2_b32 v[{r+2}:{r+3}], v{vA[i>>1]} offset0:{o+2} offset1:{o+3}")
        return B + A
    R = reads(0, 0)
    ok = c.lab("boot")
    signal(c, pre=f"v_cmp_ne_u32 vcc, 0, v20\ns_cbranch_vccnz {ok}\n" + poll(c, "s[88:91]", 4, "s49", "", 1) + f"{ok}:")
    stamp(c, "sig0")
    for l in R[8:]: a(l)
    a(f"s_add_u32 s43, s43, {WS_UT}")
    a(f"""
    s_and_b32 s37, s2, 7
    s_lshl_b32 s37, s37, 1
    s_lshr_b32 s38, s2, 7
    s_add_u32 s37, s37, s38                ; P
    s_mul_i32 s38, s37, {224*2048}
    s_mul_i32 s59, s37, {7*8192}
    s_lshl_b32 s39, s{sW}, 10
    s_add_u32 s59, s59, s39
    s_add_u32 s59, s59, {WS_WDP}
    s_and_b32 s35, s{sW}, 1
    s_lshr_b32 s37, s{sW}, 1
    s_lshl_b32 s39, s{sW}, 13
    s_add_u32 s64, s39, s38
    s_add_u32 s65, s64, {64*2048}
    s_add_u32 s66, s64, {112*2048}
    s_add_u32 s67, s64, {176*2048}
    s_lshl_b32 s39, s37, 17
    s_lshl_b32 s68, s35, 13
    s_add_u32 s39, s39, s68
    s_add_u32 s39, s39, s38
    s_add_u32 s68, s39, {32*2048}
    s_add_u32 s69, s39, {144*2048}
    s_mul_i32 s39, s37, {112*2048}
    s_lshl_b32 s70, s35, 14
    s_add_u32 s39, s39, s70
    s_add_u32 s39, s39, s38
    s_add_u32 s70, s39, {48*2048}
    {rot}
    s_lshl_b32 s71, s{sW}, 10
    s_add_u32 s71, s71, {LDS_PK}
    v_lshrrev_b32 v6, 5, v{vLANE}
    v_bfe_u32 v7, v{vLANE}, 3, 2
    v_and_b32 v216, 0x70, v{vL16}
    v_lshl_add_u32 v7, v7, 11, v216
    v_lshl_add_u32 v216, v6, 15, v7
    v_lshl_add_u32 v217, v6, 14, v7
    v_lshl_add_u32 v218, v6, 13, v7
    v_bfe_u32 v6, v{vLANE}, 2, 2
    v_lshrrev_b32 v5, 4, v{vLANE}
    v_lshl_add_u32 v6, v5, 3, v6
    v_and_b32 v7, 0x30, v{vL16}
    v_lshl_add_u32 v6, v6, 7, v7
    s_lshl_b32 s37, s37, 6
    s_lshl_b32 s35, s35, 3
    s_add_u32 s37, s37, s35
    s_add_u32 s37, s37, {LDS_PK}
    v_add_u32 v219, s37, v6
    """)
    wait(c, vF0, "s_mov_b64 exec, 0xffff")
    stamp(c, "wait0")
    a(f"s_add_u32 m0, s47, {C_U}\ns_mov_b32 s38, 0x05040100")
    for i in range(4):
        a(f"buffer_load_dwordx4 v{vL16}, {SRD_WS}, s43 offen offset:{1024*i} sc1 lds")
    a("s_mov_b32 s39, 0x07060302")
    for i in range(4):
        a(f"s_waitcnt vmcnt({max(2-i, 0)})")
        a(R[7-2*i]); a(R[6-2*i])
    stamp(c, "ur")
    for n in range(7, -1, -1):
        cc = ACC + 4*n
        a(f"s_waitcnt lgkmcnt({n})")
        a(f"{MF} v[{cc}:{cc+3}], v[{AD}:{AD+3}], v[{fb(0,n)}:{fb(0,n)+3}], 0")
    side = {}
    def put(pos, l): side.setdefault(pos, []).append(l)
    p = opt.get('pk_pos', 1); dp = opt.get('pk_dp', 2)
    for k in range(7):
        put(p-1, f"s_add_u32 m0, s71, {4096*k}")
        put(p, f"buffer_load_dwordx4 v{216 if k < 4 else 217 if k < 6 else 218}, {SRD_WD}, s{64+k} offen {opt.get('pk_aux', 'nt')} lds"); p += dp
    p = opt.get('q_pos', 96)
    for i in range(4):
        put(p, f"buffer_load_dwordx4 v[{vQ+4*i}:{vQ+4*i+3}], v{vQA}, {SRD_T2}, s56 offen offset:{128*i} nt"); p += opt.get('q_dp', 1)
    put(p, f"buffer_load_dword v251, v{vPF}, {SRD_W}, s58 offen"); p += 1
    put(p, f"buffer_load_dword v248, v249, s[88:91], 0 offen sc1")
    jb = opt.get('pk_jb', 0)
    if jb:
        assert p < 36*jb + 24
        put(36*jb + 24, "s_waitcnt vmcnt(6)"); put(36*jb + 25, "s_barrier")
        for k in range(7):
            put(36*jb + 26 + k, f"ds_read_b64_tr_b16 a[{4*k}:{4*k+1}], v219 offset:{4096*k}")
            put(36*jb + 26 + k, f"ds_read_b64_tr_b16 a[{4*k+2}:{4*k+3}], v219 offset:{4096*k+512}")
            q_ = 36*(jb+1) + 2 + opt.get('pk_ds', 8)*k
            put(q_, f"buffer_store_dwordx4 a[{4*k}:{4*k+3}], v{vL16}, {SRD_WS}, s{76+k} offen sc1")
    hz = Hz(a); ops = []
    for j in range(8):
        hz.raw("s_waitcnt lgkmcnt(0)")
        R = reads((j & 1) ^ 1, j + 1) if j < 7 else []
        k = 0
        for i in range(8):
            for n in range(i, 8):
                cc = ACC + 4*n
                hz.mfma(f"{MF} v[{cc}:{cc+3}], v[{fa(j&1,i)}:{fa(j&1,i)+3}], v[{fb(j&1,n-i)}:{fb(j&1,n-i)+3}], v[{cc}:{cc+3}]", cc)
                if k < len(R): hz.raw(R[k])
                sl = opt.get('x_slow')
                if sl and sl[j]: hz.raw(f"s_nop {sl[j]}")
                for l in side.get(36*j + k, []): hz.raw(l)
                if j == 7:
                    if n == i: ops += [(k, o_cvt(cc, cc)), (k, o_cvt(cc+1, cc+2)), (k, ('salu', f"ds_write_b64 v{vSW}, v[{cc}:{cc+1}] offset:{640*n}", [], []))]
                    fill(hz, ops, k, 2)
                k += 1
    stamp(c, "conv")
    for _, o in ops: hz.op(o)
    a("s_waitcnt lgkmcnt(0)\ns_barrier")
    for g in range(4):
        for ch in range(4):
            a(f"ds_read_b32 v{FA+4*g+ch}, v{vSR} offset:{ch*CW + (g>>1)*640 + (g&1)*64}")
    for g in range(4):
        r = FA + 4*g; o = FB + 4*g
        a(f"s_waitcnt lgkmcnt({12-4*g})")
        a(f"v_perm_b32 v{o}, v{r+1}, v{r}, s38\nv_perm_b32 v{o+1}, v{r+3}, v{r+2}, s38")
        a(f"v_perm_b32 v{o+2}, v{r+1}, v{r}, s39\nv_perm_b32 v{o+3}, v{r+3}, v{r+2}, s39")
        a(f"buffer_store_dwordx4 v[{o}:{o+3}], v{vY}, {SRD_WS}, s57 offen sc1")
        a(f"s_add_u32 s57, s57, {8*32768}")
    stamp(c, "y out")

def repack(c):
    a = c.a
    for k in range(7):
        r = 192 + 4*k
        a(f"ds_read_b64_tr_b16 v[{r}:{r+1}], v219 offset:{4096*k}\nds_read_b64_tr_b16 v[{r+2}:{r+3}], v219 offset:{4096*k+512}") if k < 6 else None
    a(f"ds_read_b64_tr_b16 v[220:221], v219 offset:{4096*6}\nds_read_b64_tr_b16 v[222:223], v219 offset:{4096*6+512}")
    for k in range(7):
        r = 192 + 4*k if k < 6 else 220
        a(f"s_waitcnt lgkmcnt({12-2*k})")
        a(f"buffer_store_dwordx4 v[{r}:{r+3}], v{vL16}, {SRD_WS}, s{76+k} offen sc1")
```

```python
from fcore import *
import fg2p
ACC1 = 32
def g1_acc(t, j): return ACC1 + (t*7 + j)*4
def g1_xf(k, t): return 112 + (t*2 + k)*4
def g1_wf(slot, j): return slot*28 + j*4
aPK = 176; LDS_PK = LDS_RED + 1024
g1_vXA = [8, 9]; g1_vWA = [[10,11,12,13],[14,15,16,17]]; g1_vDW = [19,20,21,22]; g1_vPF = [18, 23]
def g1_dx(slot):
    return [f"s_add_u32 m0, s42, {slot*STAGE}"] + [f"buffer_load_dwordx4 v{vL16}, {SRD_WS}, s40 offen offset:{1024*i} {LY.sc} lds" for i in range(4)] + ["s_add_u32 s40, s40, 16384"]
def g1_dw(slot):
    return [f"s_add_u32 m0, s43, {slot*STAGE}"] + [f"buffer_load_dwordx4 v{g1_vDW[i]}, {SRD_W}, s41 offen offset:{1024*i} lds" for i in range(4)] + [f"s_add_u32 s41, s41, {32*7168}"]
def g1_rw(slot):
    h = slot >> 1; so = (slot & 1)*STAGE; W = []
    for j in range(7):
        va = g1_vWA[h][j % 3] if j < 6 else g1_vWA[h][3]
        off = so + (UOFF if 3 <= j < 6 else 0); r = g1_wf(slot, j)
        W.append(f"ds_read_b64_tr_b16 a[{r}:{r+1}], v{va} offset:{off}")
        W.append(f"ds_read_b64_tr_b16 a[{r+2}:{r+3}], v{va} offset:{off+1024}")
    return W
def g1_rx(h, t):
    return [f"ds_read_b128 a[{g1_xf(k,t)}:{g1_xf(k,t)+3}], v{g1_vXA[h]} offset:{k*STAGE+t*1024}" for k in range(2)]
def w_stage(a, slot):
    o = g1_dw(slot); a(o[0]); a("s_nop 0")
    for l in o[1:]: a(l)

def g1_pre(c):
    a = c.a; vDW = g1_vDW; vWA = g1_vWA; vXA = g1_vXA
    a(f"""
    s_and_b32 s44, s{sW}, 1
    s_lshr_b32 s45, s{sW}, 1
    s_and_b32 s46, s{sM}, 1
    s_mul_i32 s41, s44, {16*7168}
    s_mul_i32 s33, s{sM}, 224
    s_add_u32 s41, s41, s33
    s_lshl_b32 s33, s46, 5
    s_sub_u32 s41, s41, s33
    s_mul_i32 s43, s45, {UOFF}
    s_lshl_b32 s33, s44, 12
    s_add_u32 s43, s43, s33
    s_add_u32 s43, s43, 16384
    v_lshrrev_b32 v1, 4, v{vLANE}          ; q
    v_bfe_u32 v4, v{vLANE}, 1, 3
    v_xor_b32 v4, v4, v1
    v_and_b32 v5, 1, v{vLANE}
    v_lshlrev_b32 v5, 4, v5
    v_mul_u32_u24 v6, 7168, v1
    v_add_u32 v6, v6, v5
    v_lshl_add_u32 v{vDW[0]}, v4, 5, v6
    v_xor_b32 v4, 4, v4
    v_lshl_add_u32 v{vDW[2]}, v4, 5, v6
    v_add_u32 v{vDW[1]}, {4*7168-1024}, v{vDW[0]}
    v_add_u32 v{vDW[3]}, {3*(4*7168-1024)}, v{vDW[2]}
    v_add_u32 v{vDW[2]}, {2*(4*7168-1024)}, v{vDW[2]}
    """)
    if c.opt.get('w0', 0) == 0: w_stage(a, 0); w_stage(a, 1)
    a(f"""
    s_lshl_b32 s42, s{sW}, 12
    s_lshl_b32 s40, s{sTB}, 19
    s_add_u32 s40, s40, s42
    s_add_u32 s40, s40, s{sLB}
    s_lshl_b32 s33, s45, 13
    v_add_u32 v{vXA[0]}, s33, v{vL16}
    v_add_u32 v{vXA[1]}, {2*STAGE}, v{vXA[0]}
    v_bfe_u32 v4, v{vLANE}, 2, 2           ; r4
    v_and_b32 v5, 1, v1
    v_lshl_or_b32 v5, v5, 2, v4            ; sigma
    v_lshl_add_u32 v6, v1, 3, v4
    v_lshlrev_b32 v6, 8, v6
    v_add_u32 v6, 16384, v6
    v_and_b32 v7, 3, v{vLANE}
    v_lshl_add_u32 v1, v7, 3, v6
    s_lshl_b32 s33, s44, 2
    s_add_u32 s33, s33, s46
    """)
    for p in range(3):
        a(f"s_add_u32 s34, s33, {p}\nv_xor_b32 v4, s34, v5\nv_lshl_add_u32 v{vWA[0][p]}, v4, 5, v1")
    a(f"""
    s_add_u32 s34, s46, 3
    v_xor_b32 v4, s34, v5
    v_lshl_add_u32 v6, v4, 5, v6
    v_and_b32 v4, 1, v7
    v_lshl_add_u32 v6, v4, 3, v6
    v_lshrrev_b32 v4, 1, v7
    v_mul_u32_u24 v4, {UOFF}, v4
    s_lshl_b32 s34, s44, 4
    v_add3_u32 v{vWA[0][3]}, v6, v4, s34
    """)
    for p in range(4): a(f"v_add_u32 v{vWA[1][p]}, {2*STAGE}, v{vWA[0][p]}")
    d = c.opt.get('pf_dist', 2)
    who = c.opt.get('pf_who', 1)
    a(f"s_sub_u32 s34, s{sLAY}, 1")
    if who:
        a(f"""
        s_add_u32 s35, s{sM}, 1
        s_bfe_u32 s35, s35, 0x10001
        s_sub_u32 s35, s35, 1
        s_and_b32 s34, s34, s35
        s_bfe_u32 s36, s2, 0x20003
        s_bfe_u32 s35, s2, 0x20006
        s_lshl_b32 s35, s35, 2
        s_add_u32 s36, s36, s35
        """)
    else: a("s_lshr_b32 s36, s2, 3")
    a(f"""
    s_lshl_b32 s33, s36, 1
    s_add_u32 s33, s33, s44
    s_lshl_b32 s33, s33, 1
    s_and_b32 s35, s2, 1
    s_add_u32 s33, s33, s35
    s_mul_i32 s33, s33, {7168 << who}
    s_lshr_b32 s35, s{sM}, 3
    s_mul_i32 s35, s35, 1792
    s_add_u32 s33, s33, s35
    s_add_u32 s33, s33, {320*7168}
    v_lshlrev_b32 v4, 7, v{vLANE}
    v_cmp_lt_u32 vcc, 13, v{vLANE}
    v_add_u32 v5, s33, v4
    v_add_u32 v6, {7168-14*128}, v5
    v_cndmask_b32 v5, v5, v6, vcc
    s_and_b32 s33, s34, {14 << who}
    v_cmp_gt_u32 vcc, s33, v{vLANE}
    v_bfrev_b32 v6, 1
    s_nop 0
    v_cndmask_b32 v{g1_vPF[0]}, v6, v5, vcc
    """)

def g1_main(c):
    a = c.a; acc = g1_acc
    for l in g1_rw(0) + g1_rw(1): a(l)
    for i in range(40): a(f"v_mov_b64 v[{ACC1+2*i}:{ACC1+2*i+1}], 0")
    a("s_waitcnt lgkmcnt(0)\ns_barrier")
    w_stage(a, 0); w_stage(a, 1)
    for i in range(40, 112): a(f"v_mov_b64 v[{ACC1+2*i}:{ACC1+2*i+1}], 0")
    a(f"""
    s_lshl_b32 s59, s{sTB}, 3
    s_lshl_b32 s33, s45, 2
    s_add_u32 s59, s59, s33
    s_mul_i32 s59, s59, 229376
    s_lshr_b32 s33, s{sM}, 1
    s_mul_i32 s33, s33, {7*2048}
    s_add_u32 s59, s59, s33
    s_add_u32 s59, s59, s{sLB}
    s_add_u32 s59, s59, {L_H}
    s_lshl_b32 s34, s46, 1
    s_add_u32 s34, s34, s44                ; wv
    s_lshl_b32 s33, s34, 11
    v_add_u32 v24, s33, v{vL16}
    v_and_b32 v4, 15, v{vLANE}
    v_lshlrev_b32 v4, 4, v4
    v_lshrrev_b32 v5, 5, v{vLANE}
    v_lshl_add_u32 v4, v5, 10, v4
    v_bfe_u32 v5, v{vLANE}, 4, 1
    s_add_u32 s33, s46, 4
    s_lshl_b32 s33, s33, 11
    s_lshl_b32 s35, s44, 9
    s_add_u32 s33, s33, s35
    v_lshl_add_u32 v25, v5, 8, v4
    v_add_u32 v25, s33, v25
    s_lshl_b32 s33, s34, 8
    s_add_u32 s33, s33, {6*2048}
    v_mul_u32_u24 v5, 229376, v5
    v_add3_u32 v26, v4, v5, s33
    """)
    a(f"""
    s_lshr_b32 s33, s{sM}, 4
    s_lshl_b32 s33, s33, 2
    s_add_u32 s33, s33, s{sW}
    s_lshl_b32 s34, s{sM}, 1
    s_add_u32 s34, s34, 10
    v_and_b32 v5, 7, v{vLANE}
    v_add_u32 v5, s34, v5
    v_and_b32 v5, 15, v5
    v_bfe_u32 v7, v{vLANE}, 3, 1
    v_lshl_add_u32 v5, v7, 4, v5
    v_lshl_add_u32 v5, v5, 3, s33
    v_lshlrev_b32 v23, 7, v5
    s_mov_b32 s47, 7
    """)
    wait(c, vFL, M_ALL)
    stamp(c, "waitX")
    for slot in range(4):
        o = g1_dx(slot); a(o[0]); a("s_nop 0")
        for l in o[1:]: a(l)
    a("s_mov_b64 vcc, -1\ns_waitcnt vmcnt(8)\ns_barrier")
    for t in range(8):
        for l in g1_rx(0, t): a(l)
    stamp(c, "g1 go")
    kin = c.opt.get('g1_kin', 1)
    def mseq(jo):
        out = []
        for t in range(8):
            js = jo if t % 2 == 0 else jo[::-1]
            if kin: out += [(t, j, k) for i, j in enumerate(js) for k in ((0, 1) if i % 2 == 0 else (1, 0))]
            else: out += [(t, j, 0) for j in js] + [(t, j, 1) for j in js[::-1]]
        return out
    sch = c.opt.get('g1_sch', 0)
    def sstep(s, loop, gx=()):
        gaps = [[] for _ in range(112)]
        BA, BB = c.opt.get('ba', 7), 63
        gaps[BA-1].append(f"s_waitcnt vmcnt({17 if loop else 0}) lgkmcnt(0)"); gaps[BA].append("s_barrier")
        for k, l in enumerate(g1_rw(2*(s^1)) + g1_rw(2*(s^1)+1)): gaps[BA + 1 + ((k*3)//2 if sch == 0 else k)].append(l)
        for t in range(8):
            g = max(BB + 2 + 3*t if sch == 0 else BB + 1 + 2*t, 14*t + 13)
            r = g1_rx(s ^ 1, t)
            if t == 7: gaps[110].append(r[c.lastk ^ 1]); gaps[111].append(r[c.lastk])
            else: gaps[g].append(r[0]); gaps[g+1].append(r[1])
        if loop:
            gaps[BB-1].append(f"s_waitcnt vmcnt({16 if s or sch == 2 else 17}) lgkmcnt(0)"); gaps[BB].append("s_barrier")
            px = [[16,22,28,34,40,46,52,58], [37,40,43,46,49,52,55,58], [37,40,43,46,49,52,55,58]][sch]
            pw = [[67,72,77,82,87,92,97,102], [75,78,81,86,89,92,95,100], [75,79,86,90,94,100,104,108]][sch]
            for h in range(2):
                for o, p in ((g1_dx(2*s + h), px[4*h:]), (g1_dw(2*(s^1) + h), pw[4*h:])):
                    gaps[p[0]-1].append(o[0])
                    for i in range(4): gaps[p[i]].append(o[1+i])
                    gaps[p[3]+1].append(o[5])
        for g, l in gx: gaps[g].append(l)
        a("s_waitcnt lgkmcnt(2)")
        for n, (t, j, k) in enumerate(mseq(list(range(7)))):
            cc = acc(t, j); w = g1_wf(2*s + k, j); x = g1_xf(k, t)
            a(f"{MF} v[{cc}:{cc+3}], a[{w}:{w+3}], a[{x}:{x+3}], v[{cc}:{cc+3}]")
            for l in gaps[n]: a(l)
    c.lastk = mseq(list(range(7)))[-1][2]
    lp = c.lab("g1l")
    o = c.lab("g1f"); b = c.lab("g1b")
    c.ool.append(f"{o}:\ns_waitcnt vmcnt(8)\nbuffer_load_dword v7, v23, {SRD_WS}, s{sFB} offen sc1\ns_mov_b64 vcc, 0\ns_branch {b}")
    a(f"{lp}:")
    pg = 2 if sch == 2 else 105
    sstep(0, True, [(61, f"s_cbranch_vccnz {o}\n{b}:"), (2, "s_sub_u32 s47, s47, 1")])
    sstep(1, True, [(60, "s_cmp_eq_u32 s47, 0"), (61, "s_cselect_b32 s10, 0, s10"),
                    (pg, f"buffer_load_dword v27, v{g1_vPF[0]}, {SRD_W}, 0 offen"), (pg+1, f"v_add_u32 v{g1_vPF[0]}, {128*7168}, v{g1_vPF[0]}"),
                    (110, "s_cmp_lg_u32 s47, 0")])
    a(f"s_cbranch_scc1 {lp}")
    def pk_ld(n, g0, ds):
        o = fg2p.g2_ldw(c, n)
        return [(g0, o[0])] + [(g0+1+ds*i, o[1+i]) for i in range(4)] + [(g0+2+ds*3, o[5])]
    gx = [(0, f"s_mov_b32 s10, {D*F*2}")]
    for k, l in enumerate(fg2p.g2_pre1(c)): gx.append((1 + k//2, l))
    o = c.lab("g1c"); b = c.lab("g1d")
    c.ool.append(f"{o}:\n" + poll(c, SRD_WS, 23, f"s{sFB}", "", 3) + f"s_branch {b}")
    gx += [(0, "v_cmp_gt_u32 vcc, 3, v7"), (5, f"s_cbranch_vccnz {o}\n{b}:")]
    for n in range(4): gx += pk_ld(n, 15 + 24*n, 6)
    if c.opt.get('st14'): stamp(c)
    sstep(0, False, gx)
    stamp(c, "g1 loop")
    hz = Hz(a)
    ops = []
    jo = [0, 3, 1, 4, 2, 5, 6]
    st = "sc1"
    for t in range(8):
        base = 14*t
        g0, g1_, g2 = acc(t,0), acc(t,1), acc(t,2); d = acc(t, 3)
        for r in range(4): ops.append((base+3, o_mul(g0+r, g0+r, acc(t,3)+r)))
        ops += [(base+3, o_cvt(d, g0)), (base+3, o_cvt(d+1, g0+2))]
        for r in range(4): ops.append((base+7, o_mul(g1_+r, g1_+r, acc(t,4)+r)))
        ops += [(base+7, o_cvt(d+2, g1_)), (base+7, o_cvt(d+3, g1_+2))]
        ops.append((base+7, o_st(f"buffer_store_dwordx4 v[{d}:{d+3}], v24, {SRD_WS}, s59 offen offset:{(t&1)*1024} {st}", d)))
        for r in range(4): ops.append((base+11, o_mul(g2+r, g2+r, acc(t,5)+r)))
        b = acc(t & ~1, 4) + 2*(t & 1)
        ops += [(base+11, o_cvt(b, g2)), (base+11, o_cvt(b+1, g2+2))]
        if t & 1:
            b = acc(t & ~1, 4); o0, o1 = acc(t-1, 6), acc(t, 6)
            ops += [(base+11, o_sw(32, b, b+2)), (base+11, o_sw(32, b+1, b+3))]
            ops.append((base+11, o_st(f"buffer_store_dwordx4 v[{b}:{b+3}], v25, {SRD_WS}, s59 offen {st}", b)))
            for r in range(4): ops.append((base+13, o_sw(32, o0+r, o1+r)))
            for r in range(4): ops.append((base+13, o_mul(o0+r, o0+r, o1+r)))
            od = acc(t & ~3, 5) + ((t >> 1) & 1)*2
            ops += [(base+13, o_cvt(od, o0)), (base+13, o_cvt(od+1, o0+2))]
            if t & 3 == 3:
                od = acc(t & ~3, 5)
                ops.append((base+13, o_s("s_sub_u32 s32, s59, 229376")))
                ops += [(base+13, o_sw(16, od, od+2)), (base+13, o_sw(16, od+1, od+3))]
                ops.append((base+13, o_st(f"buffer_store_dwordx4 v[{od}:{od+3}], v26, {SRD_WS}, s32 offen {st}", od)))
            ops.append((base+13, o_s("s_add_u32 s59, s59, 229376")))
    hz.raw("s_waitcnt lgkmcnt(2)")
    n = 0; per = c.opt.get('g1_per', 2)
    for t in range(8):
        if t == 1: hz.raw("s_waitcnt lgkmcnt(0)")
        for j in jo:
            for k in range(2):
                cc = acc(t, j); w = g1_wf(2 + k, j); x = g1_xf(k, t)
                hz.mfma(f"{MF} v[{cc}:{cc+3}], a[{w}:{w+3}], a[{x}:{x+3}], v[{cc}:{cc+3}]", cc)
                fill(hz, ops, n, per)
                n += 1
    stamp(c)
    for _, o in ops: hz.op(o)
    stamp(c)
    signal(c)
    stamp(c)
```

```python
from fcore import *
G2_ACC, G2_H, G2_W, G2_RX, G2_RES = 32, 96, 160, 160, 224
g2_vRA = 8; g2_vH = [17, 18]; g2_vO = 24
WS_WDP = 74*MB
def g2_acc(t, ct): return G2_ACC + (t*8 + ct)*4
def g2_h(n, k, t): return G2_H + ((n*2 + k)*2 + t)*4
def g2_w(k, ct): return G2_W + (ct*2 + k)*4
def wsrc(c): return SRD_WD if c.opt.get('fake') else SRD_WS
def g2_ldw(c, n):
    return [f"s_add_u32 m0, s54, {n*16384}"] + [f"buffer_load_dwordx4 v{vL16}, {wsrc(c)}, s40 offen offset:{1024*i} lds" for i in range(4)] + ["s_add_u32 s40, s40, 16384"]
def g2_ldh(n):
    return [f"buffer_load_dwordx4 v[{g2_h(n,k,t)}:{g2_h(n,k,t)+3}], v{g2_vH[t]}, {SRD_WS}, s55 offen offset:{k*2048} {LY.sc}" for k in range(2) for t in range(2)] + ["s_add_u32 s55, s55, 4096"]
def g2_rd(n, k, ct):
    r = g2_w(k, ct)
    return f"ds_read_b128 v[{r}:{r+3}], v{g2_vRA} offset:{n*16384 + k*8192 + ct*1024}"

def g2_pre1(c):
    a = Asm()
    a(f"""
    s_lshr_b32 s57, s{sM}, 4                 ; kh
    s_lshl_b32 s54, s{sW}, 12                ; m0 base = w*4096
    s_and_b32 s35, s{sM}, 7
    s_lshl_b32 s35, s35, 1
    s_add_u32 s35, s35, s57
    s_mul_i32 s40, s35, {56*8192}
    s_add_u32 s40, s40, s54
    s_add_u32 s40, s40, {0 if c.opt.get('fake') else WS_WDP}
    """)
    return [l.strip() for l in a.lines]

def g2_pre(c):
    a = c.a
    a(f"""
    s_xor_b32 s54, s54, 0x10000
    v_mov_b32 v{g2_vRA}, v{vL16}
    s_lshl_b32 s58, s{sTB}, 3
    s_bfe_u32 s35, s{sM}, 0x10003
    s_lshl_b32 s35, s35, 2
    s_add_u32 s58, s58, s35
    s_add_u32 s58, s58, s{sW}
    s_mul_i32 s55, s58, 229376
    s_mul_i32 s36, s57, {56*2048}
    s_add_u32 s55, s55, s36
    s_add_u32 s55, s55, s{sLB}
    s_add_u32 s55, s55, {L_H}
    s_lshl_b32 s35, s57, 10
    v_add_u32 v{g2_vH[0]}, s35, v{vL16}
    v_xor_b32 v{g2_vH[1]}, 1024, v{g2_vH[0]}
    """)

def g2_main(c):
    a = c.a
    for ct in range(8):
        for k in range(2): a(g2_rd(0, k, ct))
    for i in range(32): a(f"v_mov_b64 v[{G2_ACC+2*i}:{G2_ACC+2*i+1}], 0")
    a(f"""
    s_lshl_b32 s39, s58, 1
    s_add_u32 s39, s39, s57
    s_lshl_b32 s39, s39, 15
    s_and_b32 s35, s{sM}, 7
    v_and_b32 v6, 15, v{vLANE}
    v_and_b32 v7, 48, v{vLANE}
    v_lshl_add_u32 v{g2_vO}, v6, 11, v7
    s_lshl_b32 s36, s35, 12
    s_add_u32 s36, s36, s39
    s_lshl_b32 s35, s35, 8
    s_add_u32 s39, s39, s35
    s_lshl_b32 s35, s{sLAY}, 31
    v_or_b32 v26, s35, v{vL16}
    v_xor_b32 v27, 0x80000000, v26
    s_add_u32 s33, s36, {LY.XR}
    s_add_u32 s34, s36, {LY.EX}
    s_lshl_b32 s35, s57, 22
    s_add_u32 s35, s35, {LY.P}
    s_cmp_eq_u32 s{sLAY}, 0
    s_cselect_b32 s35, s35, {LY.EX}
    s_xor_b32 s37, s36, 0x8000
    s_add_u32 s36, s36, s35
    s_add_u32 s37, s37, s35
    """)
    wait(c, vFL, M_KH)
    stamp(c, "waitH")
    for n in range(3):
        for l in g2_ldh(n): a(l)
    a("s_waitcnt vmcnt(8)")
    stamp(c, "g2 go")
    M = [(ct, k) for ct in range(8) for k in range(4)]
    def mrd(i):
        ct, k = M[i]
        return f"ds_read_b128 a[{4*i}:{4*i+3}], v{g2_vRA} offset:{32768 + k*8192 + ct*1024}"
    kin = c.opt.get('g2_kin', 1)
    def sstep(n, ldh, ldw, vm, extra=(), merge=False):
        gaps = [[] for _ in range(32)]
        if n == 3: gaps[1].append(f"v_xor_b32 v{g2_vRA}, 0x10000, v{g2_vRA}")
        for ct in range(8):
            if merge: r = [mrd(2*ct), mrd(2*ct+1)]
            else: r = [g2_rd((n+1) % 4, 1 if kin else 0, ct), g2_rd((n+1) % 4, 0 if kin else 1, ct)]
            gaps[4*ct+2].append(r[0]); gaps[4*ct+3].append(r[1])
        if ldh:
            o = g2_ldh((n+3) % 4)
            for i in range(4): gaps[1+4*i].append(o[i])
            gaps[14].append(o[4])
        if ldw:
            o = g2_ldw(c, n)
            gaps[16].append(o[0])
            for i in range(4): gaps[17+4*i].append(o[1+i])
            gaps[30].append(o[5])
        for g, l in extra: gaps[g].append(l)
        for g in (7, 15, 23): gaps[g].append("s_waitcnt lgkmcnt(12)")
        a(f"s_waitcnt vmcnt({vm}) lgkmcnt(12)")
        for g in range(32):
            ct = g >> 2
            t, k = [(0,0),(0,1),(1,1),(1,0)][g & 3] if kin else [(0,0),(1,0),(1,1),(0,1)][g & 3]
            if ct & 1: t ^= 1
            cc = g2_acc(t, ct)
            a(f"{MF} v[{cc}:{cc+3}], v[{g2_w(k,ct)}:{g2_w(k,ct)+3}], v[{g2_h(n,k,t)}:{g2_h(n,k,t)+3}], v[{cc}:{cc+3}]")
            if g == 0: a("s_barrier")
            for l in gaps[g]: a(l)
    loop = c.lab("g2loop")
    a(f"s_mov_b32 s56, 6\ns_mov_b64 vcc, -1\n{loop}:")
    o = c.lab("g2f"); b = c.lab("g2b")
    c.ool.append(f"{o}:\ns_waitcnt vmcnt(12)\ns_mov_b64 vcc, 0\ns_branch {b}")
    sstep(0, True, True, 16, [(30, f"s_cbranch_vccnz {o}\n{b}:")])
    sstep(1, True, True, 16)
    sstep(2, True, True, 16, [(4, "s_sub_u32 s56, s56, 1")])
    sstep(3, True, True, 16, [(20, "s_xor_b32 s54, s54, 0x10000"), (30, "s_cmp_lg_u32 s56, 0")])
    a(f"s_cbranch_scc1 {loop}")
    sstep(0, True, False, 16, [(17, f"buffer_load_dword v7, v{vFL}, {SRD_WS}, s{sFB} offen sc1")])
    sstep(1, False, False, 5, merge=True)
    o = c.lab("g2x"); b = c.lab("g2y")
    a(f"s_waitcnt vmcnt(0)\nv_cmp_gt_u32 vcc, s{sPH}, v7\ns_cbranch_vccnz {o}\n{b}:")
    c.ool.append(f"{o}:\n" + poll(c, SRD_WS, vFL, f"s{sFB}", "", f"s{sPH}") + f"s_branch {b}")
    hz = Hz(a); ops = []
    for r in range(G2_W, G2_W+64): hz.mf[r] = -6
    n2 = len(M)
    for p in range(4):
        ops.append((p, ('salu', f"buffer_load_dwordx4 v[{G2_RES+4*p}:{G2_RES+4*p+3}], v27, {SRD_WS}, s33 offen offset:{p*1024} sc1", [], [])))
    for ti, t in enumerate((1, 0)):
        for p in range(4):
            rdy = ti*n2 + 8*(p+1) - 1
            c0, c1 = g2_acc(t, 2*p), g2_acc(t, 2*p+1); e = G2_RX + 16*ti + 4*p
            ops += [(rdy-4, o_cvt(e, c0)), (rdy-4, o_cvt(e+1, c0+2)), (rdy, o_cvt(e+2, c1)), (rdy, o_cvt(e+3, c1+2)),
                    (rdy, o_st(f"buffer_store_dwordx4 v[{e}:{e+3}], v{vL16 if t else 26}, {SRD_WS}, s{36+t} offen offset:{p*1024} sc1", e))]
    n = 0
    for ti, t in enumerate((1, 0)):
        for i, (ct, k) in enumerate(M):
            if ti == 0 and i % 4 == 0: hz.raw(f"s_waitcnt lgkmcnt({min(12, n2-4-i)})")
            cc = g2_acc(t, ct); h = g2_h(2 + (k >> 1), k & 1, t)
            hz.mfma(f"{MF} v[{cc}:{cc+3}], a[{4*i}:{4*i+3}], v[{h}:{h+3}], v[{cc}:{cc+3}]", cc)
            per = 2
            if ti == 0 and i + 16 < n2:
                hz.raw(mrd(i+16)); per = 1
            fill(hz, ops, n, per)
            n += 1
    stamp(c, "g2 mm")
    fin = c.lab("g2fin")
    hz.raw(f"s_cmp_lg_u32 s{sLAY}, 0"); hz.raw(f"s_cbranch_scc1 {fin}")
    assert all(o[0] >= n2 for o in ops)
    for _, o in ops: hz.op(o)
    stamp(c, "p out")
    a(f"""
    s_mov_b32 s{sLAY}, 1
    s_mov_b32 s{sLB}, {LY.L1}
    s_branch {c.name}_layer
    {fin}:
    s_mov_b32 s32, 0x3f80
    s_mov_b32 s35, 0x3f800000
    """)
    signal(c)
    stamp(c, "sigE")
    for p in range(4):
        c0 = g2_acc(0, 2*p)
        for i in range(4):
            a(f"v_dot2_f32_bf16 v{c0+2*i}, v{G2_RES+4*p+i}, s32, v{c0+2*i}\nv_dot2_f32_bf16 v{c0+2*i+1}, v{G2_RES+4*p+i}, s35, v{c0+2*i+1}")
    wait(c, vFL, M_PAIR)
    stamp(c, "waitE")
    for p in range(4):
        a(f"buffer_load_dwordx4 v[{G2_RX+4*p}:{G2_RX+4*p+3}], v{vL16}, {SRD_WS}, s34 offen offset:{p*1024} sc1")
    for p in range(4):
        c0 = g2_acc(0, 2*p)
        a(f"s_waitcnt vmcnt(3)")
        for i in range(4):
            a(f"v_dot2_f32_bf16 v{c0+2*i}, v{G2_RX+4*p+i}, s32, v{c0+2*i}\nv_dot2_f32_bf16 v{c0+2*i+1}, v{G2_RX+4*p+i}, s35, v{c0+2*i+1}")
        r = G2_RES + 4*p
        a("s_nop 0")
        for i in range(4): a(f"v_cvt_pk_bf16_f32 v{r+i}, v{c0+2*i}, v{c0+2*i+1}")
        a(f"buffer_store_dwordx4 v[{r}:{r+3}], v{g2_vO}, {SRD_OUT}, s39 offen offset:{p*64} {c.opt.get('out_aux', 'sc1')}")
    stamp(c, "out")
    if c.ts:
        a("s_waitcnt vmcnt(0)"); stamp(c, "end")
```

```python
from fcore import *
from ffront import vQ, repack
from fg1k import g1_dw
XF, YF, RW, LO, TT = 32, 64, 96, 128, 160
def ln_stats(c, off):
    a = c.a
    a(f"v_pk_add_f32 v[28:29], v[{XF}:{XF+1}], v[{XF+2}:{XF+3}]")
    a(f"v_pk_mul_f32 v[6:7], v[{XF}:{XF+1}], v[{XF}:{XF+1}]")
    a(f"v_pk_fma_f32 v[6:7], v[{XF+2}:{XF+3}], v[{XF+2}:{XF+3}], v[6:7]")
    for i in range(2, 16):
        a(f"v_pk_add_f32 v[28:29], v[28:29], v[{XF+2*i}:{XF+2*i+1}]")
        a(f"v_pk_fma_f32 v[6:7], v[{XF+2*i}:{XF+2*i+1}], v[{XF+2*i}:{XF+2*i+1}], v[6:7]")
    a(f"""
    v_add_f32 v28, v28, v29
    v_add_f32 v29, v6, v7
    s_nop 1
    v_permlane32_swap_b32 v28, v29
    v_add_f32 v28, v28, v29
    v_mov_b32 v29, v28
    s_nop 1
    v_permlane16_swap_b32 v28, v29
    v_add_f32 v28, v28, v29
    s_nop 1
    v_add_f32_dpp v28, v28, v28 row_ror:8 row_mask:0xf bank_mask:0xf
    ds_write_b32 v26, v28 offset:{off}
    s_waitcnt lgkmcnt(0)
    s_barrier
    ds_read_b128 v[4:7], v27 offset:{off}
    ds_read_b128 v[{LO+16}:{LO+19}], v27 offset:{off+128}
    s_waitcnt lgkmcnt(1)
    v_pk_add_f32 v[4:5], v[4:5], v[6:7]
    v_add_f32 v29, v4, v5
    v_mul_f32 v29, 0x3a800000, v29
    s_waitcnt lgkmcnt(0)
    v_pk_add_f32 v[6:7], v[{LO+16}:{LO+17}], v[{LO+18}:{LO+19}]
    v_add_f32 v28, v6, v7
    v_mul_f32 v28, 0x3a800000, v28
    v_fma_f32 v28, -v29, v29, v28
    v_max_f32 v28, 0, v28
    """)
    if c.opt.get('mimic', 0):
        a(f"""
        v_cvt_pk_bf16_f32 v29, v29, v28
        v_and_b32 v28, s{sMASK}, v29
        v_lshlrev_b32 v29, 16, v29
        v_add_f32 v28, 0x3727c5ac, v28
        v_cvt_pk_bf16_f32 v28, v28, v28
        v_and_b32 v28, s{sMASK}, v28
        v_sqrt_f32 v28, v28
        s_nop 0
        v_cvt_pk_bf16_f32 v28, v28, v28
        v_and_b32 v28, s{sMASK}, v28
        v_rcp_f32 v28, v28
        """)
    else:
        a("v_add_f32 v28, 0x3727c5ac, v28\nv_rsq_f32 v28, v28")
    a("s_nop 0\nv_mul_f32 v29, -v29, v28")
def norm(d, x): return f"v_pk_fma_f32 v[{d}:{d+1}], v[{x}:{x+1}], v[28:29], v[28:29] op_sel:[0,0,1] op_sel_hi:[1,0,1]"
def w_stage(a, slot):
    o = g1_dw(slot); a(o[0]); a("s_nop 0")
    for l in o[1:]: a(l)

def ln_phase(c):
    a = c.a
    l1 = c.lab("ln1"); st = c.lab("lnst"); cm = c.lab("lncm")
    a(f"""
    v_and_b32 v4, 7, v{vLANE}              ; tok
    v_lshrrev_b32 v5, 3, v{vLANE}          ; c
    v_lshlrev_b32 v6, 8, v5
    v_lshl_add_u32 v24, v4, 4, v6
    v_lshl_add_u32 v1, v4, 3, v6
    v_and_b32 v6, 0x3ff, v24
    v_lshrrev_b32 v7, 2, v5
    v_lshl_add_u32 v25, v7, 14, v6
    v_lshlrev_b32 v27, 4, v4
    v_add_u32 v27, {LDS_RED}, v27
    s_lshl_b32 s33, s{sW}, 2
    v_lshl_add_u32 v26, v7, 7, v27
    v_add_u32 v26, s33, v26
    s_lshr_b32 s33, s{sG8}, 1
    s_lshl_b32 s33, s33, 15
    s_lshl_b32 s34, s{sW}, 13
    s_add_u32 s33, s33, s34
    s_and_b32 s34, s{sG8}, 1
    s_lshl_b32 s35, s34, 6
    s_add_u32 s33, s33, s35                ; Y offset
    s_add_u32 s36, s33, s35                ; B16 offset
    s_add_u32 s33, s33, {WS_Y}
    s_lshl_b32 s37, s{sTB}, 19
    s_lshl_b32 s35, s{sW}, 17
    s_add_u32 s37, s37, s35
    s_bfe_u32 s35, s{sG8}, 0x40001
    s_lshl_b32 s35, s35, 10
    s_add_u32 s37, s37, s35
    s_lshl_b32 s35, s34, 7
    s_add_u32 s37, s37, s35
    s_add_u32 s37, s37, s{sLB}
    s_cmp_lg_u32 s{sLAY}, 0
    s_cbranch_scc1 {l1}
    """)
    if not c.opt.get('pk_jb', 0): repack(c)
    unpack(a, XF, vQ, 16)
    a(f"s_branch {st}\n{l1}:")
    for j in range(16): a(f"v_accvgpr_read_b32 v{LO+j}, a{aX+j}")
    unpack(a, XF, LO, 16)
    a(f"s_add_u32 s38, s36, {LY.P}\ns_mov_b32 s34, 0x3f80\ns_mov_b32 s35, 0x3f800000")
    wait(c, vFL, M_TH)
    stamp(c, "waitP")
    for h in range(2):
        for p in range(2):
            for i in (2*h, 2*h+1):
                r = RW + 16*p + 4*i
                a(f"buffer_load_dwordx4 v[{r}:{r+3}], v24, {SRD_WS}, s38 offen offset:{(i&1)*2048} sc1")
            a(f"s_add_u32 s38, s38, {4*MB if p == 0 else (4096 - 4*MB) & 0xffffffff}")
    for j in range(16): a(f"v_accvgpr_read_b32 v{LO+j}, a{aY+j}")
    unpack(a, YF, LO, 16)
    w0 = 8 if c.opt.get('w0', 0) else 0
    if w0: w_stage(a, 0); w_stage(a, 1)
    k = 7 + w0
    for h in range(2):
        for p in range(2):
            for i in (2*h, 2*h+1):
                a(f"s_waitcnt vmcnt({k})"); k -= 1
                for j in range(4):
                    r = RW + 16*p + 4*i + j; x = XF + 8*i + 2*j
                    a(f"v_dot2_f32_bf16 v{x}, v{r}, s34, v{x}\nv_dot2_f32_bf16 v{x+1}, v{r}, s35, v{x+1}")
    a(f"{st}:")
    ln_stats(c, 0)
    for j in range(16): a(norm(TT+2*j, XF+2*j))
    a(f"s_cmp_lg_u32 s{sLAY}, 0\ns_cbranch_scc1 {cm}")
    ok = c.lab("boot")
    wait(c, 250, "", every=True, pre=f"v_cmp_eq_u32 vcc, 0, v248\ns_cbranch_vccz {ok}\n" + poll(c, "s[88:91]", 249, "0", "", 1) + f"{ok}:")
    stamp(c, "waitY")
    for i in range(4):
        for k in range(2):
            r = RW + 4*i + 2*k
            a(f"buffer_load_dwordx2 v[{r}:{r+1}], v1, {SRD_WS}, s33 offen offset:{(i&1)*2048 + k*128} sc1")
        if i == 1: a("s_add_u32 s33, s33, 4096")
    if w0: w_stage(a, 0); w_stage(a, 1)
    for i in range(4):
        a(f"s_waitcnt vmcnt({6+w0-2*i})")
        unpack(a, YF+8*i, RW+4*i, 4)
    a(f"{cm}:")
    stamp(c, "ln in")
    for j in range(16):
        x = XF + 2*j
        a(f"v_pk_fma_f32 v[{x}:{x+1}], v[{TT+2*j}:{TT+2*j+1}], v[{YF+2*j}:{YF+2*j+1}], v[{x}:{x+1}]")
    ln_stats(c, 256)
    for j in range(16):
        a(norm(TT+2*j, XF+2*j))
        a(f"v_cvt_pk_bf16_f32 v{YF+j}, v{TT+2*j}, v{TT+2*j+1}")
        if j % 4 == 3:
            a(f"buffer_store_dwordx4 v[{YF+j-3}:{YF+j}], v25, {SRD_WS}, s37 offen sc1\ns_add_u32 s37, s37, 32768")
    stamp(c, "xn out")
    w_stage(a, 2); w_stage(a, 3)
    signal(c, vm=8)
    stamp(c, "sigX")
    dn = c.lab("lnd"); l2 = c.lab("ln2")
    for j in range(16): a(f"v_cvt_pk_bf16_f32 v{LO+j}, v{XF+2*j}, v{XF+2*j+1}")
    a(f"s_cmp_lg_u32 s{sLAY}, 0\ns_cbranch_scc1 {l2}")
    for j in range(16): a(f"v_accvgpr_write_b32 a{aX+j}, v{LO+j}\nv_accvgpr_write_b32 a{aY+j}, v{RW+j}")
    a(f"s_branch {dn}\n{l2}:\ns_add_u32 s36, s36, {LY.XR}")
    for i in range(4):
        a(f"buffer_store_dwordx4 v[{LO+4*i}:{LO+4*i+3}], v24, {SRD_WS}, s36 offen offset:{(i&1)*2048} sc1")
        if i == 1: a("s_add_u32 s36, s36, 4096")
    a(f"{dn}:")
```

```python
from fcore import *
from ffront import front
from fln import ln_phase
from fg1k import g1_pre, g1_main
import fg2, fg2p
def gen_fused(name, ts=False, **opt):
    c = Ctx(name, ts, **opt)
    set_layout(opt.get('reuse', 0))
    if opt.get('allsc', 1): LY.sc = 'sc1'
    LY.h = opt.get('ld_aux', LY.sc)
    prolog(c); front(c)
    c.a(f"{name}_layer:")
    g1_pre(c); ln_phase(c); g1_main(c)
    g2 = fg2p
    g2.g2_pre(c); g2.g2_main(c)
    epilog(c)
    c.a(f"{name}_last:\ns_endpgm")
    t = c.a.text()
    x = opt.get('xabl', '')
    L = t.split("\n")
    if 'd' in x: L = [l for l in L if not re.search(r"s\[16:19\], s(6[4-9]|70) offen", l)]
    if 's' in x: L = [l for l in L if not re.search(r"store.*s(7[6-9]|8[0-2]) offen", l)]
    if 'p' in x: L = [l for l in L if not re.search(r"v251, v215", l)]
    t = "\n".join(L)
    return t, kernel_desc(name, 512, accum=256), LDS_TOTAL + 28672
```

```python
S, D, F = 2048, 1024, 3584
MB = 1 << 20
WS_UT = 0*MB
WS_Y  = 4*MB
WS_XR = 8*MB
WS_X2 = 12*MB
WS_FL = 16*MB
WS_L0 = 18*MB
LSTRIDE = 28*MB
L_XN = 0
L_EX = 4*MB
L_H  = 12*MB
WS_XN = WS_L0 + L_XN
WS_H  = WS_L0 + L_H
WS_USED = WS_L0 + 2*LSTRIDE + 7*MB
WS_TS = 96*MB
H_BYTES = S * F * 2
def kperm():
    out = []
    for P in range(16):
        for kap in range(7):
            for q in range(4):
                for e in range(8):
                    if kap < 4:
                        hb, wc = kap >> 1, kap & 1
                        phi = 112*hb + 64*wc + 16*(e >> 2) + 4*q + (e & 3)
                    elif kap < 6:
                        hb = kap - 4; wc = q >> 1; qq = q & 1
                        phi = 112*hb + 64*wc + 32 + 8*(e >> 2) + 4*qq + (e & 3)
                    else:
                        hb, wc = q >> 1, q & 1
                        phi = 112*hb + 48 + 8*wc + e
                    out.append(224*P + phi)
    assert sorted(out) == list(range(F))
    old = out; out = [None]*F
    for P in range(16):
        for kap in range(7):
            kh, Pp = P >> 3, P & 7
            ks = 56*kh + (4*Pp + kap if kap < 4 else 32 + 2*Pp + kap - 4 if kap < 6 else 48 + Pp)
            out[32*ks:32*ks+32] = old[32*(7*P+kap):32*(7*P+kap)+32]
    return out
```

```python
from asmlib import *
from common import *
import re

sW, sTB, sM, sLAY, sLB = 3, 4, 5, 6, 7
SRD_W, SRD_WS, SRD_WD, SRD_OUT, SRD_T, SRD_T2 = "s[8:11]", "s[12:15]", "s[16:19]", "s[20:23]", "s[24:27]", "s[28:31]"
sG8 = 60
sMASK = 61
vLANE, vL16 = 2, 3
aX, aY = 224, 240
MF = "v_mfma_f32_16x16x32_bf16"
SPIN = 300000
FL_A, FL_B, FL_LN, FL_G1, FL_G2, FL_PAIR = 0, 256, 512, 640, 768, 1536
STAGE = 32768 + 256
UOFF = 8192 + 16
LDS_RED = 4*STAGE
LDS_TOTAL = LDS_RED + 1024

class Lay:
    pass
LY = Lay()
def set_layout(reuse):
    LY.P = WS_UT if reuse else WS_L0 + L_EX
    LY.EX = WS_UT if reuse else WS_L0 + LSTRIDE + L_EX
    LY.XR = WS_Y if reuse else WS_XR
    LY.L1 = WS_L0 if reuse else WS_L0 + LSTRIDE
    LY.sc = "sc1" if reuse else ""

class Ctx:
    def __init__(self, name, ts=False, **opt):
        self.a = Asm(); self.name = name; self.ts = ts; self.nl = 0; self.ool = []; self.opt = opt
    def lab(self, s):
        self.nl += 1
        return f"{self.name[:6]}_{s}{self.nl}"

def stamp(c, name=""):
    if not c.ts: return
    c.a("""
    s_memrealtime s[98:99]
    s_memtime s[100:101]
    s_mov_b32 m0, s97
    s_add_u32 s97, s97, 1
    s_waitcnt lgkmcnt(0)
    v_writelane_b32 v30, s98, m0
    v_writelane_b32 v31, s100, m0
    """)
def ts_dump(c):
    if not c.ts: return
    if 'pad' in c.opt:
        l = c.lab("pad")
        c.a(f"""
        v_readlane_b32 s32, v30, {c.opt['pad']}
        {l}:
        s_memrealtime s[98:99]
        s_waitcnt lgkmcnt(0)
        s_sub_u32 s33, s98, s32
        s_cmp_lt_u32 s33, 15000
        s_cbranch_scc1 {l}
        """)
        return
    if c.opt.get('dbgts'):
        sel = c.opt['dbgts']; z = c.lab("nd")
        c.a(f"s_cmp_lg_u32 s2, {c.opt.get('dbgwg', 37)}\ns_cbranch_scc1 {z}\ns_cmp_lg_u32 s{sW}, 1\ns_cbranch_scc1 {z}\nv_readlane_b32 s32, v30, 0\nv_readlane_b32 s34, v31, 0\nv_mov_b32 v5, 0")
        for i, k in enumerate(sel):
            src, b = (30, 32) if k >= 0 else (31, 34)
            c.a(f"v_readlane_b32 s33, v{src}, {abs(k)}\ns_nop 3\ns_sub_u32 s33, s33, s{b}\nv_writelane_b32 v5, s33, {i}")
        c.a(f"v_lshlrev_b32 v4, 2, v{vLANE}\ns_mov_b64 exec, 0xffff\nbuffer_store_dword v5, v4, s[88:91], 0 offen sc1\n{z}:")
        return
    c.a(f"""
    s_load_dword s96, s[0:1], 88
    s_lshl_b32 s32, s2, 2
    s_add_u32 s32, s32, s{sW}
    s_lshl_b32 s32, s32, 9
    s_waitcnt lgkmcnt(0)
    s_bfe_u32 s96, s96, 0x60009
    s_lshl_b32 s96, s96, 19
    s_add_u32 s32, s32, s96
    s_add_u32 s32, s32, {WS_TS}
    v_lshlrev_b32 v4, 3, v{vLANE}
    buffer_store_dwordx2 v[30:31], v4, {SRD_WS}, s32 offen
    """)

def srd(a, d, lo, size):
    a(f"s_mov_b32 s{d}, s{lo}\ns_mov_b32 s{d+1}, s{lo+1}\ns_mov_b32 s{d+2}, {size}\ns_mov_b32 s{d+3}, 0x20000")

sPH, sFL, sFB, vFL = 63, 94, 95, 0
def signal(c, pre="", vm=0):
    l = c.lab("sig")
    c.a(f"""
    s_add_u32 s{sPH}, s{sPH}, 1
    v_mov_b32 v4, 0
    v_mov_b32 v5, s{sPH}
    s_cmp_lg_u32 s{sW}, 0
    s_waitcnt vmcnt({vm})
    s_barrier
    s_cbranch_scc1 {l}
    {pre}
    s_mov_b64 exec, 1
    {c.opt.get('flag_op', 'buffer_store_dword')} v5, v4, {SRD_WS}, s{sFL} offen {c.opt.get('flag_aux', 'sc1')}
    s_mov_b64 exec, -1
    {l}:
    """)
def poll(c, srdn, va, soff, mask, target, slp=0):
    p = c.lab("poll"); d = c.lab("pd"); to = d
    if c.opt.get('diag'):
        to = c.lab("to")
        c.ool.append(f"""{to}:
        s_waitcnt vmcnt(0)
        s_lshl_b32 s62, s2, 2
        s_add_u32 s62, s62, s{sW}
        s_lshl_b32 s62, s62, 3
        s_add_u32 s62, s62, s{sPH}
        s_lshl_b32 s62, s62, 8
        s_add_u32 s62, s62, {WS_X2}
        v_or_b32 v7, 0x{0x40000000 if srdn == SRD_WS else 0x20000000:x}, v7
        v_lshlrev_b32 v6, 2, v{vLANE}
        buffer_store_dword v7, v6, {SRD_WS}, s62 offen sc1
        s_branch {d}""")
    return f"""
    {mask}
    s_mov_b32 s62, {SPIN}
    {p}:
    buffer_load_dword v7, v{va}, {srdn}, {soff} offen {c.opt.get('poll_aux', 'sc1')}
    s_sub_u32 s62, s62, 1
    s_cbranch_scc1 {to}
    s_waitcnt vmcnt(0)
    {f"v_cmpx_gt_u32 vcc, {target}, v7" if c.opt.get('shrink', 0) else f"v_cmp_gt_u32 vcc, {target}, v7"}
    s_cbranch_vccnz {p}
    {d}:
    s_mov_b64 exec, -1
    """
def wait(c, va, mask, pre="", every=False):
    l = c.lab("wt")
    if not every: c.a(f"s_cmp_lg_u32 s{sW}, 0\ns_cbranch_scc1 {l}")
    if pre: c.a(pre)
    c.a(poll(c, SRD_WS, va, f"s{sFB}", mask, f"s{sPH}", c.opt.get('slp', 0)))
    c.a(f"{l}:\ns_barrier")
M_ALL = "s_mov_b32 exec_hi, 0"
M_KH = f"s_and_b32 s62, s{sM}, 16\ns_lshl_b32 exec_lo, 0xffff, s62\ns_mov_b32 exec_hi, 0"
M_TH = f"s_and_b32 s62, s{sM}, 8\ns_lshl_b32 exec_lo, 0x00ff00ff, s62\ns_mov_b32 exec_hi, 0"
M_PAIR = f"s_xor_b32 s62, s{sM}, 16\ns_lshl_b32 exec_lo, 1, s62\ns_mov_b32 exec_hi, 0"

def prolog(c):
    a = c.a
    kernel_begin(a, c.name)
    if c.ts: a("s_mov_b32 s97, 0\nv_mov_b32 v30, 0\nv_mov_b32 v31, 0")
    stamp(c)
    a(f"""
    s_cmp_ge_u32 s2, 256
    s_cbranch_scc1 {c.name}_end
    s_load_dwordx16 s[64:79], s[0:1], 0
    s_load_dwordx8 s[80:87], s[0:1], 64
    s_load_dwordx2 s[12:13], s[0:1], 96      ; ws
    v_lshrrev_b32 v1, 6, v0
    v_and_b32 v{vLANE}, 63, v0
    v_readfirstlane_b32 s{sW}, v1
    v_lshlrev_b32 v{vL16}, 4, v{vLANE}
    {code_touch(c, 251) if c.opt.get('pf_code', 2) == 2 else ""}
    s_mov_b32 s14, {256*MB if c.ts else WS_USED}
    s_mov_b32 s15, 0x20000
    s_mov_b32 s{sMASK}, 0xffff0000
    """)
def prolog2(c):
    c.a(f"""
    s_and_b32 s40, s2, 1
    s_lshl_b32 s40, s40, 2
    s_bfe_u32 s{sTB}, s2, 0x20003
    s_add_u32 s{sTB}, s{sTB}, s40
    s_bfe_u32 s40, s2, 0x20001
    s_lshl_b32 s40, s40, 3
    s_lshr_b32 s{sM}, s2, 5
    s_add_u32 s{sM}, s{sM}, s40
    s_lshl_b32 s{sG8}, s{sTB}, 5
    s_bfe_u32 s40, s{sM}, 0x10003
    s_lshl_b32 s40, s40, 4
    s_add_u32 s{sG8}, s{sG8}, s40
    s_lshr_b32 s40, s{sM}, 4
    s_lshl_b32 s40, s40, 3
    s_add_u32 s{sG8}, s{sG8}, s40
    s_and_b32 s40, s{sM}, 7
    s_add_u32 s{sG8}, s{sG8}, s40
    s_mov_b32 s{sLAY}, 0
    s_mov_b32 s{sLB}, {WS_L0}
    s_mov_b32 s{sPH}, 0
    s_mov_b32 s{sFB}, {WS_FL}
    s_lshl_b32 s{sFL}, s2, 7
    s_add_u32 s{sFL}, s{sFL}, s{sFB}
    s_cmp_lt_u32 s{sW}, 2
    s_cselect_b32 s8, s78, s80
    s_cselect_b32 s9, s79, s81
    s_mov_b32 s10, {D*F*2}
    s_mov_b32 s11, 0x20000
    """)
    srd(c.a, 16, 82, D*F*2); srd(c.a, 20, 84, S*D*2)

def epilog(c):
    ts_dump(c)
    c.a(f"{c.name}_end:\ns_endpgm")
    for o in c.ool: c.a(o)

class Hz:
    def __init__(self, a): self.a = a; self.n = 0; self.mf = {}; self.va = {}; self.st = {}
    def need(self, kind, rd, wr):
        w = 0
        for r in list(rd) + list(wr): w = max(w, self.mf.get(r, -99) + 9 - self.n)
        if kind == 'perm':
            for r in rd: w = max(w, self.va.get(r, -99) + 3 - self.n)
        if kind != 'store':
            for r in wr: w = max(w, self.st.get(r, -99) + 3 - self.n)
        return w
    def mfma(self, s, d):
        self.a(s)
        for r in range(d, d+4): self.mf[r] = self.n
        self.n += 1
    def raw(self, s): self.a(s); self.n += 1
    def op(self, o):
        kind, s, rd, wr = o
        w = self.need(kind, rd, wr)
        if w > 0: self.a(f"s_nop {w-1}"); self.n += w
        self.a(s)
        if kind == 'store':
            for r in rd: self.st[r] = self.n
        else:
            for r in wr: self.va[r] = self.n
        self.n += 1
def fill(hz, ops, n, per, stop=None):
    for i in range(per):
        if not ops or ops[0][0] >= n + 1: return
        if stop and stop(ops[0]): return
        w = hz.need(ops[0][1][0], ops[0][1][2], ops[0][1][3])
        if w <= 0: hz.op(ops.pop(0)[1])
        else:
            k = min(w, per - i)
            hz.a(f"s_nop {k-1}"); hz.n += k
            if k == per - i: return
def o_mul(d, x, y): return ('valu', f"v_mul_f32 v{d}, v{x}, v{y}", [x, y], [d])
def o_cvt(d, x): return ('valu', f"v_cvt_pk_bf16_f32 v{d}, v{x}, v{x+1}", [x, x+1], [d])
def o_sw(n, x, y): return ('perm', f"v_permlane{n}_swap_b32 v{x}, v{y}", [x, y], [x, y])
def o_st(s, r): return ('store', s, list(range(r, r+4)), [])
def o_s(s): return ('salu', s, [], [])


def unpack(a, dst, src, n):
    for j in range(n):
        a(f"v_lshlrev_b32 v{dst+2*j}, 16, v{src+j}\nv_and_b32 v{dst+2*j+1}, s{sMASK}, v{src+j}")

def code_touch(c, dst=27):
    l = c.lab("pc")
    return f"""
    s_lshr_b32 s37, s2, 3
    s_lshl_b32 s37, s37, 2
    s_add_u32 s37, s37, s{sW}
    v_and_b32 v4, 1, v{vLANE}
    v_lshl_add_u32 v4, s37, 1, v4
    v_lshlrev_b32 v4, 7, v4
    s_getpc_b64 s[50:51]
    {l}:
    s_sub_u32 s50, s50, {l}-{c.name}
    s_subb_u32 s51, s51, 0
    v_min_u32 v4, {c.name}_last-{c.name}, v4
    v_mov_b32 v5, s51
    v_add_co_u32 v4, vcc, s50, v4
    s_nop 1
    v_addc_co_u32 v5, vcc, 0, v5, vcc
    global_load_dword v{dst}, v[4:5], off
    """
```

```python
from fcore import *
LDS_PK = LDS_RED + 1024
WS_WDP = 74*MB
CW = 12928; C_O = 4192; C_U = 8320
A_LDS = 4*CW + 64
K_LDS = 70*1024
vQ = 232
def front(c):
    a = c.a; opt = c.opt
    K = 32; V = 60; TP = 76; KF = 92; TF = 148; T = 180; O = KF + 16
    ACC = 32; FA = 64; FB = 128; AD = 252
    vA = [22, 23, 24, 25]; vB = 26; vE = 27; vF0 = 28; vQA = 29; vSW, vSR, vY, vPF = 212, 213, 214, 215
    def fa(s, i): return FA + (s*8 + i)*4
    def fb(s, i): return FB + (s*8 + i)*4
    z = c.lab("nz")
    a(f"""
    v_and_b32 v4, 7, v0                    ; cg
    v_lshrrev_b32 v5, 3, v0
    s_and_b32 s33, s2, 7
    s_lshr_b32 s34, s2, 3
    s_lshr_b32 s35, s34, 4
    s_and_b32 s34, s34, 15                 ; cbk
    s_lshl_b32 s33, s33, 1
    s_add_u32 s33, s33, s35
    s_add_u32 s33, s33, s34
    s_and_b32 s33, s33, 15                 ; tokblk
    s_lshl_b32 s35, s33, 18
    s_lshl_b32 s36, s34, 7
    s_add_u32 s35, s35, s36
    v_lshlrev_b32 v6, 13, v5
    v_lshl_add_u32 v6, v4, 4, v6
    v_add_u32 v11, s35, v6
    v_add_u32 v12, 4096, v11
    v_lshrrev_b32 v7, 3, v{vLANE}
    v_lshlrev_b32 v6, 11, v7
    v_lshl_add_u32 v6, v4, 4, v6
    s_lshl_b32 s36, s{sW}, 16
    s_add_u32 s35, s35, s36
    v_add_u32 v9, s35, v6
    v_cmp_lt_u32 vcc, 4, v7
    v_subrev_u32 v8, 16384, v9
    v_bfrev_b32 v6, 1
    s_mul_i32 s52, s{sW}, 6144
    v_cndmask_b32 v8, v6, v8, vcc          ; k rows -3..-1
    s_add_u32 s52, s52, {K_LDS}
    s_mov_b32 m0, s52
    s_mov_b32 s53, {16384-1024}
    s_mov_b32 s54, {2*(16384-1024)}
    s_mov_b32 s55, {3*(16384-1024)}
    s_lshl_b32 s36, s34, 9
    v_mov_b64 v[16:17], 0
    v_mov_b64 v[18:19], 0
    s_mov_b32 s90, {D*8}
    s_mov_b32 s91, 0x20000
    s_mov_b32 s26, {S*D*2}
    s_mov_b32 s27, 0x20000
    s_mov_b32 s30, {S*D*2}
    s_mov_b32 s31, 0x20000
    s_lshl_b32 s46, s34, 10
    s_add_u32 s46, s46, {WS_FL}
    s_add_u32 s47, s46, {128*128}
    s_or_b32 s48, s33, s{sW}
    s_waitcnt lgkmcnt(0)
    s_mov_b64 s[88:89], s[70:71]
    s_mov_b64 s[24:25], s[66:67]
    s_mov_b64 s[28:29], s[68:69]
    s_cbranch_scc1 {z}
    buffer_store_dwordx4 v[16:19], v{vL16}, {SRD_WS}, s46 offen sc1
    buffer_store_dwordx4 v[16:19], v{vL16}, {SRD_WS}, s47 offen sc1
    {z}:
    buffer_load_dwordx4 v{vL16}, s[88:91], s36 offen lds
    s_add_u32 m0, s52, 1024
    s_lshl_b32 s49, s34, 2
    buffer_load_dwordx4 v8, {SRD_T}, 0 offen nt lds
    s_add_u32 m0, s52, 2048
    s_add_u32 s49, s49, 64
    """)
    for i in range(4): a(f"buffer_load_dwordx4 v9, {SRD_T}, {['0','s53','s54','s55'][i]} offen offset:{1024*i} nt lds")
    for i in range(4): a(f"buffer_load_dwordx4 v[{V+4*i}:{V+4*i+3}], v{11+(i>>1)}, {SRD_T2}, 0 offen offset:{2048*(i&1)} nt")
    NX = 0
    if opt.get('pf_code', 2) == 1:
        NX = 1
        a(f"""
        s_lshr_b32 s37, s2, 3
        s_lshl_b32 s37, s37, 2
        s_add_u32 s37, s37, s{sW}
        v_and_b32 v6, 1, v0
        v_lshl_add_u32 v6, s37, 1, v6
        v_lshlrev_b32 v6, 7, v6
        s_getpc_b64 s[50:51]
        {c.name[:6]}_pc:
        v_min_u32 v6, {c.name}_last-{c.name[:6]}_pc, v6
        v_mov_b32 v7, s51
        v_add_co_u32 v6, vcc, s50, v6
        s_nop 1
        v_addc_co_u32 v7, vcc, 0, v7, vcc
        global_load_dword v251, v[6:7], off
        """)
    if opt.get('tlb', 0):
        NX += 1
        sh = opt['tlb']
        a(f"""
        s_lshr_b32 s37, s2, 3
        s_cmp_lt_u32 s37, 16
        s_cselect_b64 s[40:41], s[82:83], s[84:85]
        s_cselect_b32 s42, {D*F*2}, s26
        s_cmp_eq_u32 s{sW}, 1
        s_cselect_b64 s[40:41], s[78:79], s[40:41]
        s_cselect_b32 s42, {D*F*2}, s42
        s_cmp_eq_u32 s{sW}, 3
        s_cselect_b64 s[40:41], s[80:81], s[40:41]
        s_cselect_b32 s42, {D*F*2}, s42
        s_cmp_eq_u32 s{sW}, 0
        s_cselect_b64 s[40:41], s[12:13], s[40:41]
        s_cselect_b32 s42, {WS_USED}, s42
        s_cselect_b32 s38, 31, 15
        s_mov_b32 s43, 0x20000
        s_and_b32 s37, s37, s38
        s_add_u32 s38, s38, 1
        v_min_u32 v6, {(1 << (26 - sh)) - 1}, v{vLANE}
        v_mul_u32_u24 v6, s38, v6
        v_add_lshl_u32 v6, v6, s37, {sh}
        buffer_load_dword v251, v6, s[40:43], 0 offen nt
        """)
    z = c.lab("nz")
    a(f"""
    s_mov_b64 s[88:89], s[86:87]
    s_mov_b32 s90, 256
    s_cmp_lg_u32 s48, 0
    s_cbranch_scc1 {z}
    v_mov_b32 v20, 1
    s_waitcnt vmcnt({10+NX})
    s_mov_b64 exec, 1
    buffer_store_dword v20, v16, s[88:91], s49 offen sc1
    s_mov_b64 exec, -1
    {z}:
    s_lshl_b32 s41, s34, 4
    s_add_u32 s41, s41, s33
    s_lshl_b32 s42, s41, 2
    s_add_u32 s42, s42, s{sW}              ; channel d
    s_lshl_b32 s43, s42, 12
    s_lshr_b32 s44, s42, 1
    s_lshl_b32 s44, s44, 2
    s_load_dword s45, s[74:75], s44
    s_mul_i32 s47, s{sW}, {CW}
    s_mov_b64 s[24:25], s[72:73]
    s_mov_b64 s[28:29], s[64:65]
    """)
    prolog2(c)
    t1 = opt.get('t1', 14)
    rot = "s_lshr_b32 s38, s2, 3\n"
    for k in range(7):
        rot += f"""s_and_b32 s39, s38, 15
        s_lshl_b32 s39, s39, 7
        s_add_u32 s{64+k}, s{64+k}, s39
        s_bfe_u32 s39, s38, 0x30001
        s_mul_i32 s39, s39, {112*8192}
        s_add_u32 s{76+k}, s59, s39
        s_and_b32 s39, s38, 1
        s_lshl_b32 s39, s39, 12
        s_add_u32 s{76+k}, s{76+k}, s39
        s_lshl_b32 s39, s32, {15 if k < 4 else 14 if k < 6 else 13}
        s_add_u32 s39, s39, {(k if k < 4 else 28 + k if k < 6 else 48)*8192}
        s_add_u32 s{76+k}, s{76+k}, s39
        s_add_u32 s38, s38, {opt.get('pk_rot', 1)}
        """
    a(f"""
    v_lshrrev_b32 v7, 3, v{vLANE}
    v_lshlrev_b32 v7, 9, v7
    v_lshl_add_u32 v7, v4, 4, v7
    v_add_u32 v10, s52, v7
    v_lshl_add_u32 v21, v4, 6, s52
    v_mul_u32_u24 v6, 2064, v4
    v_sub_u32 v7, 31, v5
    v_lshl_add_u32 v6, v7, 3, v6
    v_add_u32 v13, {A_LDS}, v6
    v_lshrrev_b32 v7, 7, v0
    v_add_u32 v7, v7, v0
    v_lshlrev_b32 v7, 4, v7
    v_add_u32 v14, {A_LDS}, v7
    v_lshrrev_b32 v6, 4, v0
    v_and_b32 v7, 15, v0
    v_lshl_add_u32 v249, v7, 2, 64
    v_lshlrev_b32 v7, 4, v7
    v_lshl_add_u32 v15, v6, 12, v7         ; u^T store
    s_lshl_b32 s36, s34, 18
    s_sub_u32 s37, 15, s33
    s_lshl_b32 s37, s37, 8
    s_add_u32 s36, s36, s37
    s_add_u32 s36, s36, {WS_UT}
    v_lshrrev_b32 v5, 3, v{vLANE}
    v_lshl_add_u32 v6, v5, 7, v4
    v_lshlrev_b32 v6, 7, v6
    s_lshl_b32 s37, s34, 10
    v_add_u32 v{vF0}, s37, v6
    v_lshlrev_b32 v250, 7, v0
    v_and_b32 v6, 3, v5
    v_lshlrev_b32 v7, 5, v4
    v_lshl_or_b32 v6, v6, 1, v7
    s_and_b32 s37, s2, 0x19
    v_or_b32 v6, s37, v6
    v_lshlrev_b32 v{vFL}, 7, v6
    v_lshlrev_b32 v6, 4, v5
    v_lshl_add_u32 v{vQA}, v4, 11, v6
    s_lshl_b32 s56, s{sG8}, 14
    s_lshl_b32 s38, s{sW}, 9
    s_add_u32 s56, s56, s38
    v_lshlrev_b32 v6, 4, v4
    v_lshl_add_u32 v{vY}, v5, 15, v6
    s_lshl_b32 s57, s{sW}, 20
    s_lshl_b32 s38, s41, 7
    s_add_u32 s57, s57, s38
    s_add_u32 s57, s57, {WS_Y}
    v_bfe_u32 v6, v{vLANE}, 1, 2
    v_mul_u32_u24 v6, 160, v6
    v_lshl_add_u32 v6, v5, 3, v6
    v_and_b32 v7, 1, v{vLANE}
    v_lshl_add_u32 v6, v7, 2, v6
    s_mul_i32 s37, s{sW}, 1280
    v_add_u32 v{vSR}, s37, v6
    v_min_u32 v6, 33, v{vLANE}
    v_lshlrev_b32 v6, 4, v6
    v_cmp_lt_u32 vcc, 1, v{vLANE}
    v_mov_b32 v7, {C_O-32-32}
    v_mov_b32 v5, {C_U+4096-64}
    v_cndmask_b32 v7, 0, v7, vcc
    v_cmp_lt_u32 vcc, 3, v{vLANE}
    v_add_u32 v{vE}, s47, v{vL16}
    v_and_b32 v4, 15, v{vLANE}             ; b
    v_cndmask_b32 v7, v7, v5, vcc
    v_add3_u32 v6, v6, v7, s47
    ds_write_b128 v6, v[16:19]
    v_lshrrev_b32 v5, 4, v{vLANE}          ; q
    v_add_u32 v6, 1, v4
    v_lshrrev_b32 v6, 1, v6
    v_lshl_add_u32 v6, v5, 2, v6
    v_lshlrev_b32 v6, 2, v6
    v_and_b32 v7, 1, v4
    v_xor_b32 v7, 1, v7
    v_mul_u32_u24 v7, {C_O-28}, v7
    v_add3_u32 v{vA[0]}, v6, v7, s47
    v_add_u32 v{vA[1]}, 1024, v{vA[0]}
    v_add_u32 v{vA[2]}, 2048, v{vA[0]}
    v_add_u32 v{vA[3]}, 3072, v{vA[0]}
    v_lshlrev_b32 v6, 5, v4
    v_lshlrev_b32 v7, 4, v5
    v_sub_u32 v6, v7, v6
    s_add_u32 s37, s47, {C_U + 2*(S-16) - 512*7}
    v_add_u32 v{vB}, s37, v6
    v_mul_u32_u24 v6, 160, v5
    v_lshl_add_u32 v6, v4, 3, v6
    v_add_u32 v{vSW}, s47, v6
    s_lshl_b32 s58, s2, 1
    s_and_b32 s38, s{sW}, 1
    s_add_u32 s58, s58, s38
    s_mul_i32 s83, s58, {(35-t1)*128}
    s_add_u32 s83, s83, {t1*512*128}
    s_mul_i32 s58, s58, {t1*128}
    v_min_u32 v6, {t1-1}, v{vLANE}
    v_lshlrev_b32 v{vPF}, 7, v6
    v_min_u32 v6, {max(34-t1, 0)}, v{vLANE}
    v_lshlrev_b32 v224, 7, v6
    v_lshl_add_u32 v6, v5, 3, v4
    v_sub_u32 v6, 15, v6
    v_and_b32 v7, 1, v6
    v_lshlrev_b32 v7, 4, v7
    v_ashrrev_i32 v6, 1, v6
    s_and_b32 s37, s42, 1
    s_lshl_b32 s37, s37, 4
    s_waitcnt lgkmcnt(0)
    s_lshr_b32 s45, s45, s37
    s_and_b32 s45, s45, 0xffff
    v_lshlrev_b32 v7, v7, s45
    """)
    for i in range(4):
        a(f"v_cmp_eq_u32 vcc, {i}, v6\ns_nop 1\nv_cndmask_b32 v{AD+i}, 0, v7, vcc")
    stamp(c, "setup")
    a(f"s_waitcnt vmcnt({9+NX})")
    for i in range(4): a(f"ds_read_b128 v[{TP+4*i}:{TP+4*i+3}], v21 offset:{16*i}")
    for ch in range(8):
        if ch % 2 == 0: a(f"s_waitcnt lgkmcnt({3-ch//2})")
        for h in range(2):
            r = TP + 2*ch + h
            a(f"v_lshlrev_b32 v{TF+(2*h)*8+ch}, 16, v{r}\nv_and_b32 v{TF+(2*h+1)*8+ch}, s{sMASK}, v{r}")
    ep = opt.get('e_pos', 3)
    eld = "s_add_u32 m0, s47, 32\ns_nop 0\n" + "".join(f"buffer_load_dwordx4 v{vL16}, {SRD_T}, s43 offen offset:{1024*i} nt lds\n" for i in range(4))
    if ep == -2: a(eld); NX += 4
    a(f"s_waitcnt vmcnt({4+NX})")
    if ep == -1: a(eld); NX += 4
    for i in range(7): a(f"ds_read_b128 v[{K+4*i}:{K+4*i+3}], v10 offset:{1024+(5+i)*128}")
    for i in range(7):
        a(f"s_waitcnt lgkmcnt({6-i})")
        unpack(a, KF+8*i, K+4*i, 4)
    for t in range(4):
        for tap in range(4):
            for p in range(4):
                d = T + 8*t + 2*p; kk = KF + 8*(t+3-tap) + 2*p; w = TF + 8*tap + 2*p
                if tap == 0: a(f"v_pk_mul_f32 v[{d}:{d+1}], v[{kk}:{kk+1}], v[{w}:{w+1}]")
                else: a(f"v_pk_fma_f32 v[{d}:{d+1}], v[{kk}:{kk+1}], v[{w}:{w+1}], v[{d}:{d+1}]")
    for t in range(4):
        a(f"s_waitcnt vmcnt({3-t+NX})")
        if t == ep: a(eld); NX += 4
        unpack(a, KF, V+4*t, 4)
        for p in range(4):
            d = T + 8*t + 2*p
            a(f"v_pk_mul_f32 v[{d}:{d+1}], v[{d}:{d+1}], v[{KF+2*p}:{KF+2*p+1}]")
    for ch in range(8):
        a(f"v_cvt_pk_bf16_f32 v{O+2*ch}, v{T+24+ch}, v{T+16+ch}\nv_cvt_pk_bf16_f32 v{O+2*ch+1}, v{T+8+ch}, v{T+ch}")
        a(f"ds_write_b64 v13, v[{O+2*ch}:{O+2*ch+1}] offset:{256*ch}")
    a("s_waitcnt lgkmcnt(0)\ns_barrier")
    stamp(c, "A done")
    for i in range(4): a(f"ds_read_b128 v[{K+4*i}:{K+4*i+3}], v14 offset:{i*2*2064}")
    for i in range(4):
        a(f"s_waitcnt lgkmcnt({3-i})")
        a(f"buffer_store_dwordx4 v[{K+4*i}:{K+4*i+3}], v15, {SRD_WS}, s36 offen sc1")
        a(f"s_add_u32 s36, s36, {16*4096}")
    a(f"buffer_load_dword v20, v16, s[88:91], s49 offen sc1")
    wa = opt.get('wa', 'Q'); nwa = 0
    qld = [f"buffer_load_dwordx4 v[{vQ+4*i}:{vQ+4*i+3}], v{vQA}, {SRD_T2}, s56 offen offset:{128*i} nt" for i in range(4)]
    tld = f"buffer_load_dword v251, v{vPF}, {SRD_W}, s58 offen"
    if 'q' in wa:
        for l in qld: a(l)
        nwa += 4
    if 't' in wa: a(tld); nwa += 1
    a(f"s_waitcnt vmcnt({5+nwa})")
    HK = 96
    for i in range(4):
        a(f"ds_read_b128 v[{HK+4*i}:{HK+4*i+3}], v{vE} offset:{32+1024*i}\nds_read_b32 v{HK+16+i}, v{vE} offset:{28+1024*i}")
    for i in range(4):
        r = HK + 4*i; o = 160 + 4*i
        a(f"s_waitcnt lgkmcnt({6-i})")
        a(f"v_alignbit_b32 v{o}, v{r}, v{HK+16+i}, 16")
        for j in range(1, 4): a(f"v_alignbit_b32 v{o+j}, v{r+j}, v{r+j-1}, 16")
        a(f"ds_write_b128 v{vE}, v[{o}:{o+3}] offset:{C_O+1024*i}")
    def reads(s, j):
        B = [f"ds_read_b128 v[{fb(s,i)}:{fb(s,i)+3}], v{vB} offset:{512*(7-i)+64*j}" for i in range(8)]
        A = []
        for i in range(8):
            o = (i & 1)*128 + 16*j; r = fa(s, i)
            A.append(f"ds_read2_b32 v[{r}:{r+1}], v{vA[i>>1]} offset0:{o} offset1:{o+1}")
            A.append(f"ds_read2_b32 v[{r+2}:{r+3}], v{vA[i>>1]} offset0:{o+2} offset1:{o+3}")
        return B + A
    R = reads(0, 0)
    ok = c.lab("boot")
    signal(c, vm=nwa, pre=f"v_cmp_ne_u32 vcc, 0, v20\ns_cbranch_vccnz {ok}\n" + poll(c, "s[88:91]", 4, "s49", "", 1) + f"{ok}:")
    stamp(c, "sig0")
    if 'Q' in wa:
        for l in qld: a(l)
    for l in R[8:]: a(l)
    a(f"s_add_u32 s43, s43, {WS_UT}")
    a(f"""
    s_and_b32 s37, s2, 7
    s_lshl_b32 s37, s37, 1
    s_lshr_b32 s38, s2, 7
    s_add_u32 s37, s37, s38                ; P
    s_mul_i32 s38, s37, {224*2048}
    s_lshr_b32 s59, s37, 3
    s_mul_i32 s59, s59, {56*8192}
    s_and_b32 s32, s37, 7
    s_lshl_b32 s39, s{sW}, 10
    s_add_u32 s59, s59, s39
    s_add_u32 s59, s59, {WS_WDP}
    s_and_b32 s35, s{sW}, 1
    s_lshr_b32 s37, s{sW}, 1
    s_lshl_b32 s39, s{sW}, 13
    s_add_u32 s64, s39, s38
    s_add_u32 s65, s64, {64*2048}
    s_add_u32 s66, s64, {112*2048}
    s_add_u32 s67, s64, {176*2048}
    s_lshl_b32 s39, s37, 17
    s_lshl_b32 s68, s35, 13
    s_add_u32 s39, s39, s68
    s_add_u32 s39, s39, s38
    s_add_u32 s68, s39, {32*2048}
    s_add_u32 s69, s39, {144*2048}
    s_mul_i32 s39, s37, {112*2048}
    s_lshl_b32 s70, s35, 14
    s_add_u32 s39, s39, s70
    s_add_u32 s39, s39, s38
    s_add_u32 s70, s39, {48*2048}
    {rot}
    s_lshl_b32 s71, s{sW}, 10
    s_add_u32 s71, s71, {LDS_PK}
    v_lshrrev_b32 v6, 5, v{vLANE}
    v_bfe_u32 v7, v{vLANE}, 3, 2
    v_and_b32 v216, 0x70, v{vL16}
    v_lshl_add_u32 v7, v7, 11, v216
    v_lshl_add_u32 v216, v6, 15, v7
    v_lshl_add_u32 v217, v6, 14, v7
    v_lshl_add_u32 v218, v6, 13, v7
    v_bfe_u32 v6, v{vLANE}, 2, 2
    v_lshrrev_b32 v5, 4, v{vLANE}
    v_lshl_add_u32 v6, v5, 3, v6
    v_and_b32 v7, 0x30, v{vL16}
    v_lshl_add_u32 v6, v6, 7, v7
    s_lshl_b32 s37, s37, 6
    s_lshl_b32 s35, s35, 3
    s_add_u32 s37, s37, s35
    s_add_u32 s37, s37, {LDS_PK}
    v_add_u32 v219, s37, v6
    """)
    wait(c, vF0, "s_mov_b64 exec, 0xffff")
    stamp(c, "wait0")
    a(f"s_add_u32 m0, s47, {C_U}\ns_mov_b32 s38, 0x05040100")
    for i in range(4):
        a(f"buffer_load_dwordx4 v{vL16}, {SRD_WS}, s43 offen offset:{1024*i} sc1 lds")
    a("s_mov_b32 s39, 0x07060302")
    for i in range(4):
        a(f"s_waitcnt vmcnt({max(2-i, 0)})")
        a(R[7-2*i]); a(R[6-2*i])
    stamp(c, "ur")
    for n in range(7, -1, -1):
        cc = ACC + 4*n
        a(f"s_waitcnt lgkmcnt({n})")
        a(f"{MF} v[{cc}:{cc+3}], v[{AD}:{AD+3}], v[{fb(0,n)}:{fb(0,n)+3}], 0")
    side = {}
    def put(pos, l): side.setdefault(pos, []).append(l)
    p = opt.get('pk_pos', 26); dp = opt.get('pk_dp', 30)
    for k in range(7):
        put(p-1, f"s_add_u32 m0, s71, {4096*k}")
        put(p, f"buffer_load_dwordx4 v{216 if k < 4 else 217 if k < 6 else 218}, {SRD_WD}, s{64+k} offen {opt.get('pk_aux', 'nt')} lds"); p += dp
    p = opt.get('q_pos', 200)
    if 'q' not in wa.lower():
        for l in qld: put(p, l); p += opt.get('q_dp', 1)
    if 't' not in wa: put(p, tld)
    put(250, f"buffer_load_dword v248, v249, s[88:91], 0 offen sc1")
    hz = Hz(a); ops = []
    for j in range(8):
        hz.raw("s_waitcnt lgkmcnt(0)")
        R = reads((j & 1) ^ 1, j + 1) if j < 7 else []
        k = 0
        for i in range(8):
            for n in range(i, 8):
                cc = ACC + 4*n
                if opt.get('x_nomf'): hz.raw("s_nop 2")
                else: hz.mfma(f"{MF} v[{cc}:{cc+3}], v[{fa(j&1,i)}:{fa(j&1,i)+3}], v[{fb(j&1,n-i)}:{fb(j&1,n-i)+3}], v[{cc}:{cc+3}]", cc)
                if k < len(R): hz.raw(R[k])
                sl = opt.get('x_slow')
                if sl and sl[j]: hz.raw(f"s_nop {sl[j]}")
                for l in side.get(36*j + k, []): hz.raw(l)
                if j == 7:
                    if n == i: ops += [(k, o_cvt(cc, cc)), (k, o_cvt(cc+1, cc+2)), (k, ('salu', f"ds_write_b64 v{vSW}, v[{cc}:{cc+1}] offset:{640*n}", [], []))]
                    fill(hz, ops, k, 2)
                k += 1
    stamp(c, "conv")
    for _, o in ops: hz.op(o)
    a("s_waitcnt lgkmcnt(0)\ns_barrier")
    for g in range(4):
        for ch in range(4):
            a(f"ds_read_b32 v{FA+4*g+ch}, v{vSR} offset:{ch*CW + (g>>1)*640 + (g&1)*64}")
    for g in range(4):
        r = FA + 4*g; o = FB + 4*g
        a(f"s_waitcnt lgkmcnt({12-4*g})")
        a(f"v_perm_b32 v{o}, v{r+1}, v{r}, s38\nv_perm_b32 v{o+1}, v{r+3}, v{r+2}, s38")
        a(f"v_perm_b32 v{o+2}, v{r+1}, v{r}, s39\nv_perm_b32 v{o+3}, v{r+3}, v{r+2}, s39")
        a(f"buffer_store_dwordx4 v[{o}:{o+3}], v{vY}, {SRD_WS}, s57 offen sc1")
        a(f"s_add_u32 s57, s57, {8*32768}")
    stamp(c, "y out")

TOUCH2 = f"buffer_load_dword v251, v224, {SRD_W}, s83 offen"
PKR = [192, 196, 200, 204, 208, 212, 220]
def repack_store(k): return f"buffer_store_dwordx4 v[{PKR[k]}:{PKR[k]+3}], v{vL16}, {SRD_WS}, s{76+k} offen sc1"
def repack(c, n):
    a = c.a
    for k in range(7):
        r = PKR[k]
        a(f"ds_read_b64_tr_b16 v[{r}:{r+1}], v219 offset:{4096*k}\nds_read_b64_tr_b16 v[{r+2}:{r+3}], v219 offset:{4096*k+512}")
    if c.opt.get('t2', 2) == 0: a(TOUCH2)
    for k in range(n):
        a(f"s_waitcnt lgkmcnt({12-2*k})"); a(repack_store(k))
```

```python
from fcore import *
import fg2p
ACC1 = 32
def g1_acc(t, j): return ACC1 + (t*7 + j)*4
def g1_xf(k, t): return 112 + (t*2 + k)*4
def g1_wf(slot, j): return slot*28 + j*4
aPK = 176; LDS_PK = LDS_RED + 1024
g1_vXA = [8, 9]; g1_vWA = [[10,11,12,13],[14,15,16,17]]; g1_vDW = [19,20,21,22]; g1_vPF = [18, 23]
def g1_dx(slot):
    return [f"s_add_u32 m0, s42, {slot*STAGE}"] + [f"buffer_load_dwordx4 v{vL16}, {SRD_WS}, s40 offen offset:{1024*i} {LY.sc} lds" for i in range(4)] + ["s_add_u32 s40, s40, 16384"]
def g1_dw(slot):
    return [f"s_add_u32 m0, s43, {slot*STAGE}"] + [f"buffer_load_dwordx4 v{g1_vDW[i]}, {SRD_W}, s41 offen offset:{1024*i} lds" for i in range(4)] + [f"s_add_u32 s41, s41, {32*7168}"]
def g1_rw(slot):
    h = slot >> 1; so = (slot & 1)*STAGE; W = []
    for j in range(7):
        va = g1_vWA[h][j % 3] if j < 6 else g1_vWA[h][3]
        off = so + (UOFF if 3 <= j < 6 else 0); r = g1_wf(slot, j)
        W.append(f"ds_read_b64_tr_b16 a[{r}:{r+1}], v{va} offset:{off}")
        W.append(f"ds_read_b64_tr_b16 a[{r+2}:{r+3}], v{va} offset:{off+1024}")
    return W
def g1_rx(h, t):
    return [f"ds_read_b128 a[{g1_xf(k,t)}:{g1_xf(k,t)+3}], v{g1_vXA[h]} offset:{k*STAGE+t*1024}" for k in range(2)]
def w_stage(a, slot):
    o = g1_dw(slot); a(o[0]); a("s_nop 0")
    for l in o[1:]: a(l)

def g1_waddr(a):
    vDW = g1_vDW
    a(f"""
    s_and_b32 s44, s{sW}, 1
    s_lshr_b32 s45, s{sW}, 1
    s_and_b32 s46, s{sM}, 1
    s_mul_i32 s41, s44, {16*7168}
    s_mul_i32 s33, s{sM}, 224
    s_add_u32 s41, s41, s33
    s_lshl_b32 s33, s46, 5
    s_sub_u32 s41, s41, s33
    s_mul_i32 s43, s45, {UOFF}
    s_lshl_b32 s33, s44, 12
    s_add_u32 s43, s43, s33
    s_add_u32 s43, s43, 16384
    v_lshrrev_b32 v1, 4, v{vLANE}          ; q
    v_bfe_u32 v4, v{vLANE}, 1, 3
    v_xor_b32 v4, v4, v1
    v_and_b32 v5, 1, v{vLANE}
    v_lshlrev_b32 v5, 4, v5
    v_mul_u32_u24 v6, 7168, v1
    v_add_u32 v6, v6, v5
    v_lshl_add_u32 v{vDW[0]}, v4, 5, v6
    v_xor_b32 v4, 4, v4
    v_lshl_add_u32 v{vDW[2]}, v4, 5, v6
    v_add_u32 v{vDW[1]}, {4*7168-1024}, v{vDW[0]}
    v_add_u32 v{vDW[3]}, {3*(4*7168-1024)}, v{vDW[2]}
    v_add_u32 v{vDW[2]}, {2*(4*7168-1024)}, v{vDW[2]}
    """)

def g1_pre(c):
    a = c.a; vDW = g1_vDW; vWA = g1_vWA; vXA = g1_vXA
    g1_waddr(a)
    w_stage(a, 0); w_stage(a, 1)
    if c.opt.get('w1_g2', 1): a(f"s_mul_i32 s33, s{sLAY}, {64*7168}\ns_add_u32 s41, s41, s33")
    a(f"""
    s_lshl_b32 s42, s{sW}, 12
    s_lshl_b32 s40, s{sTB}, 19
    s_add_u32 s40, s40, s42
    s_add_u32 s40, s40, s{sLB}
    s_lshl_b32 s33, s45, 13
    v_add_u32 v{vXA[0]}, s33, v{vL16}
    v_add_u32 v{vXA[1]}, {2*STAGE}, v{vXA[0]}
    v_bfe_u32 v4, v{vLANE}, 2, 2           ; r4
    v_and_b32 v5, 1, v1
    v_lshl_or_b32 v5, v5, 2, v4            ; sigma
    v_lshl_add_u32 v6, v1, 3, v4
    v_lshlrev_b32 v6, 8, v6
    v_add_u32 v6, 16384, v6
    v_and_b32 v7, 3, v{vLANE}
    v_lshl_add_u32 v1, v7, 3, v6
    s_lshl_b32 s33, s44, 2
    s_add_u32 s33, s33, s46
    """)
    for p in range(3):
        a(f"s_add_u32 s34, s33, {p}\nv_xor_b32 v4, s34, v5\nv_lshl_add_u32 v{vWA[0][p]}, v4, 5, v1")
    a(f"""
    s_add_u32 s34, s46, 3
    v_xor_b32 v4, s34, v5
    v_lshl_add_u32 v6, v4, 5, v6
    v_and_b32 v4, 1, v7
    v_lshl_add_u32 v6, v4, 3, v6
    v_lshrrev_b32 v4, 1, v7
    v_mul_u32_u24 v4, {UOFF}, v4
    s_lshl_b32 s34, s44, 4
    v_add3_u32 v{vWA[0][3]}, v6, v4, s34
    """)
    for p in range(4): a(f"v_add_u32 v{vWA[1][p]}, {2*STAGE}, v{vWA[0][p]}")
    d = c.opt.get('pf_dist', 2)
    who = c.opt.get('pf_who', 1)
    a(f"s_sub_u32 s34, s{sLAY}, 1")
    if who:
        a(f"""
        s_add_u32 s35, s{sM}, 1
        s_bfe_u32 s35, s35, 0x10001
        s_sub_u32 s35, s35, 1
        s_and_b32 s34, s34, s35
        s_bfe_u32 s36, s2, 0x20003
        s_bfe_u32 s35, s2, 0x20006
        s_lshl_b32 s35, s35, 2
        s_add_u32 s36, s36, s35
        """)
    else: a("s_lshr_b32 s36, s2, 3")
    a(f"""
    s_lshl_b32 s33, s36, 1
    s_add_u32 s33, s33, s44
    s_lshl_b32 s33, s33, 1
    s_and_b32 s35, s2, 1
    s_add_u32 s33, s33, s35
    s_mul_i32 s33, s33, {7168 << who}
    s_lshr_b32 s35, s{sM}, 3
    s_mul_i32 s35, s35, 1792
    s_add_u32 s33, s33, s35
    s_add_u32 s33, s33, {320*7168}
    v_lshlrev_b32 v4, 7, v{vLANE}
    v_cmp_lt_u32 vcc, 13, v{vLANE}
    v_add_u32 v5, s33, v4
    v_add_u32 v6, {7168-14*128}, v5
    v_cndmask_b32 v5, v5, v6, vcc
    s_and_b32 s33, s34, {14 << who}
    v_cmp_gt_u32 vcc, s33, v{vLANE}
    v_bfrev_b32 v6, 1
    s_nop 0
    v_cndmask_b32 v{g1_vPF[0]}, v6, v5, vcc
    """)

def g1_main(c):
    a = c.a; acc = g1_acc
    for l in g1_rw(0) + g1_rw(1): a(l)
    a(f"""
    s_lshl_b32 s59, s{sTB}, 3
    s_lshl_b32 s33, s45, 2
    s_add_u32 s59, s59, s33
    s_mul_i32 s59, s59, 229376
    s_lshr_b32 s33, s{sM}, 4
    s_mul_i32 s33, s33, {56*2048}
    s_add_u32 s59, s59, s33
    s_add_u32 s59, s59, s{sLB}
    s_add_u32 s59, s59, {L_H}
    s_lshl_b32 s34, s46, 1
    s_add_u32 s34, s34, s44                ; wv
    s_mov_b32 s53, s59
    s_mov_b32 s52, s59
    s_and_b32 s36, s{sM}, 15
    s_lshl_b32 s33, s36, 1
    s_add_u32 s33, s33, s44
    s_lshl_b32 s33, s33, 11
    v_add_u32 v24, s33, v{vL16}
    v_and_b32 v4, 15, v{vLANE}
    v_lshlrev_b32 v4, 4, v4
    v_lshrrev_b32 v5, 5, v{vLANE}
    v_lshl_add_u32 v4, v5, 10, v4
    v_bfe_u32 v5, v{vLANE}, 4, 1
    s_add_u32 s33, s36, 32
    s_lshl_b32 s33, s33, 11
    s_lshl_b32 s35, s44, 9
    s_add_u32 s33, s33, s35
    v_lshl_add_u32 v25, v5, 8, v4
    v_add_u32 v25, s33, v25
    s_lshl_b32 s33, s34, 8
    s_lshr_b32 s36, s36, 1
    s_lshl_b32 s36, s36, 11
    s_add_u32 s33, s33, s36
    s_add_u32 s33, s33, {48*2048}
    v_mul_u32_u24 v5, 229376, v5
    v_add3_u32 v26, v4, v5, s33
    """)
    a(f"""
    s_lshr_b32 s33, s{sM}, 4
    s_lshl_b32 s33, s33, 2
    s_add_u32 s33, s33, s{sW}
    s_lshl_b32 s34, s{sM}, 1
    s_add_u32 s34, s34, 10
    v_and_b32 v5, 7, v{vLANE}
    v_add_u32 v5, s34, v5
    v_and_b32 v5, 15, v5
    v_bfe_u32 v7, v{vLANE}, 3, 1
    v_lshl_add_u32 v5, v7, 4, v5
    v_lshl_add_u32 v5, v5, 3, s33
    v_lshlrev_b32 v23, 7, v5
    s_mov_b32 s47, 6
    s_lshl_b32 s49, s{sLAY}, 4
    s_add_u32 s49, s49, {c.opt.get('ct_it', 1)}
    """)
    wait(c, vFL, M_ALL)
    stamp(c, "waitX")
    for slot in range(4):
        o = g1_dx(slot); a(o[0]); a("s_nop 0")
        for l in o[1:]: a(l)
    a("s_waitcnt vmcnt(8)\ns_barrier")
    for t in range(8):
        for l in g1_rx(0, t): a(l)
    stamp(c, "g1 go")
    kin = c.opt.get('g1_kin', 1)
    def mseq(jo):
        out = []
        for t in range(8):
            js = jo if t % 2 == 0 else jo[::-1]
            if kin: out += [(t, j, k) for i, j in enumerate(js) for k in ((0, 1) if i % 2 == 0 else (1, 0))]
            else: out += [(t, j, 0) for j in js] + [(t, j, 1) for j in js[::-1]]
        return out
    sch = c.opt.get('g1_sch', 0)
    def sstep(s, loop, gx=(), first=False):
        gaps = [[] for _ in range(112)]
        BA, BB = c.opt.get('ba', 7), 63
        gaps[BA-1].append(f"s_waitcnt vmcnt({17 if loop else 0}) lgkmcnt(0)"); gaps[BA].append("s_barrier")
        for k, l in enumerate(g1_rw(2*(s^1)) + g1_rw(2*(s^1)+1)): gaps[BA + 1 + ((k*3)//2 if sch == 0 else k)].append(l)
        for t in range(8):
            g = max(BB + 2 + 3*t if sch == 0 else BB + 1 + 2*t, 14*t + 13)
            r = g1_rx(s ^ 1, t)
            if t == 7: gaps[110].append(r[c.lastk ^ 1]); gaps[111].append(r[c.lastk])
            else: gaps[g].append(r[0]); gaps[g+1].append(r[1])
        if loop:
            gaps[BB-1].append(f"s_waitcnt vmcnt({13 if first else 16 if s else 17}) lgkmcnt(0)"); gaps[BB].append("s_barrier")
            px = [[16,22,28,34,40,46,52,58], [37,40,43,46,49,52,55,58], [37,40,43,46,49,52,55,58]][sch]
            pw = [[67,72,77,82,87,92,97,102], [75,78,81,86,89,92,95,100], [75,79,86,90,94,100,104,108]][sch]
            if first:
                px = [44, 48, 52, 56, 60, 66, 70, 74]; pw = [79, 83, 87, 91, 95, 99, 103, 107]
                for h in range(2):
                    o = g1_dw(h); p = [10 + 16*h + 4*i for i in range(4)]
                    gaps[p[0]-1].append(o[0])
                    for i in range(4): gaps[p[i]].append(o[1+i])
                    gaps[p[3]+1].append(o[5])
            for h in range(2):
                for o, p in ((g1_dx(2*s + h), px[4*h:]), (g1_dw(2*(s^1) + h), pw[4*h:])):
                    gaps[p[0]-1].append(o[0])
                    for i in range(4): gaps[p[i]].append(o[1+i])
                    gaps[p[3]+1].append(o[5])
        for g, l in gx: gaps[g].append(l)
        ab = c.opt.get('abl', '')
        if loop and not first:
            def keep(l):
                if 'b' in ab and l == "s_barrier": return False
                if 'x' in ab and "s40 offen" in l: return False
                if 'w' in ab and "s41 offen" in l: return False
                if 'p' in ab and "v27" in l: return False
                if 'r' in ab and "ds_read" in l: return False
                if 's' in ab and l.startswith("s_add_u32"): return False
                if 'c' in ab and l.startswith("s_waitcnt"): return False
                return True
            gaps = [[l for l in g if keep(l)] for g in gaps]
        a(f"s_waitcnt lgkmcnt({14 if first else 2})")
        seen = set()
        for n, (t, j, k) in enumerate(mseq(list(range(7)))):
            cc = acc(t, j); w = g1_wf(2*s + k, j); x = g1_xf(k, t)
            src = "0" if first and cc not in seen else f"v[{cc}:{cc+3}]"
            seen.add(cc)
            a(f"{MF} v[{cc}:{cc+3}], a[{w}:{w+3}], a[{x}:{x+3}], {src}")
            for l in gaps[n]: a(l)
    c.lastk = mseq(list(range(7)))[-1][2]
    lp = c.lab("g1l")
    mid = c.lab("g1m")
    pg = 105
    sstep(0, True, [(109, f"buffer_load_dword v7, v23, {SRD_WS}, s{sFB} offen sc1")], first=True)
    a(f"s_branch {mid}\n{lp}:")
    ex = [(2, "s_sub_u32 s47, s47, 1")]
    if c.opt.get('pf_code', 1):
        o = c.lab("g1f"); b = c.lab("g1b")
        c.ool.append(f"{o}:\n" + code_touch(c) + f"s_branch {b}")
        ex += [(104, "s_cmp_eq_u32 s47, s49"), (105, f"s_cbranch_scc1 {o}\n{b}:")]
    sstep(0, True, ex)
    a(f"{mid}:")
    sstep(1, True, [(60, "s_cmp_eq_u32 s47, 0"), (61, "s_cselect_b32 s10, 0, s10"),
                    (pg, f"buffer_load_dword v27, v{g1_vPF[0]}, {SRD_W}, 0 offen"), (pg+1, f"v_add_u32 v{g1_vPF[0]}, {128*7168}, v{g1_vPF[0]}"),
                    (110, "s_cmp_lg_u32 s47, 0")])
    a(f"s_cbranch_scc1 {lp}")
    def pk_ld(n, g0, ds):
        o = fg2p.g2_ldw(c, n)
        return [(g0, o[0])] + [(g0+1+ds*i, o[1+i]) for i in range(4)] + [(g0+2+ds*3, o[5])]
    gx = [(0, f"s_mov_b32 s10, {D*F*2}")]
    for k, l in enumerate(fg2p.g2_pre1(c)): gx.append((1 + k//2, l))
    o = c.lab("g1c"); b = c.lab("g1d")
    c.ool.append(f"{o}:\n" + poll(c, SRD_WS, 23, f"s{sFB}", "", 3) + f"s_branch {b}")
    gx += [(0, "v_cmp_gt_u32 vcc, 3, v7"), (5, f"s_cbranch_vccnz {o}\n{b}:")]
    for n in range(4): gx += pk_ld(n, 15 + 24*n, 6)
    if c.opt.get('st14'): stamp(c)
    sstep(0, False, gx)
    stamp(c, "g1 loop")
    hz = Hz(a)
    ops = []
    st = "sc1"; early = c.opt.get('early', 1)
    if early: seq = [(t, j) for t in range(8) for j in (0, 3, 1, 4)] + [(t, j) for t in range(8) for j in (2, 5, 6)]
    else: seq = [(t, j) for t in range(8) for j in (0, 3, 1, 4, 2, 5, 6)]
    rd = {tj: 2*i + 1 for i, tj in enumerate(seq)}
    for t in range(8):
        g0, g1_ = acc(t,0), acc(t,1); d = acc(t, 3)
        for r in range(4): ops.append((rd[t,3], o_mul(g0+r, g0+r, acc(t,3)+r)))
        ops += [(rd[t,3], o_cvt(d, g0)), (rd[t,3], o_cvt(d+1, g0+2))]
        for r in range(4): ops.append((rd[t,4], o_mul(g1_+r, g1_+r, acc(t,4)+r)))
        ops += [(rd[t,4], o_cvt(d+2, g1_)), (rd[t,4], o_cvt(d+3, g1_+2))]
        ops.append((rd[t,4], o_st(f"buffer_store_dwordx4 v[{d}:{d+3}], v24, {SRD_WS}, s59 offen offset:{(t&1)*1024} {st}", d)))
        if t & 1: ops.append((rd[t,4], o_s("s_add_u32 s59, s59, 229376")))
        g2 = acc(t, 2)
        for r in range(4): ops.append((rd[t,5], o_mul(g2+r, g2+r, acc(t,5)+r)))
        b = acc(t & ~1, 5) + 2*(t & 1)
        ops += [(rd[t,5], o_cvt(b, g2)), (rd[t,5], o_cvt(b+1, g2+2))]
        if t & 1:
            b = acc(t & ~1, 5); o0, o1 = acc(t-1, 6), acc(t, 6)
            ops += [(rd[t,5], o_sw(32, b, b+2)), (rd[t,5], o_sw(32, b+1, b+3))]
            ops.append((rd[t,5], o_st(f"buffer_store_dwordx4 v[{b}:{b+3}], v25, {SRD_WS}, s53 offen {st}", b)))
            for r in range(4): ops.append((rd[t,6], o_sw(32, o0+r, o1+r)))
            for r in range(4): ops.append((rd[t,6], o_mul(o0+r, o0+r, o1+r)))
            od = acc(t & ~3, 2) + ((t >> 1) & 1)*2
            ops += [(rd[t,6], o_cvt(od, o0)), (rd[t,6], o_cvt(od+1, o0+2))]
            if t & 3 == 3:
                od = acc(t & ~3, 2)
                ops += [(rd[t,6], o_sw(16, od, od+2)), (rd[t,6], o_sw(16, od+1, od+3))]
                ops.append((rd[t,6], o_st(f"buffer_store_dwordx4 v[{od}:{od+3}], v26, {SRD_WS}, s52 offen {st}", od)))
                ops.append((rd[t,6], o_s("s_add_u32 s52, s52, 458752")))
            ops.append((rd[t,5], o_s("s_add_u32 s53, s53, 229376")))
    ops.sort(key=lambda o: o[0])
    hold = c.opt.get('hold', 5)
    hz.raw("s_waitcnt lgkmcnt(2)")
    n = 0; held = []
    for i, (t, j) in enumerate(seq):
        if i == 6: hz.raw("s_waitcnt lgkmcnt(0)")
        for k in ((0, 1) if i % 2 == 0 else (1, 0)):
            cc = acc(t, j); w = g1_wf(2 + k, j); x = g1_xf(k, t)
            hz.mfma(f"{MF} v[{cc}:{cc+3}], a[{w}:{w+3}], a[{x}:{x+3}], v[{cc}:{cc+3}]", cc)
            late = lambda o: hold and o[1][0] in ('store', 'salu') and o[0] >= 64 + 6*(8-hold)
            fill(hz, ops, n, 2, late)
            while ops and ops[0][0] <= n and late(ops[0]): held.append(ops.pop(0))
            n += 1
    ops = held + ops
    stamp(c, "g1 mm")
    if early:
        left = sum(o[1][0] == 'store' for o in ops)
        signal(c, vm=6 - left); hz.n += 6
        stamp(c, "sigH")
        for _, o in ops: hz.op(o)
        stamp(c)
    else:
        for _, o in ops: hz.op(o)
        stamp(c)
        signal(c)
        stamp(c, "sigH")
```

```python
from fcore import *
G2_ACC, G2_H, G2_W, G2_RX, G2_RES = 32, 96, 160, 160, 224
g2_vRA = 8; g2_vH = [17, 18]; g2_vO = 24
WS_WDP = 74*MB
def g2_acc(t, ct): return G2_ACC + (t*8 + ct)*4
def g2_h(n, k, t): return G2_H + ((n*2 + k)*2 + t)*4
def g2_w(k, ct): return G2_W + (ct*2 + k)*4
def wsrc(c): return SRD_WD if c.opt.get('fake') else SRD_WS
def g2_ldw(c, n):
    return [f"s_add_u32 m0, s54, {n*16384}"] + [f"buffer_load_dwordx4 v{vL16}, {wsrc(c)}, s40 offen offset:{1024*i} lds" for i in range(4)] + ["s_add_u32 s40, s40, 16384"]
def g2_ldh(n):
    return [f"buffer_load_dwordx4 v[{g2_h(n,k,t)}:{g2_h(n,k,t)+3}], v{g2_vH[t]}, {SRD_WS}, s55 offen offset:{k*2048} {LY.sc}" for k in range(2) for t in range(2)] + ["s_add_u32 s55, s55, 4096"]
def g2_rd(n, k, ct):
    r = g2_w(k, ct)
    return f"ds_read_b128 v[{r}:{r+3}], v{g2_vRA} offset:{n*16384 + k*8192 + ct*1024}"

def g2_pre1(c):
    a = Asm()
    a(f"""
    s_lshr_b32 s57, s{sM}, 4                 ; kh
    s_lshl_b32 s54, s{sW}, 12                ; m0 base = w*4096
    s_and_b32 s35, s{sM}, 7
    s_lshl_b32 s35, s35, 1
    s_add_u32 s35, s35, s57
    s_mul_i32 s40, s35, {56*8192}
    s_add_u32 s40, s40, s54
    s_add_u32 s40, s40, {0 if c.opt.get('fake') else WS_WDP}
    """)
    return [l.strip() for l in a.lines]

def g2_pre(c):
    a = c.a
    a(f"""
    s_xor_b32 s54, s54, 0x10000
    v_mov_b32 v{g2_vRA}, v{vL16}
    s_lshl_b32 s58, s{sTB}, 3
    s_bfe_u32 s35, s{sM}, 0x10003
    s_lshl_b32 s35, s35, 2
    s_add_u32 s58, s58, s35
    s_add_u32 s58, s58, s{sW}
    s_mul_i32 s55, s58, 229376
    s_mul_i32 s36, s57, {56*2048}
    s_add_u32 s55, s55, s36
    s_add_u32 s55, s55, s{sLB}
    s_add_u32 s55, s55, {L_H}
    s_lshl_b32 s35, s57, 10
    v_add_u32 v{g2_vH[0]}, s35, v{vL16}
    v_xor_b32 v{g2_vH[1]}, 1024, v{g2_vH[0]}
    """)

def g2_main(c):
    a = c.a
    for ct in range(8):
        for k in range(2): a(g2_rd(0, k, ct))
    for i in range(32): a(f"v_mov_b64 v[{G2_ACC+2*i}:{G2_ACC+2*i+1}], 0")
    a(f"""
    s_lshl_b32 s39, s58, 1
    s_add_u32 s39, s39, s57
    s_lshl_b32 s39, s39, 15
    s_and_b32 s35, s{sM}, 7
    v_and_b32 v6, 15, v{vLANE}
    v_and_b32 v7, 48, v{vLANE}
    v_lshl_add_u32 v{g2_vO}, v6, 11, v7
    s_lshl_b32 s36, s35, 12
    s_add_u32 s36, s36, s39
    s_lshl_b32 s35, s35, 8
    s_add_u32 s39, s39, s35
    s_lshl_b32 s35, s{sLAY}, 31
    v_or_b32 v26, s35, v{vL16}
    v_xor_b32 v27, 0x80000000, v26
    s_lshl_b32 s33, s{sTB}, 19
    s_and_b32 s35, s{sM}, 7
    s_lshl_b32 s35, s35, 16
    s_add_u32 s33, s33, s35
    s_bfe_u32 s35, s39, 0x4000f
    s_lshl_b32 s35, s35, 10
    s_add_u32 s33, s33, s35
    s_add_u32 s33, s33, {LY.L1}
    s_lshr_b32 s38, s39, 15
    s_lshl_b32 s38, s38, 8
    s_add_u32 s38, s38, {LY.XR}
    v_lshlrev_b32 v7, 4, v6
    v_and_b32 v7, 0x80, v7
    v_lshl_add_u32 v25, v6, 3, v7
    v_and_b32 v7, 0x80000000, v27
    v_or_b32 v25, v25, v7
    s_add_u32 s34, s36, {LY.EX}
    s_lshl_b32 s35, s57, 22
    s_add_u32 s35, s35, {LY.P}
    s_cmp_eq_u32 s{sLAY}, 0
    s_cselect_b32 s35, s35, {LY.EX}
    s_xor_b32 s37, s36, 0x8000
    s_add_u32 s36, s36, s35
    s_add_u32 s37, s37, s35
    """)
    a(f"""
    v_and_b32 v4, 7, v{vLANE}
    v_bfe_u32 v5, v{vLANE}, 3, 1
    v_lshlrev_b32 v4, 5, v4
    v_lshl_or_b32 v4, v5, 1, v4
    s_and_b32 s35, s2, 0x1d
    v_or_b32 v4, s35, v4
    v_lshlrev_b32 v9, 7, v4
    """)
    l = c.lab("wt")
    a(f"s_cmp_lg_u32 s{sW}, 0\ns_cbranch_scc1 {l}")
    a(poll(c, SRD_WS, vFL, f"s{sFB}", M_KH, f"s{sPH}"))
    a(f"{l}:")
    a("s_waitcnt vmcnt(0)\ns_barrier")
    stamp(c, "waitH")
    for n in range(3):
        for l in g2_ldh(n): a(l)
    l = c.lab("sg")
    a(f"""
    s_add_u32 s{sPH}, s{sPH}, 1
    v_mov_b32 v4, 0
    v_mov_b32 v5, s{sPH}
    s_cmp_lg_u32 s{sW}, 0
    s_waitcnt vmcnt(8)
    {"s_branch" if 's' in c.opt.get('y', '') else "s_cbranch_scc1"} {l}
    s_mov_b64 exec, 1
    buffer_store_dword v5, v4, {SRD_WS}, s{sFL} offen sc1
    s_mov_b64 exec, -1
    {l}:
    """)
    stamp(c, "g2 go")
    M = [(ct, k) for ct in range(8) for k in range(4)]
    def mrd(i):
        ct, k = M[i]
        return f"ds_read_b128 a[{4*i}:{4*i+3}], v{g2_vRA} offset:{32768 + k*8192 + ct*1024}"
    kin = c.opt.get('g2_kin', 1)
    def sstep(n, ldh, ldw, vm, extra=(), merge=False):
        gaps = [[] for _ in range(32)]
        if n == 3: gaps[1].append(f"v_xor_b32 v{g2_vRA}, 0x10000, v{g2_vRA}")
        for ct in range(8):
            if merge: r = [mrd(2*ct), mrd(2*ct+1)]
            else: r = [g2_rd((n+1) % 4, 1 if kin else 0, ct), g2_rd((n+1) % 4, 0 if kin else 1, ct)]
            gaps[4*ct+2].append(r[0]); gaps[4*ct+3].append(r[1])
        if ldh:
            o = g2_ldh((n+3) % 4)
            for i in range(4): gaps[1+4*i].append(o[i])
            gaps[14].append(o[4])
        if ldw:
            o = g2_ldw(c, n)
            gaps[16].append(o[0])
            for i in range(4): gaps[17+4*i].append(o[1+i])
            gaps[30].append(o[5])
        for g, l in extra: gaps[g].append(l)
        for g in (7, 15, 23): gaps[g].append("s_waitcnt lgkmcnt(12)")
        a(f"s_waitcnt vmcnt({vm}) lgkmcnt(12)")
        for g in range(32):
            ct = g >> 2
            t, k = [(0,0),(0,1),(1,1),(1,0)][g & 3] if kin else [(0,0),(1,0),(1,1),(0,1)][g & 3]
            if ct & 1: t ^= 1
            cc = g2_acc(t, ct)
            a(f"{MF} v[{cc}:{cc+3}], v[{g2_w(k,ct)}:{g2_w(k,ct)+3}], v[{g2_h(n,k,t)}:{g2_h(n,k,t)+3}], v[{cc}:{cc+3}]")
            if g == 0: a("s_barrier")
            for l in gaps[g]: a(l)
    loop = c.lab("g2loop")
    a(f"s_mov_b32 s56, 6\ns_mov_b32 s41, 1\ns_lshl_b32 s42, s{sW}, 3\ns_add_u32 s42, s42, 3\nv_mov_b32 v7, 0\ns_mov_b64 s[24:25], s[12:13]\n{loop}:")
    o = c.lab("g2f"); b = c.lab("g2b")
    c.ool.append(f"{o}:\ns_cmp_eq_u32 s56, 6\ns_waitcnt vmcnt(12)\ns_cbranch_scc1 {b}\n" + poll(c, SRD_WS, 9, f"s{sFB}", "", f"s{sPH}") + f"s_branch {b}")
    sstep(0, True, True, 16, [(24, "v_cmp_gt_u32 vcc, s41, v7"), (29, f"s_cbranch_vccnz {o}\n{b}:")])
    sstep(1, True, True, 16, [(4, "s_sub_u32 s56, s56, 1"), (8, f"s_cmp_eq_u32 s56, s42\ns_cselect_b32 s41, s{sPH}, 0"), (12, "s_cselect_b32 s26, s14, 0"),
                              (31, f"buffer_load_dword v7, v9, {SRD_T}, s{sFB} offen sc1" if 'i' not in c.opt.get('y', '') else "s_nop 0")])
    sstep(2, True, True, 17 - ('i' in c.opt.get('y', '')))
    sstep(3, True, True, 17 - ('i' in c.opt.get('y', '')), [(20, "s_xor_b32 s54, s54, 0x10000"), (30, "s_cmp_lg_u32 s56, 0")])
    a(f"s_cbranch_scc1 {loop}")
    ex = []
    if c.opt.get('w1_g2', 1):
        import fg1k
        t = Asm(); fg1k.g1_waddr(t)
        L = [l.strip() for l in t.lines if "s33" in l or True]
        L = [l.replace("s33", "s32") for l in L] + [f"s_add_u32 s41, s41, {64*7168}"]
        L.append(f"s_cmp_lg_u32 s{sLAY}, 0\ns_cselect_b32 s10, 0, s10")
        ex0 = [(k*32//len(L), l) for k, l in enumerate(L)]
        for h in range(2):
            o = fg1k.g1_dw(2 + h)
            ex += [(16*h, o[0])] + [(16*h + 1 + 4*i, o[1+i]) for i in range(4)] + [(16*h + 14, o[5])]
    else: ex0 = []
    sstep(0, True, False, 16, ex0)
    sstep(1, False, False, 4, ex, merge=True)
    a(f"s_waitcnt vmcnt({8 if ex else 0})")
    hz = Hz(a); ops = []
    for r in range(G2_W, G2_W+64): hz.mf[r] = -6
    n2 = len(M)
    for p in range(4):
        ops.append((p, ('salu', f"buffer_load_dwordx4 v[{G2_RES+4*p}:{G2_RES+4*p+3}], v27, {SRD_WS}, s33 offen {LY.sc}", [], [])))
        ops.append((p, ('salu', "s_add_u32 s33, s33, 16384", [], [])))
    ops.append((3, ('salu', f"buffer_load_dwordx2 v[28:29], v25, {SRD_WS}, s38 offen sc1", [], [])))
    for ti, t in enumerate((1, 0)):
        for p in range(4):
            rdy = ti*n2 + 8*(p+1) - 1
            c0, c1 = g2_acc(t, 2*p), g2_acc(t, 2*p+1); e = G2_RX + 16*ti + 4*p
            ops += [(rdy-4, o_cvt(e, c0)), (rdy-4, o_cvt(e+1, c0+2)), (rdy, o_cvt(e+2, c1)), (rdy, o_cvt(e+3, c1+2)),
                    (rdy, o_st(f"buffer_store_dwordx4 v[{e}:{e+3}], v{vL16 if t else 26}, {SRD_WS}, s{36+t} offen offset:{p*1024} sc1", e))]
    n = 0
    for ti, t in enumerate((1, 0)):
        for i, (ct, k) in enumerate(M):
            if ti == 0 and i % 4 == 0: hz.raw(f"s_waitcnt lgkmcnt({min(12, n2-4-i)})")
            cc = g2_acc(t, ct); h = g2_h(2 + (k >> 1), k & 1, t)
            hz.mfma(f"{MF} v[{cc}:{cc+3}], a[{4*i}:{4*i+3}], v[{h}:{h+3}], v[{cc}:{cc+3}]", cc)
            per = 2
            if ti == 0 and i + 16 < n2:
                hz.raw(mrd(i+16)); per = 1
            fill(hz, ops, n, per)
            n += 1
    stamp(c, "g2 mm")
    fin = c.lab("g2fin")
    hz.raw(f"s_cmp_lg_u32 s{sLAY}, 0"); hz.raw(f"s_cbranch_scc1 {fin}")
    assert all(o[0] >= n2 for o in ops)
    for _, o in ops: hz.op(o)
    stamp(c, "p out")
    a(f"""
    s_mov_b32 s{sLAY}, 1
    s_mov_b32 s{sLB}, {LY.L1}
    s_branch {c.name}_layer
    {fin}:
    s_mov_b32 s32, 0x3f80
    s_mov_b32 s35, 0x3f800000
    """)
    signal(c)
    stamp(c, "sigE")
    a("v_rcp_f32 v28, v28\ns_nop 0\nv_mul_f32 v29, -v29, v28")
    for j in range(16):
        x = G2_ACC + 2*j
        unpack(a, 4, G2_RES + j, 1)
        a(f"v_pk_fma_f32 v[4:5], v[4:5], v[28:29], v[28:29] op_sel:[0,0,1] op_sel_hi:[1,0,1]")
        a(f"v_pk_add_f32 v[{x}:{x+1}], v[{x}:{x+1}], v[4:5]")
    wait(c, vFL, M_PAIR)
    stamp(c, "waitE")
    for p in range(4):
        a(f"buffer_load_dwordx4 v[{G2_RX+4*p}:{G2_RX+4*p+3}], v{vL16}, {SRD_WS}, s34 offen offset:{p*1024} sc1")
    for p in range(4):
        c0 = g2_acc(0, 2*p)
        a(f"s_waitcnt vmcnt(3)")
        for i in range(4):
            a(f"v_dot2_f32_bf16 v{c0+2*i}, v{G2_RX+4*p+i}, s32, v{c0+2*i}\nv_dot2_f32_bf16 v{c0+2*i+1}, v{G2_RX+4*p+i}, s35, v{c0+2*i+1}")
        r = G2_RES + 4*p
        a("s_nop 0")
        for i in range(4): a(f"v_cvt_pk_bf16_f32 v{r+i}, v{c0+2*i}, v{c0+2*i+1}")
        a(f"buffer_store_dwordx4 v[{r}:{r+3}], v{g2_vO}, {SRD_OUT}, s39 offen offset:{p*64} {c.opt.get('out_aux', 'sc1')}")
    stamp(c, "out")
    if c.ts:
        a("s_waitcnt vmcnt(0)"); stamp(c, "end")
```

```python
from fcore import *
from ffront import vQ, repack, repack_store, TOUCH2
from fg1k import g1_dw
XF, YF, RW, LO, TT = 32, 64, 96, 128, 160
def ln_stats(c, off):
    a = c.a
    a(f"v_pk_add_f32 v[28:29], v[{XF}:{XF+1}], v[{XF+2}:{XF+3}]")
    a(f"v_pk_mul_f32 v[6:7], v[{XF}:{XF+1}], v[{XF}:{XF+1}]")
    a(f"v_pk_fma_f32 v[6:7], v[{XF+2}:{XF+3}], v[{XF+2}:{XF+3}], v[6:7]")
    for i in range(2, 16):
        a(f"v_pk_add_f32 v[28:29], v[28:29], v[{XF+2*i}:{XF+2*i+1}]")
        a(f"v_pk_fma_f32 v[6:7], v[{XF+2*i}:{XF+2*i+1}], v[{XF+2*i}:{XF+2*i+1}], v[6:7]")
    a(f"""
    v_add_f32 v28, v28, v29
    v_add_f32 v29, v6, v7
    s_nop 1
    v_permlane32_swap_b32 v28, v29
    v_add_f32 v28, v28, v29
    v_mov_b32 v29, v28
    s_nop 1
    v_permlane16_swap_b32 v28, v29
    v_add_f32 v28, v28, v29
    s_nop 1
    v_add_f32_dpp v28, v28, v28 row_ror:8 row_mask:0xf bank_mask:0xf
    ds_write_b32 v26, v28 offset:{off}
    s_waitcnt lgkmcnt(0)
    s_barrier
    ds_read_b128 v[4:7], v27 offset:{off}
    ds_read_b128 v[{LO+16}:{LO+19}], v27 offset:{off+128}
    s_waitcnt lgkmcnt(1)
    v_pk_add_f32 v[4:5], v[4:5], v[6:7]
    v_add_f32 v29, v4, v5
    v_mul_f32 v29, 0x3a800000, v29
    s_waitcnt lgkmcnt(0)
    v_pk_add_f32 v[6:7], v[{LO+16}:{LO+17}], v[{LO+18}:{LO+19}]
    v_add_f32 v28, v6, v7
    v_mul_f32 v28, 0x3a800000, v28
    v_fma_f32 v28, -v29, v29, v28
    v_max_f32 v28, 0, v28
    """)
    if c.opt.get('mimic', 0):
        a(f"""
        v_cvt_pk_bf16_f32 v29, v29, v28
        v_and_b32 v28, s{sMASK}, v29
        v_lshlrev_b32 v29, 16, v29
        v_add_f32 v28, 0x3727c5ac, v28
        v_cvt_pk_bf16_f32 v28, v28, v28
        v_and_b32 v28, s{sMASK}, v28
        v_sqrt_f32 v28, v28
        s_nop 0
        v_cvt_pk_bf16_f32 v28, v28, v28
        v_and_b32 v28, s{sMASK}, v28
        v_rcp_f32 v28, v28
        """)
    else:
        a("v_add_f32 v28, 0x3727c5ac, v28\nv_rsq_f32 v28, v28")
    a("s_nop 0\nv_mul_f32 v29, -v29, v28")
def norm(d, x): return f"v_pk_fma_f32 v[{d}:{d+1}], v[{x}:{x+1}], v[28:29], v[28:29] op_sel:[0,0,1] op_sel_hi:[1,0,1]"
def w_stage(a, slot):
    o = g1_dw(slot); a(o[0]); a("s_nop 0")
    for l in o[1:]: a(l)

def ln_phase(c):
    a = c.a
    l1 = c.lab("ln1"); st = c.lab("lnst"); cm = c.lab("lncm")
    a(f"""
    v_and_b32 v4, 7, v{vLANE}              ; tok
    v_lshrrev_b32 v5, 3, v{vLANE}          ; c
    v_lshlrev_b32 v6, 8, v5
    v_lshl_add_u32 v24, v4, 4, v6
    v_lshl_add_u32 v1, v4, 3, v6
    v_and_b32 v6, 0x3ff, v24
    v_lshrrev_b32 v7, 2, v5
    v_lshl_add_u32 v25, v7, 14, v6
    v_lshlrev_b32 v27, 4, v4
    v_add_u32 v27, {LDS_RED}, v27
    s_lshl_b32 s33, s{sW}, 2
    v_lshl_add_u32 v26, v7, 7, v27
    v_add_u32 v26, s33, v26
    s_lshr_b32 s33, s{sG8}, 1
    s_lshl_b32 s33, s33, 15
    s_lshl_b32 s34, s{sW}, 13
    s_add_u32 s33, s33, s34
    s_and_b32 s34, s{sG8}, 1
    s_lshl_b32 s35, s34, 6
    s_add_u32 s33, s33, s35                ; Y offset
    s_add_u32 s36, s33, s35                ; B16 offset
    s_add_u32 s33, s33, {WS_Y}
    s_lshl_b32 s37, s{sTB}, 19
    s_lshl_b32 s35, s{sW}, 17
    s_add_u32 s37, s37, s35
    s_bfe_u32 s35, s{sG8}, 0x40001
    s_lshl_b32 s35, s35, 10
    s_add_u32 s37, s37, s35
    s_lshl_b32 s35, s34, 7
    s_add_u32 s37, s37, s35
    s_add_u32 s37, s37, s{sLB}
    s_cmp_lg_u32 s{sLAY}, 0
    s_cbranch_scc1 {l1}
    """)
    n1 = c.opt.get('pk_n1', 3)
    repack(c, n1)
    unpack(a, XF, vQ, 16)
    a(f"s_branch {st}\n{l1}:")
    for j in range(16): a(f"v_accvgpr_read_b32 v{LO+j}, a{aX+j}")
    unpack(a, XF, LO, 16)
    a(f"s_add_u32 s38, s36, {LY.P}\ns_mov_b32 s34, 0x3f80\ns_mov_b32 s35, 0x3f800000")
    wait(c, vFL, M_TH)
    stamp(c, "waitP")
    for h in range(2):
        for p in range(2):
            for i in (2*h, 2*h+1):
                r = RW + 16*p + 4*i
                a(f"buffer_load_dwordx4 v[{r}:{r+3}], v24, {SRD_WS}, s38 offen offset:{(i&1)*2048} sc1")
            a(f"s_add_u32 s38, s38, {4*MB if p == 0 else (4096 - 4*MB) & 0xffffffff}")
    for j in range(16): a(f"v_accvgpr_read_b32 v{LO+j}, a{aY+j}")
    unpack(a, YF, LO, 16)
    w0 = 8 if c.opt.get('w0', 0) else 0
    if w0: w_stage(a, 0); w_stage(a, 1)
    k = 7 + w0
    for h in range(2):
        for p in range(2):
            for i in (2*h, 2*h+1):
                a(f"s_waitcnt vmcnt({k})"); k -= 1
                for j in range(4):
                    r = RW + 16*p + 4*i + j; x = XF + 8*i + 2*j
                    a(f"v_dot2_f32_bf16 v{x}, v{r}, s34, v{x}\nv_dot2_f32_bf16 v{x+1}, v{r}, s35, v{x+1}")
    a(f"{st}:")
    ln_stats(c, 0)
    for j in range(16): a(norm(TT+2*j, XF+2*j))
    a(f"s_cmp_lg_u32 s{sLAY}, 0\ns_cbranch_scc1 {cm}")
    ok = c.lab("boot")
    wait(c, 250, "", every=True, pre=f"v_cmp_eq_u32 vcc, 0, v248\ns_cbranch_vccz {ok}\n" + poll(c, "s[88:91]", 249, "0", "", 1) + f"{ok}:")
    stamp(c, "waitY")
    for i in range(4):
        for k in range(2):
            r = RW + 4*i + 2*k
            a(f"buffer_load_dwordx2 v[{r}:{r+1}], v1, {SRD_WS}, s33 offen offset:{(i&1)*2048 + k*128} sc1")
        if i == 1: a("s_add_u32 s33, s33, 4096")
    t2 = c.opt.get('t2', 2)
    if t2 == 1: a(TOUCH2)
    for i in range(4):
        a(f"s_waitcnt vmcnt({6+(t2 == 1)-2*i})")
        unpack(a, YF+8*i, RW+4*i, 4)
    a(f"{cm}:")
    stamp(c, "ln in")
    for j in range(16):
        x = XF + 2*j
        a(f"v_pk_fma_f32 v[{x}:{x+1}], v[{TT+2*j}:{TT+2*j+1}], v[{YF+2*j}:{YF+2*j+1}], v[{x}:{x+1}]")
    if n1 < 7:
        s3 = c.lab("lnt")
        a(f"s_cmp_lg_u32 s{sLAY}, 0\ns_cbranch_scc1 {s3}")
        for k in range(n1, c.opt.get('pk_n2', 7)): a(repack_store(k))
        a(f"{s3}:")
    ln_stats(c, 256)
    for j in range(16):
        a(norm(TT+2*j, XF+2*j))
        a(f"v_cvt_pk_bf16_f32 v{YF+j}, v{TT+2*j}, v{TT+2*j+1}")
        if j % 4 == 3:
            a(f"buffer_store_dwordx4 v[{YF+j-3}:{YF+j}], v25, {SRD_WS}, s37 offen sc1\ns_add_u32 s37, s37, 32768")
    a(f"""
    s_lshl_b32 s35, s{sG8}, 7
    s_add_u32 s35, s35, {LY.XR}
    v_lshlrev_b32 v4, 3, v{vLANE}
    s_mov_b64 exec, 0xffff
    buffer_store_dwordx2 v[28:29], v4, {SRD_WS}, s35 offen sc1
    s_mov_b64 exec, -1
    """)
    stamp(c, "xn out")
    signal(c)
    stamp(c, "sigX")
    dn = c.lab("lnd")
    w1 = c.opt.get('w1_g2', 1)
    if not w1: w_stage(a, 2); w_stage(a, 3)
    a(f"s_cmp_lg_u32 s{sLAY}, 0\ns_cbranch_scc1 {dn}")
    if t2 == 2: a(TOUCH2)
    if w1: w_stage(a, 2); w_stage(a, 3)
    for k in range(c.opt.get('pk_n2', 7), 7): a(repack_store(k))
    for j in range(16): a(f"v_cvt_pk_bf16_f32 v{LO+j}, v{XF+2*j}, v{XF+2*j+1}")
    for j in range(16): a(f"v_accvgpr_write_b32 a{aX+j}, v{LO+j}\nv_accvgpr_write_b32 a{aY+j}, v{RW+j}")
    a(f"{dn}:")
```

```python
from asmlib import *
from common import *
import re

sW, sTB, sM, sLAY, sLB = 3, 4, 5, 6, 7
SRD_W, SRD_WS, SRD_WD, SRD_OUT, SRD_T, SRD_T2 = "s[8:11]", "s[12:15]", "s[16:19]", "s[20:23]", "s[24:27]", "s[28:31]"
sG8 = 60
sMASK = 61
vLANE, vL16 = 2, 3
aX, aY = 224, 240
MF = "v_mfma_f32_16x16x32_bf16"
SPIN = 4000000
FL_A, FL_B, FL_LN, FL_G1, FL_G2, FL_PAIR = 0, 256, 512, 640, 768, 1536
STAGE = 32768 + 256
UOFF = 8192 + 16
LDS_RED = 4*STAGE
LDS_TOTAL = LDS_RED + 1024

class Lay:
    pass
LY = Lay()
def set_layout(reuse):
    LY.P = WS_UT if reuse else WS_L0 + L_EX
    LY.EX = WS_UT if reuse else WS_L0 + LSTRIDE + L_EX
    LY.XR = WS_Y if reuse else WS_XR
    LY.L1 = WS_L0 if reuse else WS_L0 + LSTRIDE
    LY.sc = "sc1" if reuse else ""

class Ctx:
    def __init__(self, name, ts=False, **opt):
        self.a = Asm(); self.name = name; self.ts = ts; self.nl = 0; self.ool = []; self.opt = opt
    def lab(self, s):
        self.nl += 1
        return f"{self.name[:6]}_{s}{self.nl}"

def stamp(c, name=""):
    if not c.ts: return
    c.a("""
    s_memrealtime s[98:99]
    s_memtime s[100:101]
    s_mov_b32 m0, s97
    s_add_u32 s97, s97, 1
    s_waitcnt lgkmcnt(0)
    v_writelane_b32 v30, s98, m0
    v_writelane_b32 v31, s100, m0
    """)
def ts_dump(c):
    if not c.ts: return
    if 'pad' in c.opt:
        l = c.lab("pad")
        c.a(f"""
        v_readlane_b32 s32, v30, {c.opt['pad']}
        {l}:
        s_memrealtime s[98:99]
        s_waitcnt lgkmcnt(0)
        s_sub_u32 s33, s98, s32
        s_cmp_lt_u32 s33, 15000
        s_cbranch_scc1 {l}
        """)
        return
    if c.opt.get('dbgts'):
        sel = c.opt['dbgts']; z = c.lab("nd")
        c.a(f"s_cmp_lg_u32 s2, {c.opt.get('dbgwg', 37)}\ns_cbranch_scc1 {z}\ns_cmp_lg_u32 s{sW}, 1\ns_cbranch_scc1 {z}\nv_readlane_b32 s32, v30, 0\nv_readlane_b32 s34, v31, 0\nv_mov_b32 v5, 0")
        for i, k in enumerate(sel):
            src, b = (30, 32) if k >= 0 else (31, 34)
            c.a(f"v_readlane_b32 s33, v{src}, {abs(k)}\ns_nop 3\ns_sub_u32 s33, s33, s{b}\nv_writelane_b32 v5, s33, {i}")
        c.a(f"v_lshlrev_b32 v4, 2, v{vLANE}\ns_mov_b64 exec, 0xffff\nbuffer_store_dword v5, v4, s[88:91], 0 offen sc1\n{z}:")
        return
    c.a(f"""
    s_load_dword s96, s[0:1], 88
    s_lshl_b32 s32, s2, 2
    s_add_u32 s32, s32, s{sW}
    s_lshl_b32 s32, s32, 9
    s_waitcnt lgkmcnt(0)
    s_bfe_u32 s96, s96, 0x60009
    s_lshl_b32 s96, s96, 19
    s_add_u32 s32, s32, s96
    s_add_u32 s32, s32, {WS_TS}
    v_lshlrev_b32 v4, 3, v{vLANE}
    buffer_store_dwordx2 v[30:31], v4, {SRD_WS}, s32 offen
    """)

def srd(a, d, lo, size):
    a(f"s_mov_b32 s{d}, s{lo}\ns_mov_b32 s{d+1}, s{lo+1}\ns_mov_b32 s{d+2}, {size}\ns_mov_b32 s{d+3}, 0x20000")

sPH, sFL, sFB, vFL = 63, 94, 95, 0
def signal(c, pre="", vm=0, vm0=0, sfl=sFL):
    l = c.lab("sig")
    c.a(f"""
    s_add_u32 s{sPH}, s{sPH}, 1
    v_mov_b32 v4, 0
    v_mov_b32 v5, s{sPH}
    s_cmp_lg_u32 s{sW}, 0
    s_waitcnt vmcnt({vm + vm0})
    {f"s_cbranch_scc0 {l}a" if vm0 else ""}
    {f"s_waitcnt vmcnt({vm})" if vm0 else ""}
    {f"{l}a:" if vm0 else ""}
    s_barrier
    s_cbranch_scc1 {l}
    {pre}
    s_mov_b64 exec, 1
    {c.opt.get('flag_op', 'buffer_store_dword')} v5, v4, {SRD_WS}, s{sfl} offen {c.opt.get('flag_aux', 'sc1')}
    s_mov_b64 exec, -1
    {l}:
    """)
def poll(c, srdn, va, soff, mask, target, slp=0, x4=False):
    p = c.lab("poll"); d = c.lab("pd"); to = d
    if c.opt.get('diag'):
        to = c.lab("to")
        c.ool.append(f"""{to}:
        s_waitcnt vmcnt(0)
        s_lshl_b32 s62, s2, 2
        s_add_u32 s62, s62, s{sW}
        s_lshl_b32 s62, s62, 3
        s_add_u32 s62, s62, s{sPH}
        s_lshl_b32 s62, s62, 8
        s_add_u32 s62, s62, {WS_X2}
        v_or_b32 v7, 0x{0x40000000 if srdn == SRD_WS else 0x20000000:x}, v7
        v_lshlrev_b32 v6, 2, v{vLANE}
        buffer_store_dword v7, v6, {SRD_WS}, s62 offen sc1
        s_branch {d}""")
    return f"""
    {mask}
    s_mov_b32 s62, {SPIN}
    {p}:
    {"buffer_load_dwordx4 v[4:7]" if x4 else "buffer_load_dword v7"}, v{va}, {srdn}, {soff} offen {c.opt.get('poll_aux', 'sc1')}
    s_sub_u32 s62, s62, 1
    s_cbranch_scc1 {to}
    s_waitcnt vmcnt(0)
    {"v_min3_u32 v7, v5, v6, v7" if x4 else ""}
    {"v_min_u32 v7, v4, v7" if x4 else ""}
    {f"v_cmpx_gt_u32 vcc, {target}, v7" if c.opt.get('shrink', 0) else f"v_cmp_gt_u32 vcc, {target}, v7"}
    s_cbranch_vccnz {p}
    {d}:
    s_mov_b64 exec, -1
    """
def wait(c, va, mask, pre="", every=False, thr=None, x4=False):
    l = c.lab("wt")
    if not every: c.a(f"s_cmp_lg_u32 s{sW}, 0\ns_cbranch_scc1 {l}")
    if pre: c.a(pre)
    c.a(poll(c, SRD_WS, va, f"s{sFB}", mask, thr or f"s{sPH}", c.opt.get('slp', 0), x4))
    c.a(f"{l}:\ns_barrier")
M_ALL = "s_mov_b32 exec_hi, 0"
M_KH = f"s_and_b32 s62, s{sM}, 16\ns_lshl_b32 exec_lo, 0xffff, s62\ns_mov_b32 exec_hi, 0"
M_TH = f"s_and_b32 s62, s{sM}, 8\ns_lshl_b32 exec_lo, 0x00ff00ff, s62\ns_mov_b32 exec_hi, 0"
M_PAIR = f"s_xor_b32 s62, s{sM}, 16\ns_lshl_b32 exec_lo, 1, s62\ns_mov_b32 exec_hi, 0"

def prolog(c):
    a = c.a
    kernel_begin(a, c.name)
    if c.ts: a("s_mov_b32 s97, 0\nv_mov_b32 v30, 0\nv_mov_b32 v31, 0")
    stamp(c)
    a(f"""
    s_cmp_ge_u32 s2, 256
    s_cbranch_scc1 {c.name}_end
    s_load_dwordx16 s[64:79], s[0:1], 0
    s_load_dwordx8 s[80:87], s[0:1], 64
    s_load_dwordx2 s[12:13], s[0:1], 96      ; ws
    v_lshrrev_b32 v1, 6, v0
    v_and_b32 v{vLANE}, 63, v0
    v_readfirstlane_b32 s{sW}, v1
    v_lshlrev_b32 v{vL16}, 4, v{vLANE}
    {code_touch(c, 251) if c.opt.get('pf_code', 2) == 2 else ""}
    s_mov_b32 s14, {256*MB if c.ts else WS_USED}
    s_mov_b32 s15, 0x20000
    s_mov_b32 s{sMASK}, 0xffff0000
    """)
def prolog2(c):
    c.a(f"""
    {"s_andn2_b32 s40, 1, s2" if c.opt.get('swap', 1) else "s_and_b32 s40, s2, 1"}
    s_lshl_b32 s40, s40, 2
    s_bfe_u32 s{sTB}, s2, 0x20003
    s_add_u32 s{sTB}, s{sTB}, s40
    s_bfe_u32 s40, s2, 0x20001
    s_lshl_b32 s40, s40, 3
    s_lshr_b32 s{sM}, s2, 5
    s_add_u32 s{sM}, s{sM}, s40
    s_lshl_b32 s{sG8}, s{sTB}, 5
    s_bfe_u32 s40, s{sM}, 0x10003
    s_lshl_b32 s40, s40, 4
    s_add_u32 s{sG8}, s{sG8}, s40
    s_lshr_b32 s40, s{sM}, 4
    s_lshl_b32 s40, s40, 3
    s_add_u32 s{sG8}, s{sG8}, s40
    s_and_b32 s40, s{sM}, 7
    s_add_u32 s{sG8}, s{sG8}, s40
    s_mov_b32 s{sLAY}, 0
    s_mov_b32 s{sLB}, {WS_L0}
    s_mov_b32 s{sPH}, 0
    s_mov_b32 s{sFB}, {WS_FL}
    s_lshl_b32 s{sFL}, s2, 7
    s_add_u32 s{sFL}, s{sFL}, s{sFB}
    s_cmp_lt_u32 s{sW}, 2
    s_cselect_b32 s8, s78, s80
    s_cselect_b32 s9, s79, s81
    s_mov_b32 s10, {D*F*2}
    s_mov_b32 s11, 0x20000
    """)
    srd(c.a, 16, 82, D*F*2); srd(c.a, 20, 84, S*D*2)

def epilog(c):
    ts_dump(c)
    c.a(f"{c.name}_end:\ns_endpgm")
    for o in c.ool: c.a(o)

class Hz:
    def __init__(self, a): self.a = a; self.n = 0; self.mf = {}; self.va = {}; self.st = {}
    def need(self, kind, rd, wr):
        w = 0
        for r in list(rd) + list(wr): w = max(w, self.mf.get(r, -99) + 9 - self.n)
        if kind == 'perm':
            for r in rd: w = max(w, self.va.get(r, -99) + 3 - self.n)
        if kind != 'store':
            for r in wr: w = max(w, self.st.get(r, -99) + 3 - self.n)
        return w
    def mfma(self, s, d):
        self.a(s)
        for r in range(d, d+4): self.mf[r] = self.n
        self.n += 1
    def raw(self, s): self.a(s); self.n += 1
    def op(self, o):
        kind, s, rd, wr = o
        w = self.need(kind, rd, wr)
        if w > 0: self.a(f"s_nop {w-1}"); self.n += w
        self.a(s)
        if kind == 'store':
            for r in rd: self.st[r] = self.n
        else:
            for r in wr: self.va[r] = self.n
        self.n += 1
def fill(hz, ops, n, per, stop=None):
    for i in range(per):
        if not ops or ops[0][0] >= n + 1: return
        if stop and stop(ops[0]): return
        w = hz.need(ops[0][1][0], ops[0][1][2], ops[0][1][3])
        if w <= 0: hz.op(ops.pop(0)[1])
        else:
            k = min(w, per - i)
            hz.a(f"s_nop {k-1}"); hz.n += k
            if k == per - i: return
def o_mul(d, x, y): return ('valu', f"v_mul_f32 v{d}, v{x}, v{y}", [x, y], [d])
def o_cvt(d, x): return ('valu', f"v_cvt_pk_bf16_f32 v{d}, v{x}, v{x+1}", [x, x+1], [d])
def o_sw(n, x, y): return ('perm', f"v_permlane{n}_swap_b32 v{x}, v{y}", [x, y], [x, y])
def o_st(s, r): return ('store', s, list(range(r, r+4)), [])
def o_s(s): return ('salu', s, [], [])


def unpack(a, dst, src, n):
    for j in range(n):
        a(f"v_lshlrev_b32 v{dst+2*j}, 16, v{src+j}\nv_and_b32 v{dst+2*j+1}, s{sMASK}, v{src+j}")

def code_touch(c, dst=27, r=4):
    l = c.lab("pc")
    return f"""
    s_lshr_b32 s37, s2, 3
    s_lshl_b32 s37, s37, 2
    s_add_u32 s37, s37, s{sW}
    s_mul_i32 s37, s37, 3
    v_min_u32 v{r}, 2, v{vLANE}
    v_add_u32 v{r}, s37, v{r}
    v_lshlrev_b32 v{r}, 7, v{r}
    s_getpc_b64 s[50:51]
    {l}:
    s_sub_u32 s50, s50, {l}-{c.name}
    s_subb_u32 s51, s51, 0
    v_min_u32 v{r}, {c.name}_last-{c.name}, v{r}
    v_mov_b32 v{r+1}, s51
    v_add_co_u32 v{r}, vcc, s50, v{r}
    s_nop 1
    v_addc_co_u32 v{r+1}, vcc, 0, v{r+1}, vcc
    {f'global_load_dword v{dst}, v[{r}:{r+1}], off' if dst else ''}
    """
```

```python
from fcore import *
import fg1k
LDS_PK = LDS_RED + 1024
WS_WDP = 74*MB
CW = STAGE; C_O = 4192; C_U = 8320
A_LDS = LDS_PK
K_LDS = 16384
vQ = 232
def front(c):
    a = c.a; opt = c.opt
    K = 32; V = 60; TP = 76; KF = 92; TF = 148; T = 180; O = KF + 16
    ACC = 32; FA = 64; FB = 128; AD = 252
    vA = [225, 226, 227, 228]; vB = 26; vE = 27; vF0 = 28; vQA = 29; vSW, vSR, vY, vPF = 212, 213, 214, 224
    def fa(s, i): return FA + (s*8 + i)*4
    def fb(s, i): return FB + (s*8 + i)*4
    z = c.lab("nz")
    a(f"""
    v_and_b32 v4, 7, v0                    ; cg
    v_lshrrev_b32 v5, 3, v0
    s_and_b32 s33, s2, 7
    s_lshr_b32 s34, s2, 3
    s_lshr_b32 s35, s34, 4
    s_and_b32 s34, s34, 15                 ; cbk
    s_lshl_b32 s33, s33, 1
    s_add_u32 s33, s33, s35
    s_add_u32 s33, s33, s34
    s_and_b32 s33, s33, 15                 ; tokblk
    s_lshl_b32 s35, s33, 18
    s_lshl_b32 s36, s34, 7
    s_add_u32 s35, s35, s36
    v_lshlrev_b32 v6, 13, v5
    v_lshl_add_u32 v6, v4, 4, v6
    v_add_u32 v11, s35, v6
    v_add_u32 v12, 4096, v11
    v_lshrrev_b32 v7, 3, v{vLANE}
    v_lshlrev_b32 v6, 11, v7
    v_lshl_add_u32 v6, v4, 4, v6
    s_lshl_b32 s36, s{sW}, 16
    s_add_u32 s35, s35, s36
    v_add_u32 v9, s35, v6
    v_cmp_lt_u32 vcc, 4, v7
    v_subrev_u32 v8, 16384, v9
    v_bfrev_b32 v6, 1
    s_mul_i32 s52, s{sW}, {STAGE}
    v_cndmask_b32 v8, v6, v8, vcc          ; k rows -3..-1
    s_add_u32 s52, s52, {K_LDS}
    s_mov_b32 m0, s52
    s_mov_b32 s53, {16384-1024}
    s_mov_b32 s54, {2*(16384-1024)}
    s_mov_b32 s55, {3*(16384-1024)}
    s_lshl_b32 s36, s34, 9
    v_mov_b64 v[16:17], 0
    v_mov_b64 v[18:19], 0
    s_mov_b32 s90, {D*8}
    s_mov_b32 s91, 0x20000
    s_mov_b32 s26, {S*D*2}
    s_mov_b32 s27, 0x20000
    s_mov_b32 s30, {S*D*2}
    s_mov_b32 s31, 0x20000
    s_lshl_b32 s46, s34, 10
    s_add_u32 s46, s46, {WS_FL}
    s_add_u32 s47, s46, {128*128}
    s_or_b32 s48, s33, s{sW}
    s_waitcnt lgkmcnt(0)
    s_mov_b64 s[88:89], s[70:71]
    s_mov_b64 s[24:25], s[66:67]
    s_mov_b64 s[28:29], s[68:69]
    s_cbranch_scc1 {z}
    buffer_store_dwordx4 v[16:19], v{vL16}, {SRD_WS}, s46 offen sc1
    buffer_store_dwordx4 v[16:19], v{vL16}, {SRD_WS}, s47 offen sc1
    {z}:
    buffer_load_dwordx4 v{vL16}, s[88:91], s36 offen lds
    s_add_u32 m0, s52, 1024
    s_lshl_b32 s49, s34, 2
    buffer_load_dwordx4 v8, {SRD_T}, 0 offen nt lds
    s_add_u32 m0, s52, 2048
    s_add_u32 s49, s49, 64
    """)
    for i in range(4): a(f"buffer_load_dwordx4 v9, {SRD_T}, {['0','s53','s54','s55'][i]} offen offset:{1024*i} nt lds")
    if opt.get('kbar', 1): a("s_barrier")
    for i in range(4): a(f"buffer_load_dwordx4 v[{V+4*i}:{V+4*i+3}], v{11+(i>>1)}, {SRD_T2}, 0 offen offset:{2048*(i&1)} nt")
    NX = 0
    if opt.get('sta'): stamp(c)
    if opt.get('pf_code', 2) == 1:
        NX = 1
        a(f"""
        s_lshr_b32 s37, s2, 3
        s_lshl_b32 s37, s37, 2
        s_add_u32 s37, s37, s{sW}
        v_and_b32 v6, 1, v0
        v_lshl_add_u32 v6, s37, 1, v6
        v_lshlrev_b32 v6, 7, v6
        s_getpc_b64 s[50:51]
        {c.name[:6]}_pc:
        v_min_u32 v6, {c.name}_last-{c.name[:6]}_pc, v6
        v_mov_b32 v7, s51
        v_add_co_u32 v6, vcc, s50, v6
        s_nop 1
        v_addc_co_u32 v7, vcc, 0, v7, vcc
        global_load_dword v251, v[6:7], off
        """)
    if opt.get('tlb', 0):
        NX += 1
        sh = opt['tlb']
        a(f"""
        s_lshr_b32 s37, s2, 3
        s_cmp_lt_u32 s37, 16
        s_cselect_b64 s[40:41], s[82:83], s[84:85]
        s_cselect_b32 s42, {D*F*2}, s26
        s_cmp_eq_u32 s{sW}, 1
        s_cselect_b64 s[40:41], s[78:79], s[40:41]
        s_cselect_b32 s42, {D*F*2}, s42
        s_cmp_eq_u32 s{sW}, 3
        s_cselect_b64 s[40:41], s[80:81], s[40:41]
        s_cselect_b32 s42, {D*F*2}, s42
        s_cmp_eq_u32 s{sW}, 0
        s_cselect_b64 s[40:41], s[12:13], s[40:41]
        s_cselect_b32 s42, {WS_USED}, s42
        s_cselect_b32 s38, 31, 15
        s_mov_b32 s43, 0x20000
        s_and_b32 s37, s37, s38
        s_add_u32 s38, s38, 1
        v_min_u32 v6, {(1 << (26 - sh)) - 1}, v{vLANE}
        v_mul_u32_u24 v6, s38, v6
        v_add_lshl_u32 v6, v6, s37, {sh}
        buffer_load_dword v251, v6, s[40:43], 0 offen nt
        """)
    z = c.lab("nz")
    a(f"""
    s_mov_b64 s[88:89], s[86:87]
    s_mov_b32 s90, 256
    s_cmp_lg_u32 s48, 0
    s_cbranch_scc1 {z}
    v_mov_b32 v20, 1
    s_waitcnt vmcnt({10+NX})
    s_mov_b64 exec, 1
    buffer_store_dword v20, v16, s[88:91], s49 offen sc1
    s_mov_b64 exec, -1
    {z}:
    s_lshl_b32 s41, s34, 4
    s_add_u32 s41, s41, s33
    s_lshl_b32 s42, s41, 2
    s_add_u32 s42, s42, s{sW}              ; channel d
    s_lshr_b32 s44, s42, 1
    s_lshl_b32 s44, s44, 2
    s_load_dword s45, s[74:75], s44
    s_mul_i32 s47, s{sW}, {CW}
    s_mov_b64 s[24:25], s[72:73]
    s_mov_b64 s[28:29], s[64:65]
    """)
    prolog2(c)
    if opt.get('t_x', 1):
        wt = f"""s_lshr_b32 s58, s2, 3
        s_lshl_b32 s58, s58, 1
        s_and_b32 s38, s{sW}, 1
        s_add_u32 s58, s58, s38
        s_mul_i32 s58, s58, 7168
        s_lshr_b32 s38, s{sM}, 3
        s_mul_i32 s38, s38, 1792
        s_add_u32 s58, s58, s38
        s_mov_b32 s83, s58
        v_min_u32 v6, 13, v{vLANE}
        v_lshlrev_b32 v{vPF}, 7, v6"""
    else:
        wt = f"""s_lshl_b32 s58, s2, 1
        s_and_b32 s38, s{sW}, 1
        s_add_u32 s58, s58, s38
        s_mul_i32 s58, s58, {7*128}
        v_min_u32 v6, 6, v{vLANE}
        v_lshlrev_b32 v{vPF}, 7, v6"""
    if opt.get('yflag', 1):
        yf = f"""v_lshrrev_b32 v6, 1, v{vLANE}
        v_and_b32 v7, 16, v{vL16}
        v_lshl_add_u32 v6, v6, 10, v7
        v_add_u32 v250, 64, v6
        s_lshr_b32 s85, s2, 3
        s_lshl_b32 s85, s85, 10
        s_and_b32 s37, s2, 7
        s_lshl_b32 s37, s37, 2
        s_add_u32 s85, s85, s37
        s_add_u32 s85, s85, {WS_FL + 64}"""
    else: yf = f"v_lshlrev_b32 v250, 7, v0\ns_mov_b32 s85, s{sFL}"
    t1 = opt.get('t1', 35)
    rot = "s_lshr_b32 s38, s2, 3\n"
    for k in range(7):
        rot += f"""s_and_b32 s39, s38, 15
        s_lshl_b32 s39, s39, 7
        s_add_u32 s{64+k}, s{64+k}, s39
        s_bfe_u32 s39, s38, 0x30001
        s_mul_i32 s39, s39, {112*8192}
        s_add_u32 s{76+k}, s59, s39
        s_and_b32 s39, s38, 1
        s_lshl_b32 s39, s39, 12
        s_add_u32 s{76+k}, s{76+k}, s39
        s_lshl_b32 s39, s32, {15 if k < 4 else 14 if k < 6 else 13}
        s_add_u32 s39, s39, {(k if k < 4 else 28 + k if k < 6 else 48)*8192}
        s_add_u32 s{76+k}, s{76+k}, s39
        s_add_u32 s38, s38, {opt.get('pk_rot', 1)}
        """
    a(f"""
    s_lshl_b32 s84, s42, 12
    v_lshrrev_b32 v7, 3, v{vLANE}
    v_lshlrev_b32 v7, 9, v7
    v_lshl_add_u32 v7, v4, 4, v7
    v_add_u32 v10, s52, v7
    v_lshl_add_u32 v21, v4, 6, s52
    v_mul_u32_u24 v6, 2064, v4
    v_sub_u32 v7, 31, v5
    v_lshl_add_u32 v6, v7, 3, v6
    v_add_u32 v13, {A_LDS}, v6
    v_lshrrev_b32 v7, 7, v0
    v_add_u32 v7, v7, v0
    v_lshlrev_b32 v7, 4, v7
    v_add_u32 v14, {A_LDS}, v7
    v_lshrrev_b32 v6, 4, v0
    v_and_b32 v7, 15, v0
    v_lshl_add_u32 v249, v7, 2, 64
    v_lshlrev_b32 v7, 4, v7
    v_lshl_add_u32 v15, v6, 12, v7         ; u^T store
    s_lshl_b32 s36, s34, 18
    s_sub_u32 s37, 15, s33
    s_lshl_b32 s37, s37, 8
    s_add_u32 s36, s36, s37
    s_add_u32 s36, s36, {WS_UT}
    v_lshrrev_b32 v5, 3, v{vLANE}
    v_lshl_add_u32 v6, v5, 7, v4
    v_lshlrev_b32 v6, 7, v6
    s_lshl_b32 s37, s34, 10
    v_add_u32 v{vF0}, s37, v6
    {yf}
    v_and_b32 v6, 3, v5
    v_lshlrev_b32 v7, 5, v4
    v_lshl_or_b32 v6, v6, 1, v7
    s_and_b32 s37, s2, 0x19
    v_or_b32 v6, s37, v6
    v_lshlrev_b32 v{vFL}, 7, v6
    v_lshlrev_b32 v6, 4, v5
    v_lshl_add_u32 v{vQA}, v4, 11, v6
    s_lshl_b32 s56, s{sG8}, 14
    s_lshl_b32 s38, s{sW}, 9
    s_add_u32 s56, s56, s38
    v_lshlrev_b32 v6, 4, v4
    v_lshl_add_u32 v{vY}, v5, 15, v6
    s_lshl_b32 s57, s{sW}, 19
    s_lshl_b32 s38, s41, 7
    s_add_u32 s57, s57, s38
    s_add_u32 s57, s57, {WS_Y}
    v_bfe_u32 v6, v{vLANE}, 1, 2
    v_mul_u32_u24 v6, 160, v6
    v_lshl_add_u32 v6, v5, 3, v6
    v_and_b32 v7, 1, v{vLANE}
    v_lshl_add_u32 v6, v7, 2, v6
    s_mul_i32 s37, s{sW}, 640
    v_add_u32 v{vSR}, s37, v6
    v_add_u32 v229, {2*CW}, v{vSR}
    v_min_u32 v6, 33, v{vLANE}
    v_lshlrev_b32 v6, 4, v6
    v_cmp_lt_u32 vcc, 1, v{vLANE}
    v_mov_b32 v7, {C_O-32-32}
    v_mov_b32 v5, {C_U+4096-64}
    v_cndmask_b32 v7, 0, v7, vcc
    v_cmp_lt_u32 vcc, 3, v{vLANE}
    v_add_u32 v{vE}, s47, v{vL16}
    v_and_b32 v4, 15, v{vLANE}             ; b
    v_cndmask_b32 v7, v7, v5, vcc
    v_add3_u32 v6, v6, v7, s47
    ds_write_b128 v6, v[16:19]
    v_lshrrev_b32 v5, 4, v{vLANE}          ; q
    v_add_u32 v6, 1, v4
    v_lshrrev_b32 v6, 1, v6
    v_lshl_add_u32 v6, v5, 2, v6
    v_lshlrev_b32 v6, 2, v6
    v_and_b32 v7, 1, v4
    v_xor_b32 v7, 1, v7
    v_mul_u32_u24 v7, {C_O-28}, v7
    v_add3_u32 v{vA[0]}, v6, v7, s47
    v_add_u32 v{vA[1]}, 1024, v{vA[0]}
    v_add_u32 v{vA[2]}, 2048, v{vA[0]}
    v_add_u32 v{vA[3]}, 3072, v{vA[0]}
    v_lshlrev_b32 v6, 5, v4
    v_lshlrev_b32 v7, 4, v5
    v_sub_u32 v6, v7, v6
    s_add_u32 s37, s47, {C_U + 2*(S-16) - 512*7}
    v_add_u32 v{vB}, s37, v6
    v_mul_u32_u24 v6, 160, v5
    v_lshl_add_u32 v6, v4, 3, v6
    v_add_u32 v{vSW}, s47, v6
    {wt}
    v_lshl_add_u32 v6, v5, 3, v4
    v_sub_u32 v6, 15, v6
    v_and_b32 v7, 1, v6
    v_lshlrev_b32 v7, 4, v7
    v_ashrrev_i32 v6, 1, v6
    s_and_b32 s37, s42, 1
    s_lshl_b32 s37, s37, 4
    s_waitcnt lgkmcnt(0)
    s_lshr_b32 s45, s45, s37
    s_and_b32 s45, s45, 0xffff
    v_lshlrev_b32 v7, v7, s45
    """)
    for i in range(4):
        a(f"v_cmp_eq_u32 vcc, {i}, v6\ns_nop 1\nv_cndmask_b32 v{AD+i}, 0, v7, vcc")
    amain = a; a = Asm()
    a(f"""
    s_and_b32 s37, s2, 7
    s_lshl_b32 s37, s37, 1
    s_lshr_b32 s38, s2, 7
    s_add_u32 s37, s37, s38                ; P
    s_mul_i32 s38, s37, {224*2048}
    s_lshr_b32 s59, s37, 3
    s_mul_i32 s59, s59, {56*8192}
    s_and_b32 s32, s37, 7
    s_lshl_b32 s39, s{sW}, 10
    s_add_u32 s59, s59, s39
    s_add_u32 s59, s59, {WS_WDP}
    s_and_b32 s35, s{sW}, 1
    s_lshr_b32 s37, s{sW}, 1
    s_lshl_b32 s39, s{sW}, 13
    s_add_u32 s64, s39, s38
    s_add_u32 s65, s64, {64*2048}
    s_add_u32 s66, s64, {112*2048}
    s_add_u32 s67, s64, {176*2048}
    s_lshl_b32 s39, s37, 17
    s_lshl_b32 s68, s35, 13
    s_add_u32 s39, s39, s68
    s_add_u32 s39, s39, s38
    s_add_u32 s68, s39, {32*2048}
    s_add_u32 s69, s39, {144*2048}
    s_mul_i32 s39, s37, {112*2048}
    s_lshl_b32 s70, s35, 14
    s_add_u32 s39, s39, s70
    s_add_u32 s39, s39, s38
    s_add_u32 s70, s39, {48*2048}
    {rot}
    s_lshl_b32 s71, s{sW}, 10
    s_add_u32 s71, s71, {LDS_PK}
    v_lshrrev_b32 v6, 5, v{vLANE}
    v_bfe_u32 v7, v{vLANE}, 3, 2
    v_and_b32 v216, 0x70, v{vL16}
    v_lshl_add_u32 v7, v7, 11, v216
    v_lshl_add_u32 v216, v6, 15, v7
    v_lshl_add_u32 v217, v6, 14, v7
    v_lshl_add_u32 v218, v6, 13, v7
    v_bfe_u32 v6, v{vLANE}, 2, 2
    v_lshrrev_b32 v5, 4, v{vLANE}
    v_lshl_add_u32 v6, v5, 3, v6
    v_and_b32 v7, 0x30, v{vL16}
    v_lshl_add_u32 v6, v6, 7, v7
    s_lshl_b32 s37, s37, 6
    s_lshl_b32 s35, s35, 3
    s_add_u32 s37, s37, s35
    s_add_u32 s37, s37, {LDS_PK}
    v_add_u32 v219, s37, v6
    """)
    fg1k.g1_waddr(a)
    later = a.text(); a = amain
    stamp(c, "setup")
    a(f"s_waitcnt vmcnt({9+NX})")
    for i in range(4): a(f"ds_read_b128 v[{TP+4*i}:{TP+4*i+3}], v21 offset:{16*i}")
    for ch in range(8):
        if ch % 2 == 0: a(f"s_waitcnt lgkmcnt({3-ch//2})")
        for h in range(2):
            r = TP + 2*ch + h
            a(f"v_lshlrev_b32 v{TF+(2*h)*8+ch}, 16, v{r}\nv_and_b32 v{TF+(2*h+1)*8+ch}, s{sMASK}, v{r}")
    ep = opt.get('e_pos', 3)
    eld = "s_add_u32 m0, s47, 32\ns_nop 0\n" + "".join(f"buffer_load_dwordx4 v{vL16}, {SRD_T}, s84 offen offset:{1024*i} nt lds\n" for i in range(4))
    if ep == -3: a("s_barrier")
    if ep <= -2: a(eld); NX += 4
    a(f"s_waitcnt vmcnt({4+NX})")
    if opt.get('sta'): stamp(c)
    if ep == -1: a(eld); NX += 4
    for i in range(7): a(f"ds_read_b128 v[{K+4*i}:{K+4*i+3}], v10 offset:{1024+(5+i)*128}")
    for i in range(7):
        a(f"s_waitcnt lgkmcnt({6-i})")
        unpack(a, KF+8*i, K+4*i, 4)
    for t in range(4):
        for tap in range(4):
            for p in range(4):
                d = T + 8*t + 2*p; kk = KF + 8*(t+3-tap) + 2*p; w = TF + 8*tap + 2*p
                if tap == 0: a(f"v_pk_mul_f32 v[{d}:{d+1}], v[{kk}:{kk+1}], v[{w}:{w+1}]")
                else: a(f"v_pk_fma_f32 v[{d}:{d+1}], v[{kk}:{kk+1}], v[{w}:{w+1}], v[{d}:{d+1}]")
    if opt.get('sta'): stamp(c)
    for t in range(4):
        a(f"s_waitcnt vmcnt({3-t+NX})")
        if opt.get('sta') and t == 3: stamp(c)
        if t == ep: a(eld); NX += 4
        unpack(a, KF, V+4*t, 4)
        for p in range(4):
            d = T + 8*t + 2*p
            a(f"v_pk_mul_f32 v[{d}:{d+1}], v[{d}:{d+1}], v[{KF+2*p}:{KF+2*p+1}]")
    for ch in range(8):
        a(f"v_cvt_pk_bf16_f32 v{O+2*ch}, v{T+24+ch}, v{T+16+ch}\nv_cvt_pk_bf16_f32 v{O+2*ch+1}, v{T+8+ch}, v{T+ch}")
        a(f"ds_write_b64 v13, v[{O+2*ch}:{O+2*ch+1}] offset:{256*ch}")
    a("s_waitcnt lgkmcnt(0)\ns_barrier")
    stamp(c, "A done")
    for i in range(4): a(f"ds_read_b128 v[{K+4*i}:{K+4*i+3}], v14 offset:{i*2*2064}")
    for i in range(4):
        a(f"s_waitcnt lgkmcnt({3-i})")
        a(f"buffer_store_dwordx4 v[{K+4*i}:{K+4*i+3}], v15, {SRD_WS}, s36 offen sc1")
        a(f"s_add_u32 s36, s36, {16*4096}")
    a(f"buffer_load_dword v20, v16, s[88:91], s49 offen sc1")
    wa = opt.get('wa', 'Q'); nwa = 0
    qld = [f"buffer_load_dwordx4 v[{vQ+4*i}:{vQ+4*i+3}], v{vQA}, {SRD_T2}, s56 offen offset:{128*i} nt" for i in range(4)]
    tld = f"buffer_load_dword v251, v{vPF}, {SRD_W}, s58 offen"
    if 'q' in wa:
        for l in qld: a(l)
        nwa += 4
    if 't' in wa: a(tld); nwa += 1
    if opt.get('sta'): stamp(c)
    if ep == 9: a(eld)
    else: a(f"s_waitcnt vmcnt({5+nwa})")
    if opt.get('sta'): stamp(c)
    if ep == 9:
        ok = c.lab("boot")
        signal(c, vm=4, pre=f"v_cmp_ne_u32 vcc, 0, v20\ns_cbranch_vccnz {ok}\n" + poll(c, "s[88:91]", 4, "s49", "", 1) + f"{ok}:")
        stamp(c, "sig0")
        a(later); a("s_waitcnt vmcnt(0)")
    HK = 96
    for i in range(4):
        a(f"ds_read_b128 v[{HK+4*i}:{HK+4*i+3}], v{vE} offset:{32+1024*i}\nds_read_b32 v{HK+16+i}, v{vE} offset:{28+1024*i}")
    for i in range(4):
        r = HK + 4*i; o = 160 + 4*i
        a(f"s_waitcnt lgkmcnt({6-i})")
        a(f"v_alignbit_b32 v{o}, v{r}, v{HK+16+i}, 16")
        for j in range(1, 4): a(f"v_alignbit_b32 v{o+j}, v{r+j}, v{r+j-1}, 16")
        a(f"ds_write_b128 v{vE}, v[{o}:{o+3}] offset:{C_O+1024*i}")
    def opA(j, i): return f"a[{(j*4+i)*4}:{(j*4+i)*4+3}]" if i < 4 else f"v[{fa(j&1,i)}:{fa(j&1,i)+3}]"
    def opB(j, i): return f"a[{128+(j*4+i)*4}:{128+(j*4+i)*4+3}]" if i < 4 else f"v[{fb(j&1,i)}:{fb(j&1,i)+3}]"
    def rdA(j, i):
        o = (i & 1)*128 + 16*j; p, r = ("a", (j*4+i)*4) if i < 4 else ("v", fa(j&1, i))
        return [f"ds_read2_b32 {p}[{r}:{r+1}], v{vA[i>>1]} offset0:{o} offset1:{o+1}", f"ds_read2_b32 {p}[{r+2}:{r+3}], v{vA[i>>1]} offset0:{o+2} offset1:{o+3}"]
    def rdB(j, i): return f"ds_read_b128 {opB(j, i)}, v{vB} offset:{512*(7-i)+64*j}"
    def rd2(j): return [rdB(j, i) for i in range(4, 8)] + [l for i in range(4, 8) for l in rdA(j, i)]
    ok = c.lab("boot")
    signal(c, vm=nwa, pre=f"v_cmp_ne_u32 vcc, 0, v20\ns_cbranch_vccnz {ok}\n" + poll(c, "s[88:91]", 4, "s49", "", 1) + f"{ok}:")
    stamp(c, "sig0")
    if 'Q' in wa:
        for l in qld: a(l)
    LA = [l for j in range(8) for i in range(4) for l in rdA(j, i)]
    LL = [l for l in later.split("\n") if l.strip() and not l.strip().startswith(";")]
    for k, l in enumerate(LL):
        a(l)
        if k % 2 == 0 and LA: a(LA.pop(0))
    for l in LA: a(l)
    a(f"""
    s_add_u32 s84, s84, {WS_UT}
    s_lshl_b32 s37, s{sW}, 29
    v_mov_b32 v230, s37
    v_mov_b32 v231, 2
    """)
    wait(c, vF0, "s_mov_b64 exec, 0xffff")
    stamp(c, "wait0")
    a(f"s_add_u32 m0, s47, {C_U}\ns_mov_b32 s38, 0x05040100")
    for i in (3, 2, 1, 0):
        a(f"buffer_load_dwordx4 v{vL16}, {SRD_WS}, s84 offen offset:{1024*i} sc1 lds")
    a("s_mov_b32 s39, 0x07060302\ns_waitcnt vmcnt(3)")
    a(rdB(0, 0)); a(rdB(0, 1)); a("s_waitcnt vmcnt(2)"); a(rdB(0, 2)); a(rdB(0, 3))
    for i in range(4): a(rdB(1, i))
    stamp(c, "ur")
    side = {}
    def put(pos, l): side.setdefault(pos, []).append(l)
    for i, p in enumerate(opt.get('t_pos', [100, 160, 220])):
        put(p, tld); put(p+1, f"s_add_u32 s58, s58, {64*7168}")
    p = opt.get('q_pos', 40)
    if 'q' not in wa.lower():
        for l in qld: put(p, l); p += opt.get('q_dp', 20)
    p = opt.get('pk_pos', 6)
    for k in range(7):
        put(p-1, f"s_add_u32 m0, s71, {4096*k}")
        put(p, f"buffer_load_dwordx4 v{216 if k < 4 else 217 if k < 6 else 218}, {SRD_WD}, s{64+k} offen {opt.get('pk_aux', 'nt')} lds"); p += opt.get('pk_dp', 40)
    put(251, f"buffer_load_dword v248, v249, s[88:91], 0 offen sc1")
    STG = 12992; SR, SO = FA, FB
    def stage_rd(off): return [f"ds_read_b32 v{SR+4*g+ch}, v{vSR if ch < 2 else 229} offset:{(ch&1)*CW + off + g*64}" for g in range(2) for ch in range(4)]
    def stage_st(g):
        r = SR + 4*g; o = SO + 4*g
        return [f"v_perm_b32 v{o}, v{r+1}, v{r}, s38", f"v_perm_b32 v{o+1}, v{r+3}, v{r+2}, s38", f"v_perm_b32 v{o+2}, v{r+1}, v{r}, s39", f"v_perm_b32 v{o+3}, v{r+3}, v{r+2}, s39",
                f"buffer_store_dwordx4 v[{o}:{o+3}], v{vY}, {SRD_WS}, s57 offen sc1", f"s_add_u32 s57, s57, {(8 if g == 0 else 56)*32768}"]
    hz = Hz(a); ops = []; pos = 0; nvm = [0]
    def emit(l):
        if l.startswith("buffer_") or l.startswith("global_"): nvm[0] += 1
        hz.raw(l)
    def mm(n, A, B, zero=False):
        cc = ACC + 4*n
        hz.mfma(f"{MF} v[{cc}:{cc+3}], {A}, {B}, " + ("0" if zero else f"v[{cc}:{cc+3}]"), cc)
    def out_ops(n, k, off):
        cc = ACC + 4*n
        return [(k, o_cvt(cc, cc)), (k, o_cvt(cc+1, cc+2)), (k, ('salu', f"ds_write_b64 v{vSW}, v[{cc}:{cc+1}] offset:{off + 640*(n & 3)}", [], []))]
    ADs = f"v[{AD}:{AD+3}]"
    for n in range(4):
        hz.raw(f"s_waitcnt lgkmcnt({7-n})"); mm(n, ADs, opB(0, n), True)
    for j in range(8):
        if j: hz.raw(f"s_waitcnt lgkmcnt({4 if j < 7 else 6})")
        if j == 2: hz.raw(f"s_waitcnt vmcnt({nvm[0]})")
        R = [rdB(j+2, i) for i in range(4)] if j < 6 else rd2(0)[6*(j-6):6*(j-5)]
        for k, (n, i) in enumerate([(n, i) for n in range(4) for i in range(n+1)]):
            mm(n, opA(j, i), opB(j, n-i))
            if k < len(R): hz.raw(R[k])
            for l in side.get(pos, []): emit(l)
            pos += 1
    sigj = opt.get('y_sig', 7); ys = opt.get('y_st', 2)
    if ys >= 6: sigj = 99
    for j in range(8):
        hz.raw("s_waitcnt lgkmcnt(0)" if j != sigj else f"s_waitcnt vmcnt({nvm[0] - mark}) lgkmcnt(0)")
        if j == 0:
            for n in range(4, 8): mm(n, ADs, opB(0, n), True)
            for n in range(4): ops += out_ops(n, 0, STG)
        R = rd2(j+1) if j < 7 else []
        if j == ys - 1: R = R + stage_rd(STG)
        if j == ys: R = R + stage_st(0) + stage_st(1)
        for k, (n, i) in enumerate([(n, i) for n in range(4, 8) for i in range(n+1)]):
            mm(n, opA(j, i), opB(j, n-i))
            if k == 0 and j in (1, sigj): hz.raw("s_barrier")
            if k == 1 and j == sigj: emit(f"buffer_store_dword v231, v230, {SRD_WS}, s85 offen sc1")
            if k < len(R):
                emit(R[k])
                if R[k].startswith("buffer_store"): mark = nvm[0]
            for l in side.get(pos, []): emit(l)
            if j == 7 and n == i: ops += out_ops(n, k, 0)
            if j in (0, 7): fill(hz, ops, k, 1 if k < len(R) else 2)
            pos += 1
        if j == 0: assert not ops
    stamp(c, "conv")
    for _, o in ops: hz.op(o)
    a(f"s_add_u32 s{sPH}, s{sPH}, 1\ns_waitcnt lgkmcnt(0)\ns_barrier")
    for l in stage_rd(0): a(l)
    for g in range(2):
        a(f"s_waitcnt lgkmcnt({4-4*g})")
        for l in stage_st(g): a(l)
    stamp(c, "y out")

TOUCH2 = f"buffer_load_dword v251, v224, {SRD_W}, s58 offen\ns_add_u32 s58, s58, {64*7168}"
PKR = [192, 196, 200, 204, 208, 212, 220]
def repack_store(k): return f"buffer_store_dwordx4 v[{PKR[k]}:{PKR[k]+3}], v{vL16}, {SRD_WS}, s{76+k} offen sc1"
def repack(c, n):
    a = c.a
    for k in range(7):
        r = PKR[k]
        a(f"ds_read_b64_tr_b16 v[{r}:{r+1}], v219 offset:{4096*k}\nds_read_b64_tr_b16 v[{r+2}:{r+3}], v219 offset:{4096*k+512}")
    for k in range(n):
        a(f"s_waitcnt lgkmcnt({12-2*k})"); a(repack_store(k))
```

```python
from fcore import *
import fg2p
ACC1 = 32
def g1_acc(t, j): return ACC1 + (t*7 + j)*4
def g1_xf(k, t): return 112 + (t*2 + k)*4
def g1_wf(slot, j): return slot*28 + j*4
aPK = 176; LDS_PK = LDS_RED + 1024
g1_vXA = [8, 9]; g1_vWA = [[10,11,12,13],[14,15,16,17]]; g1_vDW = [19,20,21,22]; g1_vPF = [18, 23]
def g1_dx(slot):
    return [f"s_add_u32 m0, s42, {slot*STAGE}"] + [f"buffer_load_dwordx4 v{vL16}, {SRD_WS}, s40 offen offset:{1024*i} {LY.sc} lds" for i in range(4)] + ["s_add_u32 s40, s40, 16384"]
def g1_dw(slot):
    return [f"s_add_u32 m0, s43, {slot*STAGE}"] + [f"buffer_load_dwordx4 v{g1_vDW[i]}, {SRD_W}, s41 offen offset:{1024*i} lds" for i in range(4)] + [f"s_add_u32 s41, s41, {32*7168}"]
def g1_rw(slot):
    h = slot >> 1; so = (slot & 1)*STAGE; W = []
    for j in range(7):
        va = g1_vWA[h][j % 3] if j < 6 else g1_vWA[h][3]
        off = so + (UOFF if 3 <= j < 6 else 0); r = g1_wf(slot, j)
        W.append(f"ds_read_b64_tr_b16 a[{r}:{r+1}], v{va} offset:{off}")
        W.append(f"ds_read_b64_tr_b16 a[{r+2}:{r+3}], v{va} offset:{off+1024}")
    return W
def g1_rx(h, t):
    return [f"ds_read_b128 a[{g1_xf(k,t)}:{g1_xf(k,t)+3}], v{g1_vXA[h]} offset:{k*STAGE+t*1024}" for k in range(2)]
def w_stage(a, slot):
    o = g1_dw(slot); a(o[0]); a("s_nop 0")
    for l in o[1:]: a(l)

def g1_waddr(a):
    vDW = g1_vDW
    a(f"""
    s_and_b32 s44, s{sW}, 1
    s_lshr_b32 s45, s{sW}, 1
    s_and_b32 s46, s{sM}, 1
    s_mul_i32 s41, s44, {16*7168}
    s_mul_i32 s33, s{sM}, 224
    s_add_u32 s41, s41, s33
    s_lshl_b32 s33, s46, 5
    s_sub_u32 s41, s41, s33
    s_mul_i32 s43, s45, {UOFF}
    s_lshl_b32 s33, s44, 12
    s_add_u32 s43, s43, s33
    s_add_u32 s43, s43, 16384
    v_lshrrev_b32 v1, 4, v{vLANE}          ; q
    v_bfe_u32 v4, v{vLANE}, 1, 3
    v_xor_b32 v4, v4, v1
    v_and_b32 v5, 1, v{vLANE}
    v_lshlrev_b32 v5, 4, v5
    v_mul_u32_u24 v6, 7168, v1
    v_add_u32 v6, v6, v5
    v_lshl_add_u32 v{vDW[0]}, v4, 5, v6
    v_xor_b32 v4, 4, v4
    v_lshl_add_u32 v{vDW[2]}, v4, 5, v6
    v_add_u32 v{vDW[1]}, {4*7168-1024}, v{vDW[0]}
    v_add_u32 v{vDW[3]}, {3*(4*7168-1024)}, v{vDW[2]}
    v_add_u32 v{vDW[2]}, {2*(4*7168-1024)}, v{vDW[2]}
    """)

def g1_pre(c):
    a = c.a; vDW = g1_vDW; vWA = g1_vWA; vXA = g1_vXA
    a(f"v_lshrrev_b32 v1, 4, v{vLANE}")
    a(f"""
    s_lshl_b32 s42, s{sW}, 12
    s_lshl_b32 s40, s{sTB}, 19
    s_add_u32 s40, s40, s42
    s_add_u32 s40, s40, s{sLB}
    s_lshl_b32 s33, s45, 13
    v_add_u32 v{vXA[0]}, s33, v{vL16}
    v_add_u32 v{vXA[1]}, {2*STAGE}, v{vXA[0]}
    v_bfe_u32 v4, v{vLANE}, 2, 2           ; r4
    v_and_b32 v5, 1, v1
    v_lshl_or_b32 v5, v5, 2, v4            ; sigma
    v_lshl_add_u32 v6, v1, 3, v4
    v_lshlrev_b32 v6, 8, v6
    v_add_u32 v6, 16384, v6
    v_and_b32 v7, 3, v{vLANE}
    v_lshl_add_u32 v1, v7, 3, v6
    s_lshl_b32 s33, s44, 2
    s_add_u32 s33, s33, s46
    """)
    for p in range(3):
        a(f"s_add_u32 s34, s33, {p}\nv_xor_b32 v4, s34, v5\nv_lshl_add_u32 v{vWA[0][p]}, v4, 5, v1")
    a(f"""
    s_add_u32 s34, s46, 3
    v_xor_b32 v4, s34, v5
    v_lshl_add_u32 v6, v4, 5, v6
    v_and_b32 v4, 1, v7
    v_lshl_add_u32 v6, v4, 3, v6
    v_lshrrev_b32 v4, 1, v7
    v_mul_u32_u24 v4, {UOFF}, v4
    s_lshl_b32 s34, s44, 4
    v_add3_u32 v{vWA[0][3]}, v6, v4, s34
    """)
    for p in range(4): a(f"v_add_u32 v{vWA[1][p]}, {2*STAGE}, v{vWA[0][p]}")
    d = c.opt.get('pf_dist', 2)
    who = c.opt.get('pf_who', 1)
    a(f"s_sub_u32 s34, s{sLAY}, 1")
    if who:
        a(f"""
        s_add_u32 s35, s{sM}, 1
        s_bfe_u32 s35, s35, 0x10001
        s_sub_u32 s35, s35, 1
        s_and_b32 s34, s34, s35
        s_bfe_u32 s36, s2, 0x20003
        s_bfe_u32 s35, s2, 0x20006
        s_lshl_b32 s35, s35, 2
        s_add_u32 s36, s36, s35
        """)
    else: a("s_lshr_b32 s36, s2, 3")
    a(f"""
    s_lshl_b32 s33, s36, 1
    s_add_u32 s33, s33, s44
    s_lshl_b32 s33, s33, 1
    s_and_b32 s35, s2, 1
    s_add_u32 s33, s33, s35
    s_mul_i32 s33, s33, {7168 << who}
    s_lshr_b32 s35, s{sM}, 3
    s_mul_i32 s35, s35, 1792
    s_add_u32 s33, s33, s35
    s_add_u32 s33, s33, {320*7168}
    v_lshlrev_b32 v4, 7, v{vLANE}
    v_cmp_lt_u32 vcc, 13, v{vLANE}
    v_add_u32 v5, s33, v4
    v_add_u32 v6, {7168-14*128}, v5
    v_cndmask_b32 v5, v5, v6, vcc
    s_and_b32 s33, s34, {14 << who}
    v_cmp_gt_u32 vcc, s33, v{vLANE}
    v_bfrev_b32 v6, 1
    s_nop 0
    v_cndmask_b32 v{g1_vPF[0]}, v6, v5, vcc
    """)

def g1_main(c):
    a = c.a; acc = g1_acc
    w2 = c.opt.get('w2_sx', 1)
    if w2: w_stage(a, 0); w_stage(a, 1)
    else:
        for l in g1_rw(0) + g1_rw(1): a(l)
    a(f"""
    s_lshl_b32 s59, s{sTB}, 3
    s_lshl_b32 s33, s45, 2
    s_add_u32 s59, s59, s33
    s_mul_i32 s59, s59, 229376
    s_lshr_b32 s33, s{sM}, 4
    s_mul_i32 s33, s33, {56*2048}
    s_add_u32 s59, s59, s33
    s_add_u32 s59, s59, s{sLB}
    s_add_u32 s59, s59, {L_H}
    s_lshl_b32 s34, s46, 1
    s_add_u32 s34, s34, s44                ; wv
    s_mov_b32 s53, s59
    s_mov_b32 s52, s59
    s_and_b32 s36, s{sM}, 15
    s_lshl_b32 s33, s36, 1
    s_add_u32 s33, s33, s44
    s_lshl_b32 s33, s33, 11
    v_add_u32 v24, s33, v{vL16}
    v_and_b32 v4, 15, v{vLANE}
    v_lshlrev_b32 v4, 4, v4
    v_lshrrev_b32 v5, 5, v{vLANE}
    v_lshl_add_u32 v4, v5, 10, v4
    v_bfe_u32 v5, v{vLANE}, 4, 1
    s_add_u32 s33, s36, 32
    s_lshl_b32 s33, s33, 11
    s_lshl_b32 s35, s44, 9
    s_add_u32 s33, s33, s35
    v_lshl_add_u32 v25, v5, 8, v4
    v_add_u32 v25, s33, v25
    s_lshl_b32 s33, s34, 8
    s_lshr_b32 s36, s36, 1
    s_lshl_b32 s36, s36, 11
    s_add_u32 s33, s33, s36
    s_add_u32 s33, s33, {48*2048}
    v_mul_u32_u24 v5, 229376, v5
    v_add3_u32 v26, v4, v5, s33
    """)
    a(f"""
    s_lshr_b32 s33, s{sM}, 4
    s_lshl_b32 s33, s33, 2
    s_add_u32 s33, s33, s{sW}
    s_lshl_b32 s34, s{sM}, 1
    s_add_u32 s34, s34, 10
    v_and_b32 v5, 7, v{vLANE}
    v_add_u32 v5, s34, v5
    v_and_b32 v5, 15, v5
    v_bfe_u32 v7, v{vLANE}, 3, 1
    v_lshl_add_u32 v5, v7, 4, v5
    v_lshl_add_u32 v5, v5, 3, s33
    v_lshlrev_b32 v23, 7, v5
    s_mov_b32 s47, 6
    """)
    ct = c.opt.get('ct', 4)
    if ct: a(code_touch(c, None, 28))
    l2n = c.opt.get('l2n', 0); l2w = c.opt.get('l2w', 32)
    if l2n:
        a(f"""
        s_and_b32 s33, s{sM}, 7
        s_lshl_b32 s33, s33, 1
        s_lshr_b32 s34, s{sM}, 4
        s_add_u32 s33, s33, s34
        s_mul_i32 s33, s33, {56*8192}
        s_and_b32 s34, s{sTB}, 3
        s_lshl_b32 s34, s34, 2
        s_add_u32 s34, s34, s{sW}
        s_mul_i32 s34, s34, {l2w*128}
        s_add_u32 s33, s33, s34
        s_add_u32 s48, s33, {fg2p.WS_WDP + 65536 - (6-l2n)*l2w*2048}
        v_min_u32 v1, {l2w-1}, v{vLANE}
        v_lshlrev_b32 v1, 7, v1
        s_mov_b64 s[24:25], s[12:13]
        """)
    fast = c.opt.get('fast', 1) and w2
    if fast:
        a(f"""
        s_lshl_b32 s33, s45, 13
        s_mul_i32 s34, s44, {STAGE}
        s_add_u32 s34, s34, s33
        s_lshl_b32 s35, s44, 14
        s_add_u32 s33, s33, s35
        s_sub_u32 s35, s40, s42
        s_add_u32 s33, s33, s35
        s_add_u32 s35, s33, 4096
        s_add_u32 s40, s40, 32768
        """)
    wait(c, vFL, M_ALL)
    stamp(c, "waitX")
    if fast:
        for h in range(2):
            a(f"s_add_u32 m0, s34, {4096*h}\ns_nop 0")
            for i in range(4): a(f"buffer_load_dwordx4 v{vL16}, {SRD_WS}, s{33+2*h} offen offset:{1024*i} {LY.sc} lds")
        a(g1_dx(2)[0])
        a("s_waitcnt vmcnt(6)\ns_barrier")
        for t in range(2):
            for l in g1_rx(0, t): a(l)
    else:
        for slot in range(4):
            o = g1_dx(slot); a(o[0]); a("s_nop 0")
            for l in o[1:]: a(l)
        a("s_waitcnt vmcnt(8)\ns_barrier")
        for t in range(8):
            for l in g1_rx(0, t): a(l)
    stamp(c, "g1 go")
    kin = c.opt.get('g1_kin', 1)
    def mseq(jo):
        out = []
        for t in range(8):
            js = jo if t % 2 == 0 else jo[::-1]
            if kin: out += [(t, j, k) for i, j in enumerate(js) for k in ((0, 1) if i % 2 == 0 or kin == 2 else (1, 0))]
            else: out += [(t, j, 0) for j in js] + [(t, j, 1) for j in js[::-1]]
        return out
    sch = c.opt.get('g1_sch', 0)
    def sstep(s, loop, gx=(), first=False, sh=0):
        gaps = [[] for _ in range(112)]
        BA, BB = c.opt.get('ba', 7), 63
        if first and fast:
            for h in range(2):
                o = g1_dx(2 + h)
                if h or c.ts: gaps[max(16*h-1, 0)].append(o[0])
                for i in range(4): gaps[16*h + 4*i + 1].append(o[1+i])
                gaps[16*h+14].append(o[5])
            gaps[12].append("s_waitcnt vmcnt(3) lgkmcnt(0)"); gaps[12].append("s_barrier")
            for t in range(2, 8):
                r = g1_rx(0, t); gaps[9+2*t].append(r[0]); gaps[10+2*t].append(r[1])
            gaps[27].append("s_waitcnt lgkmcnt(10)")
            gaps[33].append("s_waitcnt lgkmcnt(0)"); gaps[33].append("s_barrier")
            for k, l in enumerate(g1_rw(2) + g1_rw(3)): gaps[[2,3,4,6,7,8][k] if k < 6 else 28 + k].append(l)
        else:
            gaps[BA-1].append(f"s_waitcnt vmcnt({17 + (l2n > 0) if loop else 0}) lgkmcnt(0)"); gaps[BA].append("s_barrier")
            for k, l in enumerate(g1_rw(2*(s^1)) + g1_rw(2*(s^1)+1)): gaps[BA + 1 + (-sh) % 3 + ((k*3)//2 if sch == 0 else k)].append(l)
        for t in range(8):
            g = max(BB + 2 + 3*t if sch == 0 else BB + 1 + 2*t, 14*t + 13)
            r = g1_rx(s ^ 1, t)
            if t == 7: gaps[110].append(r[c.lastk ^ 1]); gaps[111].append(r[c.lastk])
            else: gaps[g].append(r[0]); gaps[g+1].append(r[1])
        if loop:
            gaps[BB-1].append(f"s_waitcnt vmcnt({(7 if fast else 8 if w2 else 13) if first else 16 + (l2n > 0) if s else 17}) lgkmcnt(0)"); gaps[BB].append("s_barrier")
            px = [[16,22,28,34,40,46,52,58], [37,40,43,46,49,52,55,58], [37,40,43,46,49,52,55,58]][sch]
            pw = [c.opt.get('pw', [67,72,77,82,87,92,97,102]), [75,78,81,86,89,92,95,100], [75,79,86,90,94,100,104,108]][sch]
            px = [p - sh for p in px]; pw = [p + sh for p in pw]
            if first and fast: px = [35, 39, 43, 47, 51, 55, 59, 64]; pw = [69, 74, 79, 85, 90, 95, 100, 105]
            if first and not w2:
                px = [44, 48, 52, 56, 60, 66, 70, 74]; pw = [79, 83, 87, 91, 95, 99, 103, 107]
                for h in range(2):
                    o = g1_dw(h); p = [10 + 16*h + 4*i for i in range(4)]
                    gaps[p[0]-1].append(o[0])
                    for i in range(4): gaps[p[i]].append(o[1+i])
                    gaps[p[3]+1].append(o[5])
            for h in range(2):
                for o, p in ((g1_dx(2*s + h), px[4*h:]), (g1_dw(2*(s^1) + h), pw[4*h:])):
                    gaps[p[0]-1].append(o[0])
                    for i in range(4): gaps[p[i]].append(o[1+i])
                    gaps[p[3]+1].append(o[5])
        for g, l in gx: gaps[g].append(l)
        ab = c.opt.get('abl', '')
        if loop and not first:
            def keep(l):
                if 'b' in ab and l == "s_barrier": return False
                if 'x' in ab and "s40 offen" in l: return False
                if 'w' in ab and "s41 offen" in l: return False
                if 'p' in ab and "v27" in l: return False
                if 'r' in ab and "ds_read" in l: return False
                if 's' in ab and l.startswith("s_add_u32"): return False
                if 'c' in ab and l.startswith("s_waitcnt"): return False
                return True
            gaps = [[l for l in g if keep(l)] for g in gaps]
        a(f"s_waitcnt lgkmcnt({14 if first and not fast else 2})")
        seen = set()
        for n, (t, j, k) in enumerate(mseq(list(range(7)))):
            cc = acc(t, j); w = g1_wf(2*s + k, j); x = g1_xf(k, t)
            src = "0" if first and cc not in seen else f"v[{cc}:{cc+3}]"
            seen.add(cc)
            a(f"{MF} v[{cc}:{cc+3}], a[{w}:{w+3}], a[{x}:{x+3}], {src}")
            for l in gaps[n]: a(l)
    c.lastk = mseq(list(range(7)))[-1][2]
    sstep(0, True, [(109, "s_mov_b64 s[24:25], s[12:13]")], first=True)
    o = c.lab("g1c"); b = c.lab("g1d")
    c.ool.append(f"{o}:\n" + poll(c, SRD_WS, 23, f"s{sFB}", "", 4) + f"s_branch {b}")
    chk = [(0, "v_cmp_gt_u32 vcc, 4, v7"), (5, f"s_cbranch_vccnz {o}\n{b}:")]
    shifts = c.opt.get('stag', [0, 3, 0, 3])
    cps = sorted(set(shifts)); mids = {x: c.lab("g1m") for x in cps}; done = c.lab("g1z")
    for w in range(3):
        if shifts[w] != shifts[3]: a(f"s_cmp_eq_u32 s{sW}, {w}\ns_cbranch_scc1 {mids[shifts[w]]}")
    a(f"s_branch {mids[shifts[3]]}")
    for x in cps:
        lp = c.lab("g1l"); pg = 105 + x
        a(f"{lp}:")
        sstep(0, True, [(2, "s_sub_u32 s47, s47, 1"), (3, "s_cmp_eq_u32 s47, 0\ns_cselect_b32 s26, s14, 0"),
                        (10, f"buffer_load_dword v7, v23, {SRD_T}, s{sFB} offen sc1")], sh=x)
        a(f"{mids[x]}:")
        sstep(1, True, [(3, "s_cmp_eq_u32 s47, 0\ns_cselect_b32 s10, 0, s10"),
                        (pg, f"buffer_load_dword v27, v{g1_vPF[0]}, {SRD_W}, 0 offen"), (pg+1, f"v_add_u32 v{g1_vPF[0]}, {128*7168}, v{g1_vPF[0]}"),
                        (110, "s_cmp_lg_u32 s47, 0")], sh=x)
        a(f"s_cbranch_scc1 {lp}")
        if x != cps[-1]: a(f"s_branch {done}")
    a(f"{done}:")
    def pk_ld(n, g0, ds):
        o = fg2p.g2_ldw(c, n)
        return [(g0, o[0])] + [(g0+1+ds*i, o[1+i]) for i in range(4)] + [(g0+2+ds*3, o[5])]
    gx = [(0, f"s_mov_b32 s10, {D*F*2}")]
    if ct & 4: gx.append((10, "global_load_dword v27, v[28:29], off"))
    for k, l in enumerate(fg2p.g2_pre1(c)): gx.append((1 + k//2, l))
    if not l2n: gx += chk
    if c.opt.get('g2_pre', 0):
        for n in range(4): gx += pk_ld(n, 12 + 20*n, 5)
        o = fg2p.g2_ldlast(c)
        gx += [(91, o[0]), (92, o[1])] + [(93 + 5*i, o[2+i]) for i in range(4)]
    else:
        for n in range(4): gx += pk_ld(n, 15 + 24*n, 6)
    if c.opt.get('st14'): stamp(c)
    sstep(0, False, gx)
    stamp(c, "g1 loop")
    hz = Hz(a)
    ops = []
    st = "sc1"; early = c.opt.get('early', 1)
    if early: seq = [(t, j) for t in range(8) for j in (0, 3, 1, 4)] + [(t, j) for t in range(8) for j in (2, 5, 6)]
    else: seq = [(t, j) for t in range(8) for j in (0, 3, 1, 4, 2, 5, 6)]
    rd = {tj: 2*i + 1 for i, tj in enumerate(seq)}
    for t in range(8):
        g0, g1_ = acc(t,0), acc(t,1); d = acc(t, 3)
        for r in range(4): ops.append((rd[t,3], o_mul(g0+r, g0+r, acc(t,3)+r)))
        ops += [(rd[t,3], o_cvt(d, g0)), (rd[t,3], o_cvt(d+1, g0+2))]
        for r in range(4): ops.append((rd[t,4], o_mul(g1_+r, g1_+r, acc(t,4)+r)))
        ops += [(rd[t,4], o_cvt(d+2, g1_)), (rd[t,4], o_cvt(d+3, g1_+2))]
        ops.append((rd[t,4], o_st(f"buffer_store_dwordx4 v[{d}:{d+3}], v24, {SRD_WS}, s59 offen offset:{(t&1)*1024} {st}", d)))
        if t & 1: ops.append((rd[t,4], o_s("s_add_u32 s59, s59, 229376")))
        g2 = acc(t, 2)
        for r in range(4): ops.append((rd[t,5], o_mul(g2+r, g2+r, acc(t,5)+r)))
        b = acc(t & ~1, 5) + 2*(t & 1)
        ops += [(rd[t,5], o_cvt(b, g2)), (rd[t,5], o_cvt(b+1, g2+2))]
        if t & 1:
            b = acc(t & ~1, 5); o0, o1 = acc(t-1, 6), acc(t, 6)
            ops += [(rd[t,5], o_sw(32, b, b+2)), (rd[t,5], o_sw(32, b+1, b+3))]
            ops.append((rd[t,5], o_st(f"buffer_store_dwordx4 v[{b}:{b+3}], v25, {SRD_WS}, s53 offen {st}", b)))
            for r in range(4): ops.append((rd[t,6], o_sw(32, o0+r, o1+r)))
            for r in range(4): ops.append((rd[t,6], o_mul(o0+r, o0+r, o1+r)))
            od = acc(t & ~3, 2) + ((t >> 1) & 1)*2
            ops += [(rd[t,6], o_cvt(od, o0)), (rd[t,6], o_cvt(od+1, o0+2))]
            if t & 3 == 3:
                od = acc(t & ~3, 2)
                ops += [(rd[t,6], o_sw(16, od, od+2)), (rd[t,6], o_sw(16, od+1, od+3))]
                ops.append((rd[t,6], o_st(f"buffer_store_dwordx4 v[{od}:{od+3}], v26, {SRD_WS}, s52 offen {st}", od)))
                ops.append((rd[t,6], o_s("s_add_u32 s52, s52, 458752")))
            ops.append((rd[t,5], o_s("s_add_u32 s53, s53, 229376")))
    ops.sort(key=lambda o: o[0])
    hold = c.opt.get('hold', 5)
    hz.raw("s_waitcnt lgkmcnt(2)")
    n = 0; held = []
    for i, (t, j) in enumerate(seq):
        if i == 6: hz.raw("s_waitcnt lgkmcnt(0)")
        for k in ((0, 1) if i % 2 == 0 else (1, 0)):
            cc = acc(t, j); w = g1_wf(2 + k, j); x = g1_xf(k, t)
            hz.mfma(f"{MF} v[{cc}:{cc+3}], a[{w}:{w+3}], a[{x}:{x+3}], v[{cc}:{cc+3}]", cc)
            late = lambda o: hold and o[1][0] in ('store', 'salu') and o[0] >= 64 + 6*(8-hold)
            fill(hz, ops, n, 2, late)
            while ops and ops[0][0] <= n and late(ops[0]): held.append(ops.pop(0))
            n += 1
    ops = held + ops
    stamp(c, "g1 mm")
    if early:
        left = sum(o[1][0] == 'store' for o in ops)
        signal(c, vm=6 - left); hz.n += 6
        stamp(c, "sigH")
        for _, o in ops: hz.op(o)
        stamp(c)
    else:
        for _, o in ops: hz.op(o)
        stamp(c)
        signal(c)
        stamp(c, "sigH")
```

```python
from fcore import *
G2_ACC, G2_H, G2_W, G2_RX, G2_RES = 32, 96, 160, 160, 224
g2_vRA = 8; g2_vH = [17, 18]; g2_vO = 24
WS_WDP = 74*MB
def g2_acc(t, ct): return G2_ACC + (t*8 + ct)*4
def g2_h(n, k, t): return G2_H + ((n*2 + k)*2 + t)*4
def g2_w(k, ct): return G2_W + (ct*2 + k)*4
def wsrc(c): return SRD_T2
LDS_PK = LDS_RED + 1024
def g2_ldw(c, n):
    return [f"s_add_u32 m0, s54, {n*16384}"] + [f"buffer_load_dwordx4 v{vL16}, {wsrc(c)}, s40 offen offset:{1024*i} {LY.sc} lds" for i in range(4)] + ["s_add_u32 s40, s40, 16384"]
def g2_ldh(n):
    return [f"buffer_load_dwordx4 v[{g2_h(n,k,t)}:{g2_h(n,k,t)+3}], v{g2_vH[t]}, {SRD_WS}, s55 offen offset:{k*2048} {LY.sc}" for k in range(2) for t in range(2)] + ["s_add_u32 s55, s55, 4096"]
def g2_rd(n, k, ct):
    r = g2_w(k, ct)
    return f"ds_read_b128 v[{r}:{r+3}], v{g2_vRA} offset:{n*16384 + k*8192 + ct*1024}"

def g2_ldlast(c):
    return [f"s_add_u32 m0, s54, {LDS_PK}", f"s_add_u32 s35, s40, {23*16384}"] + [f"buffer_load_dwordx4 v{vL16}, {wsrc(c)}, s35 offen offset:{1024*i} {LY.sc} lds" for i in range(4)]
def g2_pre1(c):
    a = Asm()
    a(f"""
    s_lshr_b32 s57, s{sM}, 4                 ; kh
    s_lshl_b32 s54, s{sW}, 12                ; m0 base = w*4096
    s_and_b32 s35, s{sM}, 7
    s_lshl_b32 s35, s35, 1
    s_add_u32 s35, s35, s57
    s_mul_i32 s40, s35, {56*8192}
    s_add_u32 s40, s40, s54
    s_add_u32 s40, s40, {WS_WDP}
    s_mov_b64 s[28:29], s[12:13]
    s_mov_b32 s30, s14
    """)
    return [l.strip() for l in a.lines]

def g2_pre(c):
    a = c.a
    a(f"""
    s_xor_b32 s54, s54, 0x10000
    v_mov_b32 v{g2_vRA}, v{vL16}
    v_add_u32 v12, {LDS_PK}, v{vL16}
    s_lshl_b32 s58, s{sTB}, 3
    s_bfe_u32 s35, s{sM}, 0x10003
    s_lshl_b32 s35, s35, 2
    s_add_u32 s58, s58, s35
    s_add_u32 s58, s58, s{sW}
    s_mul_i32 s55, s58, 229376
    s_mul_i32 s36, s57, {56*2048}
    s_add_u32 s55, s55, s36
    s_add_u32 s55, s55, s{sLB}
    s_add_u32 s55, s55, {L_H}
    s_lshl_b32 s35, s57, 10
    v_add_u32 v{g2_vH[0]}, s35, v{vL16}
    v_xor_b32 v{g2_vH[1]}, 1024, v{g2_vH[0]}
    """)

def g2_main(c):
    a = c.a
    for ct in range(8):
        for k in range(2): a(g2_rd(0, k, ct))
    for i in range(32): a(f"v_mov_b64 v[{G2_ACC+2*i}:{G2_ACC+2*i+1}], 0")
    a(f"""
    s_lshl_b32 s39, s58, 1
    s_add_u32 s39, s39, s57
    s_lshl_b32 s39, s39, 15
    s_and_b32 s35, s{sM}, 7
    v_and_b32 v6, 15, v{vLANE}
    v_and_b32 v7, 48, v{vLANE}
    v_lshl_add_u32 v{g2_vO}, v6, 11, v7
    s_lshl_b32 s36, s35, 12
    s_add_u32 s36, s36, s39
    s_lshl_b32 s35, s35, 8
    s_add_u32 s39, s39, s35
    s_lshl_b32 s35, s{sLAY}, 31
    v_or_b32 v26, s35, v{vL16}
    v_xor_b32 v27, 0x80000000, v26
    s_lshl_b32 s33, s{sTB}, 19
    s_and_b32 s35, s{sM}, 7
    s_lshl_b32 s35, s35, 16
    s_add_u32 s33, s33, s35
    s_bfe_u32 s35, s39, 0x4000f
    s_lshl_b32 s35, s35, 10
    s_add_u32 s33, s33, s35
    s_add_u32 s33, s33, {LY.L1}
    s_lshr_b32 s38, s39, 15
    s_lshl_b32 s38, s38, 8
    s_add_u32 s38, s38, {LY.XR}
    v_lshlrev_b32 v7, 4, v6
    v_and_b32 v7, 0x80, v7
    v_lshl_add_u32 v25, v6, 3, v7
    v_and_b32 v7, 0x80000000, v27
    v_or_b32 v25, v25, v7
    s_add_u32 s34, s36, {LY.EX}
    s_lshl_b32 s35, s57, 22
    s_add_u32 s35, s35, {LY.P}
    s_cmp_eq_u32 s{sLAY}, 0
    s_cselect_b32 s35, s35, {LY.EX}
    s_xor_b32 s37, s36, 0x8000
    s_add_u32 s36, s36, s35
    s_add_u32 s37, s37, s35
    """)
    a(f"""
    v_and_b32 v4, 7, v{vLANE}
    v_bfe_u32 v5, v{vLANE}, 3, 1
    v_lshlrev_b32 v4, 5, v4
    v_lshl_or_b32 v4, v5, 1, v4
    s_and_b32 s35, s2, 0x1d
    v_or_b32 v4, s35, v4
    v_lshlrev_b32 v9, 7, v4
    """)
    l = c.lab("wt")
    a(f"s_cmp_lg_u32 s{sW}, 0\ns_cbranch_scc1 {l}")
    a(poll(c, SRD_WS, vFL, f"s{sFB}", M_KH, f"s{sPH}"))
    a(f"{l}:")
    a("s_waitcnt vmcnt(0)\ns_barrier")
    stamp(c, "waitH")
    for n in range(3):
        for l in g2_ldh(n): a(l)
    l = c.lab("sg")
    a(f"""
    s_add_u32 s{sPH}, s{sPH}, 1
    v_mov_b32 v4, 0
    v_mov_b32 v5, s{sPH}
    s_cmp_lg_u32 s{sW}, 0
    s_waitcnt vmcnt(8)
    {"s_branch" if 's' in c.opt.get('y', '') else "s_cbranch_scc1"} {l}
    s_mov_b64 exec, 1
    buffer_store_dword v5, v4, {SRD_WS}, s{sFL} offen sc1
    s_mov_b64 exec, -1
    {l}:
    """)
    stamp(c, "g2 go")
    M = [(ct, k) for ct in range(8) for k in range(4)]
    pre = c.opt.get('g2_pre', 0)
    def mrd(i):
        ct, k = M[i]
        if pre and k >= 2: return f"ds_read_b128 a[{4*i}:{4*i+3}], v12 offset:{(k-2)*8192 + ct*1024}"
        return f"ds_read_b128 a[{4*i}:{4*i+3}], v{g2_vRA} offset:{32768 + k*8192 + ct*1024}"
    kin = c.opt.get('g2_kin', 1)
    def sstep(n, ldh, ldw, vm, extra=(), merge=False, sh=0):
        gaps = [[] for _ in range(32)]
        if n == 3: gaps[1].append(f"v_xor_b32 v{g2_vRA}, 0x10000, v{g2_vRA}")
        for ct in range(8):
            if merge: r = [mrd(2*ct), mrd(2*ct+1)]
            else: r = [g2_rd((n+1) % 4, 1 if kin else 0, ct), g2_rd((n+1) % 4, 0 if kin else 1, ct)]
            gaps[4*ct+2].append(r[0]); gaps[4*ct+3].append(r[1])
        if ldh:
            o = g2_ldh((n+3) % 4)
            for i in range(4): gaps[1+4*i+sh].append(o[i])
            gaps[14+sh].append(o[4])
        if ldw:
            o = g2_ldw(c, n)
            gaps[16].append(o[0])
            for i in range(4): gaps[17+4*i+sh].append(o[1+i])
            gaps[min(30+sh, 31)].append(o[5])
        for g, l in extra: gaps[g].append(l)
        for g in (7, 15, 23): gaps[g].append("s_waitcnt lgkmcnt(12)")
        a(f"s_waitcnt vmcnt({vm}) lgkmcnt(12)")
        for g in range(32):
            ct = g >> 2
            t, k = [(0,0),(0,1),(1,1),(1,0)][g & 3] if kin else [(0,0),(1,0),(1,1),(0,1)][g & 3]
            if ct & 1: t ^= 1
            cc = g2_acc(t, ct)
            a(f"{MF} v[{cc}:{cc+3}], v[{g2_w(k,ct)}:{g2_w(k,ct)+3}], v[{g2_h(n,k,t)}:{g2_h(n,k,t)+3}], v[{cc}:{cc+3}]")
            if g == 0: a("s_barrier")
            for l in gaps[g]: a(l)
    a(f"s_mov_b32 s56, 6\ns_mov_b32 s41, 1\ns_lshl_b32 s42, s{sW}, 3\ns_add_u32 s42, s42, 3\nv_mov_b32 v7, 0\ns_mov_b64 s[24:25], s[12:13]")
    st2 = c.opt.get('stag2', 0); done = c.lab("g2z"); loops = [c.lab("g2loop"), c.lab("g2loop")]
    if st2: a(f"s_bitcmp1_b32 s{sW}, 0\ns_cbranch_scc1 {loops[1]}")
    for cp in range(2 if st2 else 1):
        sh = st2*cp; loop = loops[cp]
        a(f"{loop}:")
        o = c.lab("g2f"); b = c.lab("g2b")
        c.ool.append(f"{o}:\ns_cmp_eq_u32 s56, 6\ns_waitcnt vmcnt(12)\ns_cbranch_scc1 {b}\n" + poll(c, SRD_WS, 9, f"s{sFB}", "", f"s{sPH}") + f"s_branch {b}")
        sstep(0, True, True, 16, [(24, "v_cmp_gt_u32 vcc, s41, v7"), (29+sh, f"s_cbranch_vccnz {o}\n{b}:")], sh=sh)
        sstep(1, True, True, 16, [(4, "s_sub_u32 s56, s56, 1"), (8, f"s_cmp_eq_u32 s56, s42\ns_cselect_b32 s41, s{sPH}, 0"), (12, "s_cselect_b32 s26, s14, 0")] +
                                 ([(31, f"buffer_load_dword v7, v9, {SRD_T}, s{sFB} offen sc1")] if cp == 0 else []), sh=sh)
        sstep(2, True, True, 17 - cp, sh=sh)
        sstep(3, True, True, 17 - cp, ([(8, "s_cmp_eq_u32 s56, 0\ns_cselect_b32 s30, 0, s30")] if pre else []) + [(20, "s_xor_b32 s54, s54, 0x10000"), (min(30+sh, 31), "s_cmp_lg_u32 s56, 0")], sh=sh)
        a(f"s_cbranch_scc1 {loop}")
        if st2 and cp == 0: a(f"s_branch {done}")
    a(f"{done}:")
    ex = []
    if c.opt.get('w1_g2', 1):
        import fg1k
        t = Asm(); fg1k.g1_waddr(t)
        L = [l.strip() for l in t.lines if "s33" in l or True]
        L = [l.replace("s33", "s32") for l in L] + [f"s_add_u32 s41, s41, {64*7168}"]
        L.append(f"s_cmp_lg_u32 s{sLAY}, 0\ns_cselect_b32 s10, 0, s10")
        ex0 = [(k*32//len(L), l) for k, l in enumerate(L)]
        for h in range(2):
            o = fg1k.g1_dw(2 + h)
            ex += [(16*h, o[0])] + [(16*h + 1 + 4*i, o[1+i]) for i in range(4)] + [(16*h + 14, o[5])]
    else: ex0 = []
    t2 = c.opt.get('t_g2', 0)
    if t2:
        ex0 = [(g, l) for g, l in ex0 if "s10" not in l] + [(0, f"s_cmp_lg_u32 s{sLAY}, 0\ns_cselect_b32 s10, 0, s10"), (4, f"v_min_u32 v10, 13, v{vLANE}"), (8, "v_lshlrev_b32 v10, 7, v10"),
               (17, f"buffer_load_dword v11, v10, {SRD_W}, s83 offen"), (20, f"s_add_u32 s83, s83, {128*7168}"), (25, f"buffer_load_dword v11, v10, {SRD_W}, s83 offen")]
        ex0.sort(key=lambda x: x[0])
    sstep(0, True, False, 16, ex0)
    sstep(1, False, False, 4 + 2*t2, ex, merge=True)
    a(f"s_waitcnt vmcnt({8 if ex else 0})")
    hz = Hz(a); ops = []
    for r in range(G2_W, G2_W+64): hz.mf[r] = -6
    n2 = len(M)
    for p in range(4):
        ops.append((p, ('salu', f"buffer_load_dwordx4 v[{G2_RES+4*p}:{G2_RES+4*p+3}], v27, {SRD_WS}, s33 offen {LY.sc}", [], [])))
        ops.append((p, ('salu', "s_add_u32 s33, s33, 16384", [], [])))
    ops.append((3, ('salu', f"buffer_load_dwordx2 v[28:29], v25, {SRD_WS}, s38 offen sc1", [], [])))
    for ti, t in enumerate((1, 0)):
        for p in range(4):
            rdy = ti*n2 + 8*(p+1) - 1
            c0, c1 = g2_acc(t, 2*p), g2_acc(t, 2*p+1); e = G2_RX + 16*ti + 4*p
            ops += [(rdy-4, o_cvt(e, c0)), (rdy-4, o_cvt(e+1, c0+2)), (rdy, o_cvt(e+2, c1)), (rdy, o_cvt(e+3, c1+2)),
                    (rdy, o_st(f"buffer_store_dwordx4 v[{e}:{e+3}], v{vL16 if t else 26}, {SRD_WS}, s{36+t} offen offset:{p*1024} sc1", e))]
    n = 0
    for ti, t in enumerate((1, 0)):
        for i, (ct, k) in enumerate(M):
            if ti == 0 and i % 4 == 0: hz.raw(f"s_waitcnt lgkmcnt({min(12, n2-4-i)})")
            cc = g2_acc(t, ct); h = g2_h(2 + (k >> 1), k & 1, t)
            hz.mfma(f"{MF} v[{cc}:{cc+3}], a[{4*i}:{4*i+3}], v[{h}:{h+3}], v[{cc}:{cc+3}]", cc)
            per = 2
            if ti == 0 and i + 16 < n2:
                hz.raw(mrd(i+16)); per = 1
            fill(hz, ops, n, per)
            n += 1
    stamp(c, "g2 mm")
    fin = c.lab("g2fin")
    assert all(o[0] >= n2 for o in ops)
    pe = c.opt.get('p_early', 0)
    hz.raw(f"s_cmp_lg_u32 s{sLAY}, 0"); hz.raw(f"s_cbranch_scc1 {fin}")
    for _, o in ops: hz.op(o)
    stamp(c, "p out")
    a(f"""
    s_mov_b32 s{sLAY}, 1
    s_mov_b32 s{sLB}, {LY.L1}
    s_branch {c.name}_layer
    {fin}:
    s_mov_b32 s32, 0x3f80
    s_mov_b32 s35, 0x3f800000
    """)
    signal(c)
    stamp(c, "sigE")
    a("v_rcp_f32 v28, v28\ns_nop 0\nv_mul_f32 v29, -v29, v28")
    for j in range(16):
        x = G2_ACC + 2*j
        unpack(a, 4, G2_RES + j, 1)
        a(f"v_pk_fma_f32 v[4:5], v[4:5], v[28:29], v[28:29] op_sel:[0,0,1] op_sel_hi:[1,0,1]")
        a(f"v_pk_add_f32 v[{x}:{x+1}], v[{x}:{x+1}], v[4:5]")
    tr = c.opt.get('out_tr', 1)
    if tr:
        a(f"""
        s_mul_i32 s33, s{sW}, {16*272}
        v_and_b32 v4, 15, v{vLANE}
        v_lshrrev_b32 v5, 4, v{vLANE}
        v_mul_u32_u24 v6, 272, v4
        v_lshl_add_u32 v6, v5, 4, v6
        v_add_u32 v10, s33, v6
        v_mul_u32_u24 v6, 272, v5
        v_lshl_add_u32 v6, v4, 4, v6
        v_add_u32 v11, s33, v6
        v_lshlrev_b32 v4, 4, v4
        v_lshl_add_u32 v{g2_vO}, v5, 11, v4
        """)
    wait(c, vFL, M_PAIR)
    stamp(c, "waitE")
    for p in range(4):
        a(f"buffer_load_dwordx4 v[{G2_RX+4*p}:{G2_RX+4*p+3}], v{vL16}, {SRD_WS}, s34 offen offset:{p*1024} sc1")
    for p in range(4):
        c0 = g2_acc(0, 2*p)
        a(f"s_waitcnt vmcnt({3-p if tr else 3})")
        for i in range(4):
            a(f"v_dot2_f32_bf16 v{c0+2*i}, v{G2_RX+4*p+i}, s32, v{c0+2*i}\nv_dot2_f32_bf16 v{c0+2*i+1}, v{G2_RX+4*p+i}, s35, v{c0+2*i+1}")
        r = G2_RES + 4*p
        a("s_nop 0")
        for i in range(4): a(f"v_cvt_pk_bf16_f32 v{r+i}, v{c0+2*i}, v{c0+2*i+1}")
        if tr: a(f"ds_write_b128 v10, v[{r}:{r+3}] offset:{p*64}")
        else: a(f"buffer_store_dwordx4 v[{r}:{r+3}], v{g2_vO}, {SRD_OUT}, s39 offen offset:{p*64} {c.opt.get('out_aux', 'nt')}")
    if tr:
        for i in range(4): a(f"ds_read_b128 v[{G2_RX+4*i}:{G2_RX+4*i+3}], v11 offset:{i*4*272}")
        for i in range(4):
            a(f"s_waitcnt lgkmcnt({3-i})")
            a(f"buffer_store_dwordx4 v[{G2_RX+4*i}:{G2_RX+4*i+3}], v{g2_vO}, {SRD_OUT}, s39 offen {c.opt.get('out_aux', 'nt')}\ns_add_u32 s39, s39, 8192")
    stamp(c, "out")
    if c.ts:
        a("s_waitcnt vmcnt(0)"); stamp(c, "end")
```

```python
from fcore import *
from ffront import vQ, repack, repack_store, TOUCH2
from fg1k import g1_dw, g1_rw
XF, YF, RW, LO, TT = 32, 64, 96, 128, 160
def ln_stats(c, off, vm=''):
    a = c.a
    a(f"v_pk_add_f32 v[28:29], v[{XF}:{XF+1}], v[{XF+2}:{XF+3}]")
    a(f"v_pk_mul_f32 v[6:7], v[{XF}:{XF+1}], v[{XF}:{XF+1}]")
    a(f"v_pk_fma_f32 v[6:7], v[{XF+2}:{XF+3}], v[{XF+2}:{XF+3}], v[6:7]")
    for i in range(2, 16):
        a(f"v_pk_add_f32 v[28:29], v[28:29], v[{XF+2*i}:{XF+2*i+1}]")
        a(f"v_pk_fma_f32 v[6:7], v[{XF+2*i}:{XF+2*i+1}], v[{XF+2*i}:{XF+2*i+1}], v[6:7]")
    a(f"""
    v_add_f32 v28, v28, v29
    v_add_f32 v29, v6, v7
    s_nop 1
    v_permlane32_swap_b32 v28, v29
    v_add_f32 v28, v28, v29
    v_mov_b32 v29, v28
    s_nop 1
    v_permlane16_swap_b32 v28, v29
    v_add_f32 v28, v28, v29
    s_nop 1
    v_add_f32_dpp v28, v28, v28 row_ror:8 row_mask:0xf bank_mask:0xf
    ds_write_b32 v26, v28 offset:{off}
    s_waitcnt {vm}lgkmcnt(0)
    s_barrier
    ds_read_b128 v[4:7], v27 offset:{off}
    ds_read_b128 v[{LO+16}:{LO+19}], v27 offset:{off+128}
    s_waitcnt lgkmcnt(1)
    v_pk_add_f32 v[4:5], v[4:5], v[6:7]
    v_add_f32 v29, v4, v5
    v_mul_f32 v29, 0x3a800000, v29
    s_waitcnt lgkmcnt(0)
    v_pk_add_f32 v[6:7], v[{LO+16}:{LO+17}], v[{LO+18}:{LO+19}]
    v_add_f32 v28, v6, v7
    v_mul_f32 v28, 0x3a800000, v28
    v_fma_f32 v28, -v29, v29, v28
    v_max_f32 v28, 0, v28
    """)
    if c.opt.get('mimic', 0):
        a(f"""
        v_cvt_pk_bf16_f32 v29, v29, v28
        v_and_b32 v28, s{sMASK}, v29
        v_lshlrev_b32 v29, 16, v29
        v_add_f32 v28, 0x3727c5ac, v28
        v_cvt_pk_bf16_f32 v28, v28, v28
        v_and_b32 v28, s{sMASK}, v28
        v_sqrt_f32 v28, v28
        s_nop 0
        v_cvt_pk_bf16_f32 v28, v28, v28
        v_and_b32 v28, s{sMASK}, v28
        v_rcp_f32 v28, v28
        """)
    else:
        a("v_add_f32 v28, 0x3727c5ac, v28\nv_rsq_f32 v28, v28")
    a("s_nop 0\nv_mul_f32 v29, -v29, v28")
def norm(d, x): return f"v_pk_fma_f32 v[{d}:{d+1}], v[{x}:{x+1}], v[28:29], v[28:29] op_sel:[0,0,1] op_sel_hi:[1,0,1]"
def w_stage(a, slot):
    o = g1_dw(slot); a(o[0]); a("s_nop 0")
    for l in o[1:]: a(l)

def ln_phase(c):
    a = c.a
    l1 = c.lab("ln1"); st = c.lab("lnst"); cm = c.lab("lncm")
    a(f"""
    v_and_b32 v4, 7, v{vLANE}              ; tok
    v_lshrrev_b32 v5, 3, v{vLANE}          ; c
    v_lshlrev_b32 v6, 8, v5
    v_lshl_add_u32 v24, v4, 4, v6
    v_lshl_add_u32 v1, v4, 3, v6
    v_and_b32 v6, 0x3ff, v24
    v_lshrrev_b32 v7, 2, v5
    v_lshl_add_u32 v25, v7, 14, v6
    v_lshlrev_b32 v27, 4, v4
    v_add_u32 v27, {LDS_RED}, v27
    s_lshl_b32 s33, s{sW}, 2
    v_lshl_add_u32 v26, v7, 7, v27
    v_add_u32 v26, s33, v26
    s_lshr_b32 s33, s{sG8}, 1
    s_lshl_b32 s33, s33, 15
    s_lshl_b32 s34, s{sW}, 13
    s_add_u32 s33, s33, s34
    s_and_b32 s34, s{sG8}, 1
    s_lshl_b32 s35, s34, 6
    s_add_u32 s33, s33, s35                ; Y offset
    s_add_u32 s36, s33, s35                ; B16 offset
    s_add_u32 s33, s33, {WS_Y}
    s_lshl_b32 s37, s{sTB}, 19
    s_lshl_b32 s35, s{sW}, 17
    s_add_u32 s37, s37, s35
    s_bfe_u32 s35, s{sG8}, 0x40001
    s_lshl_b32 s35, s35, 10
    s_add_u32 s37, s37, s35
    s_lshl_b32 s35, s34, 7
    s_add_u32 s37, s37, s35
    s_add_u32 s37, s37, s{sLB}
    s_cmp_lg_u32 s{sLAY}, 0
    s_cbranch_scc1 {l1}
    """)
    n1 = c.opt.get('pk_n1', 3)
    unpack(a, XF, vQ, 16)
    signal(c, sfl=85 if c.opt.get('yflag', 2) < 2 else sFL); stamp(c, "sigY")
    eo = c.opt.get('e_ord', 0)
    if eo: a(f"s_cmp_lt_u32 s{sTB}, 4\ns_cbranch_scc1 {st}")
    def side1():
        for slot in range(c.opt.get('w_sy', 4)): w_stage(a, slot)
        if c.opt.get('sty'): stamp(c)
        repack(c, n1)
        if c.opt.get('sty'): stamp(c)
    st2 = c.lab("lns2")
    if c.opt.get('ilv', 0):
        amain = c.a
        c.a = a = Asm(); ln_stats(c, 0)
        for j in range(16): a(norm(TT+2*j, XF+2*j))
        V = [l.strip() for l in a.lines]
        c.a = a = amain
        if c.opt.get('ilv', 0) == 2: repack(c, n1); a("s_waitcnt lgkmcnt(0)")
        Dm = []
        for slot in range(c.opt.get('w_sy', 4)):
            o = g1_dw(slot); Dm += [[o[0], "s_nop 0", o[1]], [o[2]], [o[3]], [o[4], o[5]]]
        lead = c.opt.get('ilv_lead', 4); step = len(V) // max(len(Dm) - lead, 1)
        for d in Dm[:lead]:
            for l in d: a(l)
        Dm = Dm[lead:]
        for k, l in enumerate(V):
            a(l)
            if k % step == step - 1 and Dm:
                for l in Dm.pop(0): a(l)
        assert not Dm
        if c.opt.get('ilv', 0) == 1: repack(c, n1); a("s_waitcnt lgkmcnt(0)")
        a(f"s_branch {st2}\n{l1}:")
    else:
        side1()
        a(f"s_branch {st}")
        if c.opt.get('iw', 2048): a(".p2align 12\niw_base:")
        a(f"{l1}:")
    for j in range(16): a(f"v_accvgpr_read_b32 v{LO+j}, a{aX+j}")
    unpack(a, XF, LO, 16)
    w0 = eo
    a(f"""
    s_add_u32 s38, s36, {LY.P}
    s_add_u32 s50, s36, {LY.P + 4*MB}
    s_mov_b32 s34, 0x3f80
    s_mov_b32 s35, 0x3f800000
    """)
    signal(c); stamp(c, "sigP")
    a(f"s_sub_u32 s41, s41, {128*7168}")
    w_stage(a, 0); w_stage(a, 1)
    a(f"s_add_u32 s41, s41, {64*7168}")
    def ldp(p):
        for i in range(4):
            r = RW + 16*p + 4*i
            a(f"buffer_load_dwordx4 v[{r}:{r+3}], v24, {SRD_WS}, s{[38, 50][p]} offen offset:{(i&1)*2048} {c.opt.get('ld_aux', 'sc1')}")
            if i == 1: a(f"s_add_u32 s{[38, 50][p]}, s{[38, 50][p]}, 4096")
    def addp(p, k, D=()):
        D = list(D)
        for i in range(4):
            a(f"s_waitcnt vmcnt({k-i})")
            for j in range(4):
                r = RW + 16*p + 4*i + j; x = XF + 8*i + 2*j
                a(f"v_dot2_f32_bf16 v{x}, v{r}, s34, v{x}\nv_dot2_f32_bf16 v{x+1}, v{r}, s35, v{x+1}")
    def gety():
        for j in range(16): a(f"v_accvgpr_read_b32 v{LO+j}, a{aY+j}")
        unpack(a, YF, LO, 16)
    gety()
    wait(c, vFL, M_TH)
    stamp(c, "waitP")
    ldp(0); ldp(1); addp(0, 7); addp(1, 3)
    a(f"{st}:")
    ln_stats(c, 0)
    for j in range(16): a(norm(TT+2*j, XF+2*j))
    a(f"s_cmp_lg_u32 s{sLAY}, 0\ns_cbranch_scc1 {cm}\n{st2}:")
    ok = c.lab("boot")
    yf = c.opt.get('yflag', 2)
    if c.opt.get('sty'): stamp(c); a("s_waitcnt vmcnt(0)"); stamp(c)
    boot = lambda ok: f"v_cmp_eq_u32 vcc, 0, v248\ns_cbranch_vccz {ok}\n" + poll(c, "s[88:91]", 249, "0", "", 1) + f"{ok}:"
    if yf == 2:
        y1 = c.lab("lny"); y2 = c.lab("lnz")
        a(f"s_cmp_lt_u32 s{sTB}, {4 if c.opt.get('y_st', 2) < 6 else 0}\ns_cbranch_scc1 {y1}\ns_lshl_b32 s51, s{sW}, 13\nv_lshl_add_u32 v250, v{vLANE}, 7, s51")
        a(boot(ok)); a(poll(c, SRD_WS, 250, f"s{sFB}", "", 3))
        a(f"s_branch {y2}\n{y1}:\ns_cmp_lg_u32 s{sW}, 0\ns_cbranch_scc1 {y2}")
        a(boot(c.lab("boot"))); a(poll(c, SRD_WS, 250, f"s{sFB}", "", 2, x4=True))
        a(f"{y2}:\ns_barrier")
    else:
        a(f"s_lshr_b32 s51, s{sTB}, 2\ns_add_u32 s51, s51, 2")
        wait(c, 250, "", every=not yf, x4=yf, thr="s51", pre=boot(ok))
    stamp(c, "waitY")
    for i in range(4):
        for k in range(2):
            r = RW + 4*i + 2*k
            a(f"buffer_load_dwordx2 v[{r}:{r+1}], v1, {SRD_WS}, s33 offen offset:{(i&1)*2048 + k*128} sc1")
        if i == 1: a("s_add_u32 s33, s33, 4096")
    if eo == 1:
        e1 = c.lab("lne"); e2 = c.lab("lnf")
        a(f"s_cmp_lt_u32 s{sTB}, 4\ns_cbranch_scc1 {e1}")
    for i in range(4):
        a(f"s_waitcnt vmcnt({6-2*i})")
        unpack(a, YF+8*i, RW+4*i, 4)
    if eo == 1:
        a(f"s_branch {cm}\n{e1}:\ns_barrier")
        side1()
        a(f"s_waitcnt vmcnt({4*c.opt.get('w_sy', 4) + n1}) lgkmcnt(0)")
        unpack(a, YF, RW, 16)
    if eo == 2:
        a(f"s_cmp_ge_u32 s{sTB}, 4\ns_cbranch_scc1 {cm}")
        side1()
        a("s_waitcnt lgkmcnt(0)")
    a(f"{cm}:")
    stamp(c, "ln in")
    for j in range(16):
        x = XF + 2*j
        a(f"v_pk_fma_f32 v[{x}:{x+1}], v[{TT+2*j}:{TT+2*j+1}], v[{YF+2*j}:{YF+2*j+1}], v[{x}:{x+1}]")
    if n1 < 7:
        s3 = c.lab("lnt")
        a(f"s_cmp_lg_u32 s{sLAY}, 0\ns_cbranch_scc1 {s3}")
        for k in range(n1, c.opt.get('pk_n2', 7)): a(repack_store(k))
        a(f"{s3}:")
    ln_stats(c, 256)
    for j in range(16):
        a(norm(TT+2*j, XF+2*j))
        a(f"v_cvt_pk_bf16_f32 v{YF+j}, v{TT+2*j}, v{TT+2*j+1}")
        if j % 4 == 3:
            a(f"buffer_store_dwordx4 v[{YF+j-3}:{YF+j}], v25, {SRD_WS}, s37 offen sc1\ns_add_u32 s37, s37, 32768")
    a(f"""
    s_lshl_b32 s35, s{sG8}, 7
    s_add_u32 s35, s35, {LY.XR}
    v_lshlrev_b32 v4, 3, v{vLANE}
    s_mov_b64 exec, 0xffff
    buffer_store_dwordx2 v[28:29], v4, {SRD_WS}, s35 offen sc1
    s_mov_b64 exec, -1
    """)
    stamp(c, "xn out")
    if c.opt.get('w2_sx', 1):
        if w0: a("s_waitcnt vmcnt(5)\ns_barrier")
        for l in g1_rw(0) + g1_rw(1): a(l)
        a("s_waitcnt lgkmcnt(0)")
    signal(c)
    stamp(c, "sigX")
    dn = c.lab("lnd")
    a(f"s_cmp_lg_u32 s{sLAY}, 0\ns_cbranch_scc1 {dn}")
    for i in range(5 - len(c.opt.get('t_pos', [0])) - c.opt.get('t_s0', 2)): a(TOUCH2)
    for slot in range(c.opt.get('w_sy', 4), 4): w_stage(a, slot)
    for j in range(16): a(f"v_cvt_pk_bf16_f32 v{LO+j}, v{XF+2*j}, v{XF+2*j+1}")
    for j in range(16): a(f"v_accvgpr_write_b32 a{aX+j}, v{LO+j}\nv_accvgpr_write_b32 a{aY+j}, v{RW+j}")
    a(f"{dn}:")
```

```python
from fcore import *
import fg1k
LDS_PK = LDS_RED + 1024
WS_WDP = 74*MB
CW = STAGE; C_O = 4192; C_U = 8320
A_LDS = LDS_PK
K_LDS = 16384
vQ = 232
def front(c):
    a = c.a; opt = c.opt
    K = 32; V = 60; TP = 76; KF = 92; TF = 148; T = 180; O = KF + 16
    ACC = 32; FA = 64; FB = 128; AD = 252
    vA = [225, 226, 227, 228]; vB = 26; vE = 27; vF0 = 28; vQA = 29; vSW, vSR, vY, vPF = 212, 213, 214, 224
    def fa(s, i): return FA + (s*8 + i)*4
    def fb(s, i): return FB + (s*8 + i)*4
    z = c.lab("nz")
    a(f"""
    v_and_b32 v4, 7, v0                    ; cg
    v_lshrrev_b32 v5, 3, v0
    s_and_b32 s33, s2, 7
    s_lshr_b32 s34, s2, 3
    s_lshr_b32 s35, s34, 4
    s_and_b32 s34, s34, 15                 ; cbk
    s_lshl_b32 s33, s33, 1
    s_add_u32 s33, s33, s35
    s_add_u32 s33, s33, s34
    s_and_b32 s33, s33, 15                 ; tokblk
    s_lshl_b32 s35, s33, 18
    s_lshl_b32 s36, s34, 7
    s_add_u32 s35, s35, s36
    v_lshlrev_b32 v6, 13, v5
    v_lshl_add_u32 v6, v4, 4, v6
    v_add_u32 v11, s35, v6
    v_add_u32 v12, 4096, v11
    v_lshrrev_b32 v7, 3, v{vLANE}
    v_lshlrev_b32 v6, 11, v7
    v_lshl_add_u32 v6, v4, 4, v6
    s_lshl_b32 s36, s{sW}, 16
    s_add_u32 s35, s35, s36
    v_add_u32 v9, s35, v6
    v_cmp_lt_u32 vcc, 4, v7
    v_subrev_u32 v8, 16384, v9
    v_bfrev_b32 v6, 1
    s_mul_i32 s52, s{sW}, {STAGE}
    v_cndmask_b32 v8, v6, v8, vcc          ; k rows -3..-1
    s_add_u32 s52, s52, {K_LDS}
    s_mov_b32 m0, s52
    s_mov_b32 s53, {16384-1024}
    s_mov_b32 s54, {2*(16384-1024)}
    s_mov_b32 s55, {3*(16384-1024)}
    s_lshl_b32 s36, s34, 9
    v_add_u32 v10, s36, v{vL16}
    v_mov_b64 v[16:17], 0
    v_mov_b64 v[18:19], 0
    s_mov_b32 s90, {D*8}
    s_mov_b32 s91, 0x20000
    s_mov_b32 s26, {S*D*2}
    s_mov_b32 s27, 0x20000
    s_mov_b32 s30, {S*D*2}
    s_mov_b32 s31, 0x20000
    s_lshl_b32 s46, s34, 10
    s_add_u32 s46, s46, {WS_FL}
    s_add_u32 s47, s46, {128*128}
    s_or_b32 s48, s33, s{sW}
    s_waitcnt lgkmcnt(0)
    s_mov_b64 s[88:89], s[70:71]
    s_mov_b64 s[24:25], s[66:67]
    s_mov_b64 s[28:29], s[68:69]
    s_cbranch_scc1 {z}
    buffer_store_dwordx4 v[16:19], v{vL16}, {SRD_WS}, s46 offen sc1
    buffer_store_dwordx4 v[16:19], v{vL16}, {SRD_WS}, s47 offen sc1
    {z}:
    buffer_load_dwordx4 v10, s[88:91], 0 offen lds
    s_add_u32 m0, s52, 1024
    s_lshl_b32 s49, s34, 2
    buffer_load_dwordx4 v8, {SRD_T}, 0 offen nt lds
    s_add_u32 m0, s52, 2048
    s_add_u32 s49, s49, 64
    """)
    for i in range(4): a(f"buffer_load_dwordx4 v9, {SRD_T}, {['0','s53','s54','s55'][i]} offen offset:{1024*i} nt lds")
    if opt.get('kbar', 1): a("s_barrier")
    for i in range(4): a(f"buffer_load_dwordx4 v[{V+4*i}:{V+4*i+3}], v{11+(i>>1)}, {SRD_T2}, 0 offen offset:{2048*(i&1)} nt")
    NX = 0
    if opt.get('sta'): stamp(c)
    if opt.get('pf_code', 2) == 1:
        NX = 1
        a(f"""
        s_lshr_b32 s37, s2, 3
        s_lshl_b32 s37, s37, 2
        s_add_u32 s37, s37, s{sW}
        v_and_b32 v6, 1, v0
        v_lshl_add_u32 v6, s37, 1, v6
        v_lshlrev_b32 v6, 7, v6
        s_getpc_b64 s[50:51]
        {c.name[:6]}_pc:
        v_min_u32 v6, {c.name}_last-{c.name[:6]}_pc, v6
        v_mov_b32 v7, s51
        v_add_co_u32 v6, vcc, s50, v6
        s_nop 1
        v_addc_co_u32 v7, vcc, 0, v7, vcc
        global_load_dword v251, v[6:7], off
        """)
    if opt.get('tlb', 0):
        NX += 1
        sh = opt['tlb']
        a(f"""
        s_lshr_b32 s37, s2, 3
        s_cmp_lt_u32 s37, 16
        s_cselect_b64 s[40:41], s[82:83], s[84:85]
        s_cselect_b32 s42, {D*F*2}, s26
        s_cmp_eq_u32 s{sW}, 1
        s_cselect_b64 s[40:41], s[78:79], s[40:41]
        s_cselect_b32 s42, {D*F*2}, s42
        s_cmp_eq_u32 s{sW}, 3
        s_cselect_b64 s[40:41], s[80:81], s[40:41]
        s_cselect_b32 s42, {D*F*2}, s42
        s_cmp_eq_u32 s{sW}, 0
        s_cselect_b64 s[40:41], s[12:13], s[40:41]
        s_cselect_b32 s42, {WS_USED}, s42
        s_cselect_b32 s38, 31, 15
        s_mov_b32 s43, 0x20000
        s_and_b32 s37, s37, s38
        s_add_u32 s38, s38, 1
        v_min_u32 v6, {(1 << (26 - sh)) - 1}, v{vLANE}
        v_mul_u32_u24 v6, s38, v6
        v_add_lshl_u32 v6, v6, s37, {sh}
        buffer_load_dword v251, v6, s[40:43], 0 offen nt
        """)
    z = c.lab("nz")
    a(f"""
    s_mov_b64 s[88:89], s[86:87]
    s_mov_b32 s90, 256
    s_cmp_lg_u32 s48, 0
    s_cbranch_scc1 {z}
    v_mov_b32 v20, 1
    s_waitcnt vmcnt({10+NX})
    s_mov_b64 exec, 1
    buffer_store_dword v20, v16, s[88:91], s49 offen sc1
    s_mov_b64 exec, -1
    {z}:
    s_lshl_b32 s41, s34, 4
    s_add_u32 s41, s41, s33
    s_lshl_b32 s42, s41, 2
    s_add_u32 s42, s42, s{sW}              ; channel d
    s_lshr_b32 s44, s42, 1
    s_lshl_b32 s44, s44, 2
    s_load_dword s45, s[74:75], s44
    s_mul_i32 s47, s{sW}, {CW}
    s_mov_b64 s[24:25], s[72:73]
    s_mov_b64 s[28:29], s[64:65]
    """)
    prolog2(c)
    if opt.get('t_x', 1):
        wt = f"""s_lshr_b32 s58, s2, 3
        s_lshl_b32 s58, s58, 1
        s_and_b32 s38, s{sW}, 1
        s_add_u32 s58, s58, s38
        s_mul_i32 s58, s58, 7168
        s_lshr_b32 s38, s{sM}, 3
        s_mul_i32 s38, s38, 1792
        s_add_u32 s58, s58, s38
        s_mov_b32 s83, s58
        v_min_u32 v6, 13, v{vLANE}
        v_lshlrev_b32 v{vPF}, 7, v6"""
    else:
        wt = f"""s_lshl_b32 s58, s2, 1
        s_and_b32 s38, s{sW}, 1
        s_add_u32 s58, s58, s38
        s_mul_i32 s58, s58, {7*128}
        v_min_u32 v6, 6, v{vLANE}
        v_lshlrev_b32 v{vPF}, 7, v6"""
    if opt.get('yflag', 1):
        yf = f"""v_lshrrev_b32 v6, 1, v{vLANE}
        v_and_b32 v7, 16, v{vL16}
        v_lshl_add_u32 v6, v6, 10, v7
        v_add_u32 v250, 64, v6
        s_lshr_b32 s85, s2, 3
        s_lshl_b32 s85, s85, 10
        s_and_b32 s37, s2, 7
        s_lshl_b32 s37, s37, 2
        s_add_u32 s85, s85, s37
        s_add_u32 s85, s85, {WS_FL + 64}"""
    else: yf = f"v_lshlrev_b32 v250, 7, v0\ns_mov_b32 s85, s{sFL}"
    t1 = opt.get('t1', 35)
    rot = "s_lshr_b32 s38, s2, 3\n"
    for k in range(7):
        rot += f"""s_and_b32 s39, s38, 15
        s_lshl_b32 s39, s39, 7
        s_add_u32 s{64+k}, s{64+k}, s39
        s_bfe_u32 s39, s38, 0x30001
        s_mul_i32 s39, s39, {112*8192}
        s_add_u32 s{76+k}, s59, s39
        s_and_b32 s39, s38, 1
        s_lshl_b32 s39, s39, 12
        s_add_u32 s{76+k}, s{76+k}, s39
        s_lshl_b32 s39, s32, {15 if k < 4 else 14 if k < 6 else 13}
        s_add_u32 s39, s39, {(k if k < 4 else 28 + k if k < 6 else 48)*8192}
        s_add_u32 s{76+k}, s{76+k}, s39
        s_add_u32 s38, s38, {opt.get('pk_rot', 1)}
        """
    a(f"""
    s_lshl_b32 s84, s42, 12
    v_lshrrev_b32 v7, 3, v{vLANE}
    v_lshlrev_b32 v7, 9, v7
    v_lshl_add_u32 v7, v4, 4, v7
    v_add_u32 v10, s52, v7
    v_lshl_add_u32 v21, v4, 6, s52
    v_mul_u32_u24 v6, 2064, v4
    v_sub_u32 v7, 31, v5
    v_lshl_add_u32 v6, v7, 3, v6
    v_add_u32 v13, {A_LDS}, v6
    v_lshrrev_b32 v7, 7, v0
    v_add_u32 v7, v7, v0
    v_lshlrev_b32 v7, 4, v7
    v_add_u32 v14, {A_LDS}, v7
    v_lshrrev_b32 v6, 4, v0
    v_and_b32 v7, 15, v0
    v_lshl_add_u32 v249, v7, 2, 64
    v_lshlrev_b32 v7, 4, v7
    v_lshl_add_u32 v15, v6, 12, v7         ; u^T store
    s_lshl_b32 s36, s34, 18
    s_sub_u32 s37, 15, s33
    s_lshl_b32 s37, s37, 8
    s_add_u32 s36, s36, s37
    s_add_u32 s36, s36, {WS_UT}
    v_lshrrev_b32 v5, 3, v{vLANE}
    v_lshl_add_u32 v6, v5, 7, v4
    v_lshlrev_b32 v6, 7, v6
    s_lshl_b32 s37, s34, 10
    v_add_u32 v{vF0}, s37, v6
    {yf}
    v_and_b32 v6, 3, v5
    v_lshlrev_b32 v7, 5, v4
    v_lshl_or_b32 v6, v6, 1, v7
    s_and_b32 s37, s2, 0x19
    v_or_b32 v6, s37, v6
    v_lshlrev_b32 v{vFL}, 7, v6
    v_lshlrev_b32 v6, 4, v5
    v_lshl_add_u32 v{vQA}, v4, 11, v6
    s_lshl_b32 s56, s{sG8}, 14
    s_lshl_b32 s38, s{sW}, 9
    s_add_u32 s56, s56, s38
    v_lshlrev_b32 v6, 4, v4
    v_lshl_add_u32 v{vY}, v5, 15, v6
    s_lshl_b32 s57, s{sW}, 19
    s_lshl_b32 s38, s41, 7
    s_add_u32 s57, s57, s38
    s_add_u32 s57, s57, {WS_Y}
    v_bfe_u32 v6, v{vLANE}, 1, 2
    v_mul_u32_u24 v6, 160, v6
    v_lshl_add_u32 v6, v5, 3, v6
    v_and_b32 v7, 1, v{vLANE}
    v_lshl_add_u32 v6, v7, 2, v6
    s_mul_i32 s37, s{sW}, 640
    v_add_u32 v{vSR}, s37, v6
    v_add_u32 v229, {2*CW}, v{vSR}
    v_min_u32 v6, 33, v{vLANE}
    v_lshlrev_b32 v6, 4, v6
    v_cmp_lt_u32 vcc, 1, v{vLANE}
    v_mov_b32 v7, {C_O-32-32}
    v_mov_b32 v5, {C_U+4096-64}
    v_cndmask_b32 v7, 0, v7, vcc
    v_cmp_lt_u32 vcc, 3, v{vLANE}
    v_add_u32 v{vE}, s47, v{vL16}
    v_and_b32 v4, 15, v{vLANE}             ; b
    v_cndmask_b32 v7, v7, v5, vcc
    v_add3_u32 v6, v6, v7, s47
    ds_write_b128 v6, v[16:19]
    v_lshrrev_b32 v5, 4, v{vLANE}          ; q
    v_add_u32 v6, 1, v4
    v_lshrrev_b32 v6, 1, v6
    v_lshl_add_u32 v6, v5, 2, v6
    v_lshlrev_b32 v6, 2, v6
    v_and_b32 v7, 1, v4
    v_xor_b32 v7, 1, v7
    v_mul_u32_u24 v7, {C_O-28}, v7
    v_add3_u32 v{vA[0]}, v6, v7, s47
    v_add_u32 v{vA[1]}, 1024, v{vA[0]}
    v_add_u32 v{vA[2]}, 2048, v{vA[0]}
    v_add_u32 v{vA[3]}, 3072, v{vA[0]}
    v_lshlrev_b32 v6, 5, v4
    v_lshlrev_b32 v7, 4, v5
    v_sub_u32 v6, v7, v6
    s_add_u32 s37, s47, {C_U + 2*(S-16) - 512*7}
    v_add_u32 v{vB}, s37, v6
    v_mul_u32_u24 v6, 160, v5
    v_lshl_add_u32 v6, v4, 3, v6
    v_add_u32 v{vSW}, s47, v6
    {wt}
    v_lshl_add_u32 v6, v5, 3, v4
    v_sub_u32 v6, 15, v6
    v_and_b32 v7, 1, v6
    v_lshlrev_b32 v7, 4, v7
    v_ashrrev_i32 v6, 1, v6
    s_and_b32 s37, s42, 1
    s_lshl_b32 s37, s37, 4
    s_waitcnt lgkmcnt(0)
    s_lshr_b32 s45, s45, s37
    s_and_b32 s45, s45, 0xffff
    v_lshlrev_b32 v7, v7, s45
    """)
    for i in range(4):
        a(f"v_cmp_eq_u32 vcc, {i}, v6\ns_nop 1\nv_cndmask_b32 v{AD+i}, 0, v7, vcc")
    amain = a; a = Asm()
    a(f"""
    s_and_b32 s37, s2, 7
    s_lshl_b32 s37, s37, 1
    s_lshr_b32 s38, s2, 7
    s_add_u32 s37, s37, s38                ; P
    s_mul_i32 s38, s37, {224*2048}
    s_lshr_b32 s59, s37, 3
    s_mul_i32 s59, s59, {56*8192}
    s_and_b32 s32, s37, 7
    s_lshl_b32 s39, s{sW}, 10
    s_add_u32 s59, s59, s39
    s_add_u32 s59, s59, {WS_WDP}
    s_and_b32 s35, s{sW}, 1
    s_lshr_b32 s37, s{sW}, 1
    s_lshl_b32 s39, s{sW}, 13
    s_add_u32 s64, s39, s38
    s_add_u32 s65, s64, {64*2048}
    s_add_u32 s66, s64, {112*2048}
    s_add_u32 s67, s64, {176*2048}
    s_lshl_b32 s39, s37, 17
    s_lshl_b32 s68, s35, 13
    s_add_u32 s39, s39, s68
    s_add_u32 s39, s39, s38
    s_add_u32 s68, s39, {32*2048}
    s_add_u32 s69, s39, {144*2048}
    s_mul_i32 s39, s37, {112*2048}
    s_lshl_b32 s70, s35, 14
    s_add_u32 s39, s39, s70
    s_add_u32 s39, s39, s38
    s_add_u32 s70, s39, {48*2048}
    {rot}
    s_lshl_b32 s71, s{sW}, 10
    s_add_u32 s71, s71, {LDS_PK}
    v_lshrrev_b32 v6, 5, v{vLANE}
    v_bfe_u32 v7, v{vLANE}, 3, 2
    v_and_b32 v216, 0x70, v{vL16}
    v_lshl_add_u32 v7, v7, 11, v216
    v_lshl_add_u32 v216, v6, 15, v7
    v_lshl_add_u32 v217, v6, 14, v7
    v_lshl_add_u32 v218, v6, 13, v7
    v_bfe_u32 v6, v{vLANE}, 2, 2
    v_lshrrev_b32 v5, 4, v{vLANE}
    v_lshl_add_u32 v6, v5, 3, v6
    v_and_b32 v7, 0x30, v{vL16}
    v_lshl_add_u32 v6, v6, 7, v7
    s_lshl_b32 s37, s37, 6
    s_lshl_b32 s35, s35, 3
    s_add_u32 s37, s37, s35
    s_add_u32 s37, s37, {LDS_PK}
    v_add_u32 v219, s37, v6
    """)
    fg1k.g1_waddr(a)
    later = a.text(); a = amain
    stamp(c, "setup")
    a(f"s_waitcnt vmcnt({9+NX})")
    for i in range(4): a(f"ds_read_b128 v[{TP+4*i}:{TP+4*i+3}], v21 offset:{16*i}")
    for ch in range(8):
        if ch % 2 == 0: a(f"s_waitcnt lgkmcnt({3-ch//2})")
        for h in range(2):
            r = TP + 2*ch + h
            a(f"v_lshlrev_b32 v{TF+(2*h)*8+ch}, 16, v{r}\nv_and_b32 v{TF+(2*h+1)*8+ch}, s{sMASK}, v{r}")
    ep = opt.get('e_pos', 3)
    eld = "s_add_u32 m0, s47, 32\ns_nop 0\n" + "".join(f"buffer_load_dwordx4 v{vL16}, {SRD_T}, s84 offen offset:{1024*i} nt lds\n" for i in range(4))
    if ep == -3: a("s_barrier")
    if ep <= -2: a(eld); NX += 4
    a(f"s_waitcnt vmcnt({4+NX})")
    if opt.get('sta'): stamp(c)
    if ep == -1: a(eld); NX += 4
    for i in range(7): a(f"ds_read_b128 v[{K+4*i}:{K+4*i+3}], v10 offset:{1024+(5+i)*128}")
    for i in range(7):
        a(f"s_waitcnt lgkmcnt({6-i})")
        unpack(a, KF+8*i, K+4*i, 4)
    for t in range(4):
        for tap in range(4):
            for p in range(4):
                d = T + 8*t + 2*p; kk = KF + 8*(t+3-tap) + 2*p; w = TF + 8*tap + 2*p
                if tap == 0: a(f"v_pk_mul_f32 v[{d}:{d+1}], v[{kk}:{kk+1}], v[{w}:{w+1}]")
                else: a(f"v_pk_fma_f32 v[{d}:{d+1}], v[{kk}:{kk+1}], v[{w}:{w+1}], v[{d}:{d+1}]")
    if opt.get('sta'): stamp(c)
    for t in range(4):
        a(f"s_waitcnt vmcnt({3-t+NX})")
        if opt.get('sta') and t == 3: stamp(c)
        if t == ep: a(eld); NX += 4
        unpack(a, KF, V+4*t, 4)
        for p in range(4):
            d = T + 8*t + 2*p
            a(f"v_pk_mul_f32 v[{d}:{d+1}], v[{d}:{d+1}], v[{KF+2*p}:{KF+2*p+1}]")
    for ch in range(8):
        a(f"v_cvt_pk_bf16_f32 v{O+2*ch}, v{T+24+ch}, v{T+16+ch}\nv_cvt_pk_bf16_f32 v{O+2*ch+1}, v{T+8+ch}, v{T+ch}")
        a(f"ds_write_b64 v13, v[{O+2*ch}:{O+2*ch+1}] offset:{256*ch}")
    a("s_waitcnt lgkmcnt(0)\ns_barrier")
    stamp(c, "A done")
    for i in range(4): a(f"ds_read_b128 v[{K+4*i}:{K+4*i+3}], v14 offset:{i*2*2064}")
    for i in range(4):
        a(f"s_waitcnt lgkmcnt({3-i})")
        a(f"buffer_store_dwordx4 v[{K+4*i}:{K+4*i+3}], v15, {SRD_WS}, s36 offen sc1")
        a(f"s_add_u32 s36, s36, {16*4096}")
    a(f"buffer_load_dword v20, v16, s[88:91], s49 offen sc1")
    wa = opt.get('wa', 'Q'); nwa = 0
    qld = [f"buffer_load_dwordx4 v[{vQ+4*i}:{vQ+4*i+3}], v{vQA}, {SRD_T2}, s56 offen offset:{128*i} nt" for i in range(4)]
    tld = f"buffer_load_dword v251, v{vPF}, {SRD_W}, s58 offen"
    if 'q' in wa:
        for l in qld: a(l)
        nwa += 4
    if 't' in wa: a(tld); nwa += 1
    if opt.get('sta'): stamp(c)
    if ep == 9: a(eld)
    else: a(f"s_waitcnt vmcnt({5+nwa})")
    if opt.get('sta'): stamp(c)
    if ep == 9:
        ok = c.lab("boot")
        signal(c, vm=4, pre=f"v_cmp_ne_u32 vcc, 0, v20\ns_cbranch_vccnz {ok}\n" + poll(c, "s[88:91]", 4, "s49", "", 1) + f"{ok}:")
        stamp(c, "sig0")
        a(later); a("s_waitcnt vmcnt(0)")
    HK = 96
    for i in range(4):
        a(f"ds_read_b128 v[{HK+4*i}:{HK+4*i+3}], v{vE} offset:{32+1024*i}\nds_read_b32 v{HK+16+i}, v{vE} offset:{28+1024*i}")
    for i in range(4):
        r = HK + 4*i; o = 160 + 4*i
        a(f"s_waitcnt lgkmcnt({6-i})")
        a(f"v_alignbit_b32 v{o}, v{r}, v{HK+16+i}, 16")
        for j in range(1, 4): a(f"v_alignbit_b32 v{o+j}, v{r+j}, v{r+j-1}, 16")
        a(f"ds_write_b128 v{vE}, v[{o}:{o+3}] offset:{C_O+1024*i}")
    def opA(j, i): return f"a[{(j*4+i)*4}:{(j*4+i)*4+3}]" if i < 4 else f"v[{fa(j&1,i)}:{fa(j&1,i)+3}]"
    def opB(j, i): return f"a[{128+(j*4+i)*4}:{128+(j*4+i)*4+3}]" if i < 4 else f"v[{fb(j&1,i)}:{fb(j&1,i)+3}]"
    def rdA(j, i):
        o = (i & 1)*128 + 16*j; p, r = ("a", (j*4+i)*4) if i < 4 else ("v", fa(j&1, i))
        return [f"ds_read2_b32 {p}[{r}:{r+1}], v{vA[i>>1]} offset0:{o} offset1:{o+1}", f"ds_read2_b32 {p}[{r+2}:{r+3}], v{vA[i>>1]} offset0:{o+2} offset1:{o+3}"]
    def rdB(j, i): return f"ds_read_b128 {opB(j, i)}, v{vB} offset:{512*(7-i)+64*j}"
    def rd2(j): return [rdB(j, i) for i in range(4, 8)] + [l for i in range(4, 8) for l in rdA(j, i)]
    ok = c.lab("boot")
    signal(c, vm=nwa, pre=f"v_cmp_ne_u32 vcc, 0, v20\ns_cbranch_vccnz {ok}\n" + poll(c, "s[88:91]", 4, "s49", "", 1) + f"{ok}:")
    stamp(c, "sig0")
    if 'Q' in wa:
        for l in qld: a(l)
    LA = [l for j in range(8) for i in range(4) for l in rdA(j, i)]
    LL = [l for l in later.split("\n") if l.strip() and not l.strip().startswith(";")]
    for k, l in enumerate(LL):
        a(l)
        if k % 2 == 0 and LA: a(LA.pop(0))
    for l in LA: a(l)
    pkl = lambda k: [f"s_add_u32 m0, s71, {4096*k}", f"buffer_load_dwordx4 v{216 if k < 4 else 217 if k < 6 else 218}, {SRD_WD}, s{64+k} offen {opt.get('pk_aux', 'nt')} lds"]
    ns0 = opt.get('pk_s0', 0)
    for k in range(ns0): a(pkl(k)[0]); a("s_nop 0"); a(pkl(k)[1])
    for i in range(opt.get('t_s0', 2)): a(tld); a(f"s_add_u32 s58, s58, {64*7168}")
    a(f"""
    s_add_u32 s84, s84, {WS_UT}
    s_lshl_b32 s37, s{sW}, 29
    v_mov_b32 v230, s37
    v_mov_b32 v231, 2
    """)
    wait(c, vF0, "s_mov_b64 exec, 0xffff")
    stamp(c, "wait0")
    a(f"s_add_u32 m0, s47, {C_U}\ns_mov_b32 s38, 0x05040100")
    for i in (3, 2, 1, 0):
        a(f"buffer_load_dwordx4 v{vL16}, {SRD_WS}, s84 offen offset:{1024*i} sc1 lds")
    a("s_mov_b32 s39, 0x07060302\ns_waitcnt vmcnt(3)")
    a(rdB(0, 0)); a(rdB(0, 1)); a("s_waitcnt vmcnt(2)"); a(rdB(0, 2)); a(rdB(0, 3))
    for i in range(4): a(rdB(1, i))
    stamp(c, "ur")
    side = {}
    def put(pos, l): side.setdefault(pos, []).append(l)
    for i, p in enumerate(opt.get('t_pos', [225])):
        put(p, tld); put(p+1, f"s_add_u32 s58, s58, {64*7168}")
    p = opt.get('q_pos', 40)
    if 'q' not in wa.lower():
        for l in qld: put(p, l); p += opt.get('q_dp', 20)
    p = opt.get('pk_pos', 6)
    for k in range(ns0, 7):
        put(p-1, f"s_add_u32 m0, s71, {4096*k}")
        put(p, f"buffer_load_dwordx4 v{216 if k < 4 else 217 if k < 6 else 218}, {SRD_WD}, s{64+k} offen {opt.get('pk_aux', 'nt')} lds"); p += opt.get('pk_dp', 40)
    put(251, f"buffer_load_dword v248, v249, s[88:91], 0 offen sc1")
    STG = 12992; SR, SO = FA, FB
    def stage_rd(off): return [f"ds_read_b32 v{SR+4*g+ch}, v{vSR if ch < 2 else 229} offset:{(ch&1)*CW + off + g*64}" for g in range(2) for ch in range(4)]
    def stage_st(g):
        r = SR + 4*g; o = SO + 4*g
        return [f"v_perm_b32 v{o}, v{r+1}, v{r}, s38", f"v_perm_b32 v{o+1}, v{r+3}, v{r+2}, s38", f"v_perm_b32 v{o+2}, v{r+1}, v{r}, s39", f"v_perm_b32 v{o+3}, v{r+3}, v{r+2}, s39",
                f"buffer_store_dwordx4 v[{o}:{o+3}], v{vY}, {SRD_WS}, s57 offen sc1", f"s_add_u32 s57, s57, {(8 if g == 0 else 56)*32768}"]
    hz = Hz(a); ops = []; pos = 0; nvm = [0]
    def emit(l):
        if l.startswith("buffer_") or l.startswith("global_"): nvm[0] += 1
        hz.raw(l)
    def mm(n, A, B, zero=False):
        cc = ACC + 4*n
        hz.mfma(f"{MF} v[{cc}:{cc+3}], {A}, {B}, " + ("0" if zero else f"v[{cc}:{cc+3}]"), cc)
    def out_ops(n, k, off):
        cc = ACC + 4*n
        return [(k, o_cvt(cc, cc)), (k, o_cvt(cc+1, cc+2)), (k, ('salu', f"ds_write_b64 v{vSW}, v[{cc}:{cc+1}] offset:{off + 640*(n & 3)}", [], []))]
    ADs = f"v[{AD}:{AD+3}]"
    for n in range(4):
        hz.raw(f"s_waitcnt lgkmcnt({7-n})"); mm(n, ADs, opB(0, n), True)
    for j in range(8):
        if j: hz.raw(f"s_waitcnt lgkmcnt({4 if j < 7 else 6})")
        if j == 2: hz.raw(f"s_waitcnt vmcnt({nvm[0]})")
        R = [rdB(j+2, i) for i in range(4)] if j < 6 else rd2(0)[6*(j-6):6*(j-5)]
        for k, (n, i) in enumerate([(n, i) for n in range(4) for i in range(n+1)]):
            mm(n, opA(j, i), opB(j, n-i))
            if k < len(R): hz.raw(R[k])
            for l in side.get(pos, []): emit(l)
            pos += 1
    sigj = opt.get('y_sig', 7); ys = opt.get('y_st', 2)
    if ys >= 6: sigj = 99
    for j in range(8):
        hz.raw("s_waitcnt lgkmcnt(0)" if j != sigj else f"s_waitcnt vmcnt({nvm[0] - mark}) lgkmcnt(0)")
        if j == 0:
            for n in range(4, 8): mm(n, ADs, opB(0, n), True)
            for n in range(4): ops += out_ops(n, 0, STG)
        R = rd2(j+1) if j < 7 else []
        if j == ys - 1: R = R + stage_rd(STG)
        if j == ys: R = R + stage_st(0) + stage_st(1)
        for k, (n, i) in enumerate([(n, i) for n in range(4, 8) for i in range(n+1)]):
            mm(n, opA(j, i), opB(j, n-i))
            if k == 0 and j in (1, sigj): hz.raw("s_barrier")
            if k == 1 and j == sigj: emit(f"buffer_store_dword v231, v230, {SRD_WS}, s85 offen sc1")
            if k < len(R):
                emit(R[k])
                if R[k].startswith("buffer_store"): mark = nvm[0]
            for l in side.get(pos, []): emit(l)
            if j == 7 and n == i: ops += out_ops(n, k, 0)
            if j in (0, 7): fill(hz, ops, k, 1 if k < len(R) else 2)
            pos += 1
        if j == 0: assert not ops
    stamp(c, "conv")
    for _, o in ops: hz.op(o)
    a(f"s_add_u32 s{sPH}, s{sPH}, 1\ns_waitcnt lgkmcnt(0)\ns_barrier")
    for l in stage_rd(0): a(l)
    for g in range(2):
        a(f"s_waitcnt lgkmcnt({4-4*g})")
        for l in stage_st(g): a(l)
    stamp(c, "y out")

TOUCH2 = f"buffer_load_dword v251, v224, {SRD_W}, s58 offen\ns_add_u32 s58, s58, {64*7168}"
PKR = [192, 196, 200, 204, 208, 212, 220]
def repack_store(k): return f"buffer_store_dwordx4 v[{PKR[k]}:{PKR[k]+3}], v{vL16}, {SRD_WS}, s{76+k} offen sc1"
def repack(c, n):
    a = c.a
    for k in range(7):
        r = PKR[k]
        a(f"ds_read_b64_tr_b16 v[{r}:{r+1}], v219 offset:{4096*k}\nds_read_b64_tr_b16 v[{r+2}:{r+3}], v219 offset:{4096*k+512}")
    for k in range(n):
        a(f"s_waitcnt lgkmcnt({12-2*k})"); a(repack_store(k))
```

```python
from asmlib import *
from common import *
import re

sW, sTB, sM, sLAY, sLB = 3, 4, 5, 6, 7
SRD_W, SRD_WS, SRD_WD, SRD_OUT, SRD_T, SRD_T2 = "s[8:11]", "s[12:15]", "s[16:19]", "s[20:23]", "s[24:27]", "s[28:31]"
sG8 = 60
sMASK = 61
vLANE, vL16 = 2, 3
aX, aY = 224, 240
MF = "v_mfma_f32_16x16x32_bf16"
SPIN = 4000000
FL_A, FL_B, FL_LN, FL_G1, FL_G2, FL_PAIR = 0, 256, 512, 640, 768, 1536
STAGE = 32768 + 256
UOFF = 8192 + 16
LDS_RED = 4*STAGE
LDS_TOTAL = LDS_RED + 1024

class Lay:
    pass
LY = Lay()
def set_layout(reuse):
    LY.P = WS_UT if reuse else WS_L0 + L_EX
    LY.EX = WS_UT if reuse else WS_L0 + LSTRIDE + L_EX
    LY.XR = WS_XR
    LY.L1 = WS_L0 if reuse else WS_L0 + LSTRIDE
    LY.sc = "sc1" if reuse else ""

class Ctx:
    def __init__(self, name, ts=False, **opt):
        self.a = Asm(); self.name = name; self.ts = ts; self.nl = 0; self.ool = []; self.opt = opt
    def lab(self, s):
        self.nl += 1
        return f"{self.name[:6]}_{s}{self.nl}"

def stamp(c, name=""):
    if not c.ts: return
    c.a("""
    s_memrealtime s[98:99]
    s_memtime s[100:101]
    s_mov_b32 m0, s97
    s_add_u32 s97, s97, 1
    s_waitcnt lgkmcnt(0)
    v_writelane_b32 v30, s98, m0
    v_writelane_b32 v31, s100, m0
    """)
def ts_dump(c):
    if not c.ts: return
    if 'pad' in c.opt:
        l = c.lab("pad")
        c.a(f"""
        v_readlane_b32 s32, v30, {c.opt['pad']}
        {l}:
        s_memrealtime s[98:99]
        s_waitcnt lgkmcnt(0)
        s_sub_u32 s33, s98, s32
        s_cmp_lt_u32 s33, 15000
        s_cbranch_scc1 {l}
        """)
        return
    if c.opt.get('dbgts'):
        sel = c.opt['dbgts']; z = c.lab("nd")
        c.a(f"s_cmp_lg_u32 s2, {c.opt.get('dbgwg', 37)}\ns_cbranch_scc1 {z}\ns_cmp_lg_u32 s{sW}, 1\ns_cbranch_scc1 {z}\nv_readlane_b32 s32, v30, 0\nv_readlane_b32 s34, v31, 0\nv_mov_b32 v5, 0")
        for i, k in enumerate(sel):
            src, b = (30, 32) if k >= 0 else (31, 34)
            c.a(f"v_readlane_b32 s33, v{src}, {abs(k)}\ns_nop 3\ns_sub_u32 s33, s33, s{b}\nv_writelane_b32 v5, s33, {i}")
        c.a(f"v_lshlrev_b32 v4, 2, v{vLANE}\ns_mov_b64 exec, 0xffff\nbuffer_store_dword v5, v4, s[88:91], 0 offen sc1\n{z}:")
        return
    c.a(f"""
    s_load_dword s96, s[0:1], 88
    s_lshl_b32 s32, s93, 2
    s_add_u32 s32, s32, s{sW}
    s_lshl_b32 s32, s32, 9
    s_waitcnt lgkmcnt(0)
    s_bfe_u32 s96, s96, 0x60009
    s_lshl_b32 s96, s96, 19
    s_add_u32 s32, s32, s96
    s_add_u32 s32, s32, {WS_TS}
    v_lshlrev_b32 v4, 3, v{vLANE}
    buffer_store_dwordx2 v[30:31], v4, {SRD_WS}, s32 offen
    """)

def srd(a, d, lo, size):
    a(f"s_mov_b32 s{d}, s{lo}\ns_mov_b32 s{d+1}, s{lo+1}\ns_mov_b32 s{d+2}, {size}\ns_mov_b32 s{d+3}, 0x20000")

sPH, sFL, sFB, vFL = 63, 94, 95, 0
def signal(c, pre="", vm=0, vm0=0, sfl=sFL):
    l = c.lab("sig")
    c.a(f"""
    s_add_u32 s{sPH}, s{sPH}, 1
    v_mov_b32 v4, 0
    v_mov_b32 v5, s{sPH}
    s_cmp_lg_u32 s{sW}, 0
    s_waitcnt vmcnt({vm + vm0})
    {f"s_cbranch_scc0 {l}a" if vm0 else ""}
    {f"s_waitcnt vmcnt({vm})" if vm0 else ""}
    {f"{l}a:" if vm0 else ""}
    s_barrier
    s_cbranch_scc1 {l}
    {pre}
    s_mov_b64 exec, 1
    {c.opt.get('flag_op', 'buffer_store_dword')} v5, v4, {SRD_WS}, s{sfl} offen {c.opt.get('flag_aux', 'sc1')}
    s_mov_b64 exec, -1
    {l}:
    """)
def poll(c, srdn, va, soff, mask, target, slp=0, x4=False):
    p = c.lab("poll"); d = c.lab("pd"); to = d
    if c.opt.get('diag'):
        to = c.lab("to")
        c.ool.append(f"""{to}:
        s_waitcnt vmcnt(0)
        s_lshl_b32 s62, s2, 2
        s_add_u32 s62, s62, s{sW}
        s_lshl_b32 s62, s62, 3
        s_add_u32 s62, s62, s{sPH}
        s_lshl_b32 s62, s62, 8
        s_add_u32 s62, s62, {WS_X2}
        v_or_b32 v7, 0x{0x40000000 if srdn == SRD_WS else 0x20000000:x}, v7
        v_lshlrev_b32 v6, 2, v{vLANE}
        buffer_store_dword v7, v6, {SRD_WS}, s62 offen sc1
        s_branch {d}""")
    return f"""
    {mask}
    s_mov_b32 s62, {SPIN}
    {p}:
    {"buffer_load_dwordx4 v[4:7]" if x4 else "buffer_load_dword v7"}, v{va}, {srdn}, {soff} offen {c.opt.get('poll_aux', 'sc1')}
    s_sub_u32 s62, s62, 1
    s_cbranch_scc1 {to}
    s_waitcnt vmcnt(0)
    {"v_min3_u32 v7, v5, v6, v7" if x4 else ""}
    {"v_min_u32 v7, v4, v7" if x4 else ""}
    {f"v_cmpx_gt_u32 vcc, {target}, v7" if c.opt.get('shrink', 0) else f"v_cmp_gt_u32 vcc, {target}, v7"}
    s_cbranch_vccnz {p}
    {d}:
    s_mov_b64 exec, -1
    """
def wait(c, va, mask, pre="", every=False, thr=None, x4=False):
    l = c.lab("wt")
    if not every: c.a(f"s_cmp_lg_u32 s{sW}, 0\ns_cbranch_scc1 {l}")
    if pre: c.a(pre)
    c.a(poll(c, SRD_WS, va, f"s{sFB}", mask, thr or f"s{sPH}", c.opt.get('slp', 0), x4))
    c.a(f"{l}:\ns_barrier")
M_ALL = "s_mov_b32 exec_hi, 0"
M_KH = f"s_and_b32 s62, s{sM}, 16\ns_lshl_b32 exec_lo, 0xffff, s62\ns_mov_b32 exec_hi, 0"
M_TH = f"s_and_b32 s62, s{sM}, 8\ns_lshl_b32 exec_lo, 0x00ff00ff, s62\ns_mov_b32 exec_hi, 0"
M_PAIR = f"s_xor_b32 s62, s{sM}, 16\ns_lshl_b32 exec_lo, 1, s62\ns_mov_b32 exec_hi, 0"

MIX = """s_lshr_b32 s33, s2, 2
    s_xor_b32 s33, s33, s2
    s_and_b32 s33, s33, 1
    s_mul_i32 s33, s33, 5
    s_xor_b32 s2, s2, s33"""
def mixcode(p):
    if tuple(p) == (0, 1, 2): return ""
    tab = sum(sum(((x >> p[i]) & 1) << i for i in range(3)) << (4*x) for x in range(8))
    return f"s_and_b32 s33, s2, 7\ns_lshl_b32 s33, s33, 2\ns_lshr_b32 s33, 0x{tab:x}, s33\ns_and_b32 s33, s33, 7\ns_andn2_b32 s2, s2, 7\ns_or_b32 s2, s2, s33"
def prolog(c):
    a = c.a
    kernel_begin(a, c.name)
    if c.ts: a("s_mov_b32 s97, 0\nv_mov_b32 v30, 0\nv_mov_b32 v31, 0")
    stamp(c)
    a(f"""
    s_cmp_ge_u32 s2, 256
    s_cbranch_scc1 {c.name}_end
    s_load_dwordx16 s[64:79], s[0:1], 0
    s_load_dwordx8 s[80:87], s[0:1], 64
    s_load_dwordx2 s[12:13], s[0:1], 96      ; ws
    {"s_mov_b32 s93, s2" if c.ts else ""}
    {mixcode(c.opt.get('perm', (0, 1, 2)))}
    v_lshrrev_b32 v1, 6, v0
    v_and_b32 v{vLANE}, 63, v0
    v_readfirstlane_b32 s{sW}, v1
    v_lshlrev_b32 v{vL16}, 4, v{vLANE}
    {code_touch(c, 251) if c.opt.get('pf_code', 2) == 2 else ""}
    s_mov_b32 s14, {256*MB if c.ts else WS_USED}
    s_mov_b32 s15, 0x20000
    s_mov_b32 s{sMASK}, 0xffff0000
    """)
def prolog2(c):
    kb = c.opt.get('kb', 3)
    c.a(f"""
    {"s_andn2_b32 s40, 1, s2" if c.opt.get('swap', 1) else "s_and_b32 s40, s2, 1"}
    s_lshl_b32 s40, s40, 2
    s_bfe_u32 s{sTB}, s2, 0x20003
    s_add_u32 s{sTB}, s{sTB}, s40
    s_bfe_u32 s40, s2, 0x20001
    s_lshl_b32 s40, s40, 3
    s_lshr_b32 s{sM}, s2, 5
    s_add_u32 s{sM}, s{sM}, s40
    s_lshl_b32 s{sG8}, s{sTB}, 5
    s_bfe_u32 s40, s{sM}, 0x10003
    s_lshl_b32 s40, s40, 4
    s_add_u32 s{sG8}, s{sG8}, s40
    s_lshr_b32 s40, s{sM}, 4
    s_lshl_b32 s40, s40, {kb}
    s_add_u32 s{sG8}, s{sG8}, s40
    s_and_b32 s40, s{sM}, {(1 << kb) - 1}
    s_add_u32 s{sG8}, s{sG8}, s40
    s_and_b32 s40, s{sM}, {7 & ~((1 << kb) - 1)}
    s_lshl_b32 s40, s40, 1
    s_add_u32 s{sG8}, s{sG8}, s40
    s_mov_b32 s{sLAY}, 0
    s_mov_b32 s{sLB}, {WS_L0}
    s_mov_b32 s{sPH}, 0
    s_mov_b32 s{sFB}, {WS_FL}
    s_lshl_b32 s{sFL}, s2, 7
    s_add_u32 s{sFL}, s{sFL}, s{sFB}
    s_cmp_lt_u32 s{sW}, 2
    s_cselect_b32 s8, s78, s80
    s_cselect_b32 s9, s79, s81
    s_mov_b32 s10, {D*F*2}
    s_mov_b32 s11, 0x20000
    """)
    srd(c.a, 16, 82, D*F*2); srd(c.a, 20, 84, S*D*2)

def epilog(c):
    ts_dump(c)
    c.a(f"{c.name}_end:\ns_endpgm")
    for o in c.ool: c.a(o)

class Hz:
    def __init__(self, a): self.a = a; self.n = 0; self.mf = {}; self.va = {}; self.st = {}
    def need(self, kind, rd, wr):
        w = 0
        for r in list(rd) + list(wr): w = max(w, self.mf.get(r, -99) + 9 - self.n)
        if kind == 'perm':
            for r in rd: w = max(w, self.va.get(r, -99) + 3 - self.n)
        if kind != 'store':
            for r in wr: w = max(w, self.st.get(r, -99) + 3 - self.n)
        return w
    def mfma(self, s, d):
        self.a(s)
        for r in range(d, d+4): self.mf[r] = self.n
        self.n += 1
    def raw(self, s): self.a(s); self.n += 1
    def op(self, o):
        kind, s, rd, wr = o
        w = self.need(kind, rd, wr)
        if w > 0: self.a(f"s_nop {w-1}"); self.n += w
        self.a(s)
        if kind == 'store':
            for r in rd: self.st[r] = self.n
        else:
            for r in wr: self.va[r] = self.n
        self.n += 1
def fill(hz, ops, n, per, stop=None):
    for i in range(per):
        if not ops or ops[0][0] >= n + 1: return
        if stop and stop(ops[0]): return
        w = hz.need(ops[0][1][0], ops[0][1][2], ops[0][1][3])
        if w <= 0: hz.op(ops.pop(0)[1])
        else:
            k = min(w, per - i)
            hz.a(f"s_nop {k-1}"); hz.n += k
            if k == per - i: return
def o_mul(d, x, y): return ('valu', f"v_mul_f32 v{d}, v{x}, v{y}", [x, y], [d])
def o_cvt(d, x): return ('valu', f"v_cvt_pk_bf16_f32 v{d}, v{x}, v{x+1}", [x, x+1], [d])
def o_sw(n, x, y): return ('perm', f"v_permlane{n}_swap_b32 v{x}, v{y}", [x, y], [x, y])
def o_st(s, r): return ('store', s, list(range(r, r+4)), [])
def o_s(s): return ('salu', s, [], [])


def unpack(a, dst, src, n):
    for j in range(n):
        a(f"v_lshlrev_b32 v{dst+2*j}, 16, v{src+j}\nv_and_b32 v{dst+2*j+1}, s{sMASK}, v{src+j}")

def code_touch(c, dst=27, r=4):
    l = c.lab("pc")
    return f"""
    s_lshr_b32 s37, s2, 3
    s_lshl_b32 s37, s37, 2
    s_add_u32 s37, s37, s{sW}
    s_mul_i32 s37, s37, 3
    v_min_u32 v{r}, 2, v{vLANE}
    v_add_u32 v{r}, s37, v{r}
    v_lshlrev_b32 v{r}, 7, v{r}
    s_getpc_b64 s[50:51]
    {l}:
    s_sub_u32 s50, s50, {l}-{c.name}
    s_subb_u32 s51, s51, 0
    v_min_u32 v{r}, {c.name}_last-{c.name}, v{r}
    v_mov_b32 v{r+1}, s51
    v_add_co_u32 v{r}, vcc, s50, v{r}
    s_nop 1
    v_addc_co_u32 v{r+1}, vcc, 0, v{r+1}, vcc
    {f'global_load_dword v{dst}, v[{r}:{r+1}], off' if dst else ''}
    """

sXCC, sLOC = 87, 86
def dual(c, bit, fn):
    if not (c.opt.get('loc', 0) >> bit) & 1:
        fn("sc1"); return
    o = c.lab("loc"); b = c.lab("lob")
    c.a(f"s_cbranch_scc1 {o}")
    fn("sc1")
    c.a(f"{b}:")
    main = c.a; c.a = Asm(); fn(c.opt.get('loc_aux', "")); t = c.a.text(); c.a = main
    c.ool.append(f"{o}:\n{t}s_branch {b}")
```

```python
from fcore import *
import fg1k
LDS_PK = LDS_RED + 1024
WS_WDP = 74*MB
CW = STAGE; C_O = 4192; C_U = 8320
A_LDS = LDS_PK
K_LDS = 16384
vQ = 232
def front(c):
    a = c.a; opt = c.opt
    K = 32; V = 60; TP = 76; KF = 92; TF = 148; T = 180; O = KF + 16
    ACC = 32; FA = 64; FB = 128; AD = 252
    vA = [225, 226, 227, 228]; vB = 26; vE = 27; vF0 = 28; vQA = 29; vSW, vSR, vY, vPF = 212, 213, 214, 224
    def fa(s, i): return FA + (s*8 + i)*4
    def fb(s, i): return FB + (s*8 + i)*4
    z = c.lab("nz")
    a(f"""
    v_and_b32 v4, 7, v0                    ; cg
    v_lshrrev_b32 v5, 3, v0
    s_and_b32 s33, s2, 7
    s_lshr_b32 s34, s2, 3
    s_lshr_b32 s35, s34, 4
    s_and_b32 s34, s34, 15                 ; cbk
    s_lshl_b32 s33, s33, 1
    s_add_u32 s33, s33, s35
    s_add_u32 s33, s33, s34
    s_and_b32 s33, s33, 15                 ; tokblk
    s_lshl_b32 s35, s33, 18
    s_lshl_b32 s36, s34, 7
    s_add_u32 s35, s35, s36
    v_lshlrev_b32 v6, 13, v5
    v_lshl_add_u32 v6, v4, 4, v6
    v_add_u32 v11, s35, v6
    v_add_u32 v12, 4096, v11
    v_lshrrev_b32 v7, 3, v{vLANE}
    v_lshlrev_b32 v6, 11, v7
    v_lshl_add_u32 v6, v4, 4, v6
    s_lshl_b32 s36, s{sW}, 16
    s_add_u32 s35, s35, s36
    v_add_u32 v9, s35, v6
    v_cmp_lt_u32 vcc, 4, v7
    v_subrev_u32 v8, 16384, v9
    v_bfrev_b32 v6, 1
    s_mul_i32 s52, s{sW}, {STAGE}
    v_cndmask_b32 v8, v6, v8, vcc          ; k rows -3..-1
    s_add_u32 s52, s52, {K_LDS}
    s_mov_b32 m0, s52
    s_mov_b32 s53, {16384-1024}
    s_mov_b32 s54, {2*(16384-1024)}
    s_mov_b32 s55, {3*(16384-1024)}
    s_lshl_b32 s36, s34, 9
    v_add_u32 v10, s36, v{vL16}
    v_mov_b64 v[16:17], 0
    v_mov_b64 v[18:19], 0
    s_mov_b32 s90, {D*8}
    s_mov_b32 s91, 0x20000
    s_mov_b32 s26, {S*D*2}
    s_mov_b32 s27, 0x20000
    s_mov_b32 s30, {S*D*2}
    s_mov_b32 s31, 0x20000
    s_lshl_b32 s46, s34, 10
    s_add_u32 s46, s46, {WS_FL}
    s_add_u32 s47, s46, {128*128}
    s_or_b32 s48, s33, s{sW}
    s_waitcnt lgkmcnt(0)
    s_mov_b64 s[88:89], s[70:71]
    s_mov_b64 s[24:25], s[66:67]
    s_mov_b64 s[28:29], s[68:69]
    s_cbranch_scc1 {z}
    buffer_store_dwordx4 v[16:19], v{vL16}, {SRD_WS}, s46 offen sc1
    buffer_store_dwordx4 v[16:19], v{vL16}, {SRD_WS}, s47 offen sc1
    {z}:
    buffer_load_dwordx4 v10, s[88:91], 0 offen lds
    s_add_u32 m0, s52, 1024
    s_lshl_b32 s49, s34, 2
    buffer_load_dwordx4 v8, {SRD_T}, 0 offen nt lds
    s_add_u32 m0, s52, 2048
    s_add_u32 s49, s49, 64
    """)
    for i in range(4): a(f"buffer_load_dwordx4 v9, {SRD_T}, {['0','s53','s54','s55'][i]} offen offset:{1024*i} nt lds")
    if opt.get('kbar', 1): a("s_barrier")
    for i in range(4): a(f"buffer_load_dwordx4 v[{V+4*i}:{V+4*i+3}], v{11+(i>>1)}, {SRD_T2}, 0 offen offset:{2048*(i&1)} nt")
    NX = 0
    if opt.get('sta'): stamp(c)
    if opt.get('pf_code', 2) == 1:
        NX = 1
        a(f"""
        s_lshr_b32 s37, s2, 3
        s_lshl_b32 s37, s37, 2
        s_add_u32 s37, s37, s{sW}
        v_and_b32 v6, 1, v0
        v_lshl_add_u32 v6, s37, 1, v6
        v_lshlrev_b32 v6, 7, v6
        s_getpc_b64 s[50:51]
        {c.name[:6]}_pc:
        v_min_u32 v6, {c.name}_last-{c.name[:6]}_pc, v6
        v_mov_b32 v7, s51
        v_add_co_u32 v6, vcc, s50, v6
        s_nop 1
        v_addc_co_u32 v7, vcc, 0, v7, vcc
        global_load_dword v251, v[6:7], off
        """)
    if opt.get('tlb', 0):
        NX += 1
        sh = opt['tlb']
        a(f"""
        s_lshr_b32 s37, s2, 3
        s_cmp_lt_u32 s37, 16
        s_cselect_b64 s[40:41], s[82:83], s[84:85]
        s_cselect_b32 s42, {D*F*2}, s26
        s_cmp_eq_u32 s{sW}, 1
        s_cselect_b64 s[40:41], s[78:79], s[40:41]
        s_cselect_b32 s42, {D*F*2}, s42
        s_cmp_eq_u32 s{sW}, 3
        s_cselect_b64 s[40:41], s[80:81], s[40:41]
        s_cselect_b32 s42, {D*F*2}, s42
        s_cmp_eq_u32 s{sW}, 0
        s_cselect_b64 s[40:41], s[12:13], s[40:41]
        s_cselect_b32 s42, {WS_USED}, s42
        s_cselect_b32 s38, 31, 15
        s_mov_b32 s43, 0x20000
        s_and_b32 s37, s37, s38
        s_add_u32 s38, s38, 1
        v_min_u32 v6, {(1 << (26 - sh)) - 1}, v{vLANE}
        v_mul_u32_u24 v6, s38, v6
        v_add_lshl_u32 v6, v6, s37, {sh}
        buffer_load_dword v251, v6, s[40:43], 0 offen nt
        """)
    z = c.lab("nz")
    a(f"""
    s_mov_b64 s[88:89], s[86:87]
    s_mov_b32 s90, 256
    s_cmp_lg_u32 s48, 0
    s_cbranch_scc1 {z}
    v_mov_b32 v20, 1
    s_waitcnt vmcnt({10+NX})
    s_mov_b64 exec, 1
    buffer_store_dword v20, v16, s[88:91], s49 offen sc1
    s_mov_b64 exec, -1
    {z}:
    s_lshl_b32 s41, s34, 4
    s_add_u32 s41, s41, s33
    s_lshl_b32 s42, s41, 2
    s_add_u32 s42, s42, s{sW}              ; channel d
    s_lshr_b32 s44, s42, 1
    s_lshl_b32 s44, s44, 2
    s_load_dword s45, s[74:75], s44
    s_mul_i32 s47, s{sW}, {CW}
    s_mov_b64 s[24:25], s[72:73]
    s_mov_b64 s[28:29], s[64:65]
    """)
    prolog2(c)
    if opt.get('q_lds', 0):
        qa = f"""v_lshl_add_u32 v6, v4, 9, v6
        v_lshrrev_b32 v7, 1, v4
        v_lshl_add_u32 v6, v7, 5, v6
        v_add_u32 v215, s52, v6
        v_lshrrev_b32 v7, 5, v{vLANE}
        v_and_b32 v6, 0x1f0, v{vL16}
        v_lshl_add_u32 v{vQA}, v7, 11, v6"""
    else: qa = f"v_lshl_add_u32 v{vQA}, v4, 11, v6"
    if opt.get('t_x', 1):
        wt = f"""s_lshr_b32 s58, s2, 3
        s_lshl_b32 s58, s58, 1
        s_and_b32 s38, s{sW}, 1
        s_add_u32 s58, s58, s38
        s_mul_i32 s58, s58, 7168
        s_lshr_b32 s38, s{sM}, 3
        s_mul_i32 s38, s38, 1792
        s_add_u32 s58, s58, s38
        s_mov_b32 s83, s58
        v_min_u32 v6, 13, v{vLANE}
        v_lshlrev_b32 v{vPF}, 7, v6"""
    else:
        wt = f"""s_lshl_b32 s58, s2, 1
        s_and_b32 s38, s{sW}, 1
        s_add_u32 s58, s58, s38
        s_mul_i32 s58, s58, {7*128}
        v_min_u32 v6, 6, v{vLANE}
        v_lshlrev_b32 v{vPF}, 7, v6"""
    if opt.get('yflag', 1):
        yf = f"""v_lshrrev_b32 v6, 1, v{vLANE}
        v_and_b32 v7, 16, v{vL16}
        v_lshl_add_u32 v6, v6, 10, v7
        v_add_u32 v250, 64, v6
        s_lshr_b32 s85, s2, 3
        s_lshl_b32 s85, s85, 10
        s_and_b32 s37, s2, 7
        s_lshl_b32 s37, s37, 2
        s_add_u32 s85, s85, s37
        s_add_u32 s85, s85, {WS_FL + 64}"""
    else: yf = f"v_lshlrev_b32 v250, 7, v0\ns_mov_b32 s85, s{sFL}"
    t1 = opt.get('t1', 35)
    rot = "s_lshr_b32 s38, s2, 3\n"
    for k in range(7):
        rot += f"""s_and_b32 s39, s38, 15
        s_lshl_b32 s39, s39, 7
        s_add_u32 s{64+k}, s{64+k}, s39
        s_bfe_u32 s39, s38, 0x30001
        s_mul_i32 s39, s39, {112*8192}
        s_add_u32 s{76+k}, s59, s39
        s_and_b32 s39, s38, 1
        s_lshl_b32 s39, s39, 12
        s_add_u32 s{76+k}, s{76+k}, s39
        s_lshl_b32 s39, s32, {15 if k < 4 else 14 if k < 6 else 13}
        s_add_u32 s39, s39, {(k if k < 4 else 28 + k if k < 6 else 48)*8192}
        s_add_u32 s{76+k}, s{76+k}, s39
        s_add_u32 s38, s38, {opt.get('pk_rot', 1)}
        """
    a(f"""
    s_lshl_b32 s84, s42, 12
    v_lshrrev_b32 v7, 3, v{vLANE}
    v_lshlrev_b32 v7, 9, v7
    v_lshl_add_u32 v7, v4, 4, v7
    v_add_u32 v10, s52, v7
    v_lshl_add_u32 v21, v4, 6, s52
    v_mul_u32_u24 v6, 2064, v4
    v_sub_u32 v7, 31, v5
    v_lshl_add_u32 v6, v7, 3, v6
    v_add_u32 v13, {A_LDS}, v6
    v_lshrrev_b32 v7, 7, v0
    v_add_u32 v7, v7, v0
    v_lshlrev_b32 v7, 4, v7
    v_add_u32 v14, {A_LDS}, v7
    v_lshrrev_b32 v6, 4, v0
    v_and_b32 v7, 15, v0
    v_lshl_add_u32 v249, v7, 2, 64
    v_lshlrev_b32 v7, 4, v7
    v_lshl_add_u32 v15, v6, 12, v7         ; u^T store
    s_lshl_b32 s36, s34, 18
    s_sub_u32 s37, 15, s33
    s_lshl_b32 s37, s37, 8
    s_add_u32 s36, s36, s37
    s_add_u32 s36, s36, {WS_UT}
    v_lshrrev_b32 v5, 3, v{vLANE}
    v_lshl_add_u32 v6, v5, 7, v4
    v_lshlrev_b32 v6, 7, v6
    s_lshl_b32 s37, s34, 10
    v_add_u32 v{vF0}, s37, v6
    {yf}
    v_and_b32 v6, 3, v5
    v_lshlrev_b32 v7, 5, v4
    v_lshl_or_b32 v6, v6, 1, v7
    s_and_b32 s37, s2, 0x19
    v_or_b32 v6, s37, v6
    v_lshlrev_b32 v{vFL}, 7, v6
    v_lshlrev_b32 v6, 4, v5
    {qa}
    s_lshl_b32 s56, s{sG8}, 14
    s_lshl_b32 s38, s{sW}, 9
    s_add_u32 s56, s56, s38
    v_lshlrev_b32 v6, 4, v4
    v_lshl_add_u32 v{vY}, v5, 15, v6
    s_lshl_b32 s57, s{sW}, 19
    s_lshl_b32 s38, s41, 7
    s_add_u32 s57, s57, s38
    s_add_u32 s57, s57, {WS_Y}
    v_bfe_u32 v6, v{vLANE}, 1, 2
    v_mul_u32_u24 v6, 160, v6
    v_lshl_add_u32 v6, v5, 3, v6
    v_and_b32 v7, 1, v{vLANE}
    v_lshl_add_u32 v6, v7, 2, v6
    s_mul_i32 s37, s{sW}, 640
    v_add_u32 v{vSR}, s37, v6
    v_add_u32 v229, {2*CW}, v{vSR}
    v_min_u32 v6, 33, v{vLANE}
    v_lshlrev_b32 v6, 4, v6
    v_cmp_lt_u32 vcc, 1, v{vLANE}
    v_mov_b32 v7, {C_O-32-32}
    v_mov_b32 v5, {C_U+4096-64}
    v_cndmask_b32 v7, 0, v7, vcc
    v_cmp_lt_u32 vcc, 3, v{vLANE}
    v_add_u32 v{vE}, s47, v{vL16}
    v_and_b32 v4, 15, v{vLANE}             ; b
    v_cndmask_b32 v7, v7, v5, vcc
    v_add3_u32 v6, v6, v7, s47
    ds_write_b128 v6, v[16:19]
    v_lshrrev_b32 v5, 4, v{vLANE}          ; q
    v_add_u32 v6, 1, v4
    v_lshrrev_b32 v6, 1, v6
    v_lshl_add_u32 v6, v5, 2, v6
    v_lshlrev_b32 v6, 2, v6
    v_and_b32 v7, 1, v4
    v_xor_b32 v7, 1, v7
    v_mul_u32_u24 v7, {C_O-28}, v7
    v_add3_u32 v{vA[0]}, v6, v7, s47
    v_add_u32 v{vA[1]}, 1024, v{vA[0]}
    v_add_u32 v{vA[2]}, 2048, v{vA[0]}
    v_add_u32 v{vA[3]}, 3072, v{vA[0]}
    v_lshlrev_b32 v6, 5, v4
    v_lshlrev_b32 v7, 4, v5
    v_sub_u32 v6, v7, v6
    s_add_u32 s37, s47, {C_U + 2*(S-16) - 512*7}
    v_add_u32 v{vB}, s37, v6
    v_mul_u32_u24 v6, 160, v5
    v_lshl_add_u32 v6, v4, 3, v6
    v_add_u32 v{vSW}, s47, v6
    {wt}
    v_lshl_add_u32 v6, v5, 3, v4
    v_sub_u32 v6, 15, v6
    v_and_b32 v7, 1, v6
    v_lshlrev_b32 v7, 4, v7
    v_ashrrev_i32 v6, 1, v6
    s_and_b32 s37, s42, 1
    s_lshl_b32 s37, s37, 4
    s_waitcnt lgkmcnt(0)
    s_lshr_b32 s45, s45, s37
    s_and_b32 s45, s45, 0xffff
    v_lshlrev_b32 v7, v7, s45
    """)
    for i in range(4):
        a(f"v_cmp_eq_u32 vcc, {i}, v6\ns_nop 1\nv_cndmask_b32 v{AD+i}, 0, v7, vcc")
    amain = a; a = Asm()
    a(f"""
    s_and_b32 s37, s2, 7
    s_lshl_b32 s37, s37, 1
    s_lshr_b32 s38, s2, 7
    s_add_u32 s37, s37, s38                ; P
    s_mul_i32 s38, s37, {224*2048}
    s_lshr_b32 s59, s37, 3
    s_mul_i32 s59, s59, {56*8192}
    s_and_b32 s32, s37, 7
    s_lshl_b32 s39, s{sW}, 10
    s_add_u32 s59, s59, s39
    s_add_u32 s59, s59, {WS_WDP}
    s_and_b32 s35, s{sW}, 1
    s_lshr_b32 s37, s{sW}, 1
    s_lshl_b32 s39, s{sW}, 13
    s_add_u32 s64, s39, s38
    s_add_u32 s65, s64, {64*2048}
    s_add_u32 s66, s64, {112*2048}
    s_add_u32 s67, s64, {176*2048}
    s_lshl_b32 s39, s37, 17
    s_lshl_b32 s68, s35, 13
    s_add_u32 s39, s39, s68
    s_add_u32 s39, s39, s38
    s_add_u32 s68, s39, {32*2048}
    s_add_u32 s69, s39, {144*2048}
    s_mul_i32 s39, s37, {112*2048}
    s_lshl_b32 s70, s35, 14
    s_add_u32 s39, s39, s70
    s_add_u32 s39, s39, s38
    s_add_u32 s70, s39, {48*2048}
    {rot}
    s_lshl_b32 s71, s{sW}, 10
    s_add_u32 s71, s71, {LDS_PK}
    v_lshrrev_b32 v6, 5, v{vLANE}
    v_bfe_u32 v7, v{vLANE}, 3, 2
    v_and_b32 v216, 0x70, v{vL16}
    v_lshl_add_u32 v7, v7, 11, v216
    v_lshl_add_u32 v216, v6, 15, v7
    v_lshl_add_u32 v217, v6, 14, v7
    v_lshl_add_u32 v218, v6, 13, v7
    v_bfe_u32 v6, v{vLANE}, 2, 2
    v_lshrrev_b32 v5, 4, v{vLANE}
    v_lshl_add_u32 v6, v5, 3, v6
    v_and_b32 v7, 0x30, v{vL16}
    v_lshl_add_u32 v6, v6, 7, v7
    s_lshl_b32 s37, s37, 6
    s_lshl_b32 s35, s35, 3
    s_add_u32 s37, s37, s35
    s_add_u32 s37, s37, {LDS_PK}
    v_add_u32 v219, s37, v6
    """)
    fg1k.g1_waddr(a)
    later = a.text(); a = amain
    stamp(c, "setup")
    a(f"s_waitcnt vmcnt({9+NX})")
    for i in range(4): a(f"ds_read_b128 v[{TP+4*i}:{TP+4*i+3}], v21 offset:{16*i}")
    for ch in range(8):
        if ch % 2 == 0: a(f"s_waitcnt lgkmcnt({3-ch//2})")
        for h in range(2):
            r = TP + 2*ch + h
            a(f"v_lshlrev_b32 v{TF+(2*h)*8+ch}, 16, v{r}\nv_and_b32 v{TF+(2*h+1)*8+ch}, s{sMASK}, v{r}")
    ep = opt.get('e_pos', 3)
    eld = "s_add_u32 m0, s47, 32\ns_nop 0\n" + "".join(f"buffer_load_dwordx4 v{vL16}, {SRD_T}, s84 offen offset:{1024*i} nt lds\n" for i in range(4))
    if ep == -3: a("s_barrier")
    if ep <= -2: a(eld); NX += 4
    a(f"s_waitcnt vmcnt({4+NX})")
    if opt.get('sta'): stamp(c)
    if ep == -1: a(eld); NX += 4
    for i in range(7): a(f"ds_read_b128 v[{K+4*i}:{K+4*i+3}], v10 offset:{1024+(5+i)*128}")
    for i in range(7):
        a(f"s_waitcnt lgkmcnt({6-i})")
        unpack(a, KF+8*i, K+4*i, 4)
    for t in range(4):
        for tap in range(4):
            for p in range(4):
                d = T + 8*t + 2*p; kk = KF + 8*(t+3-tap) + 2*p; w = TF + 8*tap + 2*p
                if tap == 0: a(f"v_pk_mul_f32 v[{d}:{d+1}], v[{kk}:{kk+1}], v[{w}:{w+1}]")
                else: a(f"v_pk_fma_f32 v[{d}:{d+1}], v[{kk}:{kk+1}], v[{w}:{w+1}], v[{d}:{d+1}]")
    if opt.get('sta'): stamp(c)
    for t in range(4):
        a(f"s_waitcnt vmcnt({3-t+NX})")
        if opt.get('sta') and t == 3: stamp(c)
        if t == ep: a(eld); NX += 4
        unpack(a, KF, V+4*t, 4)
        for p in range(4):
            d = T + 8*t + 2*p
            a(f"v_pk_mul_f32 v[{d}:{d+1}], v[{d}:{d+1}], v[{KF+2*p}:{KF+2*p+1}]")
    for ch in range(8):
        a(f"v_cvt_pk_bf16_f32 v{O+2*ch}, v{T+24+ch}, v{T+16+ch}\nv_cvt_pk_bf16_f32 v{O+2*ch+1}, v{T+8+ch}, v{T+ch}")
        a(f"ds_write_b64 v13, v[{O+2*ch}:{O+2*ch+1}] offset:{256*ch}")
    a("s_waitcnt lgkmcnt(0)\ns_barrier")
    stamp(c, "A done")
    for i in range(4): a(f"ds_read_b128 v[{K+4*i}:{K+4*i+3}], v14 offset:{i*2*2064}")
    for i in range(4):
        a(f"s_waitcnt lgkmcnt({3-i})")
        a(f"buffer_store_dwordx4 v[{K+4*i}:{K+4*i+3}], v15, {SRD_WS}, s36 offen sc1")
        a(f"s_add_u32 s36, s36, {16*4096}")
    a(f"buffer_load_dword v20, v16, s[88:91], s49 offen sc1")
    wa = opt.get('wa', 'Q'); nwa = 0
    qld = [f"buffer_load_dwordx4 v[{vQ+4*i}:{vQ+4*i+3}], v{vQA}, {SRD_T2}, s56 offen offset:{128*i} {opt.get('q_aux', 'nt')}" for i in range(4)]
    qlds = opt.get('q_lds', 0)
    if qlds: qld = [f"s_add_u32 m0, s52, {1056*i}\ns_add_u32 s37, s56, {4096*i}\nbuffer_load_dwordx4 v{vQA}, {SRD_T2}, s37 offen nt lds" for i in range(4)]
    tld = f"buffer_load_dword v251, v{vPF}, {SRD_W}, s58 offen"
    if 'q' in wa:
        for l in qld: a(l)
        nwa += 4
    if 't' in wa: a(tld); nwa += 1
    if opt.get('sta'): stamp(c)
    if ep == 9: a(eld)
    else: a(f"s_waitcnt vmcnt({5+nwa})")
    if opt.get('sta'): stamp(c)
    if ep == 9:
        ok = c.lab("boot")
        signal(c, vm=4, pre=f"v_cmp_ne_u32 vcc, 0, v20\ns_cbranch_vccnz {ok}\n" + poll(c, "s[88:91]", 4, "s49", "", 1) + f"{ok}:")
        stamp(c, "sig0")
        a(later); a("s_waitcnt vmcnt(0)")
    HK = 96
    for i in range(4):
        a(f"ds_read_b128 v[{HK+4*i}:{HK+4*i+3}], v{vE} offset:{32+1024*i}\nds_read_b32 v{HK+16+i}, v{vE} offset:{28+1024*i}")
    for i in range(4):
        r = HK + 4*i; o = 160 + 4*i
        a(f"s_waitcnt lgkmcnt({6-i})")
        a(f"v_alignbit_b32 v{o}, v{r}, v{HK+16+i}, 16")
        for j in range(1, 4): a(f"v_alignbit_b32 v{o+j}, v{r+j}, v{r+j-1}, 16")
        a(f"ds_write_b128 v{vE}, v[{o}:{o+3}] offset:{C_O+1024*i}")
    def opA(j, i): return f"a[{(j*4+i)*4}:{(j*4+i)*4+3}]" if i < 4 else f"v[{fa(j&1,i)}:{fa(j&1,i)+3}]"
    def opB(j, i): return f"a[{128+(j*4+i)*4}:{128+(j*4+i)*4+3}]" if i < 4 else f"v[{fb(j&1,i)}:{fb(j&1,i)+3}]"
    def rdA(j, i):
        o = (i & 1)*128 + 16*j; p, r = ("a", (j*4+i)*4) if i < 4 else ("v", fa(j&1, i))
        return [f"ds_read2_b32 {p}[{r}:{r+1}], v{vA[i>>1]} offset0:{o} offset1:{o+1}", f"ds_read2_b32 {p}[{r+2}:{r+3}], v{vA[i>>1]} offset0:{o+2} offset1:{o+3}"]
    def rdB(j, i): return f"ds_read_b128 {opB(j, i)}, v{vB} offset:{512*(7-i)+64*j}"
    def rd2(j): return [rdB(j, i) for i in range(4, 8)] + [l for i in range(4, 8) for l in rdA(j, i)]
    ok = c.lab("boot")
    signal(c, vm=nwa, pre=f"v_cmp_ne_u32 vcc, 0, v20\ns_cbranch_vccnz {ok}\n" + poll(c, "s[88:91]", 4, "s49", "", 1) + f"{ok}:")
    stamp(c, "sig0")
    if 'Q' in wa:
        for l in qld: a(l)
    LA = [l for j in range(8) for i in range(4) for l in rdA(j, i)]
    LL = [l for l in later.split("\n") if l.strip() and not l.strip().startswith(";")]
    for k, l in enumerate(LL):
        a(l)
        if k % 2 == 0 and LA: a(LA.pop(0))
    for l in LA: a(l)
    pkl = lambda k: [f"s_add_u32 m0, s71, {4096*k}", f"buffer_load_dwordx4 v{216 if k < 4 else 217 if k < 6 else 218}, {SRD_WD}, s{64+k} offen {opt.get('pk_aux', 'nt')} lds"]
    ns0 = opt.get('pk_s0', 0)
    for k in range(ns0): a(pkl(k)[0]); a("s_nop 0"); a(pkl(k)[1])
    for i in range(opt.get('t_s0', 2)): a(tld); a(f"s_add_u32 s58, s58, {64*7168}")
    a(f"""
    s_add_u32 s84, s84, {WS_UT}
    s_lshl_b32 s37, s{sW}, 29
    v_mov_b32 v230, s37
    v_mov_b32 v231, 2
    """)
    wait(c, vF0, "s_mov_b64 exec, 0xffff")
    stamp(c, "wait0")
    a(f"s_add_u32 m0, s47, {C_U}\ns_mov_b32 s38, 0x05040100")
    for i in (3, 2, 1, 0):
        a(f"buffer_load_dwordx4 v{vL16}, {SRD_WS}, s84 offen offset:{1024*i} sc1 lds")
    a("s_mov_b32 s39, 0x07060302\ns_waitcnt vmcnt(3)")
    a(rdB(0, 0)); a(rdB(0, 1)); a("s_waitcnt vmcnt(2)"); a(rdB(0, 2)); a(rdB(0, 3))
    for i in range(4): a(rdB(1, i))
    stamp(c, "ur")
    side = {}
    def put(pos, l): side.setdefault(pos, []).append(l)
    for i, p in enumerate(opt.get('t_pos', [225])):
        put(p, tld); put(p+1, f"s_add_u32 s58, s58, {64*7168}")
    p = opt.get('q_pos', 40)
    if 'q' not in wa.lower():
        for l in qld: put(p, l); p += opt.get('q_dp', 20)
    p = opt.get('pk_pos', 6)
    for k in range(ns0, 7):
        put(p-1, f"s_add_u32 m0, s71, {4096*k}")
        put(p, f"buffer_load_dwordx4 v{216 if k < 4 else 217 if k < 6 else 218}, {SRD_WD}, s{64+k} offen {opt.get('pk_aux', 'nt')} lds"); p += opt.get('pk_dp', 40)
    if qlds:
        for i in range(4): put(80 + 26*4 + 14 + i, f"ds_read_b128 v[{vQ+4*i}:{vQ+4*i+3}], v215 offset:{128*i}")
    put(251, f"buffer_load_dword v248, v249, s[88:91], 0 offen sc1")
    STG = 12992; SR, SO = FA, FB
    def stage_rd(off): return [f"ds_read_b32 v{SR+4*g+ch}, v{vSR if ch < 2 else 229} offset:{(ch&1)*CW + off + g*64}" for g in range(2) for ch in range(4)]
    def stage_st(g):
        r = SR + 4*g; o = SO + 4*g
        return [f"v_perm_b32 v{o}, v{r+1}, v{r}, s38", f"v_perm_b32 v{o+1}, v{r+3}, v{r+2}, s38", f"v_perm_b32 v{o+2}, v{r+1}, v{r}, s39", f"v_perm_b32 v{o+3}, v{r+3}, v{r+2}, s39",
                f"buffer_store_dwordx4 v[{o}:{o+3}], v{vY}, {SRD_WS}, s57 offen sc1", f"s_add_u32 s57, s57, {(8 if g == 0 else 56)*32768}"]
    hz = Hz(a); ops = []; pos = 0; nvm = [0]
    def emit(l):
        if l.startswith("buffer_") or l.startswith("global_"): nvm[0] += 1
        hz.raw(l)
    def mm(n, A, B, zero=False):
        cc = ACC + 4*n
        hz.mfma(f"{MF} v[{cc}:{cc+3}], {A}, {B}, " + ("0" if zero else f"v[{cc}:{cc+3}]"), cc)
    def out_ops(n, k, off):
        cc = ACC + 4*n
        return [(k, o_cvt(cc, cc)), (k, o_cvt(cc+1, cc+2)), (k, ('salu', f"ds_write_b64 v{vSW}, v[{cc}:{cc+1}] offset:{off + 640*(n & 3)}", [], []))]
    ADs = f"v[{AD}:{AD+3}]"
    for n in range(4):
        hz.raw(f"s_waitcnt lgkmcnt({7-n})"); mm(n, ADs, opB(0, n), True)
    for j in range(8):
        if j: hz.raw(f"s_waitcnt lgkmcnt({4 if j < 7 else 6})")
        if j == 2: hz.raw(f"s_waitcnt vmcnt({nvm[0]})")
        R = [rdB(j+2, i) for i in range(4)] if j < 6 else rd2(0)[6*(j-6):6*(j-5)]
        for k, (n, i) in enumerate([(n, i) for n in range(4) for i in range(n+1)]):
            mm(n, opA(j, i), opB(j, n-i))
            if k < len(R): hz.raw(R[k])
            for l in side.get(pos, []): emit(l)
            pos += 1
    sigj = opt.get('y_sig', 7); ys = opt.get('y_st', 2)
    if ys >= 6: sigj = 99
    for j in range(8):
        hz.raw("s_waitcnt lgkmcnt(0)" if j != sigj else f"s_waitcnt vmcnt({nvm[0] - mark}) lgkmcnt(0)")
        if j == 0:
            for n in range(4, 8): mm(n, ADs, opB(0, n), True)
            for n in range(4): ops += out_ops(n, 0, STG)
        R = rd2(j+1) if j < 7 else []
        if j == ys - 1: R = R + stage_rd(STG)
        if j == ys: R = R + stage_st(0) + stage_st(1)
        for k, (n, i) in enumerate([(n, i) for n in range(4, 8) for i in range(n+1)]):
            mm(n, opA(j, i), opB(j, n-i))
            if k == 0 and j in (1, sigj): hz.raw("s_barrier")
            if k == 1 and j == sigj: emit(f"buffer_store_dword v231, v230, {SRD_WS}, s85 offen sc1")
            if k < len(R):
                emit(R[k])
                if R[k].startswith("buffer_store"): mark = nvm[0]
            for l in side.get(pos, []): emit(l)
            if j == 7 and n == i: ops += out_ops(n, k, 0)
            if j in (0, 7): fill(hz, ops, k, 1 if k < len(R) else 2)
            pos += 1
        if j == 0: assert not ops
    stamp(c, "conv")
    for _, o in ops: hz.op(o)
    a(f"s_add_u32 s{sPH}, s{sPH}, 1\ns_waitcnt lgkmcnt(0)\ns_barrier")
    for l in stage_rd(0): a(l)
    for g in range(2):
        a(f"s_waitcnt lgkmcnt({4-4*g})")
        for l in stage_st(g): a(l)
    stamp(c, "y out")

TOUCH2 = f"buffer_load_dword v251, v224, {SRD_W}, s58 offen\ns_add_u32 s58, s58, {64*7168}"
PKR = [192, 196, 200, 204, 208, 212, 220]
def repack_store(k): return f"buffer_store_dwordx4 v[{PKR[k]}:{PKR[k]+3}], v{vL16}, {SRD_WS}, s{76+k} offen sc1"
def repack(c, n):
    a = c.a
    for k in range(7):
        r = PKR[k]
        a(f"ds_read_b64_tr_b16 v[{r}:{r+1}], v219 offset:{4096*k}\nds_read_b64_tr_b16 v[{r+2}:{r+3}], v219 offset:{4096*k+512}")
    for k in range(n):
        a(f"s_waitcnt lgkmcnt({12-2*k})"); a(repack_store(k))
```

```python
from fcore import *
import fg2p
ACC1 = 32
def g1_acc(t, j): return ACC1 + (t*7 + j)*4
def g1_xf(k, t): return 112 + (t*2 + k)*4
def g1_wf(slot, j): return slot*28 + j*4
aPK = 176; LDS_PK = LDS_RED + 1024
g1_vXA = [8, 9]; g1_vWA = [[10,11,12,13],[14,15,16,17]]; g1_vDW = [19,20,21,22]; g1_vPF = [18, 23]
def g1_dx(slot):
    return [f"s_add_u32 m0, s42, {slot*STAGE}"] + [f"buffer_load_dwordx4 v{vL16}, {SRD_WS}, s40 offen offset:{1024*i} {LY.sc} lds" for i in range(4)] + ["s_add_u32 s40, s40, 16384"]
def g1_dw(slot):
    return [f"s_add_u32 m0, s43, {slot*STAGE}"] + [f"buffer_load_dwordx4 v{g1_vDW[i]}, {SRD_W}, s41 offen offset:{1024*i} lds" for i in range(4)] + [f"s_add_u32 s41, s41, {32*7168}"]
def g1_rw(slot):
    h = slot >> 1; so = (slot & 1)*STAGE; W = []
    for j in range(7):
        va = g1_vWA[h][j % 3] if j < 6 else g1_vWA[h][3]
        off = so + (UOFF if 3 <= j < 6 else 0); r = g1_wf(slot, j)
        W.append(f"ds_read_b64_tr_b16 a[{r}:{r+1}], v{va} offset:{off}")
        W.append(f"ds_read_b64_tr_b16 a[{r+2}:{r+3}], v{va} offset:{off+1024}")
    return W
def g1_rx(h, t):
    return [f"ds_read_b128 a[{g1_xf(k,t)}:{g1_xf(k,t)+3}], v{g1_vXA[h]} offset:{k*STAGE+t*1024}" for k in range(2)]
def w_stage(a, slot):
    o = g1_dw(slot); a(o[0]); a("s_nop 0")
    for l in o[1:]: a(l)

def g1_waddr(a):
    vDW = g1_vDW
    a(f"""
    s_and_b32 s44, s{sW}, 1
    s_lshr_b32 s45, s{sW}, 1
    s_and_b32 s46, s{sM}, 1
    s_mul_i32 s41, s44, {16*7168}
    s_mul_i32 s33, s{sM}, 224
    s_add_u32 s41, s41, s33
    s_lshl_b32 s33, s46, 5
    s_sub_u32 s41, s41, s33
    s_mov_b32 s92, s41
    s_mul_i32 s43, s45, {UOFF}
    s_lshl_b32 s33, s44, 12
    s_add_u32 s43, s43, s33
    s_add_u32 s43, s43, 16384
    v_lshrrev_b32 v1, 4, v{vLANE}          ; q
    v_bfe_u32 v4, v{vLANE}, 1, 3
    v_xor_b32 v4, v4, v1
    v_and_b32 v5, 1, v{vLANE}
    v_lshlrev_b32 v5, 4, v5
    v_mul_u32_u24 v6, 7168, v1
    v_add_u32 v6, v6, v5
    v_lshl_add_u32 v{vDW[0]}, v4, 5, v6
    v_xor_b32 v4, 4, v4
    v_lshl_add_u32 v{vDW[2]}, v4, 5, v6
    v_add_u32 v{vDW[1]}, {4*7168-1024}, v{vDW[0]}
    v_add_u32 v{vDW[3]}, {3*(4*7168-1024)}, v{vDW[2]}
    v_add_u32 v{vDW[2]}, {2*(4*7168-1024)}, v{vDW[2]}
    """)

def g1_pre(c):
    a = c.a; vDW = g1_vDW; vWA = g1_vWA; vXA = g1_vXA
    a(f"v_lshrrev_b32 v1, 4, v{vLANE}")
    a(f"""
    s_lshl_b32 s42, s{sW}, 12
    s_lshl_b32 s40, s{sTB}, 19
    s_add_u32 s40, s40, s42
    s_add_u32 s40, s40, s{sLB}
    s_lshl_b32 s33, s45, 13
    v_add_u32 v{vXA[0]}, s33, v{vL16}
    v_add_u32 v{vXA[1]}, {2*STAGE}, v{vXA[0]}
    v_bfe_u32 v4, v{vLANE}, 2, 2           ; r4
    v_and_b32 v5, 1, v1
    v_lshl_or_b32 v5, v5, 2, v4            ; sigma
    v_lshl_add_u32 v6, v1, 3, v4
    v_lshlrev_b32 v6, 8, v6
    v_add_u32 v6, 16384, v6
    v_and_b32 v7, 3, v{vLANE}
    v_lshl_add_u32 v1, v7, 3, v6
    s_lshl_b32 s33, s44, 2
    s_add_u32 s33, s33, s46
    """)
    for p in range(3):
        a(f"s_add_u32 s34, s33, {p}\nv_xor_b32 v4, s34, v5\nv_lshl_add_u32 v{vWA[0][p]}, v4, 5, v1")
    a(f"""
    s_add_u32 s34, s46, 3
    v_xor_b32 v4, s34, v5
    v_lshl_add_u32 v6, v4, 5, v6
    v_and_b32 v4, 1, v7
    v_lshl_add_u32 v6, v4, 3, v6
    v_lshrrev_b32 v4, 1, v7
    v_mul_u32_u24 v4, {UOFF}, v4
    s_lshl_b32 s34, s44, 4
    v_add3_u32 v{vWA[0][3]}, v6, v4, s34
    """)
    for p in range(4): a(f"v_add_u32 v{vWA[1][p]}, {2*STAGE}, v{vWA[0][p]}")
    d = c.opt.get('pf_dist', 2)
    who = c.opt.get('pf_who', 1)
    a(f"s_sub_u32 s34, s{sLAY}, 1")
    if who:
        a(f"""
        s_add_u32 s35, s{sM}, 1
        s_bfe_u32 s35, s35, 0x10001
        s_sub_u32 s35, s35, 1
        s_and_b32 s34, s34, s35
        s_bfe_u32 s36, s2, 0x20003
        s_bfe_u32 s35, s2, 0x20006
        s_lshl_b32 s35, s35, 2
        s_add_u32 s36, s36, s35
        """)
    else: a("s_lshr_b32 s36, s2, 3")
    a(f"""
    s_lshl_b32 s33, s36, 1
    s_add_u32 s33, s33, s44
    s_lshl_b32 s33, s33, 1
    s_and_b32 s35, s2, 1
    s_add_u32 s33, s33, s35
    s_mul_i32 s33, s33, {7168 << who}
    s_lshr_b32 s35, s{sM}, 3
    s_mul_i32 s35, s35, 1792
    s_add_u32 s33, s33, s35
    s_add_u32 s33, s33, {320*7168}
    v_lshlrev_b32 v4, 7, v{vLANE}
    v_cmp_lt_u32 vcc, 13, v{vLANE}
    v_add_u32 v5, s33, v4
    v_add_u32 v6, {7168-14*128}, v5
    v_cndmask_b32 v5, v5, v6, vcc
    s_and_b32 s33, s34, {14 << who}
    v_cmp_gt_u32 vcc, s33, v{vLANE}
    v_bfrev_b32 v6, 1
    s_nop 0
    v_cndmask_b32 v{g1_vPF[0]}, v6, v5, vcc
    """)

def g1_main(c):
    a = c.a; acc = g1_acc
    w2 = c.opt.get('w2_sx', 1)
    if w2: w_stage(a, 0); w_stage(a, 1)
    else:
        for l in g1_rw(0) + g1_rw(1): a(l)
    a(f"""
    s_lshl_b32 s59, s{sTB}, 3
    s_lshl_b32 s33, s45, 2
    s_add_u32 s59, s59, s33
    s_mul_i32 s59, s59, 229376
    s_lshr_b32 s33, s{sM}, 4
    s_mul_i32 s33, s33, {56*2048}
    s_add_u32 s59, s59, s33
    s_add_u32 s59, s59, s{sLB}
    s_add_u32 s59, s59, {L_H}
    s_lshl_b32 s34, s46, 1
    s_add_u32 s34, s34, s44                ; wv
    s_mov_b32 s53, s59
    s_mov_b32 s52, s59
    s_and_b32 s36, s{sM}, 15
    s_lshl_b32 s33, s36, 1
    s_add_u32 s33, s33, s44
    s_lshl_b32 s33, s33, 11
    v_add_u32 v24, s33, v{vL16}
    v_and_b32 v4, 15, v{vLANE}
    v_lshlrev_b32 v4, 4, v4
    v_lshrrev_b32 v5, 5, v{vLANE}
    v_lshl_add_u32 v4, v5, 10, v4
    v_bfe_u32 v5, v{vLANE}, 4, 1
    s_add_u32 s33, s36, 32
    s_lshl_b32 s33, s33, 11
    s_lshl_b32 s35, s44, 9
    s_add_u32 s33, s33, s35
    v_lshl_add_u32 v25, v5, 8, v4
    v_add_u32 v25, s33, v25
    s_lshl_b32 s33, s34, 8
    s_lshr_b32 s36, s36, 1
    s_lshl_b32 s36, s36, 11
    s_add_u32 s33, s33, s36
    s_add_u32 s33, s33, {48*2048}
    v_mul_u32_u24 v5, 229376, v5
    v_add3_u32 v26, v4, v5, s33
    """)
    a(f"""
    s_lshr_b32 s33, s{sM}, 4
    s_lshl_b32 s33, s33, 2
    s_add_u32 s33, s33, s{sW}
    s_lshl_b32 s34, s{sM}, 1
    s_add_u32 s34, s34, 10
    v_and_b32 v5, 7, v{vLANE}
    v_add_u32 v5, s34, v5
    v_and_b32 v5, 15, v5
    v_bfe_u32 v7, v{vLANE}, 3, 1
    v_lshl_add_u32 v5, v7, 4, v5
    v_mov_b32 v7, s33
    v_cmp_gt_u32 vcc, 16, v{vLANE}
    v_lshlrev_b32 v5, 3, v5
    s_nop 0
    v_cndmask_b32 v7, 4, v7, vcc
    v_add_lshl_u32 v23, v5, v7, 7
    s_mov_b32 s47, 6
    """)
    ct = c.opt.get('ct', 4)
    if ct: a(code_touch(c, None, 28))
    l2n = c.opt.get('l2n', 0); l2w = c.opt.get('l2w', 32)
    if l2n:
        a(f"""
        s_and_b32 s33, s{sM}, 7
        s_lshl_b32 s33, s33, 1
        s_lshr_b32 s34, s{sM}, 4
        s_add_u32 s33, s33, s34
        s_mul_i32 s33, s33, {56*8192}
        s_and_b32 s34, s{sTB}, 3
        s_lshl_b32 s34, s34, 2
        s_add_u32 s34, s34, s{sW}
        s_mul_i32 s34, s34, {l2w*128}
        s_add_u32 s33, s33, s34
        s_add_u32 s48, s33, {fg2p.WS_WDP + 65536 - (6-l2n)*l2w*2048}
        v_min_u32 v1, {l2w-1}, v{vLANE}
        v_lshlrev_b32 v1, 7, v1
        s_mov_b64 s[24:25], s[12:13]
        """)
    fast = c.opt.get('fast', 1) and w2
    if fast:
        a(f"""
        s_lshl_b32 s33, s45, 13
        s_mul_i32 s34, s44, {STAGE}
        s_add_u32 s34, s34, s33
        s_lshl_b32 s35, s44, 14
        s_add_u32 s33, s33, s35
        s_sub_u32 s35, s40, s42
        s_add_u32 s33, s33, s35
        s_add_u32 s35, s33, 4096
        s_add_u32 s40, s40, 32768
        """)
    co = c.opt.get('co1', 0)
    if co:
        a(f"""
        s_and_b32 s36, s{sM}, 7
        s_lshl_b32 s36, s36, 2
        s_add_u32 s36, s36, s{sW}
        s_mul_i32 s36, s36, {co*128}
        s_sub_u32 s37, s40, s42
        s_add_u32 s36, s36, s37
        s_sub_u32 s36, s36, 32768
        v_min_u32 v1, {co-1}, v{vLANE}
        v_lshlrev_b32 v1, 7, v1
        """)
    wait(c, vFL, M_ALL)
    stamp(c, "waitX")
    if fast:
        for h in range(2):
            a(f"s_add_u32 m0, s34, {4096*h}\ns_nop 0")
            for i in range(4):
                a(f"buffer_load_dwordx4 v{vL16}, {SRD_WS}, s{33+2*h} offen offset:{1024*i} {LY.sc} lds")
                if co and (h, i) == (0, 1): a(f"s_barrier\nbuffer_load_dword v27, v1, {SRD_WS}, s36 offen sc1")
        a(g1_dx(2)[0])
        a(f"s_waitcnt vmcnt({7 if co else 6})\ns_barrier")
        for t in range(2):
            for l in g1_rx(0, t): a(l)
    else:
        for slot in range(4):
            o = g1_dx(slot); a(o[0]); a("s_nop 0")
            for l in o[1:]: a(l)
        a("s_waitcnt vmcnt(8)\ns_barrier")
        for t in range(8):
            for l in g1_rx(0, t): a(l)
    stamp(c, "g1 go")
    kin = c.opt.get('g1_kin', 1)
    def mseq(jo):
        out = []
        for t in range(8):
            js = jo if t % 2 == 0 else jo[::-1]
            if kin: out += [(t, j, k) for i, j in enumerate(js) for k in ((0, 1) if i % 2 == 0 or kin == 2 else (1, 0))]
            else: out += [(t, j, 0) for j in js] + [(t, j, 1) for j in js[::-1]]
        return out
    sch = c.opt.get('g1_sch', 0)
    def sstep(s, loop, gx=(), first=False, sh=0):
        gaps = [[] for _ in range(112)]
        BA, BB = c.opt.get('ba', 7), 63
        if first and fast:
            for h in range(2):
                o = g1_dx(2 + h)
                if h or c.ts: gaps[max(16*h-1, 0)].append(o[0])
                for i in range(4): gaps[16*h + 4*i + 1].append(o[1+i])
                gaps[16*h+14].append(o[5])
            gaps[12].append("s_waitcnt vmcnt(3) lgkmcnt(0)"); gaps[12].append("s_barrier")
            for t in range(2, 8):
                r = g1_rx(0, t); gaps[9+2*t].append(r[0]); gaps[10+2*t].append(r[1])
            gaps[27].append("s_waitcnt lgkmcnt(10)")
            gaps[33].append("s_waitcnt lgkmcnt(0)"); gaps[33].append("s_barrier")
            for k, l in enumerate(g1_rw(2) + g1_rw(3)): gaps[[2,3,4,6,7,8][k] if k < 6 else 28 + k].append(l)
        else:
            gaps[BA-1].append(f"s_waitcnt vmcnt({17 + (l2n > 0) if loop else 0}) lgkmcnt(0)"); gaps[BA].append("s_barrier")
            for k, l in enumerate(g1_rw(2*(s^1)) + g1_rw(2*(s^1)+1)): gaps[BA + 1 + (-sh) % 3 + ((k*3)//2 if sch == 0 else k)].append(l)
        for t in range(8):
            g = max(BB + 2 + 3*t if sch == 0 else BB + 1 + 2*t, 14*t + 13)
            r = g1_rx(s ^ 1, t)
            if t == 7: gaps[110].append(r[c.lastk ^ 1]); gaps[111].append(r[c.lastk])
            else: gaps[g].append(r[0]); gaps[g+1].append(r[1])
        if loop:
            gaps[BB-1].append(f"s_waitcnt vmcnt({(7 if fast else 8 if w2 else 13) if first else 16 + (l2n > 0) if s else 17}) lgkmcnt(0)"); gaps[BB].append("s_barrier")
            px = [[16,22,28,34,40,46,52,58], [37,40,43,46,49,52,55,58], [37,40,43,46,49,52,55,58]][sch]
            pw = [c.opt.get('pw', [67,72,77,82,87,92,97,102]), [75,78,81,86,89,92,95,100], [75,79,86,90,94,100,104,108]][sch]
            px = [p - sh for p in px]; pw = [p + sh for p in pw]
            if first and fast: px = [35, 39, 43, 47, 51, 55, 59, 64]; pw = [69, 74, 79, 85, 90, 95, 100, 105]
            if first and not w2:
                px = [44, 48, 52, 56, 60, 66, 70, 74]; pw = [79, 83, 87, 91, 95, 99, 103, 107]
                for h in range(2):
                    o = g1_dw(h); p = [10 + 16*h + 4*i for i in range(4)]
                    gaps[p[0]-1].append(o[0])
                    for i in range(4): gaps[p[i]].append(o[1+i])
                    gaps[p[3]+1].append(o[5])
            for h in range(2):
                for o, p in ((g1_dx(2*s + h), px[4*h:]), (g1_dw(2*(s^1) + h), pw[4*h:])):
                    gaps[p[0]-1].append(o[0])
                    for i in range(4): gaps[p[i]].append(o[1+i])
                    gaps[p[3]+1].append(o[5])
        for g, l in gx: gaps[g].append(l)
        ab = c.opt.get('abl', '')
        if loop and not first:
            def keep(l):
                if 'b' in ab and l == "s_barrier": return False
                if 'x' in ab and "s40 offen" in l: return False
                if 'w' in ab and "s41 offen" in l: return False
                if 'p' in ab and "v27" in l: return False
                if 'r' in ab and "ds_read" in l: return False
                if 's' in ab and l.startswith("s_add_u32"): return False
                if 'c' in ab and l.startswith("s_waitcnt"): return False
                return True
            gaps = [[l for l in g if keep(l)] for g in gaps]
        a(f"s_waitcnt lgkmcnt({14 if first and not fast else 2})")
        seen = set()
        for n, (t, j, k) in enumerate(mseq(list(range(7)))):
            cc = acc(t, j); w = g1_wf(2*s + k, j); x = g1_xf(k, t)
            src = "0" if first and cc not in seen else f"v[{cc}:{cc+3}]"
            seen.add(cc)
            a(f"{MF} v[{cc}:{cc+3}], a[{w}:{w+3}], a[{x}:{x+3}], {src}")
            for l in gaps[n]: a(l)
    c.lastk = mseq(list(range(7)))[-1][2]
    sstep(0, True, [(108, "s_mov_b64 s[24:25], s[12:13]")], first=True)
    o = c.lab("g1c"); b = c.lab("g1d")
    c.ool.append(f"{o}:\n" + poll(c, SRD_WS, 23, f"s{sFB}", "", 4) + f"s_branch {b}")
    chk = [(0, "v_cmp_gt_u32 vcc, 4, v7"), (5, f"s_cbranch_vccnz {o}\n{b}:")]
    shifts = c.opt.get('stag', [0, 3, 0, 3])
    cps = sorted(set(shifts)); mids = {x: c.lab("g1m") for x in cps}; done = c.lab("g1z")
    for w in range(3):
        if shifts[w] != shifts[3]: a(f"s_cmp_eq_u32 s{sW}, {w}\ns_cbranch_scc1 {mids[shifts[w]]}")
    a(f"s_branch {mids[shifts[3]]}")
    for x in cps:
        lp = c.lab("g1l"); pg = 105 + x
        a(f"{lp}:")
        sstep(0, True, [(2, "s_sub_u32 s47, s47, 1"), (3, "s_cmp_eq_u32 s47, 0\ns_cselect_b32 s26, s14, 0"),
                        (10, f"buffer_load_dword v7, v23, {SRD_T}, s{sFB} offen sc1")], sh=x)
        a(f"{mids[x]}:")
        sstep(1, True, [(3, "s_cmp_eq_u32 s47, 0\ns_cselect_b32 s10, 0, s10"),
                        (pg, f"buffer_load_dword v27, v{g1_vPF[0]}, {SRD_W}, 0 offen"), (pg+1, f"v_add_u32 v{g1_vPF[0]}, {128*7168}, v{g1_vPF[0]}"),
                        (110, "s_cmp_lg_u32 s47, 0")], sh=x)
        a(f"s_cbranch_scc1 {lp}")
        if x != cps[-1]: a(f"s_branch {done}")
    a(f"{done}:")
    def pk_ld(n, g0, ds):
        o = fg2p.g2_ldw(c, n)
        return [(g0, o[0])] + [(g0+1+ds*i, o[1+i]) for i in range(4)] + [(g0+2+ds*3, o[5])]
    gx = [(0, f"s_mov_b32 s10, {D*F*2}")]
    if ct & 4: gx.append((10, "global_load_dword v27, v[28:29], off"))
    for k, l in enumerate(fg2p.g2_pre1(c)): gx.append((1 + k//2, l))
    if not l2n: gx += chk
    if c.opt.get('g2_pre', 0):
        for n in range(4): gx += pk_ld(n, 12 + 20*n, 5)
        o = fg2p.g2_ldlast(c)
        gx += [(91, o[0]), (92, o[1])] + [(93 + 5*i, o[2+i]) for i in range(4)]
    else:
        for n in range(4): gx += pk_ld(n, 15 + 24*n, 6)
    if c.opt.get('st14'): stamp(c)
    sstep(0, False, gx)
    stamp(c, "g1 loop")
    def tail(st):
        a = c.a
        hz = Hz(a)
        ops = []
        early = c.opt.get('early', 1)
        if early: seq = [(t, j) for t in range(8) for j in (0, 3, 1, 4)] + [(t, j) for t in range(8) for j in (2, 5, 6)]
        else: seq = [(t, j) for t in range(8) for j in (0, 3, 1, 4, 2, 5, 6)]
        rd = {tj: 2*i + 1 for i, tj in enumerate(seq)}
        for t in range(8):
            g0, g1_ = acc(t,0), acc(t,1); d = acc(t, 3)
            for r in range(4): ops.append((rd[t,3], o_mul(g0+r, g0+r, acc(t,3)+r)))
            ops += [(rd[t,3], o_cvt(d, g0)), (rd[t,3], o_cvt(d+1, g0+2))]
            for r in range(4): ops.append((rd[t,4], o_mul(g1_+r, g1_+r, acc(t,4)+r)))
            ops += [(rd[t,4], o_cvt(d+2, g1_)), (rd[t,4], o_cvt(d+3, g1_+2))]
            ops.append((rd[t,4], o_st(f"buffer_store_dwordx4 v[{d}:{d+3}], v24, {SRD_WS}, s59 offen offset:{(t&1)*1024} {st}", d)))
            if t & 1: ops.append((rd[t,4], o_s("s_add_u32 s59, s59, 229376")))
            g2 = acc(t, 2)
            for r in range(4): ops.append((rd[t,5], o_mul(g2+r, g2+r, acc(t,5)+r)))
            b = acc(t & ~1, 5) + 2*(t & 1)
            ops += [(rd[t,5], o_cvt(b, g2)), (rd[t,5], o_cvt(b+1, g2+2))]
            if t & 1:
                b = acc(t & ~1, 5); o0, o1 = acc(t-1, 6), acc(t, 6)
                ops += [(rd[t,5], o_sw(32, b, b+2)), (rd[t,5], o_sw(32, b+1, b+3))]
                ops.append((rd[t,5], o_st(f"buffer_store_dwordx4 v[{b}:{b+3}], v25, {SRD_WS}, s53 offen {st}", b)))
                for r in range(4): ops.append((rd[t,6], o_sw(32, o0+r, o1+r)))
                for r in range(4): ops.append((rd[t,6], o_mul(o0+r, o0+r, o1+r)))
                od = acc(t & ~3, 2) + ((t >> 1) & 1)*2
                ops += [(rd[t,6], o_cvt(od, o0)), (rd[t,6], o_cvt(od+1, o0+2))]
                if t & 3 == 3:
                    od = acc(t & ~3, 2)
                    ops += [(rd[t,6], o_sw(16, od, od+2)), (rd[t,6], o_sw(16, od+1, od+3))]
                    ops.append((rd[t,6], o_st(f"buffer_store_dwordx4 v[{od}:{od+3}], v26, {SRD_WS}, s52 offen {st}", od)))
                    ops.append((rd[t,6], o_s("s_add_u32 s52, s52, 458752")))
                ops.append((rd[t,5], o_s("s_add_u32 s53, s53, 229376")))
        ops.sort(key=lambda o: o[0])
        hold = c.opt.get('hold', 5)
        hz.raw("s_waitcnt lgkmcnt(2)")
        n = 0; held = []
        for i, (t, j) in enumerate(seq):
            if i == 6: hz.raw("s_waitcnt lgkmcnt(0)")
            for k in ((0, 1) if i % 2 == 0 else (1, 0)):
                cc = acc(t, j); w = g1_wf(2 + k, j); x = g1_xf(k, t)
                hz.mfma(f"{MF} v[{cc}:{cc+3}], a[{w}:{w+3}], a[{x}:{x+3}], v[{cc}:{cc+3}]", cc)
                late = lambda o: hold and o[1][0] in ('store', 'salu') and o[0] >= 64 + 6*(8-hold)
                fill(hz, ops, n, 2, late)
                while ops and ops[0][0] <= n and late(ops[0]): held.append(ops.pop(0))
                n += 1
        ops = held + ops
        stamp(c, "g1 mm")
        if early:
            left = sum(o[1][0] == 'store' for o in ops)
            signal(c, vm=6 - left); hz.n += 6
            stamp(c, "sigH")
            for _, o in ops: hz.op(o)
            stamp(c)
        else:
            for _, o in ops: hz.op(o)
            stamp(c)
            signal(c)
            stamp(c, "sigH")

    dual(c, 0, tail)
```

```python
from fcore import *
G2_ACC, G2_H, G2_W, G2_RX, G2_RES = 32, 96, 160, 160, 224
g2_vRA = 8; g2_vH = [17, 18]; g2_vO = 24
WS_WDP = 74*MB
def g2_acc(t, ct): return G2_ACC + (t*8 + ct)*4
def g2_h(n, k, t): return G2_H + ((n*2 + k)*2 + t)*4
def g2_w(k, ct): return G2_W + (ct*2 + k)*4
def wsrc(c): return SRD_T2
LDS_PK = LDS_RED + 1024
def g2_ldw(c, n):
    return [f"s_add_u32 m0, s54, {n*16384}"] + [f"buffer_load_dwordx4 v{vL16}, {wsrc(c)}, s40 offen offset:{1024*i} {LY.sc} lds" for i in range(4)] + ["s_add_u32 s40, s40, 16384"]
def g2_ldh(n):
    return [f"buffer_load_dwordx4 v[{g2_h(n,k,t)}:{g2_h(n,k,t)+3}], v{g2_vH[t]}, {SRD_WS}, s55 offen offset:{k*2048} {LY.h}" for k in range(2) for t in range(2)] + ["s_add_u32 s55, s55, 4096"]
def g2_rd(n, k, ct):
    r = g2_w(k, ct)
    return f"ds_read_b128 v[{r}:{r+3}], v{g2_vRA} offset:{n*16384 + k*8192 + ct*1024}"

def g2_ldlast(c):
    return [f"s_add_u32 m0, s54, {LDS_PK}", f"s_add_u32 s35, s40, {23*16384}"] + [f"buffer_load_dwordx4 v{vL16}, {wsrc(c)}, s35 offen offset:{1024*i} {LY.sc} lds" for i in range(4)]
def g2_pre1(c):
    a = Asm()
    a(f"""
    s_lshr_b32 s57, s{sM}, 4                 ; kh
    s_lshl_b32 s54, s{sW}, 12                ; m0 base = w*4096
    s_and_b32 s35, s{sM}, 7
    s_lshl_b32 s35, s35, 1
    s_add_u32 s35, s35, s57
    s_mul_i32 s40, s35, {56*8192}
    s_mul_i32 s35, s57, {c.opt.get('shift', 0)*16384}
    s_add_u32 s40, s40, s35
    s_add_u32 s40, s40, s54
    s_add_u32 s40, s40, {WS_WDP}
    s_mov_b64 s[28:29], s[12:13]
    s_mov_b32 s30, s14
    """)
    return [l.strip() for l in a.lines]

def g2_pre(c):
    a = c.a
    a(f"""
    s_xor_b32 s54, s54, 0x10000
    v_mov_b32 v{g2_vRA}, v{vL16}
    v_add_u32 v12, 0x10000, v{vL16}
    s_lshl_b32 s58, s{sTB}, 3
    s_bfe_u32 s35, s{sM}, 0x10003
    s_lshl_b32 s35, s35, 2
    s_add_u32 s58, s58, s35
    s_add_u32 s58, s58, s{sW}
    s_mul_i32 s55, s58, 229376
    s_mul_i32 s36, s57, {(56 + 2*c.opt.get('shift', 0))*2048}
    s_add_u32 s55, s55, s36
    s_add_u32 s55, s55, s{sLB}
    s_add_u32 s55, s55, {L_H}
    s_lshl_b32 s35, s57, 10
    v_add_u32 v{g2_vH[0]}, s35, v{vL16}
    v_xor_b32 v{g2_vH[1]}, 1024, v{g2_vH[0]}
    """)

def g2_main(c):
    a = c.a
    for ct in range(8):
        for k in range(2): a(g2_rd(0, k, ct))
    for i in range(32): a(f"v_mov_b64 v[{G2_ACC+2*i}:{G2_ACC+2*i+1}], 0")
    a(f"""
    s_lshl_b32 s39, s58, 1
    s_add_u32 s39, s39, s57
    s_lshl_b32 s39, s39, 15
    s_and_b32 s35, s{sM}, 7
    v_and_b32 v6, 15, v{vLANE}
    v_and_b32 v7, 48, v{vLANE}
    v_lshl_add_u32 v{g2_vO}, v6, 11, v7
    s_lshl_b32 s36, s35, 12
    s_add_u32 s36, s36, s39
    s_lshl_b32 s35, s35, 8
    s_add_u32 s39, s39, s35
    s_lshl_b32 s35, s{sLAY}, 31
    v_or_b32 v26, s35, v{vL16}
    v_xor_b32 v27, 0x80000000, v26
    s_lshl_b32 s33, s{sTB}, 19
    s_and_b32 s35, s{sM}, 7
    s_lshl_b32 s35, s35, 16
    s_add_u32 s33, s33, s35
    s_bfe_u32 s35, s39, 0x4000f
    s_lshl_b32 s35, s35, 10
    s_add_u32 s33, s33, s35
    s_add_u32 s33, s33, {LY.L1}
    s_lshr_b32 s38, s39, 15
    s_lshl_b32 s38, s38, 8
    s_add_u32 s38, s38, {LY.XR}
    v_lshlrev_b32 v7, 4, v6
    v_and_b32 v7, 0x80, v7
    v_lshl_add_u32 v25, v6, 3, v7
    v_and_b32 v7, 0x80000000, v27
    v_or_b32 v25, v25, v7
    s_add_u32 s34, s36, {LY.EX}
    s_lshl_b32 s35, s57, 22
    s_add_u32 s35, s35, {LY.P}
    s_cmp_eq_u32 s{sLAY}, 0
    s_cselect_b32 s35, s35, {LY.EX}
    s_xor_b32 s37, s36, 0x8000
    s_add_u32 s36, s36, s35
    s_add_u32 s37, s37, s35
    """)
    a(f"""
    v_and_b32 v4, 7, v{vLANE}
    v_bfe_u32 v5, v{vLANE}, 3, 1
    v_lshlrev_b32 v4, 5, v4
    v_lshl_or_b32 v4, v5, 1, v4
    s_and_b32 s35, s2, 0x1d
    v_or_b32 v4, s35, v4
    v_lshlrev_b32 v9, 7, v4
    {f"s_cmp_eq_u32 s57, 0" if c.opt.get('shift', 0) else ""}
    {f"s_cselect_b64 vcc, -1, 0" if c.opt.get('shift', 0) else ""}
    {f"v_cndmask_b32 v9, v9, v{vFL}, vcc" if c.opt.get('shift', 0) else ""}
    """)
    co = c.opt.get('co2', 0)
    if co:
        a(f"""
        s_and_b32 s42, s{sM}, 7
        s_mul_i32 s42, s42, {co*128}
        s_add_u32 s42, s42, s55
        s_add_u32 s42, s42, 4096
        v_min_u32 v10, {co-1}, v{vLANE}
        v_lshlrev_b32 v10, 7, v10
        """)
    l = c.lab("wt")
    a(f"s_cmp_lg_u32 s{sW}, 0\ns_cbranch_scc1 {l}")
    a(poll(c, SRD_WS, vFL, f"s{sFB}", M_KH, f"s{sPH}"))
    a(f"{l}:")
    a("s_waitcnt vmcnt(0)\ns_barrier")
    stamp(c, "waitH")
    for n in range(3):
        for l in g2_ldh(n): a(l)
        if co and n == 0: a(f"s_barrier\nbuffer_load_dword v11, v10, {SRD_WS}, s42 offen sc1")
    l = c.lab("sg")
    a(f"""
    s_add_u32 s{sPH}, s{sPH}, 1
    v_mov_b32 v4, 0
    v_mov_b32 v5, s{sPH}
    s_cmp_lg_u32 s{sW}, 0
    s_waitcnt vmcnt({9 if co else 8})
    {"s_branch" if 's' in c.opt.get('y', '') else "s_cbranch_scc1"} {l}
    s_mov_b64 exec, 1
    buffer_store_dword v5, v4, {SRD_WS}, s{sFL} offen sc1
    s_mov_b64 exec, -1
    {l}:
    """)
    stamp(c, "g2 go")
    M = [(ct, k) for ct in range(8) for k in range(4)]
    shift = c.opt.get('shift', 0); mg = [26]
    def mrd(i):
        ct, k = M[i]; p = (mg[0] + (k >> 1)) % 8
        return f"ds_read_b128 a[{4*i}:{4*i+3}], v{g2_vRA if p < 4 else 12} offset:{(p & 3)*16384 + (k & 1)*8192 + ct*1024}"
    kin = c.opt.get('g2_kin', 1)
    def sstep(n, ldh, ldw, vm, extra=(), merge=False, sh=0):
        a = c.a
        gaps = [[] for _ in range(32)]
        if n == 3: gaps[1].append(f"v_xor_b32 v{g2_vRA}, 0x10000, v{g2_vRA}")
        for ct in range(8):
            if merge: r = [mrd(2*ct), mrd(2*ct+1)]
            else: r = [g2_rd((n+1) % 4, 1 if kin else 0, ct), g2_rd((n+1) % 4, 0 if kin else 1, ct)]
            gaps[4*ct+2].append(r[0]); gaps[4*ct+3].append(r[1])
        if ldh:
            o = g2_ldh((n+3) % 4)
            for i in range(4): gaps[1+4*i+sh].append(o[i])
            gaps[14+sh].append(o[4])
        if ldw:
            o = g2_ldw(c, n)
            gaps[16].append(o[0])
            for i in range(4): gaps[17+4*i+sh].append(o[1+i])
            gaps[min(30+sh, 31)].append(o[5])
        for g, l in extra: gaps[g].append(l)
        for g in (7, 15, 23): gaps[g].append("s_waitcnt lgkmcnt(12)")
        a(f"s_waitcnt vmcnt({vm}) lgkmcnt(12)")
        for g in range(32):
            ct = g >> 2
            t, k = [(0,0),(0,1),(1,1),(1,0)][g & 3] if kin else [(0,0),(1,0),(1,1),(0,1)][g & 3]
            if ct & 1: t ^= 1
            cc = g2_acc(t, ct)
            a(f"{MF} v[{cc}:{cc+3}], v[{g2_w(k,ct)}:{g2_w(k,ct)+3}], v[{g2_h(n,k,t)}:{g2_h(n,k,t)+3}], v[{cc}:{cc+3}]")
            if g == 0: a("s_barrier")
            for l in gaps[g]: a(l)
    a(f"s_mov_b32 s56, 6\ns_mov_b32 s41, 1\ns_lshl_b32 s42, s{sW}, 3\ns_add_u32 s42, s42, 3\n{'s_add_u32 s42, s42, s57' if shift else ''}\ns_xor_b32 s48, s57, 1\ns_lshl_b32 s48, s48, 4\nv_mov_b32 v7, 0\ns_mov_b64 s[24:25], s[12:13]")
    st2 = c.opt.get('stag2', 0); done = c.lab("g2z"); loops = [c.lab("g2loop"), c.lab("g2loop")]
    if st2: a(f"s_bitcmp1_b32 s{sW}, 0\ns_cbranch_scc1 {loops[1]}")
    for cp in range(2 if st2 else 1):
        sh = st2*cp; loop = loops[cp]
        a(f"{loop}:")
        o = c.lab("g2f"); b = c.lab("g2b")
        c.ool.append(f"{o}:\ns_cmp_eq_u32 s56, 6\ns_waitcnt vmcnt(12)\ns_cbranch_scc1 {b}\n" + poll(c, SRD_WS, 9, f"s{sFB}", "", f"s{sPH}") + f"s_branch {b}")
        sstep(0, True, True, 16, [(24, "v_cmp_gt_u32 vcc, s41, v7"), (29+sh, f"s_cbranch_vccnz {o}\n{b}:")], sh=sh)
        sstep(1, True, True, 16, [(4, "s_sub_u32 s56, s56, 1"), (8, f"s_cmp_eq_u32 s56, s42\ns_cselect_b32 s41, s{sPH}, 0"), (12, "s_cselect_b32 s26, s14, 0")] +
                                 ([(31, f"buffer_load_dword v7, v9, {SRD_T}, s{sFB} offen sc1")] if cp == 0 else []), sh=sh)
        sstep(2, True, True, 17 - cp, sh=sh)
        sstep(3, True, True, 17 - cp, ([(8, "s_cmp_eq_u32 s56, s48\ns_cselect_b32 s30, 0, s30")] if shift else []) + [(20, "s_xor_b32 s54, s54, 0x10000"), (min(30+sh, 31), "s_cmp_lg_u32 s56, 0")], sh=sh)
        a(f"s_cbranch_scc1 {loop}")
        if st2 and cp == 0: a(f"s_branch {done}")
    a(f"{done}:")
    import fg1k
    fin = c.lab("g2fin")
    def tail(R):
        a = c.a; st = "sc1"
        last = 24 + R - 1; mg[0] = last - 1
        hist = []
        for i in range(20, 24): hist += [('h', i+3)]*4 + [('w', i+4)]*4 + ([('f', 0)] if i == 21 else [])
        def allowed(need): return len(hist) - 1 - max(k for k, e in enumerate(hist) if e in need)
        for i in range(24, last - 1):
            merge = (i == last - 2); ex = []
            if merge:
                ex = [(0, f"s_add_u32 s41, s92, {64*7168}")]
                for h in range(2):
                    o = fg1k.g1_dw(2 + h)
                    ex += [(16*h, o[0])] + [(16*h + 1 + 4*i_, o[1+i_]) for i_ in range(4)] + [(16*h + 14, o[5])]
            need = [('h', i), ('w', i+1)] + ([('w', last)] if merge else [])
            sstep(i % 4, i + 3 <= last, i + 4 <= last, allowed(need), ex, merge=merge)
            hist += ([('h', i+3)]*4 if i + 3 <= last else []) + ([('w', i+4)]*4 if i + 4 <= last else []) + ([('n', 0)]*8 if merge else [])
        a(f"s_waitcnt vmcnt({allowed([('h', last)])})")
        hz = Hz(a); ops = []
        for r in range(G2_W, G2_W+64): hz.mf[r] = -6
        n2 = len(M)
        for p in range(4):
            ops.append((p, ('salu', f"buffer_load_dwordx4 v[{G2_RES+4*p}:{G2_RES+4*p+3}], v27, {SRD_WS}, s33 offen {LY.sc}", [], [])))
            ops.append((p, ('salu', "s_add_u32 s33, s33, 16384", [], [])))
        ops.append((3, ('salu', f"buffer_load_dwordx2 v[28:29], v25, {SRD_WS}, s38 offen sc1", [], [])))
        for ti, t in enumerate((1, 0)):
            for p in range(4):
                rdy = ti*n2 + 8*(p+1) - 1
                c0, c1 = g2_acc(t, 2*p), g2_acc(t, 2*p+1); e = G2_RX + 16*ti + 4*p
                ops += [(rdy-4, o_cvt(e, c0)), (rdy-4, o_cvt(e+1, c0+2)), (rdy, o_cvt(e+2, c1)), (rdy, o_cvt(e+3, c1+2)),
                        (rdy, o_st(f"buffer_store_dwordx4 v[{e}:{e+3}], v{vL16 if t else 26}, {SRD_WS}, s{36+t} offen offset:{p*1024} {st}", e))]
        n = 0
        for ti, t in enumerate((1, 0)):
            for i, (ct, k) in enumerate(M):
                if ti == 0 and i % 4 == 0: hz.raw(f"s_waitcnt lgkmcnt({min(12, n2-4-i)})")
                cc = g2_acc(t, ct); h = g2_h((mg[0] + (k >> 1)) % 4, k & 1, t)
                hz.mfma(f"{MF} v[{cc}:{cc+3}], a[{4*i}:{4*i+3}], v[{h}:{h+3}], v[{cc}:{cc+3}]", cc)
                per = 2
                if ti == 0 and i + 16 < n2:
                    hz.raw(mrd(i+16)); per = 1
                fill(hz, ops, n, per)
                n += 1
        stamp(c, "g2 mm")
        assert all(o[0] >= n2 for o in ops)
        pe = c.opt.get('p_early', 0)
        hz.raw(f"s_cmp_lg_u32 s{sLAY}, 0"); hz.raw(f"s_cbranch_scc1 {fin}")
        for _, o in ops: hz.op(o)
        stamp(c, "p out")

    a(f"s_cmp_lg_u32 s{sLAY}, 0\ns_cselect_b32 s10, 0, s10")
    if shift:
        o = c.lab("g2e"); b = c.lab("g2j")
        a(f"s_cmp_eq_u32 s57, 0\ns_cbranch_scc1 {o}")
        tail(4 - shift)
        a(f"{b}:")
        c.a = Asm(); tail(4 + shift); t = c.a.text(); c.a = a
        c.ool.append(f"{o}:\n{t}s_branch {b}")
    else: tail(4)
    a(f"""
    s_mov_b32 s{sLAY}, 1
    s_mov_b32 s{sLB}, {LY.L1}
    s_branch {c.name}_layer
    {fin}:
    s_mov_b32 s32, 0x3f80
    s_mov_b32 s35, 0x3f800000
    """)
    signal(c)
    stamp(c, "sigE")
    a("v_rcp_f32 v28, v28\ns_nop 0\nv_mul_f32 v29, -v29, v28")
    for j in range(16):
        x = G2_ACC + 2*j
        unpack(a, 4, G2_RES + j, 1)
        a(f"v_pk_fma_f32 v[4:5], v[4:5], v[28:29], v[28:29] op_sel:[0,0,1] op_sel_hi:[1,0,1]")
        a(f"v_pk_add_f32 v[{x}:{x+1}], v[{x}:{x+1}], v[4:5]")
    tr = c.opt.get('out_tr', 1)
    if tr:
        a(f"""
        s_mul_i32 s33, s{sW}, {16*272}
        v_and_b32 v4, 15, v{vLANE}
        v_lshrrev_b32 v5, 4, v{vLANE}
        v_mul_u32_u24 v6, 272, v4
        v_lshl_add_u32 v6, v5, 4, v6
        v_add_u32 v10, s33, v6
        v_mul_u32_u24 v6, 272, v5
        v_lshl_add_u32 v6, v4, 4, v6
        v_add_u32 v11, s33, v6
        v_lshlrev_b32 v4, 4, v4
        v_lshl_add_u32 v{g2_vO}, v5, 11, v4
        """)
    wait(c, vFL, M_PAIR)
    stamp(c, "waitE")
    for p in range(4):
        a(f"buffer_load_dwordx4 v[{G2_RX+4*p}:{G2_RX+4*p+3}], v{vL16}, {SRD_WS}, s34 offen offset:{p*1024} sc1")
    for p in range(4):
        c0 = g2_acc(0, 2*p)
        a(f"s_waitcnt vmcnt({3-p if tr else 3})")
        for i in range(4):
            a(f"v_dot2_f32_bf16 v{c0+2*i}, v{G2_RX+4*p+i}, s32, v{c0+2*i}\nv_dot2_f32_bf16 v{c0+2*i+1}, v{G2_RX+4*p+i}, s35, v{c0+2*i+1}")
        r = G2_RES + 4*p
        a("s_nop 0")
        for i in range(4): a(f"v_cvt_pk_bf16_f32 v{r+i}, v{c0+2*i}, v{c0+2*i+1}")
        if tr: a(f"ds_write_b128 v10, v[{r}:{r+3}] offset:{p*64}")
        else: a(f"buffer_store_dwordx4 v[{r}:{r+3}], v{g2_vO}, {SRD_OUT}, s39 offen offset:{p*64} {c.opt.get('out_aux', 'nt')}")
    if tr:
        for i in range(4): a(f"ds_read_b128 v[{G2_RX+4*i}:{G2_RX+4*i+3}], v11 offset:{i*4*272}")
        for i in range(4):
            a(f"s_waitcnt lgkmcnt({3-i})")
            a(f"buffer_store_dwordx4 v[{G2_RX+4*i}:{G2_RX+4*i+3}], v{g2_vO}, {SRD_OUT}, s39 offen {c.opt.get('out_aux', 'nt')}\ns_add_u32 s39, s39, 8192")
    stamp(c, "out")
    if c.ts:
        a("s_waitcnt vmcnt(0)"); stamp(c, "end")
```

```python
from asmlib import *
from common import *
import re

sW, sTB, sM, sLAY, sLB = 3, 4, 5, 6, 7
SRD_W, SRD_WS, SRD_WD, SRD_OUT, SRD_T, SRD_T2 = "s[8:11]", "s[12:15]", "s[16:19]", "s[20:23]", "s[24:27]", "s[28:31]"
sG8 = 60
sMASK = 61
vLANE, vL16 = 2, 3
aX, aY = 224, 240
MF = "v_mfma_f32_16x16x32_bf16"
SPIN = 4000000
FL_A, FL_B, FL_LN, FL_G1, FL_G2, FL_PAIR = 0, 256, 512, 640, 768, 1536
STAGE = 32768 + 256
UOFF = 8192 + 16
LDS_RED = 4*STAGE
LDS_TOTAL = LDS_RED + 1024

class Lay:
    pass
LY = Lay()
def set_layout(reuse):
    LY.P = WS_UT if reuse else WS_L0 + L_EX
    LY.EX = WS_UT if reuse else WS_L0 + LSTRIDE + L_EX
    LY.XR = WS_XR
    LY.L1 = WS_L0 if reuse else WS_L0 + LSTRIDE
    LY.sc = "sc1" if reuse else ""

class Ctx:
    def __init__(self, name, ts=False, **opt):
        self.a = Asm(); self.name = name; self.ts = ts; self.nl = 0; self.ool = []; self.opt = opt
    def lab(self, s):
        self.nl += 1
        return f"{self.name[:6]}_{s}{self.nl}"

def stamp(c, name=""):
    if not c.ts: return
    c.a("""
    s_memrealtime s[98:99]
    s_memtime s[100:101]
    s_mov_b32 m0, s97
    s_add_u32 s97, s97, 1
    s_waitcnt lgkmcnt(0)
    v_writelane_b32 v30, s98, m0
    v_writelane_b32 v31, s100, m0
    """)
def ts_dump(c):
    if not c.ts: return
    if 'pad' in c.opt:
        l = c.lab("pad")
        c.a(f"""
        v_readlane_b32 s32, v30, {c.opt['pad']}
        {l}:
        s_memrealtime s[98:99]
        s_waitcnt lgkmcnt(0)
        s_sub_u32 s33, s98, s32
        s_cmp_lt_u32 s33, 15000
        s_cbranch_scc1 {l}
        """)
        return
    if c.opt.get('dbgts'):
        sel = c.opt['dbgts']; z = c.lab("nd")
        c.a(f"s_cmp_lg_u32 s2, {c.opt.get('dbgwg', 37)}\ns_cbranch_scc1 {z}\ns_cmp_lg_u32 s{sW}, 1\ns_cbranch_scc1 {z}\nv_readlane_b32 s32, v30, 0\nv_readlane_b32 s34, v31, 0\nv_mov_b32 v5, 0")
        for i, k in enumerate(sel):
            src, b = (30, 32) if k >= 0 else (31, 34)
            c.a(f"v_readlane_b32 s33, v{src}, {abs(k)}\ns_nop 3\ns_sub_u32 s33, s33, s{b}\nv_writelane_b32 v5, s33, {i}")
        c.a(f"v_lshlrev_b32 v4, 2, v{vLANE}\ns_mov_b64 exec, 0xffff\nbuffer_store_dword v5, v4, s[88:91], 0 offen sc1\n{z}:")
        return
    c.a(f"""
    s_load_dword s96, s[0:1], 88
    s_lshl_b32 s32, s93, 2
    s_add_u32 s32, s32, s{sW}
    s_lshl_b32 s32, s32, 9
    s_waitcnt lgkmcnt(0)
    s_bfe_u32 s96, s96, 0x60009
    s_lshl_b32 s96, s96, 19
    s_add_u32 s32, s32, s96
    s_add_u32 s32, s32, {WS_TS}
    v_lshlrev_b32 v4, 3, v{vLANE}
    buffer_store_dwordx2 v[30:31], v4, {SRD_WS}, s32 offen
    """)

def srd(a, d, lo, size):
    a(f"s_mov_b32 s{d}, s{lo}\ns_mov_b32 s{d+1}, s{lo+1}\ns_mov_b32 s{d+2}, {size}\ns_mov_b32 s{d+3}, 0x20000")

sPH, sFL, sFB, vFL = 63, 94, 95, 0
def signal(c, pre="", vm=0, vm0=0, sfl=sFL):
    l = c.lab("sig")
    c.a(f"""
    s_add_u32 s{sPH}, s{sPH}, 1
    v_mov_b32 v4, 0
    v_mov_b32 v5, s{sPH}
    s_cmp_lg_u32 s{sW}, 0
    s_waitcnt vmcnt({vm + vm0})
    {f"s_cbranch_scc0 {l}a" if vm0 else ""}
    {f"s_waitcnt vmcnt({vm})" if vm0 else ""}
    {f"{l}a:" if vm0 else ""}
    s_barrier
    s_cbranch_scc1 {l}
    {pre}
    s_mov_b64 exec, 1
    {c.opt.get('flag_op', 'buffer_store_dword')} v5, v4, {SRD_WS}, s{sfl} offen {c.opt.get('flag_aux', 'sc1')}
    s_mov_b64 exec, -1
    {l}:
    """)
def poll(c, srdn, va, soff, mask, target, slp=0, x4=False):
    p = c.lab("poll"); d = c.lab("pd"); to = d
    if c.opt.get('diag'):
        to = c.lab("to")
        c.ool.append(f"""{to}:
        s_waitcnt vmcnt(0)
        s_lshl_b32 s62, s2, 2
        s_add_u32 s62, s62, s{sW}
        s_lshl_b32 s62, s62, 3
        s_add_u32 s62, s62, s{sPH}
        s_lshl_b32 s62, s62, 8
        s_add_u32 s62, s62, {WS_X2}
        v_or_b32 v7, 0x{0x40000000 if srdn == SRD_WS else 0x20000000:x}, v7
        v_lshlrev_b32 v6, 2, v{vLANE}
        buffer_store_dword v7, v6, {SRD_WS}, s62 offen sc1
        s_branch {d}""")
    return f"""
    {mask}
    s_mov_b32 s62, {SPIN}
    {p}:
    {"buffer_load_dwordx4 v[4:7]" if x4 else "buffer_load_dword v7"}, v{va}, {srdn}, {soff} offen {c.opt.get('poll_aux', 'sc1')}
    s_sub_u32 s62, s62, 1
    s_cbranch_scc1 {to}
    s_waitcnt vmcnt(0)
    {"v_min3_u32 v7, v5, v6, v7" if x4 else ""}
    {"v_min_u32 v7, v4, v7" if x4 else ""}
    {f"v_cmpx_gt_u32 vcc, {target}, v7" if c.opt.get('shrink', 0) else f"v_cmp_gt_u32 vcc, {target}, v7"}
    s_cbranch_vccnz {p}
    {d}:
    s_mov_b64 exec, -1
    """
def wait(c, va, mask, pre="", every=False, thr=None, x4=False):
    l = c.lab("wt")
    if not every: c.a(f"s_cmp_lg_u32 s{sW}, 0\ns_cbranch_scc1 {l}")
    if pre: c.a(pre)
    c.a(poll(c, SRD_WS, va, f"s{sFB}", mask, thr or f"s{sPH}", c.opt.get('slp', 0), x4))
    c.a(f"{l}:\ns_barrier")
M_ALL = "s_mov_b32 exec_hi, 0"
M_KH = f"s_and_b32 s62, s{sM}, 16\ns_lshl_b32 exec_lo, 0xffff, s62\ns_mov_b32 exec_hi, 0"
M_TH = f"s_and_b32 s62, s{sM}, 8\ns_lshl_b32 exec_lo, 0x00ff00ff, s62\ns_mov_b32 exec_hi, 0"
M_PAIR = f"s_xor_b32 s62, s{sM}, 16\ns_lshl_b32 exec_lo, 1, s62\ns_mov_b32 exec_hi, 0"

MIX = """s_lshr_b32 s33, s2, 2
    s_xor_b32 s33, s33, s2
    s_and_b32 s33, s33, 1
    s_mul_i32 s33, s33, 5
    s_xor_b32 s2, s2, s33"""
def mixcode(p):
    if tuple(p) == (0, 1, 2): return ""
    tab = sum(sum(((x >> p[i]) & 1) << i for i in range(3)) << (4*x) for x in range(8))
    return f"s_and_b32 s33, s2, 7\ns_lshl_b32 s33, s33, 2\ns_lshr_b32 s33, 0x{tab:x}, s33\ns_and_b32 s33, s33, 7\ns_andn2_b32 s2, s2, 7\ns_or_b32 s2, s2, s33"
def prolog(c):
    a = c.a
    kernel_begin(a, c.name)
    if c.ts: a("s_mov_b32 s97, 0\nv_mov_b32 v30, 0\nv_mov_b32 v31, 0")
    stamp(c)
    a(f"""
    s_cmp_ge_u32 s2, 256
    s_cbranch_scc1 {c.name}_end
    s_load_dwordx16 s[64:79], s[0:1], 0
    s_load_dwordx8 s[80:87], s[0:1], 64
    s_load_dwordx2 s[12:13], s[0:1], 96      ; ws
    {"s_mov_b32 s93, s2" if c.ts else ""}
    {mixcode(c.opt.get('perm', (0, 1, 2)))}
    v_lshrrev_b32 v1, 6, v0
    v_and_b32 v{vLANE}, 63, v0
    v_readfirstlane_b32 s{sW}, v1
    """)
    if not c.opt.get('head', 0): prolog1(c)
def prolog1(c):
    c.a(f"""
    v_lshlrev_b32 v{vL16}, 4, v{vLANE}
    {code_touch(c, 251) if c.opt.get('pf_code', 2) == 2 and not c.opt.get('head', 0) else ""}
    s_mov_b32 s14, {256*MB if c.ts else WS_USED}
    s_mov_b32 s15, 0x20000
    s_mov_b32 s{sMASK}, 0xffff0000
    """)
def prolog2(c):
    kb = c.opt.get('kb', 3)
    c.a(f"""
    {"s_andn2_b32 s40, 1, s2" if c.opt.get('swap', 1) else "s_and_b32 s40, s2, 1"}
    s_lshl_b32 s40, s40, 2
    s_bfe_u32 s{sTB}, s2, 0x20003
    s_add_u32 s{sTB}, s{sTB}, s40
    s_bfe_u32 s40, s2, 0x20001
    s_lshl_b32 s40, s40, 3
    s_lshr_b32 s{sM}, s2, 5
    s_add_u32 s{sM}, s{sM}, s40
    s_lshl_b32 s{sG8}, s{sTB}, 5
    s_bfe_u32 s40, s{sM}, 0x10003
    s_lshl_b32 s40, s40, 4
    s_add_u32 s{sG8}, s{sG8}, s40
    s_lshr_b32 s40, s{sM}, 4
    s_lshl_b32 s40, s40, {kb}
    s_add_u32 s{sG8}, s{sG8}, s40
    s_and_b32 s40, s{sM}, {(1 << kb) - 1}
    s_add_u32 s{sG8}, s{sG8}, s40
    s_and_b32 s40, s{sM}, {7 & ~((1 << kb) - 1)}
    s_lshl_b32 s40, s40, 1
    s_add_u32 s{sG8}, s{sG8}, s40
    s_mov_b32 s{sLAY}, 0
    s_mov_b32 s{sLB}, {WS_L0}
    s_mov_b32 s{sPH}, 0
    s_mov_b32 s{sFB}, {WS_FL}
    s_lshl_b32 s{sFL}, s2, 7
    s_add_u32 s{sFL}, s{sFL}, s{sFB}
    s_cmp_lt_u32 s{sW}, 2
    s_cselect_b32 s8, s78, s80
    s_cselect_b32 s9, s79, s81
    s_mov_b32 s10, {D*F*2}
    s_mov_b32 s11, 0x20000
    """)
    srd(c.a, 16, 82, D*F*2); srd(c.a, 20, 84, S*D*2)

def epilog(c):
    ts_dump(c)
    c.a(f"{c.name}_end:\ns_endpgm")
    for o in c.ool: c.a(o)

class Hz:
    def __init__(self, a): self.a = a; self.n = 0; self.mf = {}; self.va = {}; self.st = {}
    def need(self, kind, rd, wr):
        w = 0
        for r in list(rd) + list(wr): w = max(w, self.mf.get(r, -99) + 9 - self.n)
        if kind == 'perm':
            for r in rd: w = max(w, self.va.get(r, -99) + 3 - self.n)
        if kind != 'store':
            for r in wr: w = max(w, self.st.get(r, -99) + 3 - self.n)
        return w
    def mfma(self, s, d):
        self.a(s)
        for r in range(d, d+4): self.mf[r] = self.n
        self.n += 1
    def raw(self, s): self.a(s); self.n += 1
    def op(self, o):
        kind, s, rd, wr = o
        w = self.need(kind, rd, wr)
        if w > 0: self.a(f"s_nop {w-1}"); self.n += w
        self.a(s)
        if kind == 'store':
            for r in rd: self.st[r] = self.n
        else:
            for r in wr: self.va[r] = self.n
        self.n += 1
def fill(hz, ops, n, per, stop=None):
    for i in range(per):
        if not ops or ops[0][0] >= n + 1: return
        if stop and stop(ops[0]): return
        w = hz.need(ops[0][1][0], ops[0][1][2], ops[0][1][3])
        if w <= 0: hz.op(ops.pop(0)[1])
        else:
            k = min(w, per - i)
            hz.a(f"s_nop {k-1}"); hz.n += k
            if k == per - i: return
def o_mul(d, x, y): return ('valu', f"v_mul_f32 v{d}, v{x}, v{y}", [x, y], [d])
def o_cvt(d, x): return ('valu', f"v_cvt_pk_bf16_f32 v{d}, v{x}, v{x+1}", [x, x+1], [d])
def o_sw(n, x, y): return ('perm', f"v_permlane{n}_swap_b32 v{x}, v{y}", [x, y], [x, y])
def o_st(s, r): return ('store', s, list(range(r, r+4)), [])
def o_s(s): return ('salu', s, [], [])


def unpack(a, dst, src, n):
    for j in range(n):
        a(f"v_lshlrev_b32 v{dst+2*j}, 16, v{src+j}\nv_and_b32 v{dst+2*j+1}, s{sMASK}, v{src+j}")

def code_touch(c, dst=27, r=4):
    l = c.lab("pc")
    return f"""
    s_lshr_b32 s37, s2, 3
    s_lshl_b32 s37, s37, 2
    s_add_u32 s37, s37, s{sW}
    s_mul_i32 s37, s37, 3
    v_min_u32 v{r}, 2, v{vLANE}
    v_add_u32 v{r}, s37, v{r}
    v_lshlrev_b32 v{r}, 7, v{r}
    s_getpc_b64 s[50:51]
    {l}:
    s_sub_u32 s50, s50, {l}-{c.name}
    s_subb_u32 s51, s51, 0
    v_min_u32 v{r}, {c.name}_last-{c.name}, v{r}
    v_mov_b32 v{r+1}, s51
    v_add_co_u32 v{r}, vcc, s50, v{r}
    s_nop 1
    v_addc_co_u32 v{r+1}, vcc, 0, v{r+1}, vcc
    {f'global_load_dword v{dst}, v[{r}:{r+1}], off' if dst else ''}
    """

sXCC, sLOC = 87, 86
def dual(c, bit, fn):
    if not (c.opt.get('loc', 0) >> bit) & 1:
        fn("sc1"); return
    o = c.lab("loc"); b = c.lab("lob")
    c.a(f"s_cbranch_scc1 {o}")
    fn("sc1")
    c.a(f"{b}:")
    main = c.a; c.a = Asm(); fn(c.opt.get('loc_aux', "")); t = c.a.text(); c.a = main
    c.ool.append(f"{o}:\n{t}s_branch {b}")
```

```python
from fcore import *
import fg1k
LDS_PK = LDS_RED + 1024
WS_WDP = 74*MB
CW = STAGE; C_O = 4192; C_U = 8320
A_LDS = LDS_PK
K_LDS = 16384
vQ = 232
def front(c):
    a = c.a; opt = c.opt
    K = 32; V = 60; TP = 76; KF = 92; TF = 148; T = 180; O = KF + 16
    ACC = 32; FA = 64; FB = 128; AD = 252
    vA = [225, 226, 227, 228]; vB = 26; vE = 27; vF0 = 28; vQA = 29; vSW, vSR, vY, vPF = 212, 213, 214, 224
    def fa(s, i): return FA + (s*8 + i)*4
    def fb(s, i): return FB + (s*8 + i)*4
    head = opt.get('head', 0)
    if head:
        z = c.lab("nz")
        a(f"""
        s_bfe_u32 s34, s2, 0x40003             ; cbk
        s_lshl_b32 s33, s2, 1
        s_lshr_b32 s35, s2, 7
        s_add_u32 s33, s33, s35
        s_add_u32 s33, s33, s34
        s_and_b32 s33, s33, 15                 ; tokblk
        s_lshl_b32 s35, s33, 11
        s_add_u32 s35, s35, s34
        s_lshl_b32 s35, s35, 7
        v_and_b32 v4, 7, v0                    ; cg
        v_lshrrev_b32 v7, 3, v{vLANE}
        v_lshl_add_u32 v6, v1, 5, v7
        v_lshl_add_u32 v6, v6, 7, v4
        v_lshl_add_u32 v9, v6, 4, s35
        s_mul_i32 s52, s{sW}, {STAGE}
        s_add_u32 m0, s52, {K_LDS + 2048}
        s_mov_b32 s26, {S*D*2}
        s_mov_b32 s27, 0x20000
        s_movk_i32 s53, {16384-1024}
        s_lshl_b32 s54, s53, 1
        s_add_u32 s55, s54, s53
        s_waitcnt lgkmcnt(0)
        s_mov_b64 s[24:25], s[66:67]
        """)
        for i in range(4): a(f"buffer_load_dwordx4 v9, {SRD_T}, {['0','s53','s54','s55'][i]} offen offset:{1024*i} nt lds")
        a(f"""
        v_cmp_lt_u32 vcc, 4, v7
        v_subrev_u32 v8, 16384, v9
        v_bfrev_b32 v6, 1
        s_add_u32 s52, s52, {K_LDS}
        s_add_u32 m0, s52, 1024
        v_cndmask_b32 v8, v6, v8, vcc          ; k rows -3..-1
        buffer_load_dwordx4 v8, {SRD_T}, 0 offen nt lds
        """)
        prolog1(c)
        a(f"""
        s_mov_b32 m0, s52
        s_lshl_b32 s36, s34, 9
        v_add_u32 v10, s36, v{vL16}
        s_mov_b64 s[88:89], s[70:71]
        s_movk_i32 s90, {D*8}
        s_mov_b32 s91, s27
        buffer_load_dwordx4 v10, s[88:91], 0 offen lds
        v_lshrrev_b32 v5, 3, v0
        v_lshl_add_u32 v6, v5, 9, v4
        v_lshl_add_u32 v11, v6, 4, s35
        v_add_u32 v12, 4096, v11
        s_mov_b64 s[28:29], s[68:69]
        s_mov_b64 s[30:31], s[26:27]
        v_mov_b64 v[16:17], 0
        v_mov_b64 v[18:19], 0
        s_or_b32 s48, s33, s{sW}
        s_cbranch_scc1 {z}
        s_lshl_b32 s46, s34, 10
        s_add_u32 s46, s46, {WS_FL}
        s_add_u32 s47, s46, {128*128}
        buffer_store_dwordx4 v[16:19], v{vL16}, {SRD_WS}, s46 offen sc1
        buffer_store_dwordx4 v[16:19], v{vL16}, {SRD_WS}, s47 offen sc1
        {z}:
        s_barrier
        """)
        for i in range(4): a(f"buffer_load_dwordx4 v[{V+4*i}:{V+4*i+3}], v{11+(i>>1)}, {SRD_T2}, 0 offen offset:{2048*(i&1)} nt")
        a(code_touch(c, 251, 6))
        a("s_lshl_b32 s49, s34, 2\ns_add_u32 s49, s49, 64")
    else:
        z = c.lab("nz")
        a(f"""
        v_and_b32 v4, 7, v0                    ; cg
        v_lshrrev_b32 v5, 3, v0
        s_and_b32 s33, s2, 7
        s_lshr_b32 s34, s2, 3
        s_lshr_b32 s35, s34, 4
        s_and_b32 s34, s34, 15                 ; cbk
        s_lshl_b32 s33, s33, 1
        s_add_u32 s33, s33, s35
        s_add_u32 s33, s33, s34
        s_and_b32 s33, s33, 15                 ; tokblk
        s_lshl_b32 s35, s33, 18
        s_lshl_b32 s36, s34, 7
        s_add_u32 s35, s35, s36
        v_lshlrev_b32 v6, 13, v5
        v_lshl_add_u32 v6, v4, 4, v6
        v_add_u32 v11, s35, v6
        v_add_u32 v12, 4096, v11
        v_lshrrev_b32 v7, 3, v{vLANE}
        v_lshlrev_b32 v6, 11, v7
        v_lshl_add_u32 v6, v4, 4, v6
        s_lshl_b32 s36, s{sW}, 16
        s_add_u32 s35, s35, s36
        v_add_u32 v9, s35, v6
        v_cmp_lt_u32 vcc, 4, v7
        v_subrev_u32 v8, 16384, v9
        v_bfrev_b32 v6, 1
        s_mul_i32 s52, s{sW}, {STAGE}
        v_cndmask_b32 v8, v6, v8, vcc          ; k rows -3..-1
        s_add_u32 s52, s52, {K_LDS}
        s_mov_b32 m0, s52
        s_mov_b32 s53, {16384-1024}
        s_mov_b32 s54, {2*(16384-1024)}
        s_mov_b32 s55, {3*(16384-1024)}
        s_lshl_b32 s36, s34, 9
        v_add_u32 v10, s36, v{vL16}
        v_mov_b64 v[16:17], 0
        v_mov_b64 v[18:19], 0
        s_mov_b32 s90, {D*8}
        s_mov_b32 s91, 0x20000
        s_mov_b32 s26, {S*D*2}
        s_mov_b32 s27, 0x20000
        s_mov_b32 s30, {S*D*2}
        s_mov_b32 s31, 0x20000
        s_lshl_b32 s46, s34, 10
        s_add_u32 s46, s46, {WS_FL}
        s_add_u32 s47, s46, {128*128}
        s_or_b32 s48, s33, s{sW}
        s_waitcnt lgkmcnt(0)
        s_mov_b64 s[88:89], s[70:71]
        s_mov_b64 s[24:25], s[66:67]
        s_mov_b64 s[28:29], s[68:69]
        s_cbranch_scc1 {z}
        buffer_store_dwordx4 v[16:19], v{vL16}, {SRD_WS}, s46 offen sc1
        buffer_store_dwordx4 v[16:19], v{vL16}, {SRD_WS}, s47 offen sc1
        {z}:
        buffer_load_dwordx4 v10, s[88:91], 0 offen lds
        s_add_u32 m0, s52, 1024
        s_lshl_b32 s49, s34, 2
        buffer_load_dwordx4 v8, {SRD_T}, 0 offen nt lds
        s_add_u32 m0, s52, 2048
        s_add_u32 s49, s49, 64
        """)
        for i in range(4): a(f"buffer_load_dwordx4 v9, {SRD_T}, {['0','s53','s54','s55'][i]} offen offset:{1024*i} nt lds")
        if opt.get('kbar', 1): a("s_barrier")
        for i in range(4): a(f"buffer_load_dwordx4 v[{V+4*i}:{V+4*i+3}], v{11+(i>>1)}, {SRD_T2}, 0 offen offset:{2048*(i&1)} nt")
    NX = 1 if head else 0
    if opt.get('sta'): stamp(c)
    if opt.get('pf_code', 2) == 1:
        NX = 1
        a(f"""
        s_lshr_b32 s37, s2, 3
        s_lshl_b32 s37, s37, 2
        s_add_u32 s37, s37, s{sW}
        v_and_b32 v6, 1, v0
        v_lshl_add_u32 v6, s37, 1, v6
        v_lshlrev_b32 v6, 7, v6
        s_getpc_b64 s[50:51]
        {c.name[:6]}_pc:
        v_min_u32 v6, {c.name}_last-{c.name[:6]}_pc, v6
        v_mov_b32 v7, s51
        v_add_co_u32 v6, vcc, s50, v6
        s_nop 1
        v_addc_co_u32 v7, vcc, 0, v7, vcc
        global_load_dword v251, v[6:7], off
        """)
    if opt.get('tlb', 0):
        NX += 1
        sh = opt['tlb']
        a(f"""
        s_lshr_b32 s37, s2, 3
        s_cmp_lt_u32 s37, 16
        s_cselect_b64 s[40:41], s[82:83], s[84:85]
        s_cselect_b32 s42, {D*F*2}, s26
        s_cmp_eq_u32 s{sW}, 1
        s_cselect_b64 s[40:41], s[78:79], s[40:41]
        s_cselect_b32 s42, {D*F*2}, s42
        s_cmp_eq_u32 s{sW}, 3
        s_cselect_b64 s[40:41], s[80:81], s[40:41]
        s_cselect_b32 s42, {D*F*2}, s42
        s_cmp_eq_u32 s{sW}, 0
        s_cselect_b64 s[40:41], s[12:13], s[40:41]
        s_cselect_b32 s42, {WS_USED}, s42
        s_cselect_b32 s38, 31, 15
        s_mov_b32 s43, 0x20000
        s_and_b32 s37, s37, s38
        s_add_u32 s38, s38, 1
        v_min_u32 v6, {(1 << (26 - sh)) - 1}, v{vLANE}
        v_mul_u32_u24 v6, s38, v6
        v_add_lshl_u32 v6, v6, s37, {sh}
        buffer_load_dword v251, v6, s[40:43], 0 offen nt
        """)
    z = c.lab("nz")
    lead = lambda w: f"""s_cmp_lg_u32 s48, 0
    s_cbranch_scc1 {z}
    v_mov_b32 v20, 1
    {w}
    s_mov_b64 exec, 1
    buffer_store_dword v20, v16, s[88:91], s49 offen sc1
    s_mov_b64 exec, -1
    {z}:"""
    a(f"""
    s_mov_b64 s[88:89], s[86:87]
    s_mov_b32 s90, 256
    {"" if head else lead(f"s_waitcnt vmcnt({10+NX})")}
    s_lshl_b32 s41, s34, 4
    s_add_u32 s41, s41, s33
    s_lshl_b32 s42, s41, 2
    s_add_u32 s42, s42, s{sW}              ; channel d
    s_lshr_b32 s44, s42, 1
    s_lshl_b32 s44, s44, 2
    s_load_dword s45, s[74:75], s44
    s_mul_i32 s47, s{sW}, {CW}
    s_mov_b64 s[24:25], s[72:73]
    s_mov_b64 s[28:29], s[64:65]
    """)
    prolog2(c)
    if opt.get('q_lds', 0):
        qa = f"""v_lshl_add_u32 v6, v4, 9, v6
        v_lshrrev_b32 v7, 1, v4
        v_lshl_add_u32 v6, v7, 5, v6
        v_add_u32 v215, s52, v6
        v_lshrrev_b32 v7, 5, v{vLANE}
        v_and_b32 v6, 0x1f0, v{vL16}
        v_lshl_add_u32 v{vQA}, v7, 11, v6"""
    else: qa = f"v_lshl_add_u32 v{vQA}, v4, 11, v6"
    if opt.get('t_x', 1):
        wt = f"""s_lshr_b32 s58, s2, 3
        s_lshl_b32 s58, s58, 1
        s_and_b32 s38, s{sW}, 1
        s_add_u32 s58, s58, s38
        s_mul_i32 s58, s58, 7168
        s_lshr_b32 s38, s{sM}, 3
        s_mul_i32 s38, s38, 1792
        s_add_u32 s58, s58, s38
        s_mov_b32 s83, s58
        v_min_u32 v6, 13, v{vLANE}
        v_lshlrev_b32 v{vPF}, 7, v6"""
    else:
        wt = f"""s_lshl_b32 s58, s2, 1
        s_and_b32 s38, s{sW}, 1
        s_add_u32 s58, s58, s38
        s_mul_i32 s58, s58, {7*128}
        v_min_u32 v6, 6, v{vLANE}
        v_lshlrev_b32 v{vPF}, 7, v6"""
    if opt.get('yflag', 1):
        yf = f"""v_lshrrev_b32 v6, 1, v{vLANE}
        v_and_b32 v7, 16, v{vL16}
        v_lshl_add_u32 v6, v6, 10, v7
        v_add_u32 v250, 64, v6
        s_lshr_b32 s85, s2, 3
        s_lshl_b32 s85, s85, 10
        s_and_b32 s37, s2, 7
        s_lshl_b32 s37, s37, 2
        s_add_u32 s85, s85, s37
        s_add_u32 s85, s85, {WS_FL + 64}"""
    else: yf = f"v_lshlrev_b32 v250, 7, v0\ns_mov_b32 s85, s{sFL}"
    t1 = opt.get('t1', 35)
    rot = "s_lshr_b32 s38, s2, 3\n"
    for k in range(7):
        rot += f"""s_and_b32 s39, s38, 15
        s_lshl_b32 s39, s39, 7
        s_add_u32 s{64+k}, s{64+k}, s39
        s_bfe_u32 s39, s38, 0x30001
        s_mul_i32 s39, s39, {112*8192}
        s_add_u32 s{76+k}, s59, s39
        s_and_b32 s39, s38, 1
        s_lshl_b32 s39, s39, 12
        s_add_u32 s{76+k}, s{76+k}, s39
        s_lshl_b32 s39, s32, {15 if k < 4 else 14 if k < 6 else 13}
        s_add_u32 s39, s39, {(k if k < 4 else 28 + k if k < 6 else 48)*8192}
        s_add_u32 s{76+k}, s{76+k}, s39
        s_add_u32 s38, s38, {opt.get('pk_rot', 1)}
        """
    a(f"""
    s_lshl_b32 s84, s42, 12
    v_lshrrev_b32 v7, 3, v{vLANE}
    v_lshlrev_b32 v7, 9, v7
    v_lshl_add_u32 v7, v4, 4, v7
    v_add_u32 v10, s52, v7
    v_lshl_add_u32 v21, v4, 6, s52
    v_mul_u32_u24 v6, 2064, v4
    v_sub_u32 v7, 31, v5
    v_lshl_add_u32 v6, v7, 3, v6
    v_add_u32 v13, {A_LDS}, v6
    v_lshrrev_b32 v7, 7, v0
    v_add_u32 v7, v7, v0
    v_lshlrev_b32 v7, 4, v7
    v_add_u32 v14, {A_LDS}, v7
    v_lshrrev_b32 v6, 4, v0
    v_and_b32 v7, 15, v0
    v_lshl_add_u32 v249, v7, 2, 64
    v_lshlrev_b32 v7, 4, v7
    v_lshl_add_u32 v15, v6, 12, v7         ; u^T store
    s_lshl_b32 s36, s34, 18
    s_sub_u32 s37, 15, s33
    s_lshl_b32 s37, s37, 8
    s_add_u32 s36, s36, s37
    s_add_u32 s36, s36, {WS_UT}
    v_lshrrev_b32 v5, 3, v{vLANE}
    v_lshl_add_u32 v6, v5, 7, v4
    v_lshlrev_b32 v6, 7, v6
    s_lshl_b32 s37, s34, 10
    v_add_u32 v{vF0}, s37, v6
    {yf}
    v_and_b32 v6, 3, v5
    v_lshlrev_b32 v7, 5, v4
    v_lshl_or_b32 v6, v6, 1, v7
    s_and_b32 s37, s2, 0x19
    v_or_b32 v6, s37, v6
    v_lshlrev_b32 v{vFL}, 7, v6
    v_lshlrev_b32 v6, 4, v5
    {qa}
    s_lshl_b32 s56, s{sG8}, 14
    s_lshl_b32 s38, s{sW}, 9
    s_add_u32 s56, s56, s38
    v_lshlrev_b32 v6, 4, v4
    v_lshl_add_u32 v{vY}, v5, 15, v6
    s_lshl_b32 s57, s{sW}, 19
    s_lshl_b32 s38, s41, 7
    s_add_u32 s57, s57, s38
    s_add_u32 s57, s57, {WS_Y}
    v_bfe_u32 v6, v{vLANE}, 1, 2
    v_mul_u32_u24 v6, 160, v6
    v_lshl_add_u32 v6, v5, 3, v6
    v_and_b32 v7, 1, v{vLANE}
    v_lshl_add_u32 v6, v7, 2, v6
    s_mul_i32 s37, s{sW}, 640
    v_add_u32 v{vSR}, s37, v6
    v_add_u32 v229, {2*CW}, v{vSR}
    v_min_u32 v6, 33, v{vLANE}
    v_lshlrev_b32 v6, 4, v6
    v_cmp_lt_u32 vcc, 1, v{vLANE}
    v_mov_b32 v7, {C_O-32-32}
    v_mov_b32 v5, {C_U+4096-64}
    v_cndmask_b32 v7, 0, v7, vcc
    v_cmp_lt_u32 vcc, 3, v{vLANE}
    v_add_u32 v{vE}, s47, v{vL16}
    v_and_b32 v4, 15, v{vLANE}             ; b
    v_cndmask_b32 v7, v7, v5, vcc
    v_add3_u32 v6, v6, v7, s47
    ds_write_b128 v6, v[16:19]
    v_lshrrev_b32 v5, 4, v{vLANE}          ; q
    v_add_u32 v6, 1, v4
    v_lshrrev_b32 v6, 1, v6
    v_lshl_add_u32 v6, v5, 2, v6
    v_lshlrev_b32 v6, 2, v6
    v_and_b32 v7, 1, v4
    v_xor_b32 v7, 1, v7
    v_mul_u32_u24 v7, {C_O-28}, v7
    v_add3_u32 v{vA[0]}, v6, v7, s47
    v_add_u32 v{vA[1]}, 1024, v{vA[0]}
    v_add_u32 v{vA[2]}, 2048, v{vA[0]}
    v_add_u32 v{vA[3]}, 3072, v{vA[0]}
    v_lshlrev_b32 v6, 5, v4
    v_lshlrev_b32 v7, 4, v5
    v_sub_u32 v6, v7, v6
    s_add_u32 s37, s47, {C_U + 2*(S-16) - 512*7}
    v_add_u32 v{vB}, s37, v6
    v_mul_u32_u24 v6, 160, v5
    v_lshl_add_u32 v6, v4, 3, v6
    v_add_u32 v{vSW}, s47, v6
    {wt}
    v_lshl_add_u32 v6, v5, 3, v4
    v_sub_u32 v6, 15, v6
    v_and_b32 v7, 1, v6
    v_lshlrev_b32 v7, 4, v7
    v_ashrrev_i32 v6, 1, v6
    s_and_b32 s37, s42, 1
    s_lshl_b32 s37, s37, 4
    s_waitcnt lgkmcnt(0)
    s_lshr_b32 s45, s45, s37
    s_and_b32 s45, s45, 0xffff
    v_lshlrev_b32 v7, v7, s45
    """)
    for i in range(4):
        a(f"v_cmp_eq_u32 vcc, {i}, v6\ns_nop 1\nv_cndmask_b32 v{AD+i}, 0, v7, vcc")
    amain = a; a = Asm()
    a(f"""
    s_and_b32 s37, s2, 7
    s_lshl_b32 s37, s37, 1
    s_lshr_b32 s38, s2, 7
    s_add_u32 s37, s37, s38                ; P
    s_mul_i32 s38, s37, {224*2048}
    s_lshr_b32 s59, s37, 3
    s_mul_i32 s59, s59, {56*8192}
    s_and_b32 s32, s37, 7
    s_lshl_b32 s39, s{sW}, 10
    s_add_u32 s59, s59, s39
    s_add_u32 s59, s59, {WS_WDP}
    s_and_b32 s35, s{sW}, 1
    s_lshr_b32 s37, s{sW}, 1
    s_lshl_b32 s39, s{sW}, 13
    s_add_u32 s64, s39, s38
    s_add_u32 s65, s64, {64*2048}
    s_add_u32 s66, s64, {112*2048}
    s_add_u32 s67, s64, {176*2048}
    s_lshl_b32 s39, s37, 17
    s_lshl_b32 s68, s35, 13
    s_add_u32 s39, s39, s68
    s_add_u32 s39, s39, s38
    s_add_u32 s68, s39, {32*2048}
    s_add_u32 s69, s39, {144*2048}
    s_mul_i32 s39, s37, {112*2048}
    s_lshl_b32 s70, s35, 14
    s_add_u32 s39, s39, s70
    s_add_u32 s39, s39, s38
    s_add_u32 s70, s39, {48*2048}
    {rot}
    s_lshl_b32 s71, s{sW}, 10
    s_add_u32 s71, s71, {LDS_PK}
    v_lshrrev_b32 v6, 5, v{vLANE}
    v_bfe_u32 v7, v{vLANE}, 3, 2
    v_and_b32 v216, 0x70, v{vL16}
    v_lshl_add_u32 v7, v7, 11, v216
    v_lshl_add_u32 v216, v6, 15, v7
    v_lshl_add_u32 v217, v6, 14, v7
    v_lshl_add_u32 v218, v6, 13, v7
    v_bfe_u32 v6, v{vLANE}, 2, 2
    v_lshrrev_b32 v5, 4, v{vLANE}
    v_lshl_add_u32 v6, v5, 3, v6
    v_and_b32 v7, 0x30, v{vL16}
    v_lshl_add_u32 v6, v6, 7, v7
    s_lshl_b32 s37, s37, 6
    s_lshl_b32 s35, s35, 3
    s_add_u32 s37, s37, s35
    s_add_u32 s37, s37, {LDS_PK}
    v_add_u32 v219, s37, v6
    """)
    fg1k.g1_waddr(a)
    later = a.text(); a = amain
    if opt.get('iw', 2048) and opt.get('iwf', 1):
        a(f"s_cmp_lg_u32 s{sW}, {opt.get('iwf', 1) - 1}\ns_cbranch_scc1 iw_fret\ns_mov_b64 exec, 0\ns_branch iw_f0\niw_fret:\ns_mov_b64 exec, -1")
    stamp(c, "setup")
    a(f"s_waitcnt vmcnt({(4 if head else 9)+NX})")
    for i in range(4): a(f"ds_read_b128 v[{TP+4*i}:{TP+4*i+3}], v21 offset:{16*i}")
    if head:
        for i in range(7): a(f"ds_read_b128 v[{K+4*i}:{K+4*i+3}], v10 offset:{1024+(5+i)*128}")
        a(lead(""))
    for ch in range(8):
        if ch % 2 == 0: a(f"s_waitcnt lgkmcnt({3-ch//2+(7 if head else 0)})")
        for h in range(2):
            r = TP + 2*ch + h
            a(f"v_lshlrev_b32 v{TF+(2*h)*8+ch}, 16, v{r}\nv_and_b32 v{TF+(2*h+1)*8+ch}, s{sMASK}, v{r}")
    ep = opt.get('e_pos', 3)
    eld = "s_add_u32 m0, s47, 32\ns_nop 0\n" + "".join(f"buffer_load_dwordx4 v{vL16}, {SRD_T}, s84 offen offset:{1024*i} nt lds\n" for i in range(4))
    if ep == -3: a("s_barrier")
    if ep <= -2: a(eld); NX += 4
    if not head: a(f"s_waitcnt vmcnt({4+NX})")
    if opt.get('sta'): stamp(c)
    if ep == -1: a(eld); NX += 4
    if not head:
        for i in range(7): a(f"ds_read_b128 v[{K+4*i}:{K+4*i+3}], v10 offset:{1024+(5+i)*128}")
    for i in range(7):
        a(f"s_waitcnt lgkmcnt({6-i})")
        unpack(a, KF+8*i, K+4*i, 4)
    for t in range(4):
        for tap in range(4):
            for p in range(4):
                d = T + 8*t + 2*p; kk = KF + 8*(t+3-tap) + 2*p; w = TF + 8*tap + 2*p
                if tap == 0: a(f"v_pk_mul_f32 v[{d}:{d+1}], v[{kk}:{kk+1}], v[{w}:{w+1}]")
                else: a(f"v_pk_fma_f32 v[{d}:{d+1}], v[{kk}:{kk+1}], v[{w}:{w+1}], v[{d}:{d+1}]")
    if opt.get('sta'): stamp(c)
    for t in range(4):
        a(f"s_waitcnt vmcnt({3-t+NX})")
        if opt.get('sta') and t == 3: stamp(c)
        if t == ep: a(eld); NX += 4
        unpack(a, KF, V+4*t, 4)
        for p in range(4):
            d = T + 8*t + 2*p
            a(f"v_pk_mul_f32 v[{d}:{d+1}], v[{d}:{d+1}], v[{KF+2*p}:{KF+2*p+1}]")
    for ch in range(8):
        a(f"v_cvt_pk_bf16_f32 v{O+2*ch}, v{T+24+ch}, v{T+16+ch}\nv_cvt_pk_bf16_f32 v{O+2*ch+1}, v{T+8+ch}, v{T+ch}")
        a(f"ds_write_b64 v13, v[{O+2*ch}:{O+2*ch+1}] offset:{256*ch}")
    a("s_waitcnt lgkmcnt(0)\ns_barrier")
    stamp(c, "A done")
    for i in range(4): a(f"ds_read_b128 v[{K+4*i}:{K+4*i+3}], v14 offset:{i*2*2064}")
    for i in range(4):
        a(f"s_waitcnt lgkmcnt({3-i})")
        a(f"buffer_store_dwordx4 v[{K+4*i}:{K+4*i+3}], v15, {SRD_WS}, s36 offen sc1")
        a(f"s_add_u32 s36, s36, {16*4096}")
    a(f"buffer_load_dword v20, v16, s[88:91], s49 offen sc1")
    wa = opt.get('wa', 'Q'); nwa = 0
    qld = [f"buffer_load_dwordx4 v[{vQ+4*i}:{vQ+4*i+3}], v{vQA}, {SRD_T2}, s56 offen offset:{128*i} {opt.get('q_aux', 'nt')}" for i in range(4)]
    qlds = opt.get('q_lds', 0)
    if qlds: qld = [f"s_add_u32 m0, s52, {1056*i}\ns_add_u32 s37, s56, {4096*i}\nbuffer_load_dwordx4 v{vQA}, {SRD_T2}, s37 offen nt lds" for i in range(4)]
    tld = f"buffer_load_dword v251, v{vPF}, {SRD_W}, s58 offen"
    if 'q' in wa:
        for l in qld: a(l)
        nwa += 4
    if 't' in wa: a(tld); nwa += 1
    if opt.get('sta'): stamp(c)
    if ep == 9: a(eld)
    else: a(f"s_waitcnt vmcnt({5+nwa})")
    if opt.get('sta'): stamp(c)
    if ep == 9:
        ok = c.lab("boot")
        signal(c, vm=4, pre=f"v_cmp_ne_u32 vcc, 0, v20\ns_cbranch_vccnz {ok}\n" + poll(c, "s[88:91]", 4, "s49", "", 1) + f"{ok}:")
        stamp(c, "sig0")
        a(later); a("s_waitcnt vmcnt(0)")
    HK = 96
    for i in range(4):
        a(f"ds_read_b128 v[{HK+4*i}:{HK+4*i+3}], v{vE} offset:{32+1024*i}\nds_read_b32 v{HK+16+i}, v{vE} offset:{28+1024*i}")
    for i in range(4):
        r = HK + 4*i; o = 160 + 4*i
        a(f"s_waitcnt lgkmcnt({6-i})")
        a(f"v_alignbit_b32 v{o}, v{r}, v{HK+16+i}, 16")
        for j in range(1, 4): a(f"v_alignbit_b32 v{o+j}, v{r+j}, v{r+j-1}, 16")
        a(f"ds_write_b128 v{vE}, v[{o}:{o+3}] offset:{C_O+1024*i}")
    def opA(j, i): return f"a[{(j*4+i)*4}:{(j*4+i)*4+3}]" if i < 4 else f"v[{fa(j&1,i)}:{fa(j&1,i)+3}]"
    def opB(j, i): return f"a[{128+(j*4+i)*4}:{128+(j*4+i)*4+3}]" if i < 4 else f"v[{fb(j&1,i)}:{fb(j&1,i)+3}]"
    def rdA(j, i):
        o = (i & 1)*128 + 16*j; p, r = ("a", (j*4+i)*4) if i < 4 else ("v", fa(j&1, i))
        return [f"ds_read2_b32 {p}[{r}:{r+1}], v{vA[i>>1]} offset0:{o} offset1:{o+1}", f"ds_read2_b32 {p}[{r+2}:{r+3}], v{vA[i>>1]} offset0:{o+2} offset1:{o+3}"]
    def rdB(j, i): return f"ds_read_b128 {opB(j, i)}, v{vB} offset:{512*(7-i)+64*j}"
    def rd2(j): return [rdB(j, i) for i in range(4, 8)] + [l for i in range(4, 8) for l in rdA(j, i)]
    ok = c.lab("boot")
    signal(c, vm=nwa, pre=f"v_cmp_ne_u32 vcc, 0, v20\ns_cbranch_vccnz {ok}\n" + poll(c, "s[88:91]", 4, "s49", "", 1) + f"{ok}:")
    stamp(c, "sig0")
    tf = opt.get('t_first', 1)
    def ts0():
        for i in range(opt.get('t_s0', 2)): a(tld); a(f"s_add_u32 s58, s58, {64*7168}")
    if tf == 1: ts0()
    if 'Q' in wa:
        for l in qld: a(l)
    if tf == 2: ts0()
    LA = [l for j in range(8) for i in range(4) for l in rdA(j, i)]
    LL = [l for l in later.split("\n") if l.strip() and not l.strip().startswith(";")]
    for k, l in enumerate(LL):
        a(l)
        if k % 2 == 0 and LA: a(LA.pop(0))
    for l in LA: a(l)
    pkl = lambda k: [f"s_add_u32 m0, s71, {4096*k}", f"buffer_load_dwordx4 v{216 if k < 4 else 217 if k < 6 else 218}, {SRD_WD}, s{64+k} offen {opt.get('pk_aux', 'nt')} lds"]
    ns0 = opt.get('pk_s0', 0)
    for k in range(ns0): a(pkl(k)[0]); a("s_nop 0"); a(pkl(k)[1])
    if not tf: ts0()
    a(f"""
    s_add_u32 s84, s84, {WS_UT}
    s_lshl_b32 s37, s{sW}, 29
    v_mov_b32 v230, s37
    v_mov_b32 v231, 2
    """)
    if opt.get('iw', 2048):
        a(f"""
        s_cmp_eq_u32 s{sW}, 0
        s_cbranch_scc1 iw_ret
        s_mov_b64 exec, 0
        s_cmp_eq_u32 s{sW}, 1
        s_cbranch_scc1 iw_c0
        s_cmp_eq_u32 s{sW}, 2
        s_cbranch_scc1 iw_c1
        s_branch iw_c2
        iw_ret:
        s_mov_b64 exec, -1
        """)
    wait(c, vF0, "s_mov_b64 exec, 0xffff")
    stamp(c, "wait0")
    a(f"s_add_u32 m0, s47, {C_U}\ns_mov_b32 s38, 0x05040100")
    for i in (3, 2, 1, 0):
        a(f"buffer_load_dwordx4 v{vL16}, {SRD_WS}, s84 offen offset:{1024*i} sc1 lds")
    a("s_mov_b32 s39, 0x07060302\ns_waitcnt vmcnt(3)")
    a(rdB(0, 0)); a(rdB(0, 1)); a("s_waitcnt vmcnt(2)"); a(rdB(0, 2)); a(rdB(0, 3))
    for i in range(4): a(rdB(1, i))
    stamp(c, "ur")
    side = {}
    def put(pos, l): side.setdefault(pos, []).append(l)
    for i, p in enumerate(opt.get('t_pos', [225])):
        put(p, tld); put(p+1, f"s_add_u32 s58, s58, {64*7168}")
    p = opt.get('q_pos', 40)
    if 'q' not in wa.lower():
        for l in qld: put(p, l); p += opt.get('q_dp', 20)
    p = opt.get('pk_pos', 6)
    for k in range(ns0, 7):
        put(p-1, f"s_add_u32 m0, s71, {4096*k}")
        put(p, f"buffer_load_dwordx4 v{216 if k < 4 else 217 if k < 6 else 218}, {SRD_WD}, s{64+k} offen {opt.get('pk_aux', 'nt')} lds"); p += opt.get('pk_dp', 40)
    if qlds:
        for i in range(4): put(80 + 26*4 + 14 + i, f"ds_read_b128 v[{vQ+4*i}:{vQ+4*i+3}], v215 offset:{128*i}")
    put(251, f"buffer_load_dword v248, v249, s[88:91], 0 offen sc1")
    STG = 12992; SR, SO = FA, FB
    def stage_rd(off): return [f"ds_read_b32 v{SR+4*g+ch}, v{vSR if ch < 2 else 229} offset:{(ch&1)*CW + off + g*64}" for g in range(2) for ch in range(4)]
    def stage_st(g):
        r = SR + 4*g; o = SO + 4*g
        return [f"v_perm_b32 v{o}, v{r+1}, v{r}, s38", f"v_perm_b32 v{o+1}, v{r+3}, v{r+2}, s38", f"v_perm_b32 v{o+2}, v{r+1}, v{r}, s39", f"v_perm_b32 v{o+3}, v{r+3}, v{r+2}, s39",
                f"buffer_store_dwordx4 v[{o}:{o+3}], v{vY}, {SRD_WS}, s57 offen sc1", f"s_add_u32 s57, s57, {(8 if g == 0 else 56)*32768}"]
    hz = Hz(a); ops = []; pos = 0; nvm = [0]
    def emit(l):
        if l.startswith("buffer_") or l.startswith("global_"): nvm[0] += 1
        hz.raw(l)
    def mm(n, A, B, zero=False):
        cc = ACC + 4*n
        hz.mfma(f"{MF} v[{cc}:{cc+3}], {A}, {B}, " + ("0" if zero else f"v[{cc}:{cc+3}]"), cc)
    def out_ops(n, k, off):
        cc = ACC + 4*n
        return [(k, o_cvt(cc, cc)), (k, o_cvt(cc+1, cc+2)), (k, ('salu', f"ds_write_b64 v{vSW}, v[{cc}:{cc+1}] offset:{off + 640*(n & 3)}", [], []))]
    ADs = f"v[{AD}:{AD+3}]"
    for n in range(4):
        hz.raw(f"s_waitcnt lgkmcnt({7-n})"); mm(n, ADs, opB(0, n), True)
    for j in range(8):
        if j: hz.raw(f"s_waitcnt lgkmcnt({4 if j < 7 else 6})")
        if j == 2: hz.raw(f"s_waitcnt vmcnt({nvm[0]})")
        R = [rdB(j+2, i) for i in range(4)] if j < 6 else rd2(0)[6*(j-6):6*(j-5)]
        for k, (n, i) in enumerate([(n, i) for n in range(4) for i in range(n+1)]):
            mm(n, opA(j, i), opB(j, n-i))
            if k < len(R): hz.raw(R[k])
            for l in side.get(pos, []): emit(l)
            pos += 1
    sigj = opt.get('y_sig', 7); ys = opt.get('y_st', 2)
    if ys >= 6: sigj = 99
    for j in range(8):
        hz.raw("s_waitcnt lgkmcnt(0)" if j != sigj else f"s_waitcnt vmcnt({nvm[0] - mark}) lgkmcnt(0)")
        if j == 0:
            for n in range(4, 8): mm(n, ADs, opB(0, n), True)
            for n in range(4): ops += out_ops(n, 0, STG)
        R = rd2(j+1) if j < 7 else []
        if j == ys - 1: R = R + stage_rd(STG)
        if j == ys: R = R + stage_st(0) + stage_st(1)
        for k, (n, i) in enumerate([(n, i) for n in range(4, 8) for i in range(n+1)]):
            mm(n, opA(j, i), opB(j, n-i))
            if k == 0 and j in (1, sigj): hz.raw("s_barrier")
            if k == 1 and j == sigj: emit(f"buffer_store_dword v231, v230, {SRD_WS}, s85 offen sc1")
            if k < len(R):
                emit(R[k])
                if R[k].startswith("buffer_store"): mark = nvm[0]
            for l in side.get(pos, []): emit(l)
            if j == 7 and n == i: ops += out_ops(n, k, 0)
            if j in (0, 7): fill(hz, ops, k, 1 if k < len(R) else 2)
            pos += 1
        if j == 0: assert not ops
    stamp(c, "conv")
    for _, o in ops: hz.op(o)
    a(f"s_add_u32 s{sPH}, s{sPH}, 1\ns_waitcnt lgkmcnt(0)\ns_barrier")
    for l in stage_rd(0): a(l)
    for g in range(2):
        a(f"s_waitcnt lgkmcnt({4-4*g})")
        for l in stage_st(g): a(l)
    stamp(c, "y out")

TOUCH2 = f"buffer_load_dword v251, v224, {SRD_W}, s58 offen\ns_add_u32 s58, s58, {64*7168}"
PKR = [192, 196, 200, 204, 208, 212, 220]
def repack_store(k): return f"buffer_store_dwordx4 v[{PKR[k]}:{PKR[k]+3}], v{vL16}, {SRD_WS}, s{76+k} offen sc1"
def repack(c, n):
    a = c.a
    for k in range(7):
        r = PKR[k]
        a(f"ds_read_b64_tr_b16 v[{r}:{r+1}], v219 offset:{4096*k}\nds_read_b64_tr_b16 v[{r+2}:{r+3}], v219 offset:{4096*k+512}")
    for k in range(n):
        a(f"s_waitcnt lgkmcnt({12-2*k})"); a(repack_store(k))
```

```python
from asmlib import *
from common import *
import re

sW, sTB, sM, sLAY, sLB = 3, 4, 5, 6, 7
SRD_W, SRD_WS, SRD_WD, SRD_OUT, SRD_T, SRD_T2 = "s[8:11]", "s[12:15]", "s[16:19]", "s[20:23]", "s[24:27]", "s[28:31]"
sG8 = 60
sMASK = 61
vLANE, vL16 = 2, 3
aX, aY = 224, 240
MF = "v_mfma_f32_16x16x32_bf16"
SPIN = 4000000
FL_A, FL_B, FL_LN, FL_G1, FL_G2, FL_PAIR = 0, 256, 512, 640, 768, 1536
STAGE = 32768 + 256
UOFF = 8192 + 16
LDS_RED = 4*STAGE
LDS_TOTAL = LDS_RED + 1024

class Lay:
    pass
LY = Lay()
def set_layout(reuse):
    LY.P = WS_UT if reuse else WS_L0 + L_EX
    LY.EX = WS_UT if reuse else WS_L0 + LSTRIDE + L_EX
    LY.XR = WS_XR
    LY.L1 = WS_L0 if reuse else WS_L0 + LSTRIDE
    LY.sc = "sc1" if reuse else ""

class Ctx:
    def __init__(self, name, ts=False, **opt):
        self.a = Asm(); self.name = name; self.ts = ts; self.nl = 0; self.ool = []; self.opt = opt
    def lab(self, s):
        self.nl += 1
        return f"{self.name[:6]}_{s}{self.nl}"

def stamp(c, name=""):
    if not c.ts: return
    if c.opt.get('stss') and name in ("setup", "A done", "sig0", "wait0", "ur", "conv", "y out", "sigY", "ln in", "xn out", "sigX", "waitY", "waitP", "p out", "sigP", "waitE", "sigE", "out"): return
    c.a("""
    s_memrealtime s[98:99]
    s_memtime s[100:101]
    s_mov_b32 m0, s97
    s_add_u32 s97, s97, 1
    s_waitcnt lgkmcnt(0)
    v_writelane_b32 v30, s98, m0
    v_writelane_b32 v31, s100, m0
    """)
def ts_dump(c):
    if not c.ts: return
    if 'pad' in c.opt:
        l = c.lab("pad")
        c.a(f"""
        v_readlane_b32 s32, v30, {c.opt['pad']}
        {l}:
        s_memrealtime s[98:99]
        s_waitcnt lgkmcnt(0)
        s_sub_u32 s33, s98, s32
        s_cmp_lt_u32 s33, 15000
        s_cbranch_scc1 {l}
        """)
        return
    if c.opt.get('dbgts'):
        sel = c.opt['dbgts']; z = c.lab("nd")
        c.a(f"s_cmp_lg_u32 s2, {c.opt.get('dbgwg', 37)}\ns_cbranch_scc1 {z}\ns_cmp_lg_u32 s{sW}, 1\ns_cbranch_scc1 {z}\nv_readlane_b32 s32, v30, 0\nv_readlane_b32 s34, v31, 0\nv_mov_b32 v5, 0")
        for i, k in enumerate(sel):
            src, b = (30, 32) if k >= 0 else (31, 34)
            c.a(f"v_readlane_b32 s33, v{src}, {abs(k)}\ns_nop 3\ns_sub_u32 s33, s33, s{b}\nv_writelane_b32 v5, s33, {i}")
        c.a(f"v_lshlrev_b32 v4, 2, v{vLANE}\ns_mov_b64 exec, 0xffff\nbuffer_store_dword v5, v4, s[88:91], 0 offen sc1\n{z}:")
        return
    c.a(f"""
    s_load_dword s96, s[0:1], 88
    s_lshl_b32 s32, s93, 2
    s_add_u32 s32, s32, s{sW}
    s_lshl_b32 s32, s32, 9
    s_waitcnt lgkmcnt(0)
    s_bfe_u32 s96, s96, 0x60009
    s_lshl_b32 s96, s96, 19
    s_add_u32 s32, s32, s96
    s_add_u32 s32, s32, {WS_TS}
    v_lshlrev_b32 v4, 3, v{vLANE}
    buffer_store_dwordx2 v[30:31], v4, {SRD_WS}, s32 offen
    """)

def srd(a, d, lo, size):
    a(f"s_mov_b32 s{d}, s{lo}\ns_mov_b32 s{d+1}, s{lo+1}\ns_mov_b32 s{d+2}, {size}\ns_mov_b32 s{d+3}, 0x20000")

sPH, sFL, sFB, vFL = 63, 94, 95, 0
def signal(c, pre="", vm=0, vm0=0, sfl=sFL):
    l = c.lab("sig")
    c.a(f"""
    s_add_u32 s{sPH}, s{sPH}, 1
    v_mov_b32 v4, 0
    v_mov_b32 v5, s{sPH}
    s_cmp_lg_u32 s{sW}, 0
    s_waitcnt vmcnt({vm + vm0})
    {f"s_cbranch_scc0 {l}a" if vm0 else ""}
    {f"s_waitcnt vmcnt({vm})" if vm0 else ""}
    {f"{l}a:" if vm0 else ""}
    s_barrier
    s_cbranch_scc1 {l}
    {pre}
    s_mov_b64 exec, 1
    {c.opt.get('flag_op', 'buffer_store_dword')} v5, v4, {SRD_WS}, s{sfl} offen {c.opt.get('flag_aux', 'sc1')}
    s_mov_b64 exec, -1
    {l}:
    """)
def poll(c, srdn, va, soff, mask, target, slp=0, x4=False):
    p = c.lab("poll"); d = c.lab("pd"); to = d
    if c.opt.get('diag'):
        to = c.lab("to")
        c.ool.append(f"""{to}:
        s_waitcnt vmcnt(0)
        s_lshl_b32 s62, s2, 2
        s_add_u32 s62, s62, s{sW}
        s_lshl_b32 s62, s62, 3
        s_add_u32 s62, s62, s{sPH}
        s_lshl_b32 s62, s62, 8
        s_add_u32 s62, s62, {WS_X2}
        v_or_b32 v7, 0x{0x40000000 if srdn == SRD_WS else 0x20000000:x}, v7
        v_lshlrev_b32 v6, 2, v{vLANE}
        buffer_store_dword v7, v6, {SRD_WS}, s62 offen sc1
        s_branch {d}""")
    return f"""
    {mask}
    s_mov_b32 s62, {SPIN}
    {p}:
    {"buffer_load_dwordx4 v[4:7]" if x4 else "buffer_load_dword v7"}, v{va}, {srdn}, {soff} offen {c.opt.get('poll_aux', 'sc1')}
    s_sub_u32 s62, s62, 1
    s_cbranch_scc1 {to}
    s_waitcnt vmcnt(0)
    {"v_min3_u32 v7, v5, v6, v7" if x4 else ""}
    {"v_min_u32 v7, v4, v7" if x4 else ""}
    {f"v_cmpx_gt_u32 vcc, {target}, v7" if c.opt.get('shrink', 0) else f"v_cmp_gt_u32 vcc, {target}, v7"}
    s_cbranch_vccnz {p}
    {d}:
    s_mov_b64 exec, -1
    """
def wait(c, va, mask, pre="", every=False, thr=None, x4=False, drain=False):
    l = c.lab("wt")
    if not every: c.a(f"s_cmp_lg_u32 s{sW}, 0\ns_cbranch_scc1 {l}")
    if pre: c.a(pre)
    c.a(poll(c, SRD_WS, va, f"s{sFB}", mask, thr or f"s{sPH}", c.opt.get('slp', 0), x4))
    c.a(f"{l}:\n" + ("s_waitcnt vmcnt(0)\n" if drain else "") + "s_barrier")
M_ALL = "s_mov_b32 exec_hi, 0"
M_KH = f"s_and_b32 s62, s{sM}, 16\ns_lshl_b32 exec_lo, 0xffff, s62\ns_mov_b32 exec_hi, 0"
M_TH = f"s_and_b32 s62, s{sM}, 8\ns_lshl_b32 exec_lo, 0x00ff00ff, s62\ns_mov_b32 exec_hi, 0"
M_PAIR = f"s_xor_b32 s62, s{sM}, 16\ns_lshl_b32 exec_lo, 1, s62\ns_mov_b32 exec_hi, 0"

MIX = """s_lshr_b32 s33, s2, 2
    s_xor_b32 s33, s33, s2
    s_and_b32 s33, s33, 1
    s_mul_i32 s33, s33, 5
    s_xor_b32 s2, s2, s33"""
def mixcode(p):
    if tuple(p) == (0, 1, 2): return ""
    tab = sum(sum(((x >> p[i]) & 1) << i for i in range(3)) << (4*x) for x in range(8))
    return f"s_and_b32 s33, s2, 7\ns_lshl_b32 s33, s33, 2\ns_lshr_b32 s33, 0x{tab:x}, s33\ns_and_b32 s33, s33, 7\ns_andn2_b32 s2, s2, 7\ns_or_b32 s2, s2, s33"
def prolog(c):
    a = c.a
    kernel_begin(a, c.name)
    if c.ts: a("s_mov_b32 s97, 0\nv_mov_b32 v30, 0\nv_mov_b32 v31, 0")
    stamp(c)
    a(f"""
    s_cmp_ge_u32 s2, 256
    s_cbranch_scc1 {c.name}_end
    s_load_dwordx16 s[64:79], s[0:1], 0
    s_load_dwordx8 s[80:87], s[0:1], 64      ; wu wd out dbg
    s_load_dwordx2 s[12:13], s[0:1], 96      ; ws
    {"s_mov_b32 s93, s2" if c.ts else ""}
    {mixcode(c.opt.get('perm', (0, 1, 2)))}
    v_lshrrev_b32 v1, 6, v0
    v_and_b32 v{vLANE}, 63, v0
    v_readfirstlane_b32 s{sW}, v1
    """)
    if not c.opt.get('head', 0): prolog1(c)
def prolog1(c):
    c.a(f"""
    v_lshlrev_b32 v{vL16}, 4, v{vLANE}
    {code_touch(c, 251) if c.opt.get('pf_code', 2) == 2 and not c.opt.get('head', 0) else ""}
    s_mov_b32 s14, {256*MB if c.ts else WS_USED}
    s_mov_b32 s15, 0x20000
    s_mov_b32 s{sMASK}, 0xffff0000
    """)
def prolog2(c):
    kb = c.opt.get('kb', 3)
    c.a(f"""
    {"s_andn2_b32 s40, 1, s2" if c.opt.get('swap', 1) else "s_and_b32 s40, s2, 1"}
    s_lshl_b32 s40, s40, 2
    s_bfe_u32 s{sTB}, s2, 0x20003
    s_add_u32 s{sTB}, s{sTB}, s40
    s_bfe_u32 s40, s2, 0x20001
    s_lshl_b32 s40, s40, 3
    s_lshr_b32 s{sM}, s2, 5
    s_add_u32 s{sM}, s{sM}, s40
    s_lshl_b32 s{sG8}, s{sTB}, 5
    s_bfe_u32 s40, s{sM}, 0x10003
    s_lshl_b32 s40, s40, 4
    s_add_u32 s{sG8}, s{sG8}, s40
    s_lshr_b32 s40, s{sM}, 4
    s_lshl_b32 s40, s40, {kb}
    s_add_u32 s{sG8}, s{sG8}, s40
    s_and_b32 s40, s{sM}, {(1 << kb) - 1}
    s_add_u32 s{sG8}, s{sG8}, s40
    s_and_b32 s40, s{sM}, {7 & ~((1 << kb) - 1)}
    s_lshl_b32 s40, s40, 1
    s_add_u32 s{sG8}, s{sG8}, s40
    s_mov_b32 s{sLAY}, 0
    s_mov_b32 s{sLB}, {WS_L0}
    s_mov_b32 s{sPH}, 0
    s_mov_b32 s{sFB}, {WS_FL}
    s_lshl_b32 s{sFL}, s2, 7
    s_add_u32 s{sFL}, s{sFL}, s{sFB}
    s_cmp_lt_u32 s{sW}, 2
    s_cselect_b32 s8, s78, s80
    s_cselect_b32 s9, s79, s81
    s_mov_b32 s10, {D*F*2}
    s_mov_b32 s11, 0x20000
    """)
    srd(c.a, 16, 82, D*F*2); srd(c.a, 20, 84, S*D*2)

def epilog(c):
    ts_dump(c)
    c.a(f"{c.name}_end:\ns_endpgm")
    for o in c.ool: c.a(o)

class Hz:
    def __init__(self, a): self.a = a; self.n = 0; self.mf = {}; self.va = {}; self.st = {}
    def need(self, kind, rd, wr):
        w = 0
        for r in list(rd) + list(wr): w = max(w, self.mf.get(r, -99) + 9 - self.n)
        if kind == 'perm':
            for r in rd: w = max(w, self.va.get(r, -99) + 3 - self.n)
        if kind != 'store':
            for r in wr: w = max(w, self.st.get(r, -99) + 3 - self.n)
        return w
    def mfma(self, s, d):
        self.a(s)
        for r in range(d, d+4): self.mf[r] = self.n
        self.n += 1
    def raw(self, s): self.a(s); self.n += 1
    def op(self, o):
        kind, s, rd, wr = o
        w = self.need(kind, rd, wr)
        if w > 0: self.a(f"s_nop {w-1}"); self.n += w
        self.a(s)
        if kind == 'store':
            for r in rd: self.st[r] = self.n
        else:
            for r in wr: self.va[r] = self.n
        self.n += 1
def fill(hz, ops, n, per, stop=None):
    for i in range(per):
        if not ops or ops[0][0] >= n + 1: return
        if stop and stop(ops[0]): return
        w = hz.need(ops[0][1][0], ops[0][1][2], ops[0][1][3])
        if w <= 0: hz.op(ops.pop(0)[1])
        else:
            k = min(w, per - i)
            hz.a(f"s_nop {k-1}"); hz.n += k
            if k == per - i: return
def o_mul(d, x, y): return ('valu', f"v_mul_f32 v{d}, v{x}, v{y}", [x, y], [d])
def o_cvt(d, x): return ('valu', f"v_cvt_pk_bf16_f32 v{d}, v{x}, v{x+1}", [x, x+1], [d])
def o_sw(n, x, y): return ('perm', f"v_permlane{n}_swap_b32 v{x}, v{y}", [x, y], [x, y])
def o_st(s, r): return ('store', s, list(range(r, r+4)), [])
def o_s(s): return ('salu', s, [], [])


def unpack(a, dst, src, n):
    for j in range(n):
        a(f"v_lshlrev_b32 v{dst+2*j}, 16, v{src+j}\nv_and_b32 v{dst+2*j+1}, s{sMASK}, v{src+j}")

def code_touch(c, dst=27, r=4):
    l = c.lab("pc")
    return f"""
    s_lshr_b32 s37, s2, 3
    s_lshl_b32 s37, s37, 2
    s_add_u32 s37, s37, s{sW}
    s_mul_i32 s37, s37, {c.opt.get('ctn', 3)}
    v_min_u32 v{r}, {c.opt.get('ctn', 3)-1}, v{vLANE}
    v_add_u32 v{r}, s37, v{r}
    v_lshlrev_b32 v{r}, 7, v{r}
    s_getpc_b64 s[50:51]
    {l}:
    s_sub_u32 s50, s50, {l}-{c.name}
    s_subb_u32 s51, s51, 0
    v_min_u32 v{r}, {c.name}_last-{c.name}, v{r}
    v_mov_b32 v{r+1}, s51
    v_add_co_u32 v{r}, vcc, s50, v{r}
    s_nop 1
    v_addc_co_u32 v{r+1}, vcc, 0, v{r+1}, vcc
    {f'global_load_dword v{dst}, v[{r}:{r+1}], off' if dst else ''}
    """

sXCC, sLOC = 87, 86
def dual(c, bit, fn):
    if not (c.opt.get('loc', 0) >> bit) & 1:
        fn("sc1"); return
    o = c.lab("loc"); b = c.lab("lob")
    c.a(f"s_cbranch_scc1 {o}")
    fn("sc1")
    c.a(f"{b}:")
    main = c.a; c.a = Asm(); fn(c.opt.get('loc_aux', "")); t = c.a.text(); c.a = main
    c.ool.append(f"{o}:\n{t}s_branch {b}")

def hop2(c):
    c.a(f"""
    s_lshl_b32 s62, s{sLAY}, 2
    s_add_u32 s62, s62, s{sW}
    s_mov_b64 exec, 0
    s_cmp_eq_u32 s62, 1
    s_cbranch_scc1 iw_d0
    s_cmp_eq_u32 s62, 2
    s_cbranch_scc1 iw_d1
    s_cmp_eq_u32 s62, 3
    s_cbranch_scc1 iw_d2
    iw_ret2:
    s_mov_b64 exec, -1
    """)
```

```python
from fcore import *
import fg1k
LDS_PK = LDS_RED + 1024
WS_WDP = 74*MB
CW = STAGE; C_O = 4192; C_U = 8320
A_LDS = LDS_PK
K_LDS = 16384
vQ = 232
def front(c):
    a = c.a; opt = c.opt
    K = 32; V = 60; TP = 76; KF = 92; TF = 148; T = 180; O = KF + 16
    ACC = 32; FA = 64; FB = 128; AD = 252
    vA = [225, 226, 227, 228]; vB = 26; vE = 27; vF0 = 28; vQA = 29; vSW, vSR, vY, vPF = 212, 213, 214, 224
    def fa(s, i): return FA + (s*8 + i)*4
    def fb(s, i): return FB + (s*8 + i)*4
    head = opt.get('head', 0)
    if head:
        z = c.lab("nz")
        a(f"""
        s_bfe_u32 s34, s2, 0x40003             ; cbk
        s_lshl_b32 s33, s2, 1
        s_lshr_b32 s35, s2, 7
        s_add_u32 s33, s33, s35
        s_add_u32 s33, s33, s34
        s_and_b32 s33, s33, 15                 ; tokblk
        s_lshl_b32 s35, s33, 11
        s_add_u32 s35, s35, s34
        s_lshl_b32 s35, s35, 7
        v_and_b32 v4, 7, v0                    ; cg
        v_lshrrev_b32 v7, 3, v{vLANE}
        v_lshl_add_u32 v6, v1, 5, v7
        v_lshl_add_u32 v6, v6, 7, v4
        v_lshl_add_u32 v9, v6, 4, s35
        s_mul_i32 s52, s{sW}, {STAGE}
        s_add_u32 m0, s52, {K_LDS + 2048}
        s_mov_b32 s26, {S*D*2}
        s_mov_b32 s27, 0x20000
        s_movk_i32 s53, {16384-1024}
        s_lshl_b32 s54, s53, 1
        s_add_u32 s55, s54, s53
        s_waitcnt lgkmcnt(0)
        s_mov_b64 s[24:25], s[66:67]
        """)
        for i in range(4): a(f"buffer_load_dwordx4 v9, {SRD_T}, {['0','s53','s54','s55'][i]} offen offset:{1024*i} nt lds")
        a(f"""
        v_cmp_lt_u32 vcc, 4, v7
        v_subrev_u32 v8, 16384, v9
        v_bfrev_b32 v6, 1
        s_add_u32 s52, s52, {K_LDS}
        s_add_u32 m0, s52, 1024
        v_cndmask_b32 v8, v6, v8, vcc          ; k rows -3..-1
        buffer_load_dwordx4 v8, {SRD_T}, 0 offen nt lds
        """)
        prolog1(c)
        a(f"""
        s_mov_b32 m0, s52
        s_lshl_b32 s36, s34, 9
        v_add_u32 v10, s36, v{vL16}
        s_mov_b64 s[88:89], s[70:71]
        s_movk_i32 s90, {D*8}
        s_mov_b32 s91, s27
        buffer_load_dwordx4 v10, s[88:91], 0 offen lds
        v_lshrrev_b32 v5, 3, v0
        v_lshl_add_u32 v6, v5, 9, v4
        v_lshl_add_u32 v11, v6, 4, s35
        v_add_u32 v12, 4096, v11
        s_mov_b64 s[28:29], s[68:69]
        s_mov_b64 s[30:31], s[26:27]
        v_mov_b64 v[16:17], 0
        v_mov_b64 v[18:19], 0
        s_or_b32 s48, s33, s{sW}
        s_cbranch_scc1 {z}
        s_lshl_b32 s46, s34, 10
        s_add_u32 s46, s46, {WS_FL}
        s_add_u32 s47, s46, {128*128}
        buffer_store_dwordx4 v[16:19], v{vL16}, {SRD_WS}, s46 offen sc1
        buffer_store_dwordx4 v[16:19], v{vL16}, {SRD_WS}, s47 offen sc1
        {z}:
        s_barrier
        """)
        for i in range(4): a(f"buffer_load_dwordx4 v[{V+4*i}:{V+4*i+3}], v{11+(i>>1)}, {SRD_T2}, 0 offen offset:{2048*(i&1)} nt")
        a(code_touch(c, 251, 6))
        a("s_lshl_b32 s49, s34, 2\ns_add_u32 s49, s49, 64")
    else:
        z = c.lab("nz")
        a(f"""
        v_and_b32 v4, 7, v0                    ; cg
        v_lshrrev_b32 v5, 3, v0
        s_and_b32 s33, s2, 7
        s_lshr_b32 s34, s2, 3
        s_lshr_b32 s35, s34, 4
        s_and_b32 s34, s34, 15                 ; cbk
        s_lshl_b32 s33, s33, 1
        s_add_u32 s33, s33, s35
        s_add_u32 s33, s33, s34
        s_and_b32 s33, s33, 15                 ; tokblk
        s_lshl_b32 s35, s33, 18
        s_lshl_b32 s36, s34, 7
        s_add_u32 s35, s35, s36
        v_lshlrev_b32 v6, 13, v5
        v_lshl_add_u32 v6, v4, 4, v6
        v_add_u32 v11, s35, v6
        v_add_u32 v12, 4096, v11
        v_lshrrev_b32 v7, 3, v{vLANE}
        v_lshlrev_b32 v6, 11, v7
        v_lshl_add_u32 v6, v4, 4, v6
        s_lshl_b32 s36, s{sW}, 16
        s_add_u32 s35, s35, s36
        v_add_u32 v9, s35, v6
        v_cmp_lt_u32 vcc, 4, v7
        v_subrev_u32 v8, 16384, v9
        v_bfrev_b32 v6, 1
        s_mul_i32 s52, s{sW}, {STAGE}
        v_cndmask_b32 v8, v6, v8, vcc          ; k rows -3..-1
        s_add_u32 s52, s52, {K_LDS}
        s_mov_b32 m0, s52
        s_mov_b32 s53, {16384-1024}
        s_mov_b32 s54, {2*(16384-1024)}
        s_mov_b32 s55, {3*(16384-1024)}
        s_lshl_b32 s36, s34, 9
        v_add_u32 v10, s36, v{vL16}
        v_mov_b64 v[16:17], 0
        v_mov_b64 v[18:19], 0
        s_mov_b32 s90, {D*8}
        s_mov_b32 s91, 0x20000
        s_mov_b32 s26, {S*D*2}
        s_mov_b32 s27, 0x20000
        s_mov_b32 s30, {S*D*2}
        s_mov_b32 s31, 0x20000
        s_lshl_b32 s46, s34, 10
        s_add_u32 s46, s46, {WS_FL}
        s_add_u32 s47, s46, {128*128}
        s_or_b32 s48, s33, s{sW}
        s_waitcnt lgkmcnt(0)
        s_mov_b64 s[88:89], s[70:71]
        s_mov_b64 s[24:25], s[66:67]
        s_mov_b64 s[28:29], s[68:69]
        s_cbranch_scc1 {z}
        buffer_store_dwordx4 v[16:19], v{vL16}, {SRD_WS}, s46 offen sc1
        buffer_store_dwordx4 v[16:19], v{vL16}, {SRD_WS}, s47 offen sc1
        {z}:
        buffer_load_dwordx4 v10, s[88:91], 0 offen lds
        s_add_u32 m0, s52, 1024
        s_lshl_b32 s49, s34, 2
        buffer_load_dwordx4 v8, {SRD_T}, 0 offen nt lds
        s_add_u32 m0, s52, 2048
        s_add_u32 s49, s49, 64
        """)
        for i in range(4): a(f"buffer_load_dwordx4 v9, {SRD_T}, {['0','s53','s54','s55'][i]} offen offset:{1024*i} nt lds")
        if opt.get('kbar', 1): a("s_barrier")
        for i in range(4): a(f"buffer_load_dwordx4 v[{V+4*i}:{V+4*i+3}], v{11+(i>>1)}, {SRD_T2}, 0 offen offset:{2048*(i&1)} nt")
    NX = 1 if head else 0
    if opt.get('sta'): stamp(c)
    if opt.get('pf_code', 2) == 1:
        NX = 1
        a(f"""
        s_lshr_b32 s37, s2, 3
        s_lshl_b32 s37, s37, 2
        s_add_u32 s37, s37, s{sW}
        v_and_b32 v6, 1, v0
        v_lshl_add_u32 v6, s37, 1, v6
        v_lshlrev_b32 v6, 7, v6
        s_getpc_b64 s[50:51]
        {c.name[:6]}_pc:
        v_min_u32 v6, {c.name}_last-{c.name[:6]}_pc, v6
        v_mov_b32 v7, s51
        v_add_co_u32 v6, vcc, s50, v6
        s_nop 1
        v_addc_co_u32 v7, vcc, 0, v7, vcc
        global_load_dword v251, v[6:7], off
        """)
    if opt.get('tlb', 0):
        NX += 1
        sh = opt['tlb']
        a(f"""
        s_lshr_b32 s37, s2, 3
        s_cmp_lt_u32 s37, 16
        s_cselect_b64 s[40:41], s[82:83], s[84:85]
        s_cselect_b32 s42, {D*F*2}, s26
        s_cmp_eq_u32 s{sW}, 1
        s_cselect_b64 s[40:41], s[78:79], s[40:41]
        s_cselect_b32 s42, {D*F*2}, s42
        s_cmp_eq_u32 s{sW}, 3
        s_cselect_b64 s[40:41], s[80:81], s[40:41]
        s_cselect_b32 s42, {D*F*2}, s42
        s_cmp_eq_u32 s{sW}, 0
        s_cselect_b64 s[40:41], s[12:13], s[40:41]
        s_cselect_b32 s42, {WS_USED}, s42
        s_cselect_b32 s38, 31, 15
        s_mov_b32 s43, 0x20000
        s_and_b32 s37, s37, s38
        s_add_u32 s38, s38, 1
        v_min_u32 v6, {(1 << (26 - sh)) - 1}, v{vLANE}
        v_mul_u32_u24 v6, s38, v6
        v_add_lshl_u32 v6, v6, s37, {sh}
        buffer_load_dword v251, v6, s[40:43], 0 offen nt
        """)
    z = c.lab("nz")
    lead = lambda w: f"""s_cmp_lg_u32 s48, 0
    s_cbranch_scc1 {z}
    v_mov_b32 v20, 1
    {w}
    s_mov_b64 exec, 1
    buffer_store_dword v20, v16, s[88:91], s49 offen sc1
    s_mov_b64 exec, -1
    {z}:"""
    a(f"""
    s_mov_b64 s[88:89], s[86:87]
    s_mov_b32 s90, 256
    {"" if head else lead(f"s_waitcnt vmcnt({10+NX})")}
    s_lshl_b32 s41, s34, 4
    s_add_u32 s41, s41, s33
    s_lshl_b32 s42, s41, 2
    s_add_u32 s42, s42, s{sW}              ; channel d
    s_lshr_b32 s44, s42, 1
    s_lshl_b32 s44, s44, 2
    s_load_dword s45, s[74:75], s44
    s_mul_i32 s47, s{sW}, {CW}
    s_mov_b64 s[24:25], s[72:73]
    s_mov_b64 s[28:29], s[64:65]
    """)
    prolog2(c)
    if opt.get('q_lds', 0):
        qa = f"""v_lshl_add_u32 v6, v4, 9, v6
        v_lshrrev_b32 v7, 1, v4
        v_lshl_add_u32 v6, v7, 5, v6
        v_add_u32 v215, s52, v6
        v_lshrrev_b32 v7, 5, v{vLANE}
        v_and_b32 v6, 0x1f0, v{vL16}
        v_lshl_add_u32 v{vQA}, v7, 11, v6"""
    else: qa = f"v_lshl_add_u32 v{vQA}, v4, 11, v6"
    if opt.get('t_x', 0):
        wt = f"""s_lshr_b32 s58, s2, 3
        s_lshl_b32 s58, s58, 1
        s_and_b32 s38, s{sW}, 1
        s_add_u32 s58, s58, s38
        s_mul_i32 s58, s58, 7168
        s_lshr_b32 s38, s{sM}, 3
        s_mul_i32 s38, s38, 1792
        s_add_u32 s58, s58, s38
        s_mov_b32 s83, s58
        v_min_u32 v6, 13, v{vLANE}
        v_lshlrev_b32 v{vPF}, 7, v6"""
    else:
        wt = f"""s_lshl_b32 s58, s2, 1
        s_and_b32 s38, s{sW}, 1
        s_add_u32 s58, s58, s38
        s_mul_i32 s58, s58, {7*128}
        v_min_u32 v6, 6, v{vLANE}
        v_lshlrev_b32 v{vPF}, 7, v6"""
    if opt.get('yflag', 1):
        yf = f"""v_lshrrev_b32 v6, 1, v{vLANE}
        v_and_b32 v7, 16, v{vL16}
        v_lshl_add_u32 v6, v6, 10, v7
        v_add_u32 v250, 64, v6
        s_lshr_b32 s85, s2, 3
        s_lshl_b32 s85, s85, 10
        s_and_b32 s37, s2, 7
        s_lshl_b32 s37, s37, 2
        s_add_u32 s85, s85, s37
        s_add_u32 s85, s85, {WS_FL + 64}"""
    else: yf = f"v_lshlrev_b32 v250, 7, v0\ns_mov_b32 s85, s{sFL}"
    t1 = opt.get('t1', 35)
    rot = "s_lshr_b32 s38, s2, 3\n"
    for k in range(7):
        rot += f"""s_and_b32 s39, s38, 15
        s_lshl_b32 s39, s39, 7
        s_add_u32 s{64+k}, s{64+k}, s39
        s_bfe_u32 s39, s38, 0x30001
        s_mul_i32 s39, s39, {112*8192}
        s_add_u32 s{76+k}, s59, s39
        s_and_b32 s39, s38, 1
        s_lshl_b32 s39, s39, 12
        s_add_u32 s{76+k}, s{76+k}, s39
        s_lshl_b32 s39, s32, {15 if k < 4 else 14 if k < 6 else 13}
        s_add_u32 s39, s39, {(k if k < 4 else 28 + k if k < 6 else 48)*8192}
        s_add_u32 s{76+k}, s{76+k}, s39
        s_add_u32 s38, s38, {opt.get('pk_rot', 1)}
        """
    a(f"""
    s_lshl_b32 s84, s42, 12
    v_lshrrev_b32 v7, 3, v{vLANE}
    v_lshlrev_b32 v7, 9, v7
    v_lshl_add_u32 v7, v4, 4, v7
    v_add_u32 v10, s52, v7
    v_lshl_add_u32 v21, v4, 6, s52
    v_mul_u32_u24 v6, 2064, v4
    v_sub_u32 v7, 31, v5
    v_lshl_add_u32 v6, v7, 3, v6
    v_add_u32 v13, {A_LDS}, v6
    v_lshrrev_b32 v7, 7, v0
    v_add_u32 v7, v7, v0
    v_lshlrev_b32 v7, 4, v7
    v_add_u32 v14, {A_LDS}, v7
    v_lshrrev_b32 v6, 4, v0
    v_and_b32 v7, 15, v0
    v_lshl_add_u32 v249, v7, 2, 64
    v_lshlrev_b32 v7, 4, v7
    v_lshl_add_u32 v15, v6, 12, v7         ; u^T store
    s_lshl_b32 s36, s34, 18
    s_sub_u32 s37, 15, s33
    s_lshl_b32 s37, s37, 8
    s_add_u32 s36, s36, s37
    s_add_u32 s36, s36, {WS_UT}
    v_lshrrev_b32 v5, 3, v{vLANE}
    v_lshl_add_u32 v6, v5, 7, v4
    v_lshlrev_b32 v6, 7, v6
    s_lshl_b32 s37, s34, 10
    v_add_u32 v{vF0}, s37, v6
    {yf}
    v_and_b32 v6, 3, v5
    v_lshlrev_b32 v7, 5, v4
    v_lshl_or_b32 v6, v6, 1, v7
    s_and_b32 s37, s2, 0x19
    v_or_b32 v6, s37, v6
    v_lshlrev_b32 v{vFL}, 7, v6
    v_lshlrev_b32 v6, 4, v5
    {qa}
    s_lshl_b32 s56, s{sG8}, 14
    s_lshl_b32 s38, s{sW}, 9
    s_add_u32 s56, s56, s38
    v_lshlrev_b32 v6, 4, v4
    v_lshl_add_u32 v{vY}, v5, 15, v6
    s_lshl_b32 s57, s{sW}, 19
    s_lshl_b32 s38, s41, 7
    s_add_u32 s57, s57, s38
    s_add_u32 s57, s57, {WS_Y}
    v_bfe_u32 v6, v{vLANE}, 1, 2
    v_mul_u32_u24 v6, 160, v6
    v_lshl_add_u32 v6, v5, 3, v6
    v_and_b32 v7, 1, v{vLANE}
    v_lshl_add_u32 v6, v7, 2, v6
    s_mul_i32 s37, s{sW}, 640
    v_add_u32 v{vSR}, s37, v6
    v_add_u32 v229, {2*CW}, v{vSR}
    v_min_u32 v6, 33, v{vLANE}
    v_lshlrev_b32 v6, 4, v6
    v_cmp_lt_u32 vcc, 1, v{vLANE}
    v_mov_b32 v7, {C_O-32-32}
    v_mov_b32 v5, {C_U+4096-64}
    v_cndmask_b32 v7, 0, v7, vcc
    v_cmp_lt_u32 vcc, 3, v{vLANE}
    v_add_u32 v{vE}, s47, v{vL16}
    v_and_b32 v4, 15, v{vLANE}             ; b
    v_cndmask_b32 v7, v7, v5, vcc
    v_add3_u32 v6, v6, v7, s47
    ds_write_b128 v6, v[16:19]
    v_lshrrev_b32 v5, 4, v{vLANE}          ; q
    v_add_u32 v6, 1, v4
    v_lshrrev_b32 v6, 1, v6
    v_lshl_add_u32 v6, v5, 2, v6
    v_lshlrev_b32 v6, 2, v6
    v_and_b32 v7, 1, v4
    v_xor_b32 v7, 1, v7
    v_mul_u32_u24 v7, {C_O-28}, v7
    v_add3_u32 v{vA[0]}, v6, v7, s47
    v_add_u32 v{vA[1]}, 1024, v{vA[0]}
    v_add_u32 v{vA[2]}, 2048, v{vA[0]}
    v_add_u32 v{vA[3]}, 3072, v{vA[0]}
    v_lshlrev_b32 v6, 5, v4
    v_lshlrev_b32 v7, 4, v5
    v_sub_u32 v6, v7, v6
    s_add_u32 s37, s47, {C_U + 2*(S-16) - 512*7}
    v_add_u32 v{vB}, s37, v6
    v_mul_u32_u24 v6, 160, v5
    v_lshl_add_u32 v6, v4, 3, v6
    v_add_u32 v{vSW}, s47, v6
    {wt}
    v_lshl_add_u32 v6, v5, 3, v4
    v_sub_u32 v6, 15, v6
    v_and_b32 v7, 1, v6
    v_lshlrev_b32 v7, 4, v7
    v_ashrrev_i32 v6, 1, v6
    s_and_b32 s37, s42, 1
    s_lshl_b32 s37, s37, 4
    s_waitcnt lgkmcnt(0)
    s_lshr_b32 s45, s45, s37
    s_and_b32 s45, s45, 0xffff
    v_lshlrev_b32 v7, v7, s45
    """)
    for i in range(4):
        a(f"v_cmp_eq_u32 vcc, {i}, v6\ns_nop 1\nv_cndmask_b32 v{AD+i}, 0, v7, vcc")
    amain = a; a = Asm()
    a(f"""
    s_and_b32 s37, s2, 7
    s_lshl_b32 s37, s37, 1
    s_lshr_b32 s38, s2, 7
    s_add_u32 s37, s37, s38                ; P
    s_mul_i32 s38, s37, {224*2048}
    s_lshr_b32 s59, s37, 3
    s_mul_i32 s59, s59, {56*8192}
    s_and_b32 s32, s37, 7
    s_lshl_b32 s39, s{sW}, 10
    s_add_u32 s59, s59, s39
    s_add_u32 s59, s59, {WS_WDP}
    s_and_b32 s35, s{sW}, 1
    s_lshr_b32 s37, s{sW}, 1
    s_lshl_b32 s39, s{sW}, 13
    s_add_u32 s64, s39, s38
    s_add_u32 s65, s64, {64*2048}
    s_add_u32 s66, s64, {112*2048}
    s_add_u32 s67, s64, {176*2048}
    s_lshl_b32 s39, s37, 17
    s_lshl_b32 s68, s35, 13
    s_add_u32 s39, s39, s68
    s_add_u32 s39, s39, s38
    s_add_u32 s68, s39, {32*2048}
    s_add_u32 s69, s39, {144*2048}
    s_mul_i32 s39, s37, {112*2048}
    s_lshl_b32 s70, s35, 14
    s_add_u32 s39, s39, s70
    s_add_u32 s39, s39, s38
    s_add_u32 s70, s39, {48*2048}
    {rot}
    s_lshl_b32 s71, s{sW}, 10
    s_add_u32 s71, s71, {LDS_PK}
    v_lshrrev_b32 v6, 5, v{vLANE}
    v_bfe_u32 v7, v{vLANE}, 3, 2
    v_and_b32 v216, 0x70, v{vL16}
    v_lshl_add_u32 v7, v7, 11, v216
    v_lshl_add_u32 v216, v6, 15, v7
    v_lshl_add_u32 v217, v6, 14, v7
    v_lshl_add_u32 v218, v6, 13, v7
    v_bfe_u32 v6, v{vLANE}, 2, 2
    v_lshrrev_b32 v5, 4, v{vLANE}
    v_lshl_add_u32 v6, v5, 3, v6
    v_and_b32 v7, 0x30, v{vL16}
    v_lshl_add_u32 v6, v6, 7, v7
    s_lshl_b32 s37, s37, 6
    s_lshl_b32 s35, s35, 3
    s_add_u32 s37, s37, s35
    s_add_u32 s37, s37, {LDS_PK}
    v_add_u32 v219, s37, v6
    """)
    if opt.get('pk_g1', 1):
        for k in range(7): a(f"s_add_u32 s{64+k}, s{64+k}, {15 if k < 4 else 14 if k < 6 else 13}")
        a("s_mov_b32 s72, s71\ns_mov_b32 s83, 0\ns_mov_b32 s71, 0\ns_mov_b64 s[74:75], 0")
    fg1k.g1_waddr(a)
    later = a.text(); a = amain
    if opt.get('iw', 2048) and opt.get('iwf', 1):
        a(f"s_cmp_lg_u32 s{sW}, {opt.get('iwf', 1) - 1}\ns_cbranch_scc1 iw_fret\ns_mov_b64 exec, 0\ns_branch iw_f0\niw_fret:\ns_mov_b64 exec, -1")
    stamp(c, "setup")
    a(f"s_waitcnt vmcnt({(4 if head else 9)+NX})")
    for i in range(4): a(f"ds_read_b128 v[{TP+4*i}:{TP+4*i+3}], v21 offset:{16*i}")
    if head:
        for i in range(7): a(f"ds_read_b128 v[{K+4*i}:{K+4*i+3}], v10 offset:{1024+(5+i)*128}")
        a(lead(""))
    for ch in range(8):
        if ch % 2 == 0: a(f"s_waitcnt lgkmcnt({3-ch//2+(7 if head else 0)})")
        for h in range(2):
            r = TP + 2*ch + h
            a(f"v_lshlrev_b32 v{TF+(2*h)*8+ch}, 16, v{r}\nv_and_b32 v{TF+(2*h+1)*8+ch}, s{sMASK}, v{r}")
    ep = opt.get('e_pos', 3)
    eld = "s_add_u32 m0, s47, 32\ns_nop 0\n" + "".join(f"buffer_load_dwordx4 v{vL16}, {SRD_T}, s84 offen offset:{1024*i} nt lds\n" for i in range(4))
    if ep == -3: a("s_barrier")
    if ep <= -2: a(eld); NX += 4
    if not head: a(f"s_waitcnt vmcnt({4+NX})")
    if opt.get('sta'): stamp(c)
    if ep == -1: a(eld); NX += 4
    if not head:
        for i in range(7): a(f"ds_read_b128 v[{K+4*i}:{K+4*i+3}], v10 offset:{1024+(5+i)*128}")
    for i in range(7):
        a(f"s_waitcnt lgkmcnt({6-i})")
        unpack(a, KF+8*i, K+4*i, 4)
    for t in range(4):
        for tap in range(4):
            for p in range(4):
                d = T + 8*t + 2*p; kk = KF + 8*(t+3-tap) + 2*p; w = TF + 8*tap + 2*p
                if tap == 0: a(f"v_pk_mul_f32 v[{d}:{d+1}], v[{kk}:{kk+1}], v[{w}:{w+1}]")
                else: a(f"v_pk_fma_f32 v[{d}:{d+1}], v[{kk}:{kk+1}], v[{w}:{w+1}], v[{d}:{d+1}]")
    if opt.get('sta'): stamp(c)
    for t in range(4):
        a(f"s_waitcnt vmcnt({3-t+NX})")
        if opt.get('sta') and t == 3: stamp(c)
        if t == ep: a(eld); NX += 4
        unpack(a, KF, V+4*t, 4)
        for p in range(4):
            d = T + 8*t + 2*p
            a(f"v_pk_mul_f32 v[{d}:{d+1}], v[{d}:{d+1}], v[{KF+2*p}:{KF+2*p+1}]")
    for ch in range(8):
        a(f"v_cvt_pk_bf16_f32 v{O+2*ch}, v{T+24+ch}, v{T+16+ch}\nv_cvt_pk_bf16_f32 v{O+2*ch+1}, v{T+8+ch}, v{T+ch}")
        a(f"ds_write_b64 v13, v[{O+2*ch}:{O+2*ch+1}] offset:{256*ch}")
    a("s_waitcnt lgkmcnt(0)\ns_barrier")
    stamp(c, "A done")
    for i in range(4): a(f"ds_read_b128 v[{K+4*i}:{K+4*i+3}], v14 offset:{i*2*2064}")
    for i in range(4):
        a(f"s_waitcnt lgkmcnt({3-i})")
        a(f"buffer_store_dwordx4 v[{K+4*i}:{K+4*i+3}], v15, {SRD_WS}, s36 offen sc1")
        a(f"s_add_u32 s36, s36, {16*4096}")
    a(f"buffer_load_dword v20, v16, s[88:91], s49 offen sc1")
    wa = opt.get('wa', ''); nwa = 0
    qld = [f"buffer_load_dwordx4 v[{vQ+4*i}:{vQ+4*i+3}], v{vQA}, {SRD_T2}, s56 offen offset:{128*i} {opt.get('q_aux', 'nt')}" for i in range(4)]
    qlds = opt.get('q_lds', 0)
    if qlds: qld = [f"s_add_u32 m0, s52, {1056*i}\ns_add_u32 s37, s56, {4096*i}\nbuffer_load_dwordx4 v{vQA}, {SRD_T2}, s37 offen nt lds" for i in range(4)]
    tld = f"buffer_load_dword v251, v{vPF}, {SRD_W}, s58 offen"
    if 'q' in wa:
        for l in qld: a(l)
        nwa += 4
    if 't' in wa: a(tld); nwa += 1
    if opt.get('sta'): stamp(c)
    if ep == 9: a(eld)
    else: a(f"s_waitcnt vmcnt({5+nwa})")
    if opt.get('sta'): stamp(c)
    if ep == 9:
        ok = c.lab("boot")
        signal(c, vm=4, pre=f"v_cmp_ne_u32 vcc, 0, v20\ns_cbranch_vccnz {ok}\n" + poll(c, "s[88:91]", 4, "s49", "", 1) + f"{ok}:")
        stamp(c, "sig0")
        a(later); a("s_waitcnt vmcnt(0)")
    HK = 96
    for i in range(4):
        a(f"ds_read_b128 v[{HK+4*i}:{HK+4*i+3}], v{vE} offset:{32+1024*i}\nds_read_b32 v{HK+16+i}, v{vE} offset:{28+1024*i}")
    for i in range(4):
        r = HK + 4*i; o = 160 + 4*i
        a(f"s_waitcnt lgkmcnt({6-i})")
        a(f"v_alignbit_b32 v{o}, v{r}, v{HK+16+i}, 16")
        for j in range(1, 4): a(f"v_alignbit_b32 v{o+j}, v{r+j}, v{r+j-1}, 16")
        a(f"ds_write_b128 v{vE}, v[{o}:{o+3}] offset:{C_O+1024*i}")
    def opA(j, i): return f"a[{(j*4+i)*4}:{(j*4+i)*4+3}]" if i < 4 else f"v[{fa(j&1,i)}:{fa(j&1,i)+3}]"
    def opB(j, i): return f"a[{128+(j*4+i)*4}:{128+(j*4+i)*4+3}]" if i < 4 else f"v[{fb(j&1,i)}:{fb(j&1,i)+3}]"
    def rdA(j, i):
        o = (i & 1)*128 + 16*j; p, r = ("a", (j*4+i)*4) if i < 4 else ("v", fa(j&1, i))
        return [f"ds_read2_b32 {p}[{r}:{r+1}], v{vA[i>>1]} offset0:{o} offset1:{o+1}", f"ds_read2_b32 {p}[{r+2}:{r+3}], v{vA[i>>1]} offset0:{o+2} offset1:{o+3}"]
    def rdB(j, i): return f"ds_read_b128 {opB(j, i)}, v{vB} offset:{512*(7-i)+64*j}"
    def rd2(j): return [rdB(j, i) for i in range(4, 8)] + [l for i in range(4, 8) for l in rdA(j, i)]
    ok = c.lab("boot")
    signal(c, vm=nwa, pre=f"v_cmp_ne_u32 vcc, 0, v20\ns_cbranch_vccnz {ok}\n" + poll(c, "s[88:91]", 4, "s49", "", 1) + f"{ok}:")
    stamp(c, "sig0")
    tf = opt.get('t_first', 1)
    def ts0():
        for i in range(opt.get('t_s0', 2)): a(tld); a(f"s_add_u32 s58, s58, {64*7168}")
    if tf == 1: ts0()
    if 'Q' in wa:
        for l in qld: a(l)
    if tf == 2: ts0()
    LA = [l for j in range(8) for i in range(4) for l in rdA(j, i)]
    LL = [l for l in later.split("\n") if l.strip() and not l.strip().startswith(";")]
    for k, l in enumerate(LL):
        a(l)
        if k % 2 == 0 and LA: a(LA.pop(0))
    for l in LA: a(l)
    pkl = lambda k: [f"s_add_u32 m0, s71, {4096*k}", f"buffer_load_dwordx4 v{216 if k < 4 else 217 if k < 6 else 218}, {SRD_WD}, s{64+k} offen {opt.get('pk_aux', 'nt')} lds"]
    ns0 = opt.get('pk_s0', 0)
    for k in range(ns0): a(pkl(k)[0]); a("s_nop 0"); a(pkl(k)[1])
    if not tf: ts0()
    a(f"""
    s_add_u32 s84, s84, {WS_UT}
    s_lshl_b32 s37, s{sW}, 29
    v_mov_b32 v230, s37
    v_mov_b32 v231, 2
    """)
    if opt.get('iw', 2048):
        a(f"""
        s_cmp_eq_u32 s{sW}, 0
        s_cbranch_scc1 iw_ret
        s_mov_b64 exec, 0
        s_cmp_eq_u32 s{sW}, 1
        s_cbranch_scc1 iw_c0
        s_cmp_eq_u32 s{sW}, 2
        s_cbranch_scc1 iw_c1
        s_branch iw_c2
        iw_ret:
        s_mov_b64 exec, -1
        """)
    wait(c, vF0, "s_mov_b64 exec, 0xffff")
    stamp(c, "wait0")
    a(f"s_add_u32 m0, s47, {C_U}\ns_mov_b32 s38, 0x05040100")
    for i in (3, 2, 1, 0):
        a(f"buffer_load_dwordx4 v{vL16}, {SRD_WS}, s84 offen offset:{1024*i} sc1 lds")
    a("s_mov_b32 s39, 0x07060302\ns_waitcnt vmcnt(3)")
    a(rdB(0, 0)); a(rdB(0, 1)); a("s_waitcnt vmcnt(2)"); a(rdB(0, 2)); a(rdB(0, 3))
    for i in range(4): a(rdB(1, i))
    stamp(c, "ur")
    side = {}
    def put(pos, l): side.setdefault(pos, []).append(l)
    for i, p in enumerate(opt.get('t_pos', [170, 205, 240])):
        put(p, tld); put(p+1, f"s_add_u32 s58, s58, {64*7168}")
    p = opt.get('q_pos', 20)
    if 'q' not in wa.lower():
        for l in qld: put(p, l); p += opt.get('q_dp', 40)
    p = opt.get('pk_pos', 6)
    for k in range(ns0, 0 if opt.get('pk_g1', 1) else 7):
        put(p-1, f"s_add_u32 m0, s71, {4096*k}")
        put(p, f"buffer_load_dwordx4 v{216 if k < 4 else 217 if k < 6 else 218}, {SRD_WD}, s{64+k} offen {opt.get('pk_aux', 'nt')} lds"); p += opt.get('pk_dp', 40)
    if qlds:
        for i in range(4): put(80 + 26*4 + 14 + i, f"ds_read_b128 v[{vQ+4*i}:{vQ+4*i+3}], v215 offset:{128*i}")
    put(251, f"buffer_load_dword v248, v249, s[88:91], 0 offen sc1")
    STG = 12992; SR, SO = FA, FB
    def stage_rd(off): return [f"ds_read_b32 v{SR+4*g+ch}, v{vSR if ch < 2 else 229} offset:{(ch&1)*CW + off + g*64}" for g in range(2) for ch in range(4)]
    def stage_st(g):
        r = SR + 4*g; o = SO + 4*g
        return [f"v_perm_b32 v{o}, v{r+1}, v{r}, s38", f"v_perm_b32 v{o+1}, v{r+3}, v{r+2}, s38", f"v_perm_b32 v{o+2}, v{r+1}, v{r}, s39", f"v_perm_b32 v{o+3}, v{r+3}, v{r+2}, s39",
                f"buffer_store_dwordx4 v[{o}:{o+3}], v{vY}, {SRD_WS}, s57 offen sc1", f"s_add_u32 s57, s57, {(8 if g == 0 else 56)*32768}"]
    hz = Hz(a); ops = []; pos = 0; nvm = [0]
    def emit(l):
        if l.startswith("buffer_") or l.startswith("global_"): nvm[0] += 1
        hz.raw(l)
    def mm(n, A, B, zero=False):
        cc = ACC + 4*n
        hz.mfma(f"{MF} v[{cc}:{cc+3}], {A}, {B}, " + ("0" if zero else f"v[{cc}:{cc+3}]"), cc)
    def out_ops(n, k, off):
        cc = ACC + 4*n
        return [(k, o_cvt(cc, cc)), (k, o_cvt(cc+1, cc+2)), (k, ('salu', f"ds_write_b64 v{vSW}, v[{cc}:{cc+1}] offset:{off + 640*(n & 3)}", [], []))]
    ADs = f"v[{AD}:{AD+3}]"
    for n in range(4):
        hz.raw(f"s_waitcnt lgkmcnt({7-n})"); mm(n, ADs, opB(0, n), True)
    for j in range(8):
        if j: hz.raw(f"s_waitcnt lgkmcnt({4 if j < 7 else 6})")
        if j == 2: hz.raw(f"s_waitcnt vmcnt({nvm[0]})")
        R = [rdB(j+2, i) for i in range(4)] if j < 6 else rd2(0)[6*(j-6):6*(j-5)]
        for k, (n, i) in enumerate([(n, i) for n in range(4) for i in range(n+1)]):
            mm(n, opA(j, i), opB(j, n-i))
            if k < len(R): hz.raw(R[k])
            for l in side.get(pos, []): emit(l)
            pos += 1
    sigj = opt.get('y_sig', 7); ys = opt.get('y_st', 2)
    if ys >= 6: sigj = 99
    for j in range(8):
        hz.raw("s_waitcnt lgkmcnt(0)" if j != sigj else f"s_waitcnt vmcnt({nvm[0] - mark}) lgkmcnt(0)")
        if j == 0:
            for n in range(4, 8): mm(n, ADs, opB(0, n), True)
            for n in range(4): ops += out_ops(n, 0, STG)
        R = rd2(j+1) if j < 7 else []
        if j == ys - 1: R = R + stage_rd(STG)
        if j == ys: R = R + stage_st(0) + stage_st(1)
        for k, (n, i) in enumerate([(n, i) for n in range(4, 8) for i in range(n+1)]):
            mm(n, opA(j, i), opB(j, n-i))
            if k == 0 and j in (1, sigj): hz.raw("s_barrier")
            if k == 1 and j == sigj: emit(f"buffer_store_dword v231, v230, {SRD_WS}, s85 offen sc1")
            if k < len(R):
                emit(R[k])
                if R[k].startswith("buffer_store"): mark = nvm[0]
            for l in side.get(pos, []): emit(l)
            if j == 7 and n == i: ops += out_ops(n, k, 0)
            if j in (0, 7): fill(hz, ops, k, 1 if k < len(R) else 2)
            pos += 1
        if j == 0: assert not ops
    stamp(c, "conv")
    for _, o in ops: hz.op(o)
    a(f"s_add_u32 s{sPH}, s{sPH}, 1\ns_waitcnt lgkmcnt(0)\ns_barrier")
    for l in stage_rd(0): a(l)
    for g in range(2):
        a(f"s_waitcnt lgkmcnt({4-4*g})")
        for l in stage_st(g): a(l)
    stamp(c, "y out")

TOUCH2 = f"buffer_load_dword v251, v224, {SRD_W}, s58 offen\ns_add_u32 s58, s58, {64*7168}"
PKR = [192, 196, 200, 204, 208, 212, 220]
def repack_store(k): return f"buffer_store_dwordx4 v[{PKR[k]}:{PKR[k]+3}], v{vL16}, {SRD_WS}, s{76+k} offen sc1"
def repack(c, n):
    if c.opt.get('pk_g1', 1): return
    a = c.a
    for k in range(7):
        r = PKR[k]
        a(f"ds_read_b64_tr_b16 v[{r}:{r+1}], v219 offset:{4096*k}\nds_read_b64_tr_b16 v[{r+2}:{r+3}], v219 offset:{4096*k+512}")
    for k in range(n):
        a(f"s_waitcnt lgkmcnt({12-2*k})"); a(repack_store(k))
```

```python
from fcore import *
import fg2p
ACC1 = 32
def g1_acc(t, j): return ACC1 + (t*7 + j)*4
def g1_xf(k, t): return 112 + (t*2 + k)*4
def g1_wf(slot, j): return slot*28 + j*4
aPK = 176; LDS_PK = LDS_RED + 1024
g1_vXA = [8, 9]; g1_vWA = [[10,11,12,13],[14,15,16,17]]; g1_vDW = [19,20,21,22]; g1_vPF = [18, 23]
def g1_dx(slot):
    return [f"s_add_u32 m0, s42, {slot*STAGE}"] + [f"buffer_load_dwordx4 v{vL16}, {SRD_WS}, s40 offen offset:{1024*i} {LY.sc} lds" for i in range(4)] + ["s_add_u32 s40, s40, 16384"]
def g1_dw(slot):
    return [f"s_add_u32 m0, s43, {slot*STAGE}"] + [f"buffer_load_dwordx4 v{g1_vDW[i]}, {SRD_W}, s41 offen offset:{1024*i} lds" for i in range(4)] + [f"s_add_u32 s41, s41, {32*7168}"]
def g1_rw(slot):
    h = slot >> 1; so = (slot & 1)*STAGE; W = []
    for j in range(7):
        va = g1_vWA[h][j % 3] if j < 6 else g1_vWA[h][3]
        off = so + (UOFF if 3 <= j < 6 else 0); r = g1_wf(slot, j)
        W.append(f"ds_read_b64_tr_b16 a[{r}:{r+1}], v{va} offset:{off}")
        W.append(f"ds_read_b64_tr_b16 a[{r+2}:{r+3}], v{va} offset:{off+1024}")
    return W
def g1_rx(h, t):
    return [f"ds_read_b128 a[{g1_xf(k,t)}:{g1_xf(k,t)+3}], v{g1_vXA[h]} offset:{k*STAGE+t*1024}" for k in range(2)]
def w_stage(a, slot):
    o = g1_dw(slot); a(o[0]); a("s_nop 0")
    for l in o[1:]: a(l)

def g1_waddr(a):
    vDW = g1_vDW
    a(f"""
    s_and_b32 s44, s{sW}, 1
    s_lshr_b32 s45, s{sW}, 1
    s_and_b32 s46, s{sM}, 1
    s_mul_i32 s41, s44, {16*7168}
    s_mul_i32 s33, s{sM}, 224
    s_add_u32 s41, s41, s33
    s_lshl_b32 s33, s46, 5
    s_sub_u32 s41, s41, s33
    s_mov_b32 s92, s41
    s_mul_i32 s43, s45, {UOFF}
    s_lshl_b32 s33, s44, 12
    s_add_u32 s43, s43, s33
    s_add_u32 s43, s43, 16384
    v_lshrrev_b32 v1, 4, v{vLANE}          ; q
    v_bfe_u32 v4, v{vLANE}, 1, 3
    v_xor_b32 v4, v4, v1
    v_and_b32 v5, 1, v{vLANE}
    v_lshlrev_b32 v5, 4, v5
    v_mul_u32_u24 v6, 7168, v1
    v_add_u32 v6, v6, v5
    v_lshl_add_u32 v{vDW[0]}, v4, 5, v6
    v_xor_b32 v4, 4, v4
    v_lshl_add_u32 v{vDW[2]}, v4, 5, v6
    v_add_u32 v{vDW[1]}, {4*7168-1024}, v{vDW[0]}
    v_add_u32 v{vDW[3]}, {3*(4*7168-1024)}, v{vDW[2]}
    v_add_u32 v{vDW[2]}, {2*(4*7168-1024)}, v{vDW[2]}
    """)

def g1_pre(c):
    a = c.a; vDW = g1_vDW; vWA = g1_vWA; vXA = g1_vXA
    a(f"v_lshrrev_b32 v1, 4, v{vLANE}")
    a(f"""
    s_lshl_b32 s42, s{sW}, 12
    s_lshl_b32 s40, s{sTB}, 19
    s_add_u32 s40, s40, s42
    s_add_u32 s40, s40, s{sLB}
    s_lshl_b32 s33, s45, 13
    v_add_u32 v{vXA[0]}, s33, v{vL16}
    v_add_u32 v{vXA[1]}, {2*STAGE}, v{vXA[0]}
    v_bfe_u32 v4, v{vLANE}, 2, 2           ; r4
    v_and_b32 v5, 1, v1
    v_lshl_or_b32 v5, v5, 2, v4            ; sigma
    v_lshl_add_u32 v6, v1, 3, v4
    v_lshlrev_b32 v6, 8, v6
    v_add_u32 v6, 16384, v6
    v_and_b32 v7, 3, v{vLANE}
    v_lshl_add_u32 v1, v7, 3, v6
    s_lshl_b32 s33, s44, 2
    s_add_u32 s33, s33, s46
    """)
    for p in range(3):
        a(f"s_add_u32 s34, s33, {p}\nv_xor_b32 v4, s34, v5\nv_lshl_add_u32 v{vWA[0][p]}, v4, 5, v1")
    a(f"""
    s_add_u32 s34, s46, 3
    v_xor_b32 v4, s34, v5
    v_lshl_add_u32 v6, v4, 5, v6
    v_and_b32 v4, 1, v7
    v_lshl_add_u32 v6, v4, 3, v6
    v_lshrrev_b32 v4, 1, v7
    v_mul_u32_u24 v4, {UOFF}, v4
    s_lshl_b32 s34, s44, 4
    v_add3_u32 v{vWA[0][3]}, v6, v4, s34
    """)
    for p in range(4): a(f"v_add_u32 v{vWA[1][p]}, {2*STAGE}, v{vWA[0][p]}")
    d = c.opt.get('pf_dist', 2)
    who = c.opt.get('pf_who', 1)
    a(f"s_sub_u32 s34, s{sLAY}, 1")
    if who:
        a(f"""
        s_add_u32 s35, s{sM}, 1
        s_bfe_u32 s35, s35, 0x10001
        s_sub_u32 s35, s35, 1
        s_and_b32 s34, s34, s35
        s_bfe_u32 s36, s2, 0x20003
        s_bfe_u32 s35, s2, 0x20006
        s_lshl_b32 s35, s35, 2
        s_add_u32 s36, s36, s35
        """)
    else: a("s_lshr_b32 s36, s2, 3")
    a(f"""
    s_lshl_b32 s33, s36, 1
    s_add_u32 s33, s33, s44
    s_lshl_b32 s33, s33, 1
    s_and_b32 s35, s2, 1
    s_add_u32 s33, s33, s35
    s_mul_i32 s33, s33, {7168 << who}
    s_lshr_b32 s35, s{sM}, 3
    s_mul_i32 s35, s35, 1792
    s_add_u32 s33, s33, s35
    s_add_u32 s33, s33, {320*7168}
    v_lshlrev_b32 v4, 7, v{vLANE}
    v_cmp_lt_u32 vcc, 13, v{vLANE}
    v_add_u32 v5, s33, v4
    v_add_u32 v6, {7168-14*128}, v5
    v_cndmask_b32 v5, v5, v6, vcc
    s_and_b32 s33, s34, {14 << who}
    v_cmp_gt_u32 vcc, s33, v{vLANE}
    v_bfrev_b32 v6, 1
    s_nop 0
    v_cndmask_b32 v{g1_vPF[0]}, v6, v5, vcc
    """)

def g1_main(c):
    a = c.a; acc = g1_acc
    w2 = c.opt.get('w2_sx', 1)
    if w2: w_stage(a, 0); w_stage(a, 1)
    else:
        for l in g1_rw(0) + g1_rw(1): a(l)
    a(f"""
    s_lshl_b32 s59, s{sTB}, 3
    s_lshl_b32 s33, s45, 2
    s_add_u32 s59, s59, s33
    s_mul_i32 s59, s59, 229376
    s_lshr_b32 s33, s{sM}, 4
    s_mul_i32 s33, s33, {56*2048}
    s_add_u32 s59, s59, s33
    s_add_u32 s59, s59, s{sLB}
    s_add_u32 s59, s59, {L_H}
    s_lshl_b32 s34, s46, 1
    s_add_u32 s34, s34, s44                ; wv
    s_mov_b32 s53, s59
    s_mov_b32 s52, s59
    s_and_b32 s36, s{sM}, 15
    s_lshl_b32 s33, s36, 1
    s_add_u32 s33, s33, s44
    s_lshl_b32 s33, s33, 11
    v_add_u32 v24, s33, v{vL16}
    v_and_b32 v4, 15, v{vLANE}
    v_lshlrev_b32 v4, 4, v4
    v_lshrrev_b32 v5, 5, v{vLANE}
    v_lshl_add_u32 v4, v5, 10, v4
    v_bfe_u32 v5, v{vLANE}, 4, 1
    s_add_u32 s33, s36, 32
    s_lshl_b32 s33, s33, 11
    s_lshl_b32 s35, s44, 9
    s_add_u32 s33, s33, s35
    v_lshl_add_u32 v25, v5, 8, v4
    v_add_u32 v25, s33, v25
    s_lshl_b32 s33, s34, 8
    s_lshr_b32 s36, s36, 1
    s_lshl_b32 s36, s36, 11
    s_add_u32 s33, s33, s36
    s_add_u32 s33, s33, {48*2048}
    v_mul_u32_u24 v5, 229376, v5
    v_add3_u32 v26, v4, v5, s33
    """)
    a(f"""
    s_lshr_b32 s33, s{sM}, 4
    s_lshl_b32 s33, s33, 2
    s_add_u32 s33, s33, s{sW}
    s_lshl_b32 s34, s{sM}, 1
    s_add_u32 s34, s34, 10
    v_and_b32 v5, 7, v{vLANE}
    v_add_u32 v5, s34, v5
    v_and_b32 v5, 15, v5
    v_bfe_u32 v7, v{vLANE}, 3, 1
    v_lshl_add_u32 v5, v7, 4, v5
    v_mov_b32 v7, s33
    v_cmp_gt_u32 vcc, 16, v{vLANE}
    v_lshlrev_b32 v5, 3, v5
    s_nop 0
    v_cndmask_b32 v7, 4, v7, vcc
    v_add_lshl_u32 v23, v5, v7, 7
    s_mov_b32 s47, 6
    """)
    ct = c.opt.get('ct', 4)
    if ct: a(code_touch(c, None, 28))
    l2n = c.opt.get('l2n', 0); l2w = c.opt.get('l2w', 32)
    if l2n:
        a(f"""
        s_and_b32 s33, s{sM}, 7
        s_lshl_b32 s33, s33, 1
        s_lshr_b32 s34, s{sM}, 4
        s_add_u32 s33, s33, s34
        s_mul_i32 s33, s33, {56*8192}
        s_and_b32 s34, s{sTB}, 3
        s_lshl_b32 s34, s34, 2
        s_add_u32 s34, s34, s{sW}
        s_mul_i32 s34, s34, {l2w*128}
        s_add_u32 s33, s33, s34
        s_add_u32 s48, s33, {fg2p.WS_WDP + 65536 - (6-l2n)*l2w*2048}
        v_min_u32 v1, {l2w-1}, v{vLANE}
        v_lshlrev_b32 v1, 7, v1
        s_mov_b64 s[24:25], s[12:13]
        """)
    fast = c.opt.get('fast', 1) and w2
    if fast:
        a(f"""
        s_lshl_b32 s33, s45, 13
        s_mul_i32 s34, s44, {STAGE}
        s_add_u32 s34, s34, s33
        s_lshl_b32 s35, s44, 14
        s_add_u32 s33, s33, s35
        s_sub_u32 s35, s40, s42
        s_add_u32 s33, s33, s35
        s_add_u32 s35, s33, 4096
        s_add_u32 s40, s40, 32768
        """)
    co = c.opt.get('co1', 0)
    if co:
        a(f"""
        s_and_b32 s36, s{sM}, 7
        s_lshl_b32 s36, s36, 2
        s_add_u32 s36, s36, s{sW}
        s_mul_i32 s36, s36, {co*128}
        s_sub_u32 s37, s40, s42
        s_add_u32 s36, s36, s37
        s_sub_u32 s36, s36, 32768
        v_min_u32 v1, {co-1}, v{vLANE}
        v_lshlrev_b32 v1, 7, v1
        """)
    if c.opt.get('pk_g1', 1): a(f"v_lshrrev_b32 v1, 5, v{vLANE}\nv_bfe_u32 v4, v{vLANE}, 3, 2\nv_and_b32 v5, 0x70, v{vL16}\nv_lshl_add_u32 v5, v4, 11, v5\nv_mov_b32 v6, v219\ns_lshl_b32 s49, s{sLAY}, 4\ns_add_u32 s49, s49, 1")
    if c.opt.get('iw2', 1): hop2(c)
    wait(c, vFL, M_ALL)
    stamp(c, "waitX")
    if fast:
        for h in range(2):
            a(f"s_add_u32 m0, s34, {4096*h}\ns_nop 0")
            for i in range(4):
                a(f"buffer_load_dwordx4 v{vL16}, {SRD_WS}, s{33+2*h} offen offset:{1024*i} {LY.sc} lds")
                if co and (h, i) == (0, 1): a(f"s_barrier\nbuffer_load_dword v27, v1, {SRD_WS}, s36 offen sc1")
        a(g1_dx(2)[0])
        a(f"s_waitcnt vmcnt({7 if co else 6})\ns_barrier")
        for t in range(2):
            for l in g1_rx(0, t): a(l)
    else:
        for slot in range(4):
            o = g1_dx(slot); a(o[0]); a("s_nop 0")
            for l in o[1:]: a(l)
        a("s_waitcnt vmcnt(8)\ns_barrier")
        for t in range(8):
            for l in g1_rx(0, t): a(l)
    stamp(c, "g1 go")
    kin = c.opt.get('g1_kin', 1)
    def mseq(jo):
        out = []
        for t in range(8):
            js = jo if t % 2 == 0 else jo[::-1]
            if kin: out += [(t, j, k) for i, j in enumerate(js) for k in ((0, 1) if i % 2 == 0 or kin == 2 else (1, 0))]
            else: out += [(t, j, 0) for j in js] + [(t, j, 1) for j in js[::-1]]
        return out
    sch = c.opt.get('g1_sch', 0)
    def sstep(s, loop, gx=(), first=False, sh=0, auto=None, more=0):
        a = c.a
        gaps = [[] for _ in range(112)]
        BA, BB = c.opt.get('ba', 7), 63
        if first and fast:
            for h in range(2):
                o = g1_dx(2 + h)
                if h or c.ts: gaps[max(16*h-1, 0)].append(o[0])
                for i in range(4): gaps[16*h + 4*i + 1].append(o[1+i])
                gaps[16*h+14].append(o[5])
            gaps[12].append("s_waitcnt vmcnt(3) lgkmcnt(0)"); gaps[12].append("s_barrier")
            for t in range(2, 8):
                r = g1_rx(0, t); gaps[9+2*t].append(r[0]); gaps[10+2*t].append(r[1])
            gaps[27].append("s_waitcnt lgkmcnt(10)")
            gaps[33].append("s_waitcnt lgkmcnt(0)"); gaps[33].append("s_barrier")
            for k, l in enumerate(g1_rw(2) + g1_rw(3)): gaps[[2,3,4,6,7,8][k] if k < 6 else 28 + k].append(l)
        else:
            gaps[BA-1].append(f"s_waitcnt vmcnt({17 + more if loop else 0}) lgkmcnt(0)"); gaps[BA].append("s_barrier")
            for k, l in enumerate(g1_rw(2*(s^1)) + g1_rw(2*(s^1)+1)): gaps[BA + 1 + (-sh) % 3 + ((k*3)//2 if sch == 0 else k)].append(l)
        for t in range(8):
            g = max(BB + 2 + 3*t if sch == 0 else BB + 1 + 2*t, 14*t + 13)
            r = g1_rx(s ^ 1, t)
            if t == 7: gaps[110].append(r[c.lastk ^ 1]); gaps[111].append(r[c.lastk])
            else: gaps[g].append(r[0]); gaps[g+1].append(r[1])
        if loop:
            gaps[BB-1].append(f"s_waitcnt vmcnt({(7 if fast else 8 if w2 else 13) if first else 16 + more if s else 17 + more}) lgkmcnt(0)"); gaps[BB].append("s_barrier")
            px = [[16,22,28,34,40,46,52,58], [37,40,43,46,49,52,55,58], [37,40,43,46,49,52,55,58]][sch]
            pw = [c.opt.get('pw', [67,72,77,82,87,92,97,102]), [75,78,81,86,89,92,95,100], [75,79,86,90,94,100,104,108]][sch]
            px = [p - sh for p in px]; pw = [p + sh for p in pw]
            if auto and c.opt.get('pk_plan', 3) == 3:
                x0, xd, wd = c.opt.get('pk_sp', (30, 4, 4))
                px = [x0 + xd*i for i in range(8)]; pw = [66 + wd*i for i in range(8)]
            if first and fast: px = [35, 39, 43, 47, 51, 55, 59, 64]; pw = [69, 74, 79, 85, 90, 95, 100, 105]
            if first and not w2:
                px = [44, 48, 52, 56, 60, 66, 70, 74]; pw = [79, 83, 87, 91, 95, 99, 103, 107]
                for h in range(2):
                    o = g1_dw(h); p = [10 + 16*h + 4*i for i in range(4)]
                    gaps[p[0]-1].append(o[0])
                    for i in range(4): gaps[p[i]].append(o[1+i])
                    gaps[p[3]+1].append(o[5])
            for h in range(2):
                for o, p in ((g1_dx(2*s + h), px[4*h:]), (g1_dw(2*(s^1) + h), pw[4*h:])):
                    gaps[p[0]-1].append(o[0])
                    for i in range(4): gaps[p[i]].append(o[1+i])
                    gaps[p[3]+1].append(o[5])
        for g, l in gx: gaps[g].append(l)
        if auto:
            hist, nn = auto
            for g in range(112):
                for i, l in enumerate(gaps[g]):
                    if l.startswith("s_waitcnt vmcnt"):
                        tag = ('w', nn+1) if g < 32 else ('x', nn+1)
                        last = max([k for k, e in enumerate(hist) if e == tag or (g >= 32 and e == ('p', nn-1))], default=-1)
                        gaps[g][i] = f"s_waitcnt vmcnt({len(hist) - 1 - last}) lgkmcnt(0)"
                    elif l.startswith("buffer_"): hist.append(('x', nn+2) if "s40 offen" in l else ('w', nn+3) if "s41 offen" in l else ('p', nn) if SRD_WD in l or (nn == 5 and "store" in l and c.opt.get('pk_plan', 3) == 3) else ('o', 0))
        ab = c.opt.get('abl', '')
        if loop and not first:
            def keep(l):
                if 'b' in ab and l == "s_barrier": return False
                if 'x' in ab and "s40 offen" in l: return False
                if 'w' in ab and "s41 offen" in l: return False
                if 'p' in ab and "v27" in l: return False
                if 'r' in ab and "ds_read" in l: return False
                if 's' in ab and l.startswith("s_add_u32"): return False
                if 'c' in ab and l.startswith("s_waitcnt"): return False
                return True
            gaps = [[l for l in g if keep(l)] for g in gaps]
        if c.opt.get('stss') and not first: stamp(c)
        a(f"s_waitcnt lgkmcnt({14 if first and not fast else 2})")
        seen = set()
        for n, (t, j, k) in enumerate(mseq(list(range(7)))):
            cc = acc(t, j); w = g1_wf(2*s + k, j); x = g1_xf(k, t)
            src = "0" if first and cc not in seen else f"v[{cc}:{cc+3}]"
            seen.add(cc)
            a(f"{MF} v[{cc}:{cc+3}], a[{w}:{w+3}], a[{x}:{x+3}], {src}")
            for l in gaps[n]: a(l)
    c.lastk = mseq(list(range(7)))[-1][2]
    sstep(0, True, [(108, "s_mov_b64 s[24:25], s[12:13]"), (109, f"s_cmp_eq_u32 s{sLAY}, 0")], first=True)
    o = c.lab("g1c"); b = c.lab("g1d")
    c.ool.append(f"{o}:\n" + poll(c, SRD_WS, 23, f"s{sFB}", "", 4 + c.opt.get('pk_g1', 1)) + f"s_branch {b}")
    chk = [(0, f"v_cmp_gt_u32 vcc, {4 + c.opt.get('pk_g1', 1)}, v7"), (5, f"s_cbranch_vccnz {o}\n{b}:")]
    shifts = c.opt.get('stag', [0, 3, 0, 3])
    cps = sorted(set(shifts)); mids = {x: c.lab("g1m") for x in cps}; done = c.lab("g1z")
    pk = c.opt.get('pk_g1', 1)
    lps = {x: c.lab("g1l") for x in cps}
    def pfx(x): return [(105 + x, f"buffer_load_dword v27, v{g1_vPF[0]}, {SRD_W}, 0 offen"), (106 + x, f"v_add_u32 v{g1_vPF[0]}, {128*7168}, v{g1_vPF[0]}")]
    def dispatch(m):
        for w in range(3):
            if shifts[w] != shifts[3]: c.a(f"s_cmp_eq_u32 s{sW}, {w}\ns_cbranch_scc1 {m[shifts[w]]}")
        c.a(f"s_branch {m[shifts[3]]}")
    if pk:
        o = c.lab("g1k"); a(f"s_cbranch_scc1 {o}")
        c.a = Asm(); midA = {x: c.lab("g1a") for x in cps}
        dispatch(midA)
        gd, gs = c.opt.get('pk_g', ({0: 10, 3: 8}, {0: 13, 3: 16}))
        def pko(s, x):
            e = 1 - s
            return [(0, f"v_lshl_add_u32 v4, v1, s{64+e}, v5"), (1, f"s_and_b32 s50, s{64+e}, 0xffffff80"), (1, f"s_add_u32 m0, s83, {s*4096}"),
                    (3, f"s_cmp_lg_u32 s{64+e}, 0\ns_cselect_b32 s18, {D*F*2}, 0"), (4, f"s_cmp_lg_u32 s{74+e}, 0\ns_cselect_b32 s26, s14, 0"),
                    (gd[x], f"buffer_load_dwordx4 v4, {SRD_WD}, s50 offen {c.opt.get('pk_aux', 'nt')} lds"),
                    (gs[x], f"buffer_store_dwordx4 a[{aPK}:{aPK+3}], v{vL16}, {SRD_T}, s{74+e} offen sc1"),
                    (93, f"ds_read_b64_tr_b16 a[{aPK}:{aPK+1}], v6 offset:{(s^1)*4096}"), (94, f"ds_read_b64_tr_b16 a[{aPK+2}:{aPK+3}], v6 offset:{(s^1)*4096+512}")]
        rotn = [f"s_mov_b64 s[{r}:{r+1}], s[{r+2}:{r+3}]" for r in (64, 66, 68, 74, 76, 78, 80)] + ["s_mov_b64 s[70:71], 0"]
        for x in cps:
            lpA = c.lab("g1b")
            c.a(f"{lpA}:")
            sstep(0, True, [(2, "s_sub_u32 s47, s47, 1")] + pko(0, x) + list(zip([50, 51, 53, 54, 56, 57, 60, 61], rotn)), sh=x, more=2)
            c.a(f"{midA[x]}:")
            sstep(1, True, pko(1, x) + pfx(x) + [(110, "s_cmp_lg_u32 s47, 2")], sh=x, more=2)
            c.a(f"s_cbranch_scc1 {lpA}\ns_branch {lps[x]}")
        t = c.a.text(); c.a = a
        c.ool.append(f"{o}:\n{t}")
    dispatch(mids)
    for x in cps:
        lp = lps[x]; ex = []
        if pk:
            o = c.lab("g1s"); b = c.lab("g1t")
            c.ool.append(f"{o}:\ns_add_u32 s{sPH}, s{sPH}, 1\ns_lshl_b32 s33, s{sW}, 29\nv_mov_b32 v5, s{sPH}\nv_mov_b32 v4, s33\nbuffer_store_dword v5, v4, {SRD_WS}, s{sFL} offen sc1\ns_branch {b}")
            ex = [(61, "s_cmp_eq_u32 s47, s49"), (64, f"s_cbranch_scc1 {o}\n{b}:")]
        a(f"{lp}:")
        sstep(0, True, [(2, "s_sub_u32 s47, s47, 1"), (3, "s_cmp_eq_u32 s47, 0\ns_cselect_b32 s26, s14, 0"),
                        (10, f"buffer_load_dword v7, v23, {SRD_T}, s{sFB} offen sc1")] + ex, sh=x)
        a(f"{mids[x]}:")
        sstep(1, True, [(3, "s_cmp_eq_u32 s47, 0\ns_cselect_b32 s10, 0, s10")] + pfx(x) + [(110, "s_cmp_lg_u32 s47, 0")], sh=x)
        a(f"s_cbranch_scc1 {lp}")
        if x != cps[-1]: a(f"s_branch {done}")
    a(f"{done}:")
    def pk_ld(n, g0, ds):
        o = fg2p.g2_ldw(c, n)
        return [(g0, o[0])] + [(g0+1+ds*i, o[1+i]) for i in range(4)] + [(g0+2+ds*3, o[5])]
    gx = [(0, f"s_mov_b32 s10, {D*F*2}")]
    if ct & 4: gx.append((10, "global_load_dword v27, v[28:29], off"))
    for k, l in enumerate(fg2p.g2_pre1(c)): gx.append((1 + k//2, l))
    if not l2n: gx += chk
    if c.opt.get('g2_pre', 0):
        for n in range(4): gx += pk_ld(n, 12 + 20*n, 5)
        o = fg2p.g2_ldlast(c)
        gx += [(91, o[0]), (92, o[1])] + [(93 + 5*i, o[2+i]) for i in range(4)]
    else:
        for n in range(4): gx += pk_ld(n, 15 + 24*n, 6)
    if c.opt.get('st14'): stamp(c)
    sstep(0, False, gx)
    stamp(c, "g1 loop")
    def tail(st):
        a = c.a
        hz = Hz(a)
        ops = []
        early = c.opt.get('early', 1)
        if early: seq = [(t, j) for t in range(8) for j in (0, 3, 1, 4)] + [(t, j) for t in range(8) for j in (2, 5, 6)]
        else: seq = [(t, j) for t in range(8) for j in (0, 3, 1, 4, 2, 5, 6)]
        rd = {tj: 2*i + 1 for i, tj in enumerate(seq)}
        for t in range(8):
            g0, g1_ = acc(t,0), acc(t,1); d = acc(t, 3)
            for r in range(4): ops.append((rd[t,3], o_mul(g0+r, g0+r, acc(t,3)+r)))
            ops += [(rd[t,3], o_cvt(d, g0)), (rd[t,3], o_cvt(d+1, g0+2))]
            for r in range(4): ops.append((rd[t,4], o_mul(g1_+r, g1_+r, acc(t,4)+r)))
            ops += [(rd[t,4], o_cvt(d+2, g1_)), (rd[t,4], o_cvt(d+3, g1_+2))]
            ops.append((rd[t,4], o_st(f"buffer_store_dwordx4 v[{d}:{d+3}], v24, {SRD_WS}, s59 offen offset:{(t&1)*1024} {st}", d)))
            if t & 1: ops.append((rd[t,4], o_s("s_add_u32 s59, s59, 229376")))
            g2 = acc(t, 2)
            for r in range(4): ops.append((rd[t,5], o_mul(g2+r, g2+r, acc(t,5)+r)))
            b = acc(t & ~1, 5) + 2*(t & 1)
            ops += [(rd[t,5], o_cvt(b, g2)), (rd[t,5], o_cvt(b+1, g2+2))]
            if t & 1:
                b = acc(t & ~1, 5); o0, o1 = acc(t-1, 6), acc(t, 6)
                ops += [(rd[t,5], o_sw(32, b, b+2)), (rd[t,5], o_sw(32, b+1, b+3))]
                ops.append((rd[t,5], o_st(f"buffer_store_dwordx4 v[{b}:{b+3}], v25, {SRD_WS}, s53 offen {st}", b)))
                for r in range(4): ops.append((rd[t,6], o_sw(32, o0+r, o1+r)))
                for r in range(4): ops.append((rd[t,6], o_mul(o0+r, o0+r, o1+r)))
                od = acc(t & ~3, 2) + ((t >> 1) & 1)*2
                ops += [(rd[t,6], o_cvt(od, o0)), (rd[t,6], o_cvt(od+1, o0+2))]
                if t & 3 == 3:
                    od = acc(t & ~3, 2)
                    ops += [(rd[t,6], o_sw(16, od, od+2)), (rd[t,6], o_sw(16, od+1, od+3))]
                    ops.append((rd[t,6], o_st(f"buffer_store_dwordx4 v[{od}:{od+3}], v26, {SRD_WS}, s52 offen {st}", od)))
                    ops.append((rd[t,6], o_s("s_add_u32 s52, s52, 458752")))
                ops.append((rd[t,5], o_s("s_add_u32 s53, s53, 229376")))
        ops.sort(key=lambda o: o[0])
        hold = c.opt.get('hold', 5)
        hz.raw("s_waitcnt lgkmcnt(2)")
        n = 0; held = []
        for i, (t, j) in enumerate(seq):
            if i == 6: hz.raw("s_waitcnt lgkmcnt(0)")
            for k in ((0, 1) if i % 2 == 0 else (1, 0)):
                cc = acc(t, j); w = g1_wf(2 + k, j); x = g1_xf(k, t)
                hz.mfma(f"{MF} v[{cc}:{cc+3}], a[{w}:{w+3}], a[{x}:{x+3}], v[{cc}:{cc+3}]", cc)
                late = lambda o: hold and o[1][0] in ('store', 'salu') and o[0] >= 64 + 6*(8-hold)
                fill(hz, ops, n, 2, late)
                while ops and ops[0][0] <= n and late(ops[0]): held.append(ops.pop(0))
                n += 1
        ops = held + ops
        stamp(c, "g1 mm")
        if early:
            left = sum(o[1][0] == 'store' for o in ops)
            signal(c, vm=6 - left); hz.n += 6
            stamp(c, "sigH")
            for _, o in ops: hz.op(o)
            stamp(c)
        else:
            for _, o in ops: hz.op(o)
            stamp(c)
            signal(c)
            stamp(c, "sigH")

    dual(c, 0, tail)
```

```python
from fcore import *
from ffront import vQ, repack, repack_store, TOUCH2
from fg1k import g1_dw, g1_rw
XF, YF, RW, LO, TT = 32, 64, 96, 128, 160
def ln_stats(c, off, vm=''):
    a = c.a
    a(f"v_pk_add_f32 v[28:29], v[{XF}:{XF+1}], v[{XF+2}:{XF+3}]")
    a(f"v_pk_mul_f32 v[6:7], v[{XF}:{XF+1}], v[{XF}:{XF+1}]")
    a(f"v_pk_fma_f32 v[6:7], v[{XF+2}:{XF+3}], v[{XF+2}:{XF+3}], v[6:7]")
    for i in range(2, 16):
        a(f"v_pk_add_f32 v[28:29], v[28:29], v[{XF+2*i}:{XF+2*i+1}]")
        a(f"v_pk_fma_f32 v[6:7], v[{XF+2*i}:{XF+2*i+1}], v[{XF+2*i}:{XF+2*i+1}], v[6:7]")
    a(f"""
    v_add_f32 v28, v28, v29
    v_add_f32 v29, v6, v7
    s_nop 1
    v_permlane32_swap_b32 v28, v29
    v_add_f32 v28, v28, v29
    v_mov_b32 v29, v28
    s_nop 1
    v_permlane16_swap_b32 v28, v29
    v_add_f32 v28, v28, v29
    s_nop 1
    v_add_f32_dpp v28, v28, v28 row_ror:8 row_mask:0xf bank_mask:0xf
    ds_write_b32 v26, v28 offset:{off}
    s_waitcnt {vm}lgkmcnt(0)
    s_barrier
    ds_read_b128 v[4:7], v27 offset:{off}
    ds_read_b128 v[{LO+16}:{LO+19}], v27 offset:{off+128}
    s_waitcnt lgkmcnt(1)
    v_pk_add_f32 v[4:5], v[4:5], v[6:7]
    v_add_f32 v29, v4, v5
    v_mul_f32 v29, 0x3a800000, v29
    s_waitcnt lgkmcnt(0)
    v_pk_add_f32 v[6:7], v[{LO+16}:{LO+17}], v[{LO+18}:{LO+19}]
    v_add_f32 v28, v6, v7
    v_mul_f32 v28, 0x3a800000, v28
    v_fma_f32 v28, -v29, v29, v28
    v_max_f32 v28, 0, v28
    """)
    if c.opt.get('mimic', 0):
        a(f"""
        v_cvt_pk_bf16_f32 v29, v29, v28
        v_and_b32 v28, s{sMASK}, v29
        v_lshlrev_b32 v29, 16, v29
        v_add_f32 v28, 0x3727c5ac, v28
        v_cvt_pk_bf16_f32 v28, v28, v28
        v_and_b32 v28, s{sMASK}, v28
        v_sqrt_f32 v28, v28
        s_nop 0
        v_cvt_pk_bf16_f32 v28, v28, v28
        v_and_b32 v28, s{sMASK}, v28
        v_rcp_f32 v28, v28
        """)
    else:
        a("v_add_f32 v28, 0x3727c5ac, v28\nv_rsq_f32 v28, v28")
    a("s_nop 0\nv_mul_f32 v29, -v29, v28")
def norm(d, x): return f"v_pk_fma_f32 v[{d}:{d+1}], v[{x}:{x+1}], v[28:29], v[28:29] op_sel:[0,0,1] op_sel_hi:[1,0,1]"
def w_stage(a, slot):
    o = g1_dw(slot); a(o[0]); a("s_nop 0")
    for l in o[1:]: a(l)

def ln_phase(c):
    a = c.a
    l1 = c.lab("ln1"); st = c.lab("lnst"); cm = c.lab("lncm")
    a(f"""
    v_and_b32 v4, 7, v{vLANE}              ; tok
    v_lshrrev_b32 v5, 3, v{vLANE}          ; c
    v_lshlrev_b32 v6, 8, v5
    v_lshl_add_u32 v24, v4, 4, v6
    v_lshl_add_u32 v1, v4, 3, v6
    v_and_b32 v6, 0x3ff, v24
    v_lshrrev_b32 v7, 2, v5
    v_lshl_add_u32 v25, v7, 14, v6
    v_lshlrev_b32 v27, 4, v4
    v_add_u32 v27, {LDS_RED}, v27
    s_lshl_b32 s33, s{sW}, 2
    v_lshl_add_u32 v26, v7, 7, v27
    v_add_u32 v26, s33, v26
    s_lshr_b32 s33, s{sG8}, 1
    s_lshl_b32 s33, s33, 15
    s_lshl_b32 s34, s{sW}, 13
    s_add_u32 s33, s33, s34
    s_and_b32 s34, s{sG8}, 1
    s_lshl_b32 s35, s34, 6
    s_add_u32 s33, s33, s35                ; Y offset
    s_add_u32 s36, s33, s35                ; B16 offset
    s_add_u32 s33, s33, {WS_Y}
    s_lshl_b32 s37, s{sTB}, 19
    s_lshl_b32 s35, s{sW}, 17
    s_add_u32 s37, s37, s35
    s_bfe_u32 s35, s{sG8}, 0x40001
    s_lshl_b32 s35, s35, 10
    s_add_u32 s37, s37, s35
    s_lshl_b32 s35, s34, 7
    s_add_u32 s37, s37, s35
    s_add_u32 s37, s37, s{sLB}
    s_cmp_lg_u32 s{sLAY}, 0
    s_cbranch_scc1 {l1}
    """)
    n1 = 0 if c.opt.get('pk_g1', 1) else c.opt.get('pk_n1', 3)
    unpack(a, XF, vQ, 16)
    signal(c, sfl=85 if c.opt.get('yflag', 2) < 2 else sFL); stamp(c, "sigY")
    eo = c.opt.get('e_ord', 0)
    if eo: a(f"s_cmp_lt_u32 s{sTB}, 4\ns_cbranch_scc1 {st}")
    def side1():
        for slot in range(c.opt.get('w_sy', 4)): w_stage(a, slot)
        if c.opt.get('sty'): stamp(c)
        repack(c, n1)
        if c.opt.get('sty'): stamp(c)
    st2 = c.lab("lns2")
    if c.opt.get('ilv', 0):
        amain = c.a
        c.a = a = Asm(); ln_stats(c, 0)
        for j in range(16): a(norm(TT+2*j, XF+2*j))
        V = [l.strip() for l in a.lines]
        c.a = a = amain
        if c.opt.get('ilv', 0) == 2: repack(c, n1); a("s_waitcnt lgkmcnt(0)")
        Dm = []
        for slot in range(c.opt.get('w_sy', 4)):
            o = g1_dw(slot); Dm += [[o[0], "s_nop 0", o[1]], [o[2]], [o[3]], [o[4], o[5]]]
        lead = c.opt.get('ilv_lead', 4); step = len(V) // max(len(Dm) - lead, 1)
        for d in Dm[:lead]:
            for l in d: a(l)
        Dm = Dm[lead:]
        for k, l in enumerate(V):
            a(l)
            if k % step == step - 1 and Dm:
                for l in Dm.pop(0): a(l)
        assert not Dm
        if c.opt.get('ilv', 0) == 1: repack(c, n1); a("s_waitcnt lgkmcnt(0)")
        a(f"s_branch {st2}")
        if c.opt.get('iw', 2048): a(".p2align 12\niw_base:")
        a(f"{l1}:")
    else:
        side1()
        a(f"s_branch {st}")
        if c.opt.get('iw', 2048): a(".p2align 12\niw_base:")
        a(f"{l1}:")
    for j in range(16): a(f"v_accvgpr_read_b32 v{LO+j}, a{aX+j}")
    unpack(a, XF, LO, 16)
    w0 = eo
    a(f"""
    s_add_u32 s38, s36, {LY.P}
    s_add_u32 s50, s36, {LY.P + 4*MB}
    s_mov_b32 s34, 0x3f80
    s_mov_b32 s35, 0x3f800000
    """)
    signal(c); stamp(c, "sigP")
    a(f"s_sub_u32 s41, s41, {128*7168}")
    w_stage(a, 0); w_stage(a, 1)
    a(f"s_add_u32 s41, s41, {64*7168}")
    def ldp(p):
        for i in range(4):
            r = RW + 16*p + 4*i
            a(f"buffer_load_dwordx4 v[{r}:{r+3}], v24, {SRD_WS}, s{[38, 50][p]} offen offset:{(i&1)*2048} {c.opt.get('ld_aux', 'sc1')}")
            if i == 1: a(f"s_add_u32 s{[38, 50][p]}, s{[38, 50][p]}, 4096")
    def addp(p, k, D=()):
        D = list(D)
        for i in range(4):
            a(f"s_waitcnt vmcnt({k-i})")
            for j in range(4):
                r = RW + 16*p + 4*i + j; x = XF + 8*i + 2*j
                a(f"v_dot2_f32_bf16 v{x}, v{r}, s34, v{x}\nv_dot2_f32_bf16 v{x+1}, v{r}, s35, v{x+1}")
    def gety():
        for j in range(16): a(f"v_accvgpr_read_b32 v{LO+j}, a{aY+j}")
        unpack(a, YF, LO, 16)
    gety()
    wait(c, vFL, M_TH)
    stamp(c, "waitP")
    ldp(0); ldp(1); addp(0, 7); addp(1, 3)
    a(f"{st}:")
    ln_stats(c, 0)
    for j in range(16): a(norm(TT+2*j, XF+2*j))
    a(f"s_cmp_lg_u32 s{sLAY}, 0\ns_cbranch_scc1 {cm}\n{st2}:")
    ok = c.lab("boot")
    yf = c.opt.get('yflag', 2)
    if c.opt.get('sty'): stamp(c); a("s_waitcnt vmcnt(0)"); stamp(c)
    boot = lambda ok: f"v_cmp_eq_u32 vcc, 0, v248\ns_cbranch_vccz {ok}\n" + poll(c, "s[88:91]", 249, "0", "", 1) + f"{ok}:"
    if yf == 2:
        y1 = c.lab("lny"); y2 = c.lab("lnz")
        a(f"s_cmp_lt_u32 s{sTB}, {4 if c.opt.get('y_st', 2) < 6 else 0}\ns_cbranch_scc1 {y1}\ns_lshl_b32 s51, s{sW}, 13\nv_lshl_add_u32 v250, v{vLANE}, 7, s51")
        a(boot(ok)); a(poll(c, SRD_WS, 250, f"s{sFB}", "", 3))
        a(f"s_branch {y2}\n{y1}:\ns_cmp_lg_u32 s{sW}, 0\ns_cbranch_scc1 {y2}")
        a(boot(c.lab("boot"))); a(poll(c, SRD_WS, 250, f"s{sFB}", "", 2, x4=True))
        a(f"{y2}:\ns_barrier")
    else:
        a(f"s_lshr_b32 s51, s{sTB}, 2\ns_add_u32 s51, s51, 2")
        wait(c, 250, "", every=not yf, x4=yf, thr="s51", pre=boot(ok))
    stamp(c, "waitY")
    for i in range(4):
        for k in range(2):
            r = RW + 4*i + 2*k
            a(f"buffer_load_dwordx2 v[{r}:{r+1}], v1, {SRD_WS}, s33 offen offset:{(i&1)*2048 + k*128} sc1")
        if i == 1: a("s_add_u32 s33, s33, 4096")
    if eo == 1:
        e1 = c.lab("lne"); e2 = c.lab("lnf")
        a(f"s_cmp_lt_u32 s{sTB}, 4\ns_cbranch_scc1 {e1}")
    for i in range(4):
        a(f"s_waitcnt vmcnt({6-2*i})")
        unpack(a, YF+8*i, RW+4*i, 4)
    if eo == 1:
        a(f"s_branch {cm}\n{e1}:\ns_barrier")
        side1()
        a(f"s_waitcnt vmcnt({4*c.opt.get('w_sy', 4) + n1}) lgkmcnt(0)")
        unpack(a, YF, RW, 16)
    if eo == 2:
        a(f"s_cmp_ge_u32 s{sTB}, 4\ns_cbranch_scc1 {cm}")
        side1()
        a("s_waitcnt lgkmcnt(0)")
    a(f"{cm}:")
    stamp(c, "ln in")
    for j in range(16):
        x = XF + 2*j
        a(f"v_pk_fma_f32 v[{x}:{x+1}], v[{TT+2*j}:{TT+2*j+1}], v[{YF+2*j}:{YF+2*j+1}], v[{x}:{x+1}]")
    if n1 < 7 and not c.opt.get('pk_g1', 1):
        s3 = c.lab("lnt")
        a(f"s_cmp_lg_u32 s{sLAY}, 0\ns_cbranch_scc1 {s3}")
        for k in range(n1, c.opt.get('pk_n2', 7)): a(repack_store(k))
        a(f"{s3}:")
    ln_stats(c, 256)
    for j in range(16):
        a(norm(TT+2*j, XF+2*j))
        a(f"v_cvt_pk_bf16_f32 v{YF+j}, v{TT+2*j}, v{TT+2*j+1}")
        if j % 4 == 3:
            a(f"buffer_store_dwordx4 v[{YF+j-3}:{YF+j}], v25, {SRD_WS}, s37 offen sc1\ns_add_u32 s37, s37, 32768")
    a(f"""
    s_lshl_b32 s35, s{sG8}, 7
    s_add_u32 s35, s35, {LY.XR}
    v_lshlrev_b32 v4, 3, v{vLANE}
    s_mov_b64 exec, 0xffff
    buffer_store_dwordx2 v[28:29], v4, {SRD_WS}, s35 offen sc1
    s_mov_b64 exec, -1
    """)
    stamp(c, "xn out")
    if c.opt.get('w2_sx', 1):
        if w0: a("s_waitcnt vmcnt(5)\ns_barrier")
        for l in g1_rw(0) + g1_rw(1): a(l)
        a("s_waitcnt lgkmcnt(0)")
    signal(c)
    stamp(c, "sigX")
    dn = c.lab("lnd")
    a(f"s_cmp_lg_u32 s{sLAY}, 0\ns_cbranch_scc1 {dn}")
    for i in range(5 - len(c.opt.get('t_pos', [0]*5)) - c.opt.get('t_s0', 0)): a(TOUCH2)
    for slot in range(c.opt.get('w_sy', 4), 4): w_stage(a, slot)
    for j in range(16): a(f"v_cvt_pk_bf16_f32 v{LO+j}, v{XF+2*j}, v{XF+2*j+1}")
    for j in range(16): a(f"v_accvgpr_write_b32 a{aX+j}, v{LO+j}\nv_accvgpr_write_b32 a{aY+j}, v{RW+j}")
    a(f"{dn}:")
```

```python
from fcore import *
import fg2p
ACC1 = 32
def g1_acc(t, j): return ACC1 + (t*7 + j)*4
def g1_xf(k, t): return 112 + (t*2 + k)*4
def g1_wf(slot, j): return slot*28 + j*4
aPK = 176; LDS_PK = LDS_RED + 1024
g1_vXA = [8, 9]; g1_vWA = [[10,11,12,13],[14,15,16,17]]; g1_vDW = [19,20,21,22]; g1_vPF = [18, 23]
def g1_dx(slot):
    return [f"s_add_u32 m0, s42, {slot*STAGE}"] + [f"buffer_load_dwordx4 v{vL16}, {SRD_WS}, s40 offen offset:{1024*i} {LY.sc} lds" for i in range(4)] + ["s_add_u32 s40, s40, 16384"]
def g1_dw(slot):
    return [f"s_add_u32 m0, s43, {slot*STAGE}"] + [f"buffer_load_dwordx4 v{g1_vDW[i]}, {SRD_W}, s41 offen offset:{1024*i} lds" for i in range(4)] + [f"s_add_u32 s41, s41, {32*7168}"]
def g1_rw(slot):
    h = slot >> 1; so = (slot & 1)*STAGE; W = []
    for j in range(7):
        va = g1_vWA[h][j % 3] if j < 6 else g1_vWA[h][3]
        off = so + (UOFF if 3 <= j < 6 else 0); r = g1_wf(slot, j)
        W.append(f"ds_read_b64_tr_b16 a[{r}:{r+1}], v{va} offset:{off}")
        W.append(f"ds_read_b64_tr_b16 a[{r+2}:{r+3}], v{va} offset:{off+1024}")
    return W
def g1_rx(h, t):
    return [f"ds_read_b128 a[{g1_xf(k,t)}:{g1_xf(k,t)+3}], v{g1_vXA[h]} offset:{k*STAGE+t*1024}" for k in range(2)]
def w_stage(a, slot):
    o = g1_dw(slot); a(o[0]); a("s_nop 0")
    for l in o[1:]: a(l)

def g1_waddr(a):
    vDW = g1_vDW
    a(f"""
    s_and_b32 s44, s{sW}, 1
    s_lshr_b32 s45, s{sW}, 1
    s_and_b32 s46, s{sM}, 1
    s_mul_i32 s41, s44, {16*7168}
    s_mul_i32 s33, s{sM}, 224
    s_add_u32 s41, s41, s33
    s_lshl_b32 s33, s46, 5
    s_sub_u32 s41, s41, s33
    s_mov_b32 s92, s41
    s_mul_i32 s43, s45, {UOFF}
    s_lshl_b32 s33, s44, 12
    s_add_u32 s43, s43, s33
    s_add_u32 s43, s43, 16384
    v_lshrrev_b32 v1, 4, v{vLANE}          ; q
    v_bfe_u32 v4, v{vLANE}, 1, 3
    v_xor_b32 v4, v4, v1
    v_and_b32 v5, 1, v{vLANE}
    v_lshlrev_b32 v5, 4, v5
    v_mul_u32_u24 v6, 7168, v1
    v_add_u32 v6, v6, v5
    v_lshl_add_u32 v{vDW[0]}, v4, 5, v6
    v_xor_b32 v4, 4, v4
    v_lshl_add_u32 v{vDW[2]}, v4, 5, v6
    v_add_u32 v{vDW[1]}, {4*7168-1024}, v{vDW[0]}
    v_add_u32 v{vDW[3]}, {3*(4*7168-1024)}, v{vDW[2]}
    v_add_u32 v{vDW[2]}, {2*(4*7168-1024)}, v{vDW[2]}
    """)

def g1_pre(c):
    a = c.a; vDW = g1_vDW; vWA = g1_vWA; vXA = g1_vXA
    a(f"v_lshrrev_b32 v1, 4, v{vLANE}")
    a(f"""
    s_lshl_b32 s42, s{sW}, 12
    s_lshl_b32 s40, s{sTB}, 19
    s_add_u32 s40, s40, s42
    s_add_u32 s40, s40, s{sLB}
    s_lshl_b32 s33, s45, 13
    v_add_u32 v{vXA[0]}, s33, v{vL16}
    v_add_u32 v{vXA[1]}, {2*STAGE}, v{vXA[0]}
    v_bfe_u32 v4, v{vLANE}, 2, 2           ; r4
    v_and_b32 v5, 1, v1
    v_lshl_or_b32 v5, v5, 2, v4            ; sigma
    v_lshl_add_u32 v6, v1, 3, v4
    v_lshlrev_b32 v6, 8, v6
    v_add_u32 v6, 16384, v6
    v_and_b32 v7, 3, v{vLANE}
    v_lshl_add_u32 v1, v7, 3, v6
    s_lshl_b32 s33, s44, 2
    s_add_u32 s33, s33, s46
    """)
    for p in range(3):
        a(f"s_add_u32 s34, s33, {p}\nv_xor_b32 v4, s34, v5\nv_lshl_add_u32 v{vWA[0][p]}, v4, 5, v1")
    a(f"""
    s_add_u32 s34, s46, 3
    v_xor_b32 v4, s34, v5
    v_lshl_add_u32 v6, v4, 5, v6
    v_and_b32 v4, 1, v7
    v_lshl_add_u32 v6, v4, 3, v6
    v_lshrrev_b32 v4, 1, v7
    v_mul_u32_u24 v4, {UOFF}, v4
    s_lshl_b32 s34, s44, 4
    v_add3_u32 v{vWA[0][3]}, v6, v4, s34
    """)
    for p in range(4): a(f"v_add_u32 v{vWA[1][p]}, {2*STAGE}, v{vWA[0][p]}")
    d = c.opt.get('pf_dist', 2)
    who = c.opt.get('pf_who', 1)
    a(f"s_sub_u32 s34, s{sLAY}, 1")
    if who:
        a(f"""
        s_add_u32 s35, s{sM}, 1
        s_bfe_u32 s35, s35, 0x10001
        s_sub_u32 s35, s35, 1
        s_and_b32 s34, s34, s35
        s_bfe_u32 s36, s2, 0x20003
        s_bfe_u32 s35, s2, 0x20006
        s_lshl_b32 s35, s35, 2
        s_add_u32 s36, s36, s35
        """)
    else: a("s_lshr_b32 s36, s2, 3")
    a(f"""
    s_lshl_b32 s33, s36, 1
    s_add_u32 s33, s33, s44
    s_lshl_b32 s33, s33, 1
    s_and_b32 s35, s2, 1
    s_add_u32 s33, s33, s35
    s_mul_i32 s33, s33, {7168 << who}
    s_lshr_b32 s35, s{sM}, 3
    s_mul_i32 s35, s35, 1792
    s_add_u32 s33, s33, s35
    s_add_u32 s33, s33, {320*7168}
    v_lshlrev_b32 v4, 7, v{vLANE}
    v_cmp_lt_u32 vcc, 13, v{vLANE}
    v_add_u32 v5, s33, v4
    v_add_u32 v6, {7168-14*128}, v5
    v_cndmask_b32 v5, v5, v6, vcc
    s_and_b32 s33, s34, {14 << who}
    v_cmp_gt_u32 vcc, s33, v{vLANE}
    v_bfrev_b32 v6, 1
    s_nop 0
    v_cndmask_b32 v{g1_vPF[0]}, v6, v5, vcc
    """)

def g1_main(c):
    a = c.a; acc = g1_acc
    w2 = c.opt.get('w2_sx', 1)
    if w2: w_stage(a, 0); w_stage(a, 1)
    else:
        for l in g1_rw(0) + g1_rw(1): a(l)
    a(f"""
    s_lshl_b32 s59, s{sTB}, 3
    s_lshl_b32 s33, s45, 2
    s_add_u32 s59, s59, s33
    s_mul_i32 s59, s59, 229376
    s_lshr_b32 s33, s{sM}, 4
    s_mul_i32 s33, s33, {56*2048}
    s_add_u32 s59, s59, s33
    s_add_u32 s59, s59, s{sLB}
    s_add_u32 s59, s59, {L_H}
    s_lshl_b32 s34, s46, 1
    s_add_u32 s34, s34, s44                ; wv
    s_mov_b32 s53, s59
    s_mov_b32 s52, s59
    s_and_b32 s36, s{sM}, 15
    s_lshl_b32 s33, s36, 1
    s_add_u32 s33, s33, s44
    s_lshl_b32 s33, s33, 11
    v_add_u32 v24, s33, v{vL16}
    v_and_b32 v4, 15, v{vLANE}
    v_lshlrev_b32 v4, 4, v4
    v_lshrrev_b32 v5, 5, v{vLANE}
    v_lshl_add_u32 v4, v5, 10, v4
    v_bfe_u32 v5, v{vLANE}, 4, 1
    s_add_u32 s33, s36, 32
    s_lshl_b32 s33, s33, 11
    s_lshl_b32 s35, s44, 9
    s_add_u32 s33, s33, s35
    v_lshl_add_u32 v25, v5, 8, v4
    v_add_u32 v25, s33, v25
    s_lshl_b32 s33, s34, 8
    s_lshr_b32 s36, s36, 1
    s_lshl_b32 s36, s36, 11
    s_add_u32 s33, s33, s36
    s_add_u32 s33, s33, {48*2048}
    v_mul_u32_u24 v5, 229376, v5
    v_add3_u32 v26, v4, v5, s33
    """)
    a(f"""
    s_lshr_b32 s33, s{sM}, 4
    s_lshl_b32 s33, s33, 2
    s_add_u32 s33, s33, s{sW}
    s_lshl_b32 s34, s{sM}, 1
    s_add_u32 s34, s34, 10
    v_and_b32 v5, 7, v{vLANE}
    v_add_u32 v5, s34, v5
    v_and_b32 v5, 15, v5
    v_bfe_u32 v7, v{vLANE}, 3, 1
    v_lshl_add_u32 v5, v7, 4, v5
    v_mov_b32 v7, s33
    v_cmp_gt_u32 vcc, 16, v{vLANE}
    v_lshlrev_b32 v5, 3, v5
    s_nop 0
    v_cndmask_b32 v7, 4, v7, vcc
    v_add_lshl_u32 v23, v5, v7, 7
    s_mov_b32 s47, 6
    """)
    ct = c.opt.get('ct', 4)
    if ct: a(code_touch(c, None, 28))
    l2n = c.opt.get('l2n', 0); l2w = c.opt.get('l2w', 32)
    if l2n:
        a(f"""
        s_and_b32 s33, s{sM}, 7
        s_lshl_b32 s33, s33, 1
        s_lshr_b32 s34, s{sM}, 4
        s_add_u32 s33, s33, s34
        s_mul_i32 s33, s33, {56*8192}
        s_and_b32 s34, s{sTB}, 3
        s_lshl_b32 s34, s34, 2
        s_add_u32 s34, s34, s{sW}
        s_mul_i32 s34, s34, {l2w*128}
        s_add_u32 s33, s33, s34
        s_add_u32 s48, s33, {fg2p.WS_WDP + 65536 - (6-l2n)*l2w*2048}
        v_min_u32 v1, {l2w-1}, v{vLANE}
        v_lshlrev_b32 v1, 7, v1
        s_mov_b64 s[24:25], s[12:13]
        """)
    fast = c.opt.get('fast', 1) and w2
    if fast:
        a(f"""
        s_lshl_b32 s33, s45, 13
        s_mul_i32 s34, s44, {STAGE}
        s_add_u32 s34, s34, s33
        s_lshl_b32 s35, s44, 14
        s_add_u32 s33, s33, s35
        s_sub_u32 s35, s40, s42
        s_add_u32 s33, s33, s35
        s_add_u32 s35, s33, 4096
        s_add_u32 s40, s40, 32768
        """)
    co = c.opt.get('co1', 0)
    if co:
        a(f"""
        s_and_b32 s36, s{sM}, 7
        s_lshl_b32 s36, s36, 2
        s_add_u32 s36, s36, s{sW}
        s_mul_i32 s36, s36, {co*128}
        s_sub_u32 s37, s40, s42
        s_add_u32 s36, s36, s37
        s_sub_u32 s36, s36, 32768
        v_min_u32 v1, {co-1}, v{vLANE}
        v_lshlrev_b32 v1, 7, v1
        """)
    if c.opt.get('pk_g1', 1): a(f"v_lshrrev_b32 v1, 5, v{vLANE}\nv_bfe_u32 v4, v{vLANE}, 3, 2\nv_and_b32 v5, 0x70, v{vL16}\nv_lshl_add_u32 v5, v4, 11, v5\nv_mov_b32 v6, v219\ns_lshl_b32 s49, s{sLAY}, 4\ns_add_u32 s49, s49, 1")
    if c.opt.get('iw2', 1): hop2(c)
    wait(c, vFL, M_ALL)
    stamp(c, "waitX")
    if fast:
        for h in range(2):
            a(f"s_add_u32 m0, s34, {4096*h}\ns_nop 0")
            for i in range(4):
                a(f"buffer_load_dwordx4 v{vL16}, {SRD_WS}, s{33+2*h} offen offset:{1024*i} {LY.sc} lds")
                if co and (h, i) == (0, 1): a(f"s_barrier\nbuffer_load_dword v27, v1, {SRD_WS}, s36 offen sc1")
        a(g1_dx(2)[0])
        a(f"s_waitcnt vmcnt({7 if co else 6})\ns_barrier")
        for t in range(2):
            for l in g1_rx(0, t): a(l)
    else:
        for slot in range(4):
            o = g1_dx(slot); a(o[0]); a("s_nop 0")
            for l in o[1:]: a(l)
        a("s_waitcnt vmcnt(8)\ns_barrier")
        for t in range(8):
            for l in g1_rx(0, t): a(l)
    stamp(c, "g1 go")
    kin = c.opt.get('g1_kin', 1)
    def mseq(jo):
        out = []
        for t in range(8):
            js = jo if t % 2 == 0 else jo[::-1]
            if kin: out += [(t, j, k) for i, j in enumerate(js) for k in ((0, 1) if i % 2 == 0 or kin == 2 else (1, 0))]
            else: out += [(t, j, 0) for j in js] + [(t, j, 1) for j in js[::-1]]
        return out
    sch = c.opt.get('g1_sch', 0)
    def sstep(s, loop, gx=(), first=False, sh=0, auto=None, more=(0, 0)):
        a = c.a
        gaps = [[] for _ in range(112)]
        BA, BB = c.opt.get('ba', 7), 63
        if first and fast:
            for h in range(2):
                o = g1_dx(2 + h)
                if h or c.ts: gaps[max(16*h-1, 0)].append(o[0])
                for i in range(4): gaps[16*h + 4*i + 1].append(o[1+i])
                gaps[16*h+14].append(o[5])
            gaps[12].append("s_waitcnt vmcnt(3) lgkmcnt(0)"); gaps[12].append("s_barrier")
            for t in range(2, 8):
                r = g1_rx(0, t); gaps[9+2*t].append(r[0]); gaps[10+2*t].append(r[1])
            gaps[27].append("s_waitcnt lgkmcnt(10)")
            gaps[33].append("s_waitcnt lgkmcnt(0)"); gaps[33].append("s_barrier")
            for k, l in enumerate(g1_rw(2) + g1_rw(3)): gaps[[2,3,4,6,7,8][k] if k < 6 else 28 + k].append(l)
        else:
            gaps[BA-1].append(f"s_waitcnt vmcnt({17 + more[0] if loop else 0}) lgkmcnt(0)"); gaps[BA].append("s_barrier")
            for k, l in enumerate(g1_rw(2*(s^1)) + g1_rw(2*(s^1)+1)): gaps[BA + 1 + (-sh) % 3 + ((k*3)//2 if sch == 0 else k)].append(l)
        for t in range(8):
            g = max(BB + 2 + 3*t if sch == 0 else BB + 1 + 2*t, 14*t + 13)
            r = g1_rx(s ^ 1, t)
            if t == 7: gaps[110].append(r[c.lastk ^ 1]); gaps[111].append(r[c.lastk])
            else: gaps[g].append(r[0]); gaps[g+1].append(r[1])
        if loop:
            gaps[BB-1].append(f"s_waitcnt vmcnt({(7 if fast else 8 if w2 else 13) if first else 16 + more[1] if s else 17 + more[1]}) lgkmcnt(0)"); gaps[BB].append("s_barrier")
            px = [[16,22,28,34,40,46,52,58], [37,40,43,46,49,52,55,58], [37,40,43,46,49,52,55,58]][sch]
            pw = [c.opt.get('pw', [67,72,77,82,87,92,97,102]), [75,78,81,86,89,92,95,100], [75,79,86,90,94,100,104,108]][sch]
            px = [p - sh for p in px]; pw = [p + sh for p in pw]
            if auto and c.opt.get('pk_plan', 3) == 3:
                x0, xd, wd = c.opt.get('pk_sp', (30, 4, 4))
                px = [x0 + xd*i for i in range(8)]; pw = [66 + wd*i for i in range(8)]
            if first and fast: px = [35, 39, 43, 47, 51, 55, 59, 64]; pw = [69, 74, 79, 85, 90, 95, 100, 105]
            if first and not w2:
                px = [44, 48, 52, 56, 60, 66, 70, 74]; pw = [79, 83, 87, 91, 95, 99, 103, 107]
                for h in range(2):
                    o = g1_dw(h); p = [10 + 16*h + 4*i for i in range(4)]
                    gaps[p[0]-1].append(o[0])
                    for i in range(4): gaps[p[i]].append(o[1+i])
                    gaps[p[3]+1].append(o[5])
            for h in range(2):
                for o, p in ((g1_dx(2*s + h), px[4*h:]), (g1_dw(2*(s^1) + h), pw[4*h:])):
                    gaps[p[0]-1].append(o[0])
                    for i in range(4): gaps[p[i]].append(o[1+i])
                    gaps[p[3]+1].append(o[5])
        for g, l in gx: gaps[g].append(l)
        if auto:
            hist, nn = auto
            for g in range(112):
                for i, l in enumerate(gaps[g]):
                    if l.startswith("s_waitcnt vmcnt"):
                        tag = ('w', nn+1) if g < 32 else ('x', nn+1)
                        last = max([k for k, e in enumerate(hist) if e == tag or (g >= 32 and e == ('p', nn-1))], default=-1)
                        gaps[g][i] = f"s_waitcnt vmcnt({len(hist) - 1 - last}) lgkmcnt(0)"
                    elif l.startswith("buffer_"): hist.append(('x', nn+2) if "s40 offen" in l else ('w', nn+3) if "s41 offen" in l else ('p', nn) if SRD_WD in l or (nn == 5 and "store" in l and c.opt.get('pk_plan', 3) == 3) else ('o', 0))
        ab = c.opt.get('abl', '')
        if loop and not first:
            def keep(l):
                if 'b' in ab and l == "s_barrier": return False
                if 'x' in ab and "s40 offen" in l: return False
                if 'w' in ab and "s41 offen" in l: return False
                if 'p' in ab and "v27" in l: return False
                if 'r' in ab and "ds_read" in l: return False
                if 's' in ab and l.startswith("s_add_u32"): return False
                if 'c' in ab and l.startswith("s_waitcnt"): return False
                return True
            gaps = [[l for l in g if keep(l)] for g in gaps]
        if c.opt.get('stss') and not first: stamp(c)
        a(f"s_waitcnt lgkmcnt({14 if first and not fast else 2})")
        seen = set()
        for n, (t, j, k) in enumerate(mseq(list(range(7)))):
            cc = acc(t, j); w = g1_wf(2*s + k, j); x = g1_xf(k, t)
            src = "0" if first and cc not in seen else f"v[{cc}:{cc+3}]"
            seen.add(cc)
            a(f"{MF} v[{cc}:{cc+3}], a[{w}:{w+3}], a[{x}:{x+3}], {src}")
            for l in gaps[n]: a(l)
    c.lastk = mseq(list(range(7)))[-1][2]
    pe = c.opt.get('pk_end', 0) and c.opt.get('pk_g1', 1)
    def pkend(s, x, full):
        g = (106 if s else 105) + x
        L = [(79, f"v_lshl_add_u32 v4, v1, s{64+s}, v5"), (80, f"s_and_b32 s50, s{64+s}, 0xffffff80"), (81, f"s_cmp_lg_u32 s{64+s}, 0\ns_cselect_b32 s18, {D*F*2}, 0"),
             (g-1, f"s_add_u32 m0, s72, {s*4096}"), (g, f"buffer_load_dwordx4 v4, {SRD_WD}, s50 offen {c.opt.get('pk_aux', 'nt')} lds")]
        if full: L += [(4, f"s_cmp_lg_u32 s{74+s}, 0\ns_cselect_b32 s26, s14, 0"), (g+2, f"buffer_store_dwordx4 a[{aPK}:{aPK+3}], v{vL16}, {SRD_T}, s{74+s} offen sc1"),
                       (59, f"ds_read_b64_tr_b16 a[{aPK}:{aPK+1}], v6 offset:{s*4096}"), (59, f"ds_read_b64_tr_b16 a[{aPK+2}:{aPK+3}], v6 offset:{s*4096+512}")]
        return L
    sstep(0, True, [(101, "s_mov_b64 s[24:25], s[12:13]"), (110, f"s_cmp_eq_u32 s{sLAY}, 0")] + (pkend(0, 3, False) if pe else []), first=True)
    o = c.lab("g1c"); b = c.lab("g1d")
    c.ool.append(f"{o}:\n" + poll(c, SRD_WS, 23, f"s{sFB}", "", 4 + c.opt.get('pk_g1', 1)) + f"s_branch {b}")
    chk = [(0, f"v_cmp_gt_u32 vcc, {4 + c.opt.get('pk_g1', 1)}, v7"), (5, f"s_cbranch_vccnz {o}\n{b}:")]
    shifts = c.opt.get('stag', [0, 3, 0, 3])
    cps = sorted(set(shifts)); mids = {x: c.lab("g1m") for x in cps}; done = c.lab("g1z")
    pk = c.opt.get('pk_g1', 1)
    lps = {x: c.lab("g1l") for x in cps}
    def pfx(x): return [(105 + x, f"buffer_load_dword v27, v{g1_vPF[0]}, {SRD_W}, 0 offen"), (106 + x, f"v_add_u32 v{g1_vPF[0]}, {128*7168}, v{g1_vPF[0]}")]
    def dispatch(m):
        for w in range(3):
            if shifts[w] != shifts[3]: c.a(f"s_cmp_eq_u32 s{sW}, {w}\ns_cbranch_scc1 {m[shifts[w]]}")
        c.a(f"s_branch {m[shifts[3]]}")
    if pk:
        o = c.lab("g1k"); a(f"s_cbranch_scc1 {o}")
        c.a = Asm(); midA = {x: c.lab("g1a") for x in cps}
        dispatch(midA)
        gd, gs = c.opt.get('pk_g', ({0: 10, 3: 8}, {0: 13, 3: 16}))
        def pko(s, x):
            e = 1 - s
            return [(0, f"v_lshl_add_u32 v4, v1, s{64+e}, v5"), (1, f"s_and_b32 s50, s{64+e}, 0xffffff80"), (1, f"s_add_u32 m0, s72, {s*4096}"),
                    (3, f"s_cmp_lg_u32 s{64+e}, 0\ns_cselect_b32 s18, {D*F*2}, 0"), (4, f"s_cmp_lg_u32 s{74+e}, 0\ns_cselect_b32 s26, s14, 0"),
                    (gd[x], f"buffer_load_dwordx4 v4, {SRD_WD}, s50 offen {c.opt.get('pk_aux', 'nt')} lds"),
                    (gs[x], f"buffer_store_dwordx4 a[{aPK}:{aPK+3}], v{vL16}, {SRD_T}, s{74+e} offen sc1"),
                    (93, f"ds_read_b64_tr_b16 a[{aPK}:{aPK+1}], v6 offset:{(s^1)*4096}"), (94, f"ds_read_b64_tr_b16 a[{aPK+2}:{aPK+3}], v6 offset:{(s^1)*4096+512}")]
        if pe:
            def pko(s, x): return pkend(s, x, True)
        rotn = [f"s_mov_b64 s[{r}:{r+1}], s[{r+2}:{r+3}]" for r in (64, 66, 68, 74, 76, 78, 80)] + ["s_mov_b64 s[70:71], 0"]
        for x in cps:
            lpA = c.lab("g1b")
            c.a(f"{lpA}:")
            if pe:
                sstep(0, True, list(zip([0, 0, 1, 1, 2, 2, 3, 3], rotn)) + [(5, "s_sub_u32 s47, s47, 1")] + pko(0, x), sh=x, more=(2, 2))
                c.a(f"{midA[x]}:")
                sstep(1, True, [(g-1, l) for g, l in pfx(x)] + pko(1, x) + [(110, "s_cmp_lg_u32 s47, 2")], sh=x, more=(2, 1))
            else:
                sstep(0, True, [(2, "s_sub_u32 s47, s47, 1")] + pko(0, x) + list(zip([50, 51, 53, 54, 56, 57, 60, 61], rotn)), sh=x, more=(2, 2))
                c.a(f"{midA[x]}:")
                sstep(1, True, pko(1, x) + pfx(x) + [(110, "s_cmp_lg_u32 s47, 2")], sh=x, more=(2, 2))
            c.a(f"s_cbranch_scc1 {lpA}\ns_branch {lps[x]}")
        t = c.a.text(); c.a = a
        c.ool.append(f"{o}:\n{t}")
    dispatch(mids)
    for x in cps:
        lp = lps[x]; ex = []
        if pk:
            o = c.lab("g1s"); b = c.lab("g1t")
            c.ool.append(f"{o}:\ns_add_u32 s{sPH}, s{sPH}, 1\ns_lshl_b32 s33, s{sW}, 29\nv_mov_b32 v5, s{sPH}\nv_mov_b32 v4, s33\nbuffer_store_dword v5, v4, {SRD_WS}, s{sFL} offen sc1\ns_branch {b}")
            ex = [(61, "s_cmp_eq_u32 s47, s49"), (64, f"s_cbranch_scc1 {o}\n{b}:")]
        a(f"{lp}:")
        sstep(0, True, [(2, "s_sub_u32 s47, s47, 1"), (3, "s_cmp_eq_u32 s47, 0\ns_cselect_b32 s26, s14, 0"),
                        (10, f"buffer_load_dword v7, v23, {SRD_T}, s{sFB} offen sc1")] + ex, sh=x)
        a(f"{mids[x]}:")
        sstep(1, True, [(3, "s_cmp_eq_u32 s47, 0\ns_cselect_b32 s10, 0, s10")] + pfx(x) + [(110, "s_cmp_lg_u32 s47, 0")], sh=x)
        a(f"s_cbranch_scc1 {lp}")
        if x != cps[-1]: a(f"s_branch {done}")
    a(f"{done}:")
    def pk_ld(n, g0, ds):
        o = fg2p.g2_ldw(c, n)
        return [(g0, o[0])] + [(g0+1+ds*i, o[1+i]) for i in range(4)] + [(g0+2+ds*3, o[5])]
    gx = [(0, f"s_mov_b32 s10, {D*F*2}")]
    if ct & 4: gx.append((10, "global_load_dword v27, v[28:29], off"))
    for k, l in enumerate(fg2p.g2_pre1(c)): gx.append((1 + k//2, l))
    if not l2n: gx += chk
    if c.opt.get('g2_pre', 0):
        for n in range(4): gx += pk_ld(n, 12 + 20*n, 5)
        o = fg2p.g2_ldlast(c)
        gx += [(91, o[0]), (92, o[1])] + [(93 + 5*i, o[2+i]) for i in range(4)]
    else:
        for n in range(4): gx += pk_ld(n, 15 + 24*n, 6)
    if c.opt.get('st14'): stamp(c)
    sstep(0, False, gx)
    stamp(c, "g1 loop")
    def tail(st):
        a = c.a
        hz = Hz(a)
        ops = []
        early = c.opt.get('early', 1)
        if early: seq = [(t, j) for t in range(8) for j in (0, 3, 1, 4)] + [(t, j) for t in range(8) for j in (2, 5, 6)]
        else: seq = [(t, j) for t in range(8) for j in (0, 3, 1, 4, 2, 5, 6)]
        rd = {tj: 2*i + 1 for i, tj in enumerate(seq)}
        for t in range(8):
            g0, g1_ = acc(t,0), acc(t,1); d = acc(t, 3)
            for r in range(4): ops.append((rd[t,3], o_mul(g0+r, g0+r, acc(t,3)+r)))
            ops += [(rd[t,3], o_cvt(d, g0)), (rd[t,3], o_cvt(d+1, g0+2))]
            for r in range(4): ops.append((rd[t,4], o_mul(g1_+r, g1_+r, acc(t,4)+r)))
            ops += [(rd[t,4], o_cvt(d+2, g1_)), (rd[t,4], o_cvt(d+3, g1_+2))]
            ops.append((rd[t,4], o_st(f"buffer_store_dwordx4 v[{d}:{d+3}], v24, {SRD_WS}, s59 offen offset:{(t&1)*1024} {st}", d)))
            if t & 1: ops.append((rd[t,4], o_s("s_add_u32 s59, s59, 229376")))
            g2 = acc(t, 2)
            for r in range(4): ops.append((rd[t,5], o_mul(g2+r, g2+r, acc(t,5)+r)))
            b = acc(t & ~1, 5) + 2*(t & 1)
            ops += [(rd[t,5], o_cvt(b, g2)), (rd[t,5], o_cvt(b+1, g2+2))]
            if t & 1:
                b = acc(t & ~1, 5); o0, o1 = acc(t-1, 6), acc(t, 6)
                ops += [(rd[t,5], o_sw(32, b, b+2)), (rd[t,5], o_sw(32, b+1, b+3))]
                ops.append((rd[t,5], o_st(f"buffer_store_dwordx4 v[{b}:{b+3}], v25, {SRD_WS}, s53 offen {st}", b)))
                for r in range(4): ops.append((rd[t,6], o_sw(32, o0+r, o1+r)))
                for r in range(4): ops.append((rd[t,6], o_mul(o0+r, o0+r, o1+r)))
                od = acc(t & ~3, 2) + ((t >> 1) & 1)*2
                ops += [(rd[t,6], o_cvt(od, o0)), (rd[t,6], o_cvt(od+1, o0+2))]
                if t & 3 == 3:
                    od = acc(t & ~3, 2)
                    ops += [(rd[t,6], o_sw(16, od, od+2)), (rd[t,6], o_sw(16, od+1, od+3))]
                    ops.append((rd[t,6], o_st(f"buffer_store_dwordx4 v[{od}:{od+3}], v26, {SRD_WS}, s52 offen {st}", od)))
                    ops.append((rd[t,6], o_s("s_add_u32 s52, s52, 458752")))
                ops.append((rd[t,5], o_s("s_add_u32 s53, s53, 229376")))
        ops.sort(key=lambda o: o[0])
        hold = c.opt.get('hold', 5)
        hz.raw("s_waitcnt lgkmcnt(2)")
        n = 0; held = []
        for i, (t, j) in enumerate(seq):
            if i == 6: hz.raw("s_waitcnt lgkmcnt(0)")
            for k in ((0, 1) if i % 2 == 0 else (1, 0)):
                cc = acc(t, j); w = g1_wf(2 + k, j); x = g1_xf(k, t)
                hz.mfma(f"{MF} v[{cc}:{cc+3}], a[{w}:{w+3}], a[{x}:{x+3}], v[{cc}:{cc+3}]", cc)
                late = lambda o: hold and o[1][0] in ('store', 'salu') and o[0] >= 64 + 6*(8-hold)
                fill(hz, ops, n, 2, late)
                while ops and ops[0][0] <= n and late(ops[0]): held.append(ops.pop(0))
                n += 1
        ops = held + ops
        stamp(c, "g1 mm")
        if early:
            left = sum(o[1][0] == 'store' for o in ops)
            signal(c, vm=6 - left); hz.n += 6
            stamp(c, "sigH")
            for _, o in ops: hz.op(o)
            stamp(c)
        else:
            for _, o in ops: hz.op(o)
            stamp(c)
            signal(c)
            stamp(c, "sigH")

    dual(c, 0, tail)
```

```python
from fcore import *
from ffront import vQ, repack, repack_store, TOUCH2
from fg1k import g1_dw, g1_rw
XF, YF, RW, LO, TT = 32, 64, 96, 128, 160
def ln_stats(c, off, vm=''):
    a = c.a
    a(f"v_pk_add_f32 v[28:29], v[{XF}:{XF+1}], v[{XF+2}:{XF+3}]")
    a(f"v_pk_mul_f32 v[6:7], v[{XF}:{XF+1}], v[{XF}:{XF+1}]")
    a(f"v_pk_fma_f32 v[6:7], v[{XF+2}:{XF+3}], v[{XF+2}:{XF+3}], v[6:7]")
    for i in range(2, 16):
        a(f"v_pk_add_f32 v[28:29], v[28:29], v[{XF+2*i}:{XF+2*i+1}]")
        a(f"v_pk_fma_f32 v[6:7], v[{XF+2*i}:{XF+2*i+1}], v[{XF+2*i}:{XF+2*i+1}], v[6:7]")
    a(f"""
    v_add_f32 v28, v28, v29
    v_add_f32 v29, v6, v7
    s_nop 1
    v_permlane32_swap_b32 v28, v29
    v_add_f32 v28, v28, v29
    v_mov_b32 v29, v28
    s_nop 1
    v_permlane16_swap_b32 v28, v29
    v_add_f32 v28, v28, v29
    s_nop 1
    v_add_f32_dpp v28, v28, v28 row_ror:8 row_mask:0xf bank_mask:0xf
    ds_write_b32 v26, v28 offset:{off}
    s_waitcnt {vm}lgkmcnt(0)
    s_barrier
    ds_read_b128 v[4:7], v27 offset:{off}
    ds_read_b128 v[{LO+16}:{LO+19}], v27 offset:{off+128}
    s_waitcnt lgkmcnt(1)
    v_pk_add_f32 v[4:5], v[4:5], v[6:7]
    v_add_f32 v29, v4, v5
    v_mul_f32 v29, 0x3a800000, v29
    s_waitcnt lgkmcnt(0)
    v_pk_add_f32 v[6:7], v[{LO+16}:{LO+17}], v[{LO+18}:{LO+19}]
    v_add_f32 v28, v6, v7
    v_mul_f32 v28, 0x3a800000, v28
    v_fma_f32 v28, -v29, v29, v28
    v_max_f32 v28, 0, v28
    """)
    if c.opt.get('mimic', 0):
        a(f"""
        v_cvt_pk_bf16_f32 v29, v29, v28
        v_and_b32 v28, s{sMASK}, v29
        v_lshlrev_b32 v29, 16, v29
        v_add_f32 v28, 0x3727c5ac, v28
        v_cvt_pk_bf16_f32 v28, v28, v28
        v_and_b32 v28, s{sMASK}, v28
        v_sqrt_f32 v28, v28
        s_nop 0
        v_cvt_pk_bf16_f32 v28, v28, v28
        v_and_b32 v28, s{sMASK}, v28
        v_rcp_f32 v28, v28
        """)
    else:
        a("v_add_f32 v28, 0x3727c5ac, v28\nv_rsq_f32 v28, v28")
    a("s_nop 0\nv_mul_f32 v29, -v29, v28")
def norm(d, x): return f"v_pk_fma_f32 v[{d}:{d+1}], v[{x}:{x+1}], v[28:29], v[28:29] op_sel:[0,0,1] op_sel_hi:[1,0,1]"
def w_stage(a, slot):
    o = g1_dw(slot); a(o[0]); a("s_nop 0")
    for l in o[1:]: a(l)

def ln_phase(c):
    a = c.a
    l1 = c.lab("ln1"); st = c.lab("lnst"); cm = c.lab("lncm")
    a(f"""
    v_and_b32 v4, 7, v{vLANE}              ; tok
    v_lshrrev_b32 v5, 3, v{vLANE}          ; c
    v_lshlrev_b32 v6, 8, v5
    v_lshl_add_u32 v24, v4, 4, v6
    v_lshl_add_u32 v1, v4, 3, v6
    v_and_b32 v6, 0x3ff, v24
    v_lshrrev_b32 v7, 2, v5
    v_lshl_add_u32 v25, v7, 14, v6
    v_lshlrev_b32 v27, 4, v4
    v_add_u32 v27, {LDS_RED}, v27
    s_lshl_b32 s33, s{sW}, 2
    v_lshl_add_u32 v26, v7, 7, v27
    v_add_u32 v26, s33, v26
    s_lshr_b32 s33, s{sG8}, 1
    s_lshl_b32 s33, s33, 15
    s_lshl_b32 s34, s{sW}, 13
    s_add_u32 s33, s33, s34
    s_and_b32 s34, s{sG8}, 1
    s_lshl_b32 s35, s34, 6
    s_add_u32 s33, s33, s35                ; Y offset
    s_add_u32 s36, s33, s35                ; B16 offset
    s_add_u32 s33, s33, {WS_Y}
    s_lshl_b32 s37, s{sTB}, 19
    s_lshl_b32 s35, s{sW}, 17
    s_add_u32 s37, s37, s35
    s_bfe_u32 s35, s{sG8}, 0x40001
    s_lshl_b32 s35, s35, 10
    s_add_u32 s37, s37, s35
    s_lshl_b32 s35, s34, 7
    s_add_u32 s37, s37, s35
    s_add_u32 s37, s37, s{sLB}
    s_cmp_lg_u32 s{sLAY}, 0
    s_cbranch_scc1 {l1}
    """)
    n1 = 0 if c.opt.get('pk_g1', 1) else c.opt.get('pk_n1', 3)
    unpack(a, XF, vQ, 16)
    signal(c, sfl=85 if c.opt.get('yflag', 2) < 2 else sFL); stamp(c, "sigY")
    eo = c.opt.get('e_ord', 0)
    if eo: a(f"s_cmp_lt_u32 s{sTB}, 4\ns_cbranch_scc1 {st}")
    def side1():
        for slot in range(c.opt.get('w_sy', 4)): w_stage(a, slot)
        if c.opt.get('sty'): stamp(c)
        repack(c, n1)
        if c.opt.get('sty'): stamp(c)
    st2 = c.lab("lns2")
    if c.opt.get('ilv', 1):
        amain = c.a
        c.a = a = Asm(); ln_stats(c, 0)
        for j in range(16): a(norm(TT+2*j, XF+2*j))
        V = [l.strip() for l in a.lines]
        c.a = a = amain
        if c.opt.get('ilv', 1) == 2: repack(c, n1); a("s_waitcnt lgkmcnt(0)")
        Dm = []
        for slot in range(c.opt.get('w_sy', 4)):
            o = g1_dw(slot); Dm += [[o[0], "s_nop 0", o[1]], [o[2]], [o[3]], [o[4], o[5]]]
        lead = c.opt.get('ilv_lead', 4); step = len(V) // max(len(Dm) - lead, 1)
        for d in Dm[:lead]:
            for l in d: a(l)
        Dm = Dm[lead:]
        for k, l in enumerate(V):
            a(l)
            if k % step == step - 1 and Dm:
                for l in Dm.pop(0): a(l)
        assert not Dm
        if c.opt.get('ilv', 1) == 1: repack(c, n1); a("s_waitcnt lgkmcnt(0)")
        a(f"s_branch {st2}")
        if c.opt.get('iw', 2048): a(".p2align 12\niw_base:")
        a(f"{l1}:")
    else:
        side1()
        a(f"s_branch {st}")
        if c.opt.get('iw', 2048): a(".p2align 12\niw_base:")
        a(f"{l1}:")
    for j in range(16): a(f"v_accvgpr_read_b32 v{LO+j}, a{aX+j}")
    unpack(a, XF, LO, 16)
    w0 = eo
    a(f"""
    s_add_u32 s38, s36, {LY.P}
    s_add_u32 s50, s36, {LY.P + 4*MB}
    s_mov_b32 s34, 0x3f80
    s_mov_b32 s35, 0x3f800000
    """)
    signal(c); stamp(c, "sigP")
    a(f"s_sub_u32 s41, s41, {128*7168}")
    w_stage(a, 0); w_stage(a, 1)
    a(f"s_add_u32 s41, s41, {64*7168}")
    def ldp(p):
        for i in range(4):
            r = RW + 16*p + 4*i
            a(f"buffer_load_dwordx4 v[{r}:{r+3}], v24, {SRD_WS}, s{[38, 50][p]} offen offset:{(i&1)*2048} {c.opt.get('ld_aux', 'sc1')}")
            if i == 1: a(f"s_add_u32 s{[38, 50][p]}, s{[38, 50][p]}, 4096")
    def addp(p, k, D=()):
        D = list(D)
        for i in range(4):
            a(f"s_waitcnt vmcnt({k-i})")
            for j in range(4):
                r = RW + 16*p + 4*i + j; x = XF + 8*i + 2*j
                a(f"v_dot2_f32_bf16 v{x}, v{r}, s34, v{x}\nv_dot2_f32_bf16 v{x+1}, v{r}, s35, v{x+1}")
    def gety():
        for j in range(16): a(f"v_accvgpr_read_b32 v{LO+j}, a{aY+j}")
        unpack(a, YF, LO, 16)
    gety()
    wait(c, vFL, M_TH)
    stamp(c, "waitP")
    ldp(0); ldp(1); addp(0, 7); addp(1, 3)
    a(f"{st}:")
    ln_stats(c, 0)
    for j in range(16): a(norm(TT+2*j, XF+2*j))
    a(f"s_cmp_lg_u32 s{sLAY}, 0\ns_cbranch_scc1 {cm}\n{st2}:")
    ok = c.lab("boot")
    yf = c.opt.get('yflag', 2)
    if c.opt.get('sty'): stamp(c); a("s_waitcnt vmcnt(0)"); stamp(c)
    boot = lambda ok: f"v_cmp_eq_u32 vcc, 0, v248\ns_cbranch_vccz {ok}\n" + poll(c, "s[88:91]", 249, "0", "", 1) + f"{ok}:"
    if yf == 2:
        y1 = c.lab("lny"); y2 = c.lab("lnz")
        a(f"s_cmp_lt_u32 s{sTB}, {4 if c.opt.get('y_st', 2) < 6 else 0}\ns_cbranch_scc1 {y1}\ns_lshl_b32 s51, s{sW}, 13\nv_lshl_add_u32 v250, v{vLANE}, 7, s51")
        a(boot(ok)); a(poll(c, SRD_WS, 250, f"s{sFB}", "", 3))
        a(f"s_branch {y2}\n{y1}:\ns_cmp_lg_u32 s{sW}, 0\ns_cbranch_scc1 {y2}")
        a(boot(c.lab("boot"))); a(poll(c, SRD_WS, 250, f"s{sFB}", "", 2, x4=True))
        a(f"{y2}:\ns_barrier")
    else:
        a(f"s_lshr_b32 s51, s{sTB}, 2\ns_add_u32 s51, s51, 2")
        wait(c, 250, "", every=not yf, x4=yf, thr="s51", pre=boot(ok))
    stamp(c, "waitY")
    for i in range(4):
        for k in range(2):
            r = RW + 4*i + 2*k
            a(f"buffer_load_dwordx2 v[{r}:{r+1}], v1, {SRD_WS}, s33 offen offset:{(i&1)*2048 + k*128} sc1")
        if i == 1: a("s_add_u32 s33, s33, 4096")
    if eo == 1:
        e1 = c.lab("lne"); e2 = c.lab("lnf")
        a(f"s_cmp_lt_u32 s{sTB}, 4\ns_cbranch_scc1 {e1}")
    for i in range(4):
        a(f"s_waitcnt vmcnt({6-2*i})")
        unpack(a, YF+8*i, RW+4*i, 4)
    if eo == 1:
        a(f"s_branch {cm}\n{e1}:\ns_barrier")
        side1()
        a(f"s_waitcnt vmcnt({4*c.opt.get('w_sy', 4) + n1}) lgkmcnt(0)")
        unpack(a, YF, RW, 16)
    if eo == 2:
        a(f"s_cmp_ge_u32 s{sTB}, 4\ns_cbranch_scc1 {cm}")
        side1()
        a("s_waitcnt lgkmcnt(0)")
    a(f"{cm}:")
    stamp(c, "ln in")
    for j in range(16):
        x = XF + 2*j
        a(f"v_pk_fma_f32 v[{x}:{x+1}], v[{TT+2*j}:{TT+2*j+1}], v[{YF+2*j}:{YF+2*j+1}], v[{x}:{x+1}]")
    if n1 < 7 and not c.opt.get('pk_g1', 1):
        s3 = c.lab("lnt")
        a(f"s_cmp_lg_u32 s{sLAY}, 0\ns_cbranch_scc1 {s3}")
        for k in range(n1, c.opt.get('pk_n2', 7)): a(repack_store(k))
        a(f"{s3}:")
    ln_stats(c, 256)
    for j in range(16):
        a(norm(TT+2*j, XF+2*j))
        a(f"v_cvt_pk_bf16_f32 v{YF+j}, v{TT+2*j}, v{TT+2*j+1}")
        if j % 4 == 3:
            a(f"buffer_store_dwordx4 v[{YF+j-3}:{YF+j}], v25, {SRD_WS}, s37 offen sc1\ns_add_u32 s37, s37, 32768")
    a(f"""
    s_lshl_b32 s35, s{sG8}, 7
    s_add_u32 s35, s35, {LY.XR}
    v_lshlrev_b32 v4, 3, v{vLANE}
    s_mov_b64 exec, 0xffff
    buffer_store_dwordx2 v[28:29], v4, {SRD_WS}, s35 offen sc1
    s_mov_b64 exec, -1
    """)
    stamp(c, "xn out")
    if c.opt.get('w2_sx', 1):
        if w0: a("s_waitcnt vmcnt(5)\ns_barrier")
        for l in g1_rw(0) + g1_rw(1): a(l)
        a("s_waitcnt lgkmcnt(0)")
    signal(c)
    stamp(c, "sigX")
    dn = c.lab("lnd")
    a(f"s_cmp_lg_u32 s{sLAY}, 0\ns_cbranch_scc1 {dn}")
    for i in range(5 - len(c.opt.get('t_pos', [0]*3)) - c.opt.get('t_s0', 2)): a(TOUCH2)
    for slot in range(c.opt.get('w_sy', 4), 4): w_stage(a, slot)
    for j in range(16): a(f"v_cvt_pk_bf16_f32 v{LO+j}, v{XF+2*j}, v{XF+2*j+1}")
    for j in range(16): a(f"v_accvgpr_write_b32 a{aX+j}, v{LO+j}\nv_accvgpr_write_b32 a{aY+j}, v{RW+j}")
    a(f"{dn}:")
```

```python
from fcore import *
import fg2p
ACC1 = 32
def g1_acc(t, j): return ACC1 + (t*7 + j)*4
def g1_xf(k, t): return 112 + (t*2 + k)*4
def g1_wf(slot, j): return slot*28 + j*4
aPK = 176; LDS_PK = LDS_RED + 1024
g1_vXA = [8, 9]; g1_vWA = [[10,11,12,13],[14,15,16,17]]; g1_vDW = [19,20,21,22]; g1_vPF = [18, 23]
def g1_dx(slot):
    return [f"s_add_u32 m0, s42, {slot*STAGE}"] + [f"buffer_load_dwordx4 v{vL16}, {SRD_WS}, s40 offen offset:{1024*i} {LY.sc} lds" for i in range(4)] + ["s_add_u32 s40, s40, 16384"]
def g1_dw(slot):
    return [f"s_add_u32 m0, s43, {slot*STAGE}"] + [f"buffer_load_dwordx4 v{g1_vDW[i]}, {SRD_W}, s41 offen offset:{1024*i} lds" for i in range(4)] + [f"s_add_u32 s41, s41, {32*7168}"]
def g1_rw(slot):
    h = slot >> 1; so = (slot & 1)*STAGE; W = []
    for j in range(7):
        va = g1_vWA[h][j % 3] if j < 6 else g1_vWA[h][3]
        off = so + (UOFF if 3 <= j < 6 else 0); r = g1_wf(slot, j)
        W.append(f"ds_read_b64_tr_b16 a[{r}:{r+1}], v{va} offset:{off}")
        W.append(f"ds_read_b64_tr_b16 a[{r+2}:{r+3}], v{va} offset:{off+1024}")
    return W
def g1_rx(h, t):
    return [f"ds_read_b128 a[{g1_xf(k,t)}:{g1_xf(k,t)+3}], v{g1_vXA[h]} offset:{k*STAGE+t*1024}" for k in range(2)]
def w_stage(a, slot):
    o = g1_dw(slot); a(o[0]); a("s_nop 0")
    for l in o[1:]: a(l)

def g1_waddr(a):
    vDW = g1_vDW
    a(f"""
    s_and_b32 s44, s{sW}, 1
    s_lshr_b32 s45, s{sW}, 1
    s_and_b32 s46, s{sM}, 1
    s_mul_i32 s41, s44, {16*7168}
    s_mul_i32 s33, s{sM}, 224
    s_add_u32 s41, s41, s33
    s_lshl_b32 s33, s46, 5
    s_sub_u32 s41, s41, s33
    s_mov_b32 s92, s41
    s_mul_i32 s43, s45, {UOFF}
    s_lshl_b32 s33, s44, 12
    s_add_u32 s43, s43, s33
    s_add_u32 s43, s43, 16384
    v_lshrrev_b32 v1, 4, v{vLANE}          ; q
    v_bfe_u32 v4, v{vLANE}, 1, 3
    v_xor_b32 v4, v4, v1
    v_and_b32 v5, 1, v{vLANE}
    v_lshlrev_b32 v5, 4, v5
    v_mul_u32_u24 v6, 7168, v1
    v_add_u32 v6, v6, v5
    v_lshl_add_u32 v{vDW[0]}, v4, 5, v6
    v_xor_b32 v4, 4, v4
    v_lshl_add_u32 v{vDW[2]}, v4, 5, v6
    v_add_u32 v{vDW[1]}, {4*7168-1024}, v{vDW[0]}
    v_add_u32 v{vDW[3]}, {3*(4*7168-1024)}, v{vDW[2]}
    v_add_u32 v{vDW[2]}, {2*(4*7168-1024)}, v{vDW[2]}
    """)

def g1_pre(c):
    a = c.a; vDW = g1_vDW; vWA = g1_vWA; vXA = g1_vXA
    a(f"v_lshrrev_b32 v1, 4, v{vLANE}")
    a(f"""
    s_lshl_b32 s42, s{sW}, 12
    s_lshl_b32 s40, s{sTB}, 19
    s_add_u32 s40, s40, s42
    s_add_u32 s40, s40, s{sLB}
    s_lshl_b32 s33, s45, 13
    v_add_u32 v{vXA[0]}, s33, v{vL16}
    v_add_u32 v{vXA[1]}, {2*STAGE}, v{vXA[0]}
    v_bfe_u32 v4, v{vLANE}, 2, 2           ; r4
    v_and_b32 v5, 1, v1
    v_lshl_or_b32 v5, v5, 2, v4            ; sigma
    v_lshl_add_u32 v6, v1, 3, v4
    v_lshlrev_b32 v6, 8, v6
    v_add_u32 v6, 16384, v6
    v_and_b32 v7, 3, v{vLANE}
    v_lshl_add_u32 v1, v7, 3, v6
    s_lshl_b32 s33, s44, 2
    s_add_u32 s33, s33, s46
    """)
    for p in range(3):
        a(f"s_add_u32 s34, s33, {p}\nv_xor_b32 v4, s34, v5\nv_lshl_add_u32 v{vWA[0][p]}, v4, 5, v1")
    a(f"""
    s_add_u32 s34, s46, 3
    v_xor_b32 v4, s34, v5
    v_lshl_add_u32 v6, v4, 5, v6
    v_and_b32 v4, 1, v7
    v_lshl_add_u32 v6, v4, 3, v6
    v_lshrrev_b32 v4, 1, v7
    v_mul_u32_u24 v4, {UOFF}, v4
    s_lshl_b32 s34, s44, 4
    v_add3_u32 v{vWA[0][3]}, v6, v4, s34
    """)
    for p in range(4): a(f"v_add_u32 v{vWA[1][p]}, {2*STAGE}, v{vWA[0][p]}")
    d = c.opt.get('pf_dist', 2)
    who = c.opt.get('pf_who', 1)
    a(f"s_sub_u32 s34, s{sLAY}, 1")
    if who:
        a(f"""
        s_add_u32 s35, s{sM}, 1
        s_bfe_u32 s35, s35, 0x10001
        s_sub_u32 s35, s35, 1
        s_and_b32 s34, s34, s35
        s_bfe_u32 s36, s2, 0x20003
        s_bfe_u32 s35, s2, 0x20006
        s_lshl_b32 s35, s35, 2
        s_add_u32 s36, s36, s35
        """)
    else: a("s_lshr_b32 s36, s2, 3")
    a(f"""
    s_lshl_b32 s33, s36, 1
    s_add_u32 s33, s33, s44
    s_lshl_b32 s33, s33, 1
    s_and_b32 s35, s2, 1
    s_add_u32 s33, s33, s35
    s_mul_i32 s33, s33, {7168 << who}
    s_lshr_b32 s35, s{sM}, 3
    s_mul_i32 s35, s35, 1792
    s_add_u32 s33, s33, s35
    s_add_u32 s33, s33, {320*7168}
    v_lshlrev_b32 v4, 7, v{vLANE}
    v_cmp_lt_u32 vcc, 13, v{vLANE}
    v_add_u32 v5, s33, v4
    v_add_u32 v6, {7168-14*128}, v5
    v_cndmask_b32 v5, v5, v6, vcc
    s_and_b32 s33, s34, {14 << who}
    v_cmp_gt_u32 vcc, s33, v{vLANE}
    v_bfrev_b32 v6, 1
    s_nop 0
    v_cndmask_b32 v{g1_vPF[0]}, v6, v5, vcc
    """)

def g1_main(c):
    a = c.a; acc = g1_acc
    w2 = c.opt.get('w2_sx', 1)
    if w2: w_stage(a, 0); w_stage(a, 1)
    else:
        for l in g1_rw(0) + g1_rw(1): a(l)
    a(f"""
    s_lshl_b32 s59, s{sTB}, 3
    s_lshl_b32 s33, s45, 2
    s_add_u32 s59, s59, s33
    s_mul_i32 s59, s59, 229376
    s_lshr_b32 s33, s{sM}, 4
    s_mul_i32 s33, s33, {56*2048}
    s_add_u32 s59, s59, s33
    s_add_u32 s59, s59, s{sLB}
    s_add_u32 s59, s59, {L_H}
    s_lshl_b32 s34, s46, 1
    s_add_u32 s34, s34, s44                ; wv
    s_mov_b32 s53, s59
    s_mov_b32 s52, s59
    s_and_b32 s36, s{sM}, 15
    s_lshl_b32 s33, s36, 1
    s_add_u32 s33, s33, s44
    s_lshl_b32 s33, s33, 11
    v_add_u32 v24, s33, v{vL16}
    v_and_b32 v4, 15, v{vLANE}
    v_lshlrev_b32 v4, 4, v4
    v_lshrrev_b32 v5, 5, v{vLANE}
    v_lshl_add_u32 v4, v5, 10, v4
    v_bfe_u32 v5, v{vLANE}, 4, 1
    s_add_u32 s33, s36, 32
    s_lshl_b32 s33, s33, 11
    s_lshl_b32 s35, s44, 9
    s_add_u32 s33, s33, s35
    v_lshl_add_u32 v25, v5, 8, v4
    v_add_u32 v25, s33, v25
    s_lshl_b32 s33, s34, 8
    s_lshr_b32 s36, s36, 1
    s_lshl_b32 s36, s36, 11
    s_add_u32 s33, s33, s36
    s_add_u32 s33, s33, {48*2048}
    v_mul_u32_u24 v5, 229376, v5
    v_add3_u32 v26, v4, v5, s33
    """)
    a(f"""
    s_lshr_b32 s33, s{sM}, 4
    s_lshl_b32 s33, s33, 2
    s_add_u32 s33, s33, s{sW}
    s_lshl_b32 s34, s{sM}, 1
    s_add_u32 s34, s34, 10
    v_and_b32 v5, 7, v{vLANE}
    v_add_u32 v5, s34, v5
    v_and_b32 v5, 15, v5
    v_bfe_u32 v7, v{vLANE}, 3, 1
    v_lshl_add_u32 v5, v7, 4, v5
    v_mov_b32 v7, s33
    v_cmp_gt_u32 vcc, 16, v{vLANE}
    v_lshlrev_b32 v5, 3, v5
    s_nop 0
    v_cndmask_b32 v7, 4, v7, vcc
    v_add_lshl_u32 v23, v5, v7, 7
    s_mov_b32 s47, 6
    """)
    ct = c.opt.get('ct', 4)
    if ct: a(code_touch(c, None, 28))
    l2n = c.opt.get('l2n', 0); l2w = c.opt.get('l2w', 32)
    if l2n:
        a(f"""
        s_and_b32 s33, s{sM}, 7
        s_lshl_b32 s33, s33, 1
        s_lshr_b32 s34, s{sM}, 4
        s_add_u32 s33, s33, s34
        s_mul_i32 s33, s33, {56*8192}
        s_and_b32 s34, s{sTB}, 3
        s_lshl_b32 s34, s34, 2
        s_add_u32 s34, s34, s{sW}
        s_mul_i32 s34, s34, {l2w*128}
        s_add_u32 s33, s33, s34
        s_add_u32 s48, s33, {fg2p.WS_WDP + 65536 - (6-l2n)*l2w*2048}
        v_min_u32 v1, {l2w-1}, v{vLANE}
        v_lshlrev_b32 v1, 7, v1
        s_mov_b64 s[24:25], s[12:13]
        """)
    fast = c.opt.get('fast', 1) and w2
    if fast:
        a(f"""
        s_lshl_b32 s33, s45, 13
        s_mul_i32 s34, s44, {STAGE}
        s_add_u32 s34, s34, s33
        s_lshl_b32 s35, s44, 14
        s_add_u32 s33, s33, s35
        s_sub_u32 s35, s40, s42
        s_add_u32 s33, s33, s35
        s_add_u32 s35, s33, 4096
        s_add_u32 s40, s40, 32768
        """)
    co = c.opt.get('co1', 0)
    if co:
        a(f"""
        s_and_b32 s36, s{sM}, 7
        s_lshl_b32 s36, s36, 2
        s_add_u32 s36, s36, s{sW}
        s_mul_i32 s36, s36, {co*128}
        s_sub_u32 s37, s40, s42
        s_add_u32 s36, s36, s37
        s_sub_u32 s36, s36, 32768
        v_min_u32 v1, {co-1}, v{vLANE}
        v_lshlrev_b32 v1, 7, v1
        """)
    if c.opt.get('pk_g1', 1): a(f"v_lshrrev_b32 v1, 5, v{vLANE}\nv_bfe_u32 v4, v{vLANE}, 3, 2\nv_and_b32 v5, 0x70, v{vL16}\nv_lshl_add_u32 v5, v4, 11, v5\nv_mov_b32 v6, v219\ns_lshl_b32 s49, s{sLAY}, 4\ns_add_u32 s49, s49, 1")
    if c.opt.get('iw2', 1): hop2(c)
    wait(c, vFL, M_ALL)
    stamp(c, "waitX")
    if fast:
        for h in range(2):
            a(f"s_add_u32 m0, s34, {4096*h}\ns_nop 0")
            for i in range(4):
                a(f"buffer_load_dwordx4 v{vL16}, {SRD_WS}, s{33+2*h} offen offset:{1024*i} {LY.sc} lds")
                if co and (h, i) == (0, 1): a(f"s_barrier\nbuffer_load_dword v27, v1, {SRD_WS}, s36 offen sc1")
        a(g1_dx(2)[0])
        a(f"s_waitcnt vmcnt({7 if co else 6})\ns_barrier")
        for t in range(2):
            for l in g1_rx(0, t): a(l)
    else:
        for slot in range(4):
            o = g1_dx(slot); a(o[0]); a("s_nop 0")
            for l in o[1:]: a(l)
        a("s_waitcnt vmcnt(8)\ns_barrier")
        for t in range(8):
            for l in g1_rx(0, t): a(l)
    stamp(c, "g1 go")
    kin = c.opt.get('g1_kin', 1)
    def mseq(jo):
        out = []
        for t in range(8):
            js = jo if t % 2 == 0 else jo[::-1]
            if kin: out += [(t, j, k) for i, j in enumerate(js) for k in ((0, 1) if i % 2 == 0 or kin == 2 else (1, 0))]
            else: out += [(t, j, 0) for j in js] + [(t, j, 1) for j in js[::-1]]
        return out
    sch = c.opt.get('g1_sch', 0)
    def sstep(s, loop, gx=(), first=False, sh=0, auto=None, more=(0, 0)):
        a = c.a
        gaps = [[] for _ in range(112)]
        BA, BB = c.opt.get('ba', 7), 63
        if first and fast:
            for h in range(2):
                o = g1_dx(2 + h)
                if h or c.ts: gaps[max(16*h-1, 0)].append(o[0])
                for i in range(4): gaps[16*h + 4*i + 1].append(o[1+i])
                gaps[16*h+14].append(o[5])
            gaps[12].append("s_waitcnt vmcnt(3) lgkmcnt(0)"); gaps[12].append("s_barrier")
            for t in range(2, 8):
                r = g1_rx(0, t); gaps[9+2*t].append(r[0]); gaps[10+2*t].append(r[1])
            gaps[27].append("s_waitcnt lgkmcnt(10)")
            gaps[33].append("s_waitcnt lgkmcnt(0)"); gaps[33].append("s_barrier")
            for k, l in enumerate(g1_rw(2) + g1_rw(3)): gaps[[2,3,4,6,7,8][k] if k < 6 else 28 + k].append(l)
        else:
            gaps[BA-1].append(f"s_waitcnt vmcnt({17 + more[0] if loop else 0}) lgkmcnt(0)"); gaps[BA].append("s_barrier")
            for k, l in enumerate(g1_rw(2*(s^1)) + g1_rw(2*(s^1)+1)): gaps[BA + 1 + (-sh) % 3 + ((k*3)//2 if sch == 0 else k)].append(l)
        for t in range(8):
            g = max(BB + 2 + 3*t if sch == 0 else BB + 1 + 2*t, 14*t + 13)
            r = g1_rx(s ^ 1, t)
            if t == 7: gaps[110].append(r[c.lastk ^ 1]); gaps[111].append(r[c.lastk])
            else: gaps[g].append(r[0]); gaps[g+1].append(r[1])
        if loop:
            gaps[BB-1].append(f"s_waitcnt vmcnt({(7 if fast else 8 if w2 else 13) if first else 16 + more[1] if s else 17 + more[1]}) lgkmcnt(0)"); gaps[BB].append("s_barrier")
            px = [[16,22,28,34,40,46,52,58], [37,40,43,46,49,52,55,58], [37,40,43,46,49,52,55,58]][sch]
            pw = [c.opt.get('pw', [67,72,77,82,87,92,97,102]), [75,78,81,86,89,92,95,100], [75,79,86,90,94,100,104,108]][sch]
            px = [p - sh for p in px]; pw = [p + sh for p in pw]
            if auto and c.opt.get('pk_plan', 3) == 3:
                x0, xd, wd = c.opt.get('pk_sp', (30, 4, 4))
                px = [x0 + xd*i for i in range(8)]; pw = [66 + wd*i for i in range(8)]
            if first and fast: px = [35, 39, 43, 47, 51, 55, 59, 64]; pw = [69, 74, 79, 85, 90, 95, 100, 105]
            if first and not w2:
                px = [44, 48, 52, 56, 60, 66, 70, 74]; pw = [79, 83, 87, 91, 95, 99, 103, 107]
                for h in range(2):
                    o = g1_dw(h); p = [10 + 16*h + 4*i for i in range(4)]
                    gaps[p[0]-1].append(o[0])
                    for i in range(4): gaps[p[i]].append(o[1+i])
                    gaps[p[3]+1].append(o[5])
            for h in range(2):
                for o, p in ((g1_dx(2*s + h), px[4*h:]), (g1_dw(2*(s^1) + h), pw[4*h:])):
                    gaps[p[0]-1].append(o[0])
                    for i in range(4): gaps[p[i]].append(o[1+i])
                    gaps[p[3]+1].append(o[5])
        for g, l in gx: gaps[g].append(l)
        if auto:
            hist, nn = auto
            for g in range(112):
                for i, l in enumerate(gaps[g]):
                    if l.startswith("s_waitcnt vmcnt"):
                        tag = ('w', nn+1) if g < 32 else ('x', nn+1)
                        last = max([k for k, e in enumerate(hist) if e == tag or (g >= 32 and e == ('p', nn-1))], default=-1)
                        gaps[g][i] = f"s_waitcnt vmcnt({len(hist) - 1 - last}) lgkmcnt(0)"
                    elif l.startswith("buffer_"): hist.append(('x', nn+2) if "s40 offen" in l else ('w', nn+3) if "s41 offen" in l else ('p', nn) if SRD_WD in l or (nn == 5 and "store" in l and c.opt.get('pk_plan', 3) == 3) else ('o', 0))
        ab = c.opt.get('abl', '')
        if loop and not first:
            def keep(l):
                if 'b' in ab and l == "s_barrier": return False
                if 'x' in ab and "s40 offen" in l: return False
                if 'w' in ab and "s41 offen" in l: return False
                if 'p' in ab and "v27" in l: return False
                if 'r' in ab and "ds_read" in l: return False
                if 's' in ab and l.startswith("s_add_u32"): return False
                if 'c' in ab and l.startswith("s_waitcnt"): return False
                return True
            gaps = [[l for l in g if keep(l)] for g in gaps]
        if c.opt.get('stss') and not first: stamp(c)
        a(f"s_waitcnt lgkmcnt({14 if first and not fast else 2})")
        seen = set()
        for n, (t, j, k) in enumerate(mseq(list(range(7)))):
            cc = acc(t, j); w = g1_wf(2*s + k, j); x = g1_xf(k, t)
            src = "0" if first and cc not in seen else f"v[{cc}:{cc+3}]"
            seen.add(cc)
            a(f"{MF} v[{cc}:{cc+3}], a[{w}:{w+3}], a[{x}:{x+3}], {src}")
            for l in gaps[n]: a(l)
    c.lastk = mseq(list(range(7)))[-1][2]
    pe = c.opt.get('pk_end', 0) and c.opt.get('pk_g1', 1)
    def pkend(s, x, full):
        g = (106 if s else 105) + x
        L = [(79, f"v_lshl_add_u32 v4, v1, s{64+s}, v5"), (80, f"s_and_b32 s50, s{64+s}, 0xffffff80"), (81, f"s_cmp_lg_u32 s{64+s}, 0\ns_cselect_b32 s18, {D*F*2}, 0"),
             (g-1, f"s_add_u32 m0, s72, {s*4096}"), (g, f"buffer_load_dwordx4 v4, {SRD_WD}, s50 offen {c.opt.get('pk_aux', 'nt')} lds")]
        if full: L += [(4, f"s_cmp_lg_u32 s{74+s}, 0\ns_cselect_b32 s26, s14, 0"), (g+2, f"buffer_store_dwordx4 a[{aPK}:{aPK+3}], v{vL16}, {SRD_T}, s{74+s} offen sc1"),
                       (59, f"ds_read_b64_tr_b16 a[{aPK}:{aPK+1}], v6 offset:{s*4096}"), (59, f"ds_read_b64_tr_b16 a[{aPK+2}:{aPK+3}], v6 offset:{s*4096+512}")]
        return L
    sstep(0, True, [(101, "s_mov_b64 s[24:25], s[12:13]"), (110, f"s_cmp_eq_u32 s{sLAY}, 0")] + (pkend(0, 3, False) if pe else []), first=True)
    o = c.lab("g1c"); b = c.lab("g1d")
    c.ool.append(f"{o}:\n" + poll(c, SRD_WS, 23, f"s{sFB}", "", 4 + c.opt.get('pk_g1', 1)) + f"s_branch {b}")
    chk = [(0, f"v_cmp_gt_u32 vcc, {4 + c.opt.get('pk_g1', 1)}, v7"), (5, f"s_cbranch_vccnz {o}\n{b}:")]
    shifts = c.opt.get('stag', [0, 3, 0, 3])
    cps = sorted(set(shifts)); mids = {x: c.lab("g1m") for x in cps}; done = c.lab("g1z")
    pk = c.opt.get('pk_g1', 1)
    lps = {x: c.lab("g1l") for x in cps}
    def pfx(x): return [(105 + x, f"buffer_load_dword v27, v{g1_vPF[0]}, {SRD_W}, 0 offen"), (106 + x, f"v_add_u32 v{g1_vPF[0]}, {128*7168}, v{g1_vPF[0]}")]
    def dispatch(m):
        for w in range(3):
            if shifts[w] != shifts[3]: c.a(f"s_cmp_eq_u32 s{sW}, {w}\ns_cbranch_scc1 {m[shifts[w]]}")
        c.a(f"s_branch {m[shifts[3]]}")
    if pk:
        o = c.lab("g1k"); a(f"s_cbranch_scc1 {o}")
        c.a = Asm(); midA = {x: c.lab("g1a") for x in cps}
        dispatch(midA)
        gd, gs = c.opt.get('pk_g', ({0: 10, 3: 8}, {0: 13, 3: 16}))
        def pko(s, x):
            e = 1 - s
            return [(0, f"v_lshl_add_u32 v4, v1, s{64+e}, v5"), (1, f"s_and_b32 s50, s{64+e}, 0xffffff80"), (1, f"s_add_u32 m0, s72, {s*4096}"),
                    (3, f"s_cmp_lg_u32 s{64+e}, 0\ns_cselect_b32 s18, {D*F*2}, 0"), (4, f"s_cmp_lg_u32 s{74+e}, 0\ns_cselect_b32 s26, s14, 0"),
                    (gd[x], f"buffer_load_dwordx4 v4, {SRD_WD}, s50 offen {c.opt.get('pk_aux', 'nt')} lds"),
                    (gs[x], f"buffer_store_dwordx4 a[{aPK}:{aPK+3}], v{vL16}, {SRD_T}, s{74+e} offen sc1"),
                    (93, f"ds_read_b64_tr_b16 a[{aPK}:{aPK+1}], v6 offset:{(s^1)*4096}"), (94, f"ds_read_b64_tr_b16 a[{aPK+2}:{aPK+3}], v6 offset:{(s^1)*4096+512}")]
        if pe:
            def pko(s, x): return pkend(s, x, True)
        rotn = [f"s_mov_b64 s[{r}:{r+1}], s[{r+2}:{r+3}]" for r in (64, 66, 68, 74, 76, 78, 80)] + ["s_mov_b64 s[70:71], 0"]
        for x in cps:
            lpA = c.lab("g1b")
            c.a(f"{lpA}:")
            if pe:
                sstep(0, True, list(zip([0, 0, 1, 1, 2, 2, 3, 3], rotn)) + [(5, "s_sub_u32 s47, s47, 1")] + pko(0, x), sh=x, more=(2, 2))
                c.a(f"{midA[x]}:")
                sstep(1, True, [(g-1, l) for g, l in pfx(x)] + pko(1, x) + [(110, "s_cmp_lg_u32 s47, 2")], sh=x, more=(2, 1))
            else:
                sstep(0, True, [(2, "s_sub_u32 s47, s47, 1")] + pko(0, x) + list(zip([50, 51, 53, 54, 56, 57, 60, 61], rotn)), sh=x, more=(2, 2))
                c.a(f"{midA[x]}:")
                sstep(1, True, pko(1, x) + pfx(x) + [(110, "s_cmp_lg_u32 s47, 2")], sh=x, more=(2, 2))
            c.a(f"s_cbranch_scc1 {lpA}\ns_branch {lps[x]}")
        t = c.a.text(); c.a = a
        c.ool.append(f"{o}:\n{t}")
    dispatch(mids)
    for x in cps:
        lp = lps[x]; ex = []
        if pk:
            o = c.lab("g1s"); b = c.lab("g1t")
            c.ool.append(f"{o}:\ns_add_u32 s{sPH}, s{sPH}, 1\ns_lshl_b32 s33, s{sW}, 29\nv_mov_b32 v5, s{sPH}\nv_mov_b32 v4, s33\nbuffer_store_dword v5, v4, {SRD_WS}, s{sFL} offen sc1\ns_branch {b}")
            ex = [(61, "s_cmp_eq_u32 s47, s49"), (64, f"s_cbranch_scc1 {o}\n{b}:")]
        a(f"{lp}:")
        sstep(0, True, [(2, "s_sub_u32 s47, s47, 1"), (3, "s_cmp_eq_u32 s47, 0\ns_cselect_b32 s26, s14, 0"),
                        (10, f"buffer_load_dword v7, v23, {SRD_T}, s{sFB} offen sc1")] + ex, sh=x)
        a(f"{mids[x]}:")
        sstep(1, True, [(3, "s_cmp_eq_u32 s47, 0\ns_cselect_b32 s10, 0, s10")] + pfx(x) + [(110, "s_cmp_lg_u32 s47, 0")], sh=x)
        a(f"s_cbranch_scc1 {lp}")
        if x != cps[-1]: a(f"s_branch {done}")
    a(f"{done}:")
    def pk_ld(n, g0, ds):
        o = fg2p.g2_ldw(c, n)
        return [(g0, o[0])] + [(g0+1+ds*i, o[1+i]) for i in range(4)] + [(g0+2+ds*3, o[5])]
    gx = [(0, f"s_mov_b32 s10, {D*F*2}")]
    if ct & 4: gx.append((10, "global_load_dword v27, v[28:29], off"))
    for k, l in enumerate(fg2p.g2_pre1(c)): gx.append((1 + k//2, l))
    if not l2n: gx += chk
    nd = c.opt.get('defer', 6)
    T0 = 8 - nd
    def x15(k, t): return g1_xf(k, t) if t < T0 else aPK + ((t - T0)*2 + k)*4
    if nd:
        seq = []
        for t in range(8):
            js = list(range(7)) if t < T0 else [0, 3, 1, 4]
            if t % 2: js = js[::-1]
            seq += [(t, j, k) for i, j in enumerate(js) for k in ((0, 1) if i % 2 == 0 else (1, 0))]
        N = len(seq); gaps = [[] for _ in range(N)]
        gaps[6].append("s_waitcnt vmcnt(0) lgkmcnt(0)"); gaps[7].append("s_barrier")
        sp = (N - 14) // 16
        for n in range(4): gx += pk_ld(n, 11 + 4*sp*n, sp)
        busy = {g for g, l in gx if l.startswith("buffer")}
        free = [g for g in range(8, N - 6) if g not in busy]
        R = g1_rw(2) + g1_rw(3) + [f"ds_read_b128 a[{x15(k,t)}:{x15(k,t)+3}], v{g1_vXA[1]} offset:{k*STAGE+t*1024}" for t in list(range(T0, 8)) + list(range(T0)) for k in range(2)]
        for i, l in enumerate(R): gaps[free[i*len(free)//len(R)]].append(l)
        assert T0 == 0 or free[(28 + 2*nd)*len(free)//len(R)] >= 14*T0
        for g, l in gx: gaps[g].append(l)
        a("s_waitcnt lgkmcnt(2)")
        for n, (t, j, k) in enumerate(seq):
            cc = acc(t, j); w = g1_wf(k, j); x = g1_xf(k, t)
            a(f"{MF} v[{cc}:{cc+3}], a[{w}:{w+3}], a[{x}:{x+3}], v[{cc}:{cc+3}]")
            for l in gaps[n]: a(l)
    else:
        for n in range(4): gx += pk_ld(n, 15 + 24*n, 6)
        sstep(0, False, gx)
    stamp(c, "g1 loop")
    def tail(st):
        a = c.a
        hz = Hz(a)
        ops = []
        early = c.opt.get('early', 1)
        if early: seq = [(t, j) for t in range(8) for j in (0, 3, 1, 4)] + [(t, j) for t in range(8) for j in (2, 5, 6)]
        else: seq = [(t, j) for t in range(8) for j in (0, 3, 1, 4, 2, 5, 6)]
        mseq2 = []
        for i, (t, j) in enumerate(seq):
            ks = [0, 1, 2, 3] if t >= T0 and j in (2, 5, 6) else [2, 3]
            mseq2 += [(t, j, k) for k in (ks if i % 2 == 0 else ks[::-1])]
        rd = {(t, j): n for n, (t, j, k) in enumerate(mseq2)}
        for t in range(8):
            g0, g1_ = acc(t,0), acc(t,1); d = acc(t, 3)
            for r in range(4): ops.append((rd[t,3], o_mul(g0+r, g0+r, acc(t,3)+r)))
            ops += [(rd[t,3], o_cvt(d, g0)), (rd[t,3], o_cvt(d+1, g0+2))]
            for r in range(4): ops.append((rd[t,4], o_mul(g1_+r, g1_+r, acc(t,4)+r)))
            ops += [(rd[t,4], o_cvt(d+2, g1_)), (rd[t,4], o_cvt(d+3, g1_+2))]
            ops.append((rd[t,4], o_st(f"buffer_store_dwordx4 v[{d}:{d+3}], v24, {SRD_WS}, s59 offen offset:{(t&1)*1024} {st}", d)))
            if t & 1: ops.append((rd[t,4], o_s("s_add_u32 s59, s59, 229376")))
            g2 = acc(t, 2)
            for r in range(4): ops.append((rd[t,5], o_mul(g2+r, g2+r, acc(t,5)+r)))
            b = acc(t & ~1, 5) + 2*(t & 1)
            ops += [(rd[t,5], o_cvt(b, g2)), (rd[t,5], o_cvt(b+1, g2+2))]
            if t & 1:
                b = acc(t & ~1, 5); o0, o1 = acc(t-1, 6), acc(t, 6)
                ops += [(rd[t,5], o_sw(32, b, b+2)), (rd[t,5], o_sw(32, b+1, b+3))]
                ops.append((rd[t,5], o_st(f"buffer_store_dwordx4 v[{b}:{b+3}], v25, {SRD_WS}, s53 offen {st}", b)))
                for r in range(4): ops.append((rd[t,6], o_sw(32, o0+r, o1+r)))
                for r in range(4): ops.append((rd[t,6], o_mul(o0+r, o0+r, o1+r)))
                od = acc(t & ~3, 2) + ((t >> 1) & 1)*2
                ops += [(rd[t,6], o_cvt(od, o0)), (rd[t,6], o_cvt(od+1, o0+2))]
                if t & 3 == 3:
                    od = acc(t & ~3, 2)
                    ops += [(rd[t,6], o_sw(16, od, od+2)), (rd[t,6], o_sw(16, od+1, od+3))]
                    ops.append((rd[t,6], o_st(f"buffer_store_dwordx4 v[{od}:{od+3}], v26, {SRD_WS}, s52 offen {st}", od)))
                    ops.append((rd[t,6], o_s("s_add_u32 s52, s52, 458752")))
                ops.append((rd[t,5], o_s("s_add_u32 s53, s53, 229376")))
        ops.sort(key=lambda o: o[0])
        hold = c.opt.get('hold', 5)
        hz.raw(f"s_waitcnt lgkmcnt({0 if nd else 2})")
        held = []; nsig = c.opt.get('nsig', 12); NS = len(mseq2) - nsig
        late = lambda o: hold and o[1][0] in ('store', 'salu') and o[0] > rd[7 - hold, 6] if hold < 8 else o[1][0] in ('store', 'salu') and o[0] >= 64
        for n, (t, j, k) in enumerate(mseq2):
            if n == 12 and not nd: hz.raw("s_waitcnt lgkmcnt(0)")
            cc = acc(t, j); w = g1_wf(k, j); x = x15(k & 1, t) if k >= 2 else g1_xf(k, t)
            hz.mfma(f"{MF} v[{cc}:{cc+3}], a[{w}:{w+3}], a[{x}:{x+3}], v[{cc}:{cc+3}]", cc)
            if nsig and n >= NS - 3:
                if n == NS - 3: hz.raw(f"s_add_u32 s{sPH}, s{sPH}, 1"); hz.raw(f"s_lshl_b32 s33, s{sW}, 29"); continue
                if n == NS - 2: hz.raw(f"v_mov_b32 v5, s{sPH}"); hz.raw("v_mov_b32 v4, s33"); continue
                if n == NS - 1:
                    hz.raw(f"s_waitcnt vmcnt({6 - sum(o[1][0] == 'store' for o in held + ops)})"); hz.raw("s_barrier"); continue
                if n == NS:
                    hz.raw(f"buffer_store_dword v5, v4, {SRD_WS}, s{sFL} offen sc1"); continue
                if held and (n - NS) % c.opt.get('rel', 5) == 2:
                    hz.op(held.pop(0)[1])
                    if held and held[0][1][0] == 'salu': hz.op(held.pop(0)[1])
                    continue
            fill(hz, ops, n, 2, late)
            while ops and ops[0][0] <= n and late(ops[0]): held.append(ops.pop(0))
        ops = held + ops
        stamp(c, "g1 mm")
        if early:
            left = sum(o[1][0] == 'store' for o in ops)
            if not nsig: signal(c, vm=6 - left); hz.n += 6
            stamp(c, "sigH")
            for _, o in ops: hz.op(o)
            stamp(c)
        else:
            for _, o in ops: hz.op(o)
            stamp(c)
            signal(c)
            stamp(c, "sigH")

    dual(c, 0, tail)
```

```python
from fcore import *
G2_ACC, G2_H, G2_W, G2_RX, G2_RES = 32, 96, 160, 160, 224
g2_vRA = 8; g2_vH = [17, 18]; g2_vO = 24
WS_WDP = 74*MB
def g2_acc(t, ct): return G2_ACC + (t*8 + ct)*4
def g2_h(n, k, t): return G2_H + ((n*2 + k)*2 + t)*4
def g2_w(k, ct): return G2_W + (ct*2 + k)*4
def wsrc(c): return SRD_T2
LDS_PK = LDS_RED + 1024
def g2_ldw(c, n):
    return [f"s_add_u32 m0, s54, {n*16384}"] + [f"buffer_load_dwordx4 v{vL16}, {wsrc(c)}, s40 offen offset:{1024*i} {LY.sc} lds" for i in range(4)] + ["s_add_u32 s40, s40, 16384"]
def g2_ldh(n):
    return [f"buffer_load_dwordx4 v[{g2_h(n,k,t)}:{g2_h(n,k,t)+3}], v{g2_vH[t]}, {SRD_WS}, s55 offen offset:{k*2048} {LY.h}" for k in range(2) for t in range(2)] + ["s_add_u32 s55, s55, 4096"]
def g2_rd(n, k, ct):
    r = g2_w(k, ct)
    return f"ds_read_b128 v[{r}:{r+3}], v{g2_vRA} offset:{n*16384 + k*8192 + ct*1024}"

def g2_ldlast(c):
    return [f"s_add_u32 m0, s54, {LDS_PK}", f"s_add_u32 s35, s40, {23*16384}"] + [f"buffer_load_dwordx4 v{vL16}, {wsrc(c)}, s35 offen offset:{1024*i} {LY.sc} lds" for i in range(4)]
def g2_pre1(c):
    a = Asm()
    a(f"""
    s_lshr_b32 s57, s{sM}, 4                 ; kh
    s_lshl_b32 s54, s{sW}, 12                ; m0 base = w*4096
    s_and_b32 s35, s{sM}, 7
    s_lshl_b32 s35, s35, 1
    s_add_u32 s35, s35, s57
    s_mul_i32 s40, s35, {56*8192}
    s_mul_i32 s35, s57, {c.opt.get('shift', 0)*16384}
    s_add_u32 s40, s40, s35
    s_add_u32 s40, s40, s54
    s_add_u32 s40, s40, {WS_WDP}
    s_mov_b64 s[28:29], s[12:13]
    s_mov_b32 s30, s14
    """)
    return [l.strip() for l in a.lines]

def g2_pre(c):
    a = c.a
    a(f"""
    s_xor_b32 s54, s54, 0x10000
    v_mov_b32 v{g2_vRA}, v{vL16}
    v_add_u32 v12, 0x10000, v{vL16}
    s_lshl_b32 s58, s{sTB}, 3
    s_bfe_u32 s35, s{sM}, 0x10003
    s_lshl_b32 s35, s35, 2
    s_add_u32 s58, s58, s35
    s_add_u32 s58, s58, s{sW}
    s_mul_i32 s55, s58, 229376
    s_mul_i32 s36, s57, {(56 + 2*c.opt.get('shift', 0))*2048}
    s_add_u32 s55, s55, s36
    s_add_u32 s55, s55, s{sLB}
    s_add_u32 s55, s55, {L_H}
    s_lshl_b32 s35, s57, 10
    v_add_u32 v{g2_vH[0]}, s35, v{vL16}
    v_xor_b32 v{g2_vH[1]}, 1024, v{g2_vH[0]}
    """)

def g2_main(c):
    a = c.a
    for ct in range(8):
        for k in range(2): a(g2_rd(0, k, ct))
    for i in range(32): a(f"v_mov_b64 v[{G2_ACC+2*i}:{G2_ACC+2*i+1}], 0")
    a(f"""
    s_lshl_b32 s39, s58, 1
    s_add_u32 s39, s39, s57
    s_lshl_b32 s39, s39, 15
    s_and_b32 s35, s{sM}, 7
    v_and_b32 v6, 15, v{vLANE}
    v_and_b32 v7, 48, v{vLANE}
    v_lshl_add_u32 v{g2_vO}, v6, 11, v7
    s_lshl_b32 s36, s35, 12
    s_add_u32 s36, s36, s39
    s_lshl_b32 s35, s35, 8
    s_add_u32 s39, s39, s35
    s_lshl_b32 s35, s{sLAY}, 31
    v_or_b32 v26, s35, v{vL16}
    v_xor_b32 v27, 0x80000000, v26
    s_lshl_b32 s33, s{sTB}, 19
    s_and_b32 s35, s{sM}, 7
    s_lshl_b32 s35, s35, 16
    s_add_u32 s33, s33, s35
    s_bfe_u32 s35, s39, 0x4000f
    s_lshl_b32 s35, s35, 10
    s_add_u32 s33, s33, s35
    s_add_u32 s33, s33, {LY.L1}
    s_lshr_b32 s38, s39, 15
    s_lshl_b32 s38, s38, 8
    s_add_u32 s38, s38, {LY.XR}
    v_lshlrev_b32 v7, 4, v6
    v_and_b32 v7, 0x80, v7
    v_lshl_add_u32 v25, v6, 3, v7
    v_and_b32 v7, 0x80000000, v27
    v_or_b32 v25, v25, v7
    s_add_u32 s34, s36, {LY.EX}
    s_lshl_b32 s35, s57, 22
    s_add_u32 s35, s35, {LY.P}
    s_cmp_eq_u32 s{sLAY}, 0
    s_cselect_b32 s35, s35, {LY.EX}
    s_xor_b32 s37, s36, 0x8000
    s_add_u32 s36, s36, s35
    s_add_u32 s37, s37, s35
    """)
    a(f"""
    v_and_b32 v4, 7, v{vLANE}
    v_bfe_u32 v5, v{vLANE}, 3, 1
    v_lshlrev_b32 v4, 5, v4
    v_lshl_or_b32 v4, v5, 1, v4
    s_and_b32 s35, s2, 0x1d
    v_or_b32 v4, s35, v4
    v_lshlrev_b32 v9, 7, v4
    {f"s_cmp_eq_u32 s57, 0" if c.opt.get('shift', 0) else ""}
    {f"s_cselect_b64 vcc, -1, 0" if c.opt.get('shift', 0) else ""}
    {f"v_cndmask_b32 v9, v9, v{vFL}, vcc" if c.opt.get('shift', 0) else ""}
    """)
    co = c.opt.get('co2', 0)
    if co:
        a(f"""
        s_and_b32 s42, s{sM}, 7
        s_mul_i32 s42, s42, {co*128}
        s_add_u32 s42, s42, s55
        s_add_u32 s42, s42, 4096
        v_min_u32 v10, {co-1}, v{vLANE}
        v_lshlrev_b32 v10, 7, v10
        """)
    l = c.lab("wt")
    a(f"s_cmp_lg_u32 s{sW}, 0\ns_cbranch_scc1 {l}")
    a(poll(c, SRD_WS, vFL, f"s{sFB}", M_KH, f"s{sPH}"))
    a(f"{l}:")
    a("s_waitcnt vmcnt(0)\ns_barrier")
    stamp(c, "waitH")
    for n in range(3):
        for l in g2_ldh(n): a(l)
        if co and n == 0: a(f"s_barrier\nbuffer_load_dword v11, v10, {SRD_WS}, s42 offen sc1")
    l = c.lab("sg")
    a(f"""
    s_add_u32 s{sPH}, s{sPH}, 1
    v_mov_b32 v4, 0
    v_mov_b32 v5, s{sPH}
    s_cmp_lg_u32 s{sW}, 0
    s_waitcnt vmcnt({9 if co else 8})
    {"s_branch" if 's' in c.opt.get('y', '') else "s_cbranch_scc1"} {l}
    s_mov_b64 exec, 1
    buffer_store_dword v5, v4, {SRD_WS}, s{sFL} offen sc1
    s_mov_b64 exec, -1
    {l}:
    """)
    stamp(c, "g2 go")
    M = [(ct, k) for ct in range(8) for k in range(4)]
    shift = c.opt.get('shift', 0); mg = [26]
    def mrd(i):
        ct, k = M[i]; p = (mg[0] + (k >> 1)) % 8
        return f"ds_read_b128 a[{4*i}:{4*i+3}], v{g2_vRA if p < 4 else 12} offset:{(p & 3)*16384 + (k & 1)*8192 + ct*1024}"
    kin = c.opt.get('g2_kin', 1)
    def sstep(n, ldh, ldw, vm, extra=(), merge=False, sh=0):
        a = c.a
        gaps = [[] for _ in range(32)]
        if n == 3: gaps[1].append(f"v_xor_b32 v{g2_vRA}, 0x10000, v{g2_vRA}")
        for ct in range(8):
            if merge: r = [mrd(2*ct), mrd(2*ct+1)]
            else: r = [g2_rd((n+1) % 4, 1 if kin else 0, ct), g2_rd((n+1) % 4, 0 if kin else 1, ct)]
            gaps[4*ct+2].append(r[0]); gaps[4*ct+3].append(r[1])
        if ldh:
            o = g2_ldh((n+3) % 4)
            for i in range(4): gaps[1+4*i+sh].append(o[i])
            gaps[14+sh].append(o[4])
        if ldw:
            o = g2_ldw(c, n)
            gaps[16].append(o[0])
            for i in range(4): gaps[17+4*i+sh].append(o[1+i])
            gaps[min(30+sh, 31)].append(o[5])
        for g, l in extra: gaps[g].append(l)
        for g in (7, 15, 23): gaps[g].append("s_waitcnt lgkmcnt(12)")
        a(f"s_waitcnt vmcnt({vm}) lgkmcnt(12)")
        for g in range(32):
            ct = g >> 2
            t, k = [(0,0),(0,1),(1,1),(1,0)][g & 3] if kin else [(0,0),(1,0),(1,1),(0,1)][g & 3]
            if ct & 1: t ^= 1
            cc = g2_acc(t, ct)
            a(f"{MF} v[{cc}:{cc+3}], v[{g2_w(k,ct)}:{g2_w(k,ct)+3}], v[{g2_h(n,k,t)}:{g2_h(n,k,t)+3}], v[{cc}:{cc+3}]")
            if g == 0: a("s_barrier")
            for l in gaps[g]: a(l)
    a(f"s_mov_b32 s56, 6\ns_mov_b32 s41, 1\ns_lshl_b32 s42, s{sW}, 3\ns_add_u32 s42, s42, 3\n{'s_add_u32 s42, s42, s57' if shift else ''}\ns_xor_b32 s48, s57, 1\ns_lshl_b32 s48, s48, 4\nv_mov_b32 v7, 0\ns_mov_b64 s[24:25], s[12:13]")
    st2 = c.opt.get('stag2', 0); done = c.lab("g2z"); loops = [c.lab("g2loop"), c.lab("g2loop")]
    if st2: a(f"s_bitcmp1_b32 s{sW}, 0\ns_cbranch_scc1 {loops[1]}")
    for cp in range(2 if st2 else 1):
        sh = st2*cp; loop = loops[cp]
        a(f"{loop}:")
        o = c.lab("g2f"); b = c.lab("g2b")
        c.ool.append(f"{o}:\ns_cmp_eq_u32 s56, 6\ns_waitcnt vmcnt(12)\ns_cbranch_scc1 {b}\n" + poll(c, SRD_WS, 9, f"s{sFB}", "", f"s{sPH}") + f"s_branch {b}")
        sstep(0, True, True, 16, [(24, "v_cmp_gt_u32 vcc, s41, v7"), (29+sh, f"s_cbranch_vccnz {o}\n{b}:")], sh=sh)
        sstep(1, True, True, 16, [(4, "s_sub_u32 s56, s56, 1"), (8, f"s_cmp_eq_u32 s56, s42\ns_cselect_b32 s41, s{sPH}, 0"), (12, "s_cselect_b32 s26, s14, 0")] +
                                 ([(31, f"buffer_load_dword v7, v9, {SRD_T}, s{sFB} offen sc1")] if cp == 0 else []), sh=sh)
        sstep(2, True, True, 17 - cp, sh=sh)
        sstep(3, True, True, 17 - cp, ([(8, "s_cmp_eq_u32 s56, s48\ns_cselect_b32 s30, 0, s30")] if shift else []) + [(20, "s_xor_b32 s54, s54, 0x10000"), (min(30+sh, 31), "s_cmp_lg_u32 s56, 0")], sh=sh)
        a(f"s_cbranch_scc1 {loop}")
        if st2 and cp == 0: a(f"s_branch {done}")
    a(f"{done}:")
    import fg1k
    fin = c.lab("g2fin")
    def tail(R):
        a = c.a; st = "sc1"
        last = 24 + R - 1; mg[0] = last - 1
        hist = []
        for i in range(20, 24): hist += [('h', i+3)]*4 + [('w', i+4)]*4 + ([('f', 0)] if i == 21 else [])
        def allowed(need): return len(hist) - 1 - max(k for k, e in enumerate(hist) if e in need)
        for i in range(24, last - 1):
            merge = (i == last - 2); ex = []
            if merge:
                ex = [(0, f"s_add_u32 s41, s92, {64*7168}")]
                for h in range(2):
                    o = fg1k.g1_dw(2 + h)
                    ex += [(16*h, o[0])] + [(16*h + 1 + 4*i_, o[1+i_]) for i_ in range(4)] + [(16*h + 14, o[5])]
            need = [('h', i), ('w', i+1)] + ([('w', last)] if merge else [])
            sstep(i % 4, i + 3 <= last, i + 4 <= last, allowed(need), ex, merge=merge)
            hist += ([('h', i+3)]*4 if i + 3 <= last else []) + ([('w', i+4)]*4 if i + 4 <= last else []) + ([('n', 0)]*8 if merge else [])
        a(f"s_waitcnt vmcnt({allowed([('h', last)])})")
        hz = Hz(a); ops = []
        for r in range(G2_W, G2_W+64): hz.mf[r] = -6
        n2 = len(M)
        for p in range(4):
            ops.append((p, ('salu', f"buffer_load_dwordx4 v[{G2_RES+4*p}:{G2_RES+4*p+3}], v27, {SRD_WS}, s33 offen {LY.sc}", [], [])))
            ops.append((p, ('salu', "s_add_u32 s33, s33, 16384", [], [])))
        ops.append((3, ('salu', f"buffer_load_dwordx2 v[28:29], v25, {SRD_WS}, s38 offen sc1", [], [])))
        for ti, t in enumerate((1, 0)):
            for p in range(4):
                rdy = ti*n2 + 8*(p+1) - 1
                c0, c1 = g2_acc(t, 2*p), g2_acc(t, 2*p+1); e = G2_RX + 16*ti + 4*p
                ops += [(rdy-4, o_cvt(e, c0)), (rdy-4, o_cvt(e+1, c0+2)), (rdy, o_cvt(e+2, c1)), (rdy, o_cvt(e+3, c1+2)),
                        (rdy, o_st(f"buffer_store_dwordx4 v[{e}:{e+3}], v{vL16 if t else 26}, {SRD_WS}, s{36+t} offen offset:{p*1024} {st}", e))]
        n = 0
        for ti, t in enumerate((1, 0)):
            for i, (ct, k) in enumerate(M):
                if ti == 0 and i % 4 == 0: hz.raw(f"s_waitcnt lgkmcnt({min(12, n2-4-i)})")
                cc = g2_acc(t, ct); h = g2_h((mg[0] + (k >> 1)) % 4, k & 1, t)
                hz.mfma(f"{MF} v[{cc}:{cc+3}], a[{4*i}:{4*i+3}], v[{h}:{h+3}], v[{cc}:{cc+3}]", cc)
                per = 2
                if ti == 0 and i + 16 < n2:
                    hz.raw(mrd(i+16)); per = 1
                fill(hz, ops, n, per)
                n += 1
        stamp(c, "g2 mm")
        assert all(o[0] >= n2 for o in ops)
        pe = c.opt.get('p_early', 0)
        hz.raw(f"s_cmp_lg_u32 s{sLAY}, 0"); hz.raw(f"s_cbranch_scc1 {fin}")
        for _, o in ops: hz.op(o)
        stamp(c, "p out")

    def tail2(lay):
        a = c.a; mg[0] = 26
        ex = []
        if lay == 0:
            W = fg1k.g1_dw(2) + fg1k.g1_dw(3)
            ex = [(12, f"s_add_u32 s41, s92, {64*7168}"), (16, W[0])] + [(17 + 4*i, W[1+i]) for i in range(4)] + [(30, W[5])]; nv = 4
        else:
            R_ = [f"buffer_load_dwordx4 v[{G2_RES+4*p}:{G2_RES+4*p+3}], v{vL16}, {SRD_WS}, s33 offen {LY.sc}" for p in range(4)]
            ex = [(17 + 4*p, R_[p]) for p in range(4)] + [(18 + 4*p, "s_add_u32 s33, s33, 16384") for p in range(3)] + [(31, f"buffer_load_dwordx2 v[28:29], v25, {SRD_WS}, s38 offen sc1")]; nv = 5
        sstep(0, True, False, 17, ex)
        hz = Hz(a); ops = []
        E = [[240 + 4*p for p in range(4)], [G2_H + 4*p for p in range(4)]]
        seq = [(1, ct, 25, k) for ct in range(8) for k in ((0, 1) if ct % 2 == 0 else (1, 0))]
        kk = lambda ct, n: list(range(n)) if ct % 2 == 0 else list(range(n-1, -1, -1))
        seq += [(1, ct, 26 + (k >> 1), k & 1) for ct in range(8) for k in kk(ct, 4)]
        seq += [(0, ct, 25 + (k >> 1), k & 1) for ct in range(8) for k in kk(ct, 6)]
        rdy = {}
        for n, (t, ct, ss, k) in enumerate(seq): rdy[t, ct] = n
        for ti, t in enumerate((1, 0) if lay == 0 else (1,)):
            for p in range(4):
                c0, c1 = g2_acc(t, 2*p), g2_acc(t, 2*p+1); e = E[ti][p]; r0, r1 = rdy[t, 2*p], rdy[t, 2*p+1]
                ops += [(r0, o_cvt(e, c0)), (r0, o_cvt(e+1, c0+2)), (r1, o_cvt(e+2, c1)), (r1, o_cvt(e+3, c1+2)),
                        (r1, o_st(f"buffer_store_dwordx4 v[{e}:{e+3}], v{vL16}, {SRD_WS}, s{36+t} offen offset:{p*1024} sc1", e))]
        for n, (t, ct, ss, k) in enumerate(seq):
            if n == 0: hz.raw(f"s_waitcnt vmcnt({4 + nv}) lgkmcnt(12)")
            elif n < 16 and n % 4 == 0: hz.raw("s_waitcnt lgkmcnt(12)")
            elif n == 16: hz.raw(f"s_waitcnt vmcnt({nv + (4 if lay == 0 else 0)}) lgkmcnt(12)")
            elif n < 48 and n % 4 == 0: hz.raw(f"s_waitcnt lgkmcnt({min(12, 44 - n)})")
            cc = g2_acc(t, ct); h = g2_h(ss % 4, k, t)
            i = ct*4 + (ss - 26)*2 + k
            w = f"v[{g2_w(k,ct)}:{g2_w(k,ct)+3}]" if ss == 25 else f"a[{4*i}:{4*i+3}]"
            hz.mfma(f"{MF} v[{cc}:{cc+3}], {w}, v[{h}:{h+3}], v[{cc}:{cc+3}]", cc)
            per = 2
            if n == 0: hz.raw("s_barrier")
            if n < 32: hz.raw(mrd(n)); per = 1
            if lay == 0 and n < 16:
                if n == 1: hz.raw(W[6])
                if n % 4 == 2: hz.raw(W[7 + n//4])
                if n == 15: hz.raw(W[11])
            fill(hz, ops, n, per)
        stamp(c, "g2 mm")
        for _, o in ops: hz.op(o)
        if lay == 0: stamp(c, "p out")
    if c.opt.get('tail2', 1):
        o = c.lab("g2e")
        a(f"s_cmp_lg_u32 s{sLAY}, 0\ns_cbranch_scc1 {o}")
        tail2(0)
        a(f"s_mov_b32 s{sLAY}, 1\ns_mov_b32 s{sLB}, {LY.L1}\ns_branch {c.name}_layer\n{o}:")
        tail2(1)
    else: a(f"s_cmp_lg_u32 s{sLAY}, 0\ns_cselect_b32 s10, 0, s10")
    if c.opt.get('tail2', 1): pass
    elif shift:
        o = c.lab("g2e"); b = c.lab("g2j")
        a(f"s_cmp_eq_u32 s57, 0\ns_cbranch_scc1 {o}")
        tail(4 - shift)
        a(f"{b}:")
        c.a = Asm(); tail(4 + shift); t = c.a.text(); c.a = a
        c.ool.append(f"{o}:\n{t}s_branch {b}")
    else: tail(4)
    if not c.opt.get('tail2', 1): a(f"s_mov_b32 s{sLAY}, 1\ns_mov_b32 s{sLB}, {LY.L1}\ns_branch {c.name}_layer")
    a(f"""
    {fin}:
    s_mov_b32 s32, 0x3f80
    s_mov_b32 s35, 0x3f800000
    """)
    signal(c)
    stamp(c, "sigE")
    a("v_rcp_f32 v28, v28\ns_nop 0\nv_mul_f32 v29, -v29, v28")
    for j in range(16):
        x = G2_ACC + 2*j
        unpack(a, 4, G2_RES + j, 1)
        a(f"v_pk_fma_f32 v[4:5], v[4:5], v[28:29], v[28:29] op_sel:[0,0,1] op_sel_hi:[1,0,1]")
        a(f"v_pk_add_f32 v[{x}:{x+1}], v[{x}:{x+1}], v[4:5]")
    tr = c.opt.get('out_tr', 1)
    if tr:
        a(f"""
        s_mul_i32 s33, s{sW}, {16*272}
        v_and_b32 v4, 15, v{vLANE}
        v_lshrrev_b32 v5, 4, v{vLANE}
        v_mul_u32_u24 v6, 272, v4
        v_lshl_add_u32 v6, v5, 4, v6
        v_add_u32 v10, s33, v6
        v_mul_u32_u24 v6, 272, v5
        v_lshl_add_u32 v6, v4, 4, v6
        v_add_u32 v11, s33, v6
        v_lshlrev_b32 v4, 4, v4
        v_lshl_add_u32 v{g2_vO}, v5, 11, v4
        """)
    wait(c, vFL, M_PAIR)
    stamp(c, "waitE")
    for p in range(4):
        a(f"buffer_load_dwordx4 v[{G2_RX+4*p}:{G2_RX+4*p+3}], v{vL16}, {SRD_WS}, s34 offen offset:{p*1024} sc1")
    for p in range(4):
        c0 = g2_acc(0, 2*p)
        a(f"s_waitcnt vmcnt({3-p if tr else 3})")
        for i in range(4):
            a(f"v_dot2_f32_bf16 v{c0+2*i}, v{G2_RX+4*p+i}, s32, v{c0+2*i}\nv_dot2_f32_bf16 v{c0+2*i+1}, v{G2_RX+4*p+i}, s35, v{c0+2*i+1}")
        r = G2_RES + 4*p
        a("s_nop 0")
        for i in range(4): a(f"v_cvt_pk_bf16_f32 v{r+i}, v{c0+2*i}, v{c0+2*i+1}")
        if tr: a(f"ds_write_b128 v10, v[{r}:{r+3}] offset:{p*64}")
        else: a(f"buffer_store_dwordx4 v[{r}:{r+3}], v{g2_vO}, {SRD_OUT}, s39 offen offset:{p*64} {c.opt.get('out_aux', 'nt')}")
    if tr:
        for i in range(4): a(f"ds_read_b128 v[{G2_RX+4*i}:{G2_RX+4*i+3}], v11 offset:{i*4*272}")
        for i in range(4):
            a(f"s_waitcnt lgkmcnt({3-i})")
            a(f"buffer_store_dwordx4 v[{G2_RX+4*i}:{G2_RX+4*i+3}], v{g2_vO}, {SRD_OUT}, s39 offen {c.opt.get('out_aux', 'nt')}\ns_add_u32 s39, s39, 8192")
    stamp(c, "out")
    if c.ts:
        a("s_waitcnt vmcnt(0)"); stamp(c, "end")
```

```python
from fcore import *
from ffront import vQ, repack, repack_store, TOUCH2
from fg1k import g1_dw, g1_rw
XF, YF, RW, LO, TT = 32, 64, 96, 128, 160
def ln_stats(c, off, vm=''):
    a = c.a
    a(f"v_pk_add_f32 v[28:29], v[{XF}:{XF+1}], v[{XF+2}:{XF+3}]")
    a(f"v_pk_mul_f32 v[6:7], v[{XF}:{XF+1}], v[{XF}:{XF+1}]")
    a(f"v_pk_fma_f32 v[6:7], v[{XF+2}:{XF+3}], v[{XF+2}:{XF+3}], v[6:7]")
    for i in range(2, 16):
        a(f"v_pk_add_f32 v[28:29], v[28:29], v[{XF+2*i}:{XF+2*i+1}]")
        a(f"v_pk_fma_f32 v[6:7], v[{XF+2*i}:{XF+2*i+1}], v[{XF+2*i}:{XF+2*i+1}], v[6:7]")
    a(f"""
    v_add_f32 v28, v28, v29
    v_add_f32 v29, v6, v7
    s_nop 1
    v_permlane32_swap_b32 v28, v29
    v_add_f32 v28, v28, v29
    v_mov_b32 v29, v28
    s_nop 1
    v_permlane16_swap_b32 v28, v29
    v_add_f32 v28, v28, v29
    s_nop 1
    v_add_f32_dpp v28, v28, v28 row_ror:8 row_mask:0xf bank_mask:0xf
    ds_write_b32 v26, v28 offset:{off}
    s_waitcnt {vm}lgkmcnt(0)
    s_barrier
    ds_read_b128 v[4:7], v27 offset:{off}
    ds_read_b128 v[{LO+16}:{LO+19}], v27 offset:{off+128}
    s_waitcnt lgkmcnt(1)
    v_pk_add_f32 v[4:5], v[4:5], v[6:7]
    v_add_f32 v29, v4, v5
    v_mul_f32 v29, 0x3a800000, v29
    s_waitcnt lgkmcnt(0)
    v_pk_add_f32 v[6:7], v[{LO+16}:{LO+17}], v[{LO+18}:{LO+19}]
    v_add_f32 v28, v6, v7
    v_mul_f32 v28, 0x3a800000, v28
    v_fma_f32 v28, -v29, v29, v28
    v_max_f32 v28, 0, v28
    """)
    if c.opt.get('mimic', 0):
        a(f"""
        v_cvt_pk_bf16_f32 v29, v29, v28
        v_and_b32 v28, s{sMASK}, v29
        v_lshlrev_b32 v29, 16, v29
        v_add_f32 v28, 0x3727c5ac, v28
        v_cvt_pk_bf16_f32 v28, v28, v28
        v_and_b32 v28, s{sMASK}, v28
        v_sqrt_f32 v28, v28
        s_nop 0
        v_cvt_pk_bf16_f32 v28, v28, v28
        v_and_b32 v28, s{sMASK}, v28
        v_rcp_f32 v28, v28
        """)
    else:
        a("v_add_f32 v28, 0x3727c5ac, v28\nv_rsq_f32 v28, v28")
    a("s_nop 0\nv_mul_f32 v29, -v29, v28")
def norm(d, x): return f"v_pk_fma_f32 v[{d}:{d+1}], v[{x}:{x+1}], v[28:29], v[28:29] op_sel:[0,0,1] op_sel_hi:[1,0,1]"
def w_stage(a, slot):
    o = g1_dw(slot); a(o[0]); a("s_nop 0")
    for l in o[1:]: a(l)

def ln_phase(c):
    a = c.a
    l1 = c.lab("ln1"); st = c.lab("lnst"); cm = c.lab("lncm")
    a(f"""
    v_and_b32 v4, 7, v{vLANE}              ; tok
    v_lshrrev_b32 v5, 3, v{vLANE}          ; c
    v_lshlrev_b32 v6, 8, v5
    v_lshl_add_u32 v24, v4, 4, v6
    v_lshl_add_u32 v1, v4, 3, v6
    v_and_b32 v6, 0x3ff, v24
    v_lshrrev_b32 v7, 2, v5
    v_lshl_add_u32 v25, v7, 14, v6
    v_lshlrev_b32 v27, 4, v4
    v_add_u32 v27, {LDS_RED}, v27
    s_lshl_b32 s33, s{sW}, 2
    v_lshl_add_u32 v26, v7, 7, v27
    v_add_u32 v26, s33, v26
    s_lshr_b32 s33, s{sG8}, 1
    s_lshl_b32 s33, s33, 15
    s_lshl_b32 s34, s{sW}, 13
    s_add_u32 s33, s33, s34
    s_and_b32 s34, s{sG8}, 1
    s_lshl_b32 s35, s34, 6
    s_add_u32 s33, s33, s35                ; Y offset
    s_add_u32 s36, s33, s35                ; B16 offset
    s_add_u32 s33, s33, {WS_Y}
    s_lshl_b32 s37, s{sTB}, 19
    s_lshl_b32 s35, s{sW}, 17
    s_add_u32 s37, s37, s35
    s_bfe_u32 s35, s{sG8}, 0x40001
    s_lshl_b32 s35, s35, 10
    s_add_u32 s37, s37, s35
    s_lshl_b32 s35, s34, 7
    s_add_u32 s37, s37, s35
    s_add_u32 s37, s37, s{sLB}
    s_cmp_lg_u32 s{sLAY}, 0
    s_cbranch_scc1 {l1}
    """)
    n1 = 0 if c.opt.get('pk_g1', 1) else c.opt.get('pk_n1', 3)
    unpack(a, XF, vQ, 16)
    signal(c, sfl=85 if c.opt.get('yflag', 2) < 2 else sFL); stamp(c, "sigY")
    eo = c.opt.get('e_ord', 0)
    if eo: a(f"s_cmp_lt_u32 s{sTB}, 4\ns_cbranch_scc1 {st}")
    def side1():
        for slot in range(c.opt.get('w_sy', 4)): w_stage(a, slot)
        if c.opt.get('sty'): stamp(c)
        repack(c, n1)
        if c.opt.get('sty'): stamp(c)
    st2 = c.lab("lns2")
    if c.opt.get('ilv', 1):
        amain = c.a
        c.a = a = Asm(); ln_stats(c, 0)
        for j in range(16): a(norm(TT+2*j, XF+2*j))
        V = [l.strip() for l in a.lines]
        c.a = a = amain
        if c.opt.get('ilv', 1) == 2: repack(c, n1); a("s_waitcnt lgkmcnt(0)")
        Dm = []
        for slot in range(c.opt.get('w_sy', 4)):
            o = g1_dw(slot); Dm += [[o[0], "s_nop 0", o[1]], [o[2]], [o[3]], [o[4], o[5]]]
        lead = c.opt.get('ilv_lead', 4); step = len(V) // max(len(Dm) - lead, 1)
        for d in Dm[:lead]:
            for l in d: a(l)
        Dm = Dm[lead:]
        for k, l in enumerate(V):
            a(l)
            if k % step == step - 1 and Dm:
                for l in Dm.pop(0): a(l)
        assert not Dm
        if c.opt.get('ilv', 1) == 1: repack(c, n1); a("s_waitcnt lgkmcnt(0)")
        a(f"s_branch {st2}")
        if c.opt.get('iw', 2048): a(".p2align 12\niw_base:")
        a(f"{l1}:")
    else:
        side1()
        a(f"s_branch {st}")
        if c.opt.get('iw', 2048): a(".p2align 12\niw_base:")
        a(f"{l1}:")
    for j in range(16): a(f"v_accvgpr_read_b32 v{LO+j}, a{aX+j}")
    unpack(a, XF, LO, 16)
    w0 = eo
    a(f"""
    s_add_u32 s38, s36, {LY.P}
    s_add_u32 s50, s36, {LY.P + 4*MB}
    s_mov_b32 s34, 0x3f80
    s_mov_b32 s35, 0x3f800000
    """)
    signal(c); stamp(c, "sigP")
    a(f"s_sub_u32 s41, s41, {128*7168}")
    w_stage(a, 0); w_stage(a, 1)
    a(f"s_add_u32 s41, s41, {64*7168}")
    def ldp(p):
        for i in range(4):
            r = RW + 16*p + 4*i
            a(f"buffer_load_dwordx4 v[{r}:{r+3}], v24, {SRD_WS}, s{[38, 50][p]} offen offset:{(i&1)*2048} {c.opt.get('ld_aux', 'sc1')}")
            if i == 1: a(f"s_add_u32 s{[38, 50][p]}, s{[38, 50][p]}, 4096")
    def addp(p, k, D=()):
        D = list(D)
        for i in range(4):
            a(f"s_waitcnt vmcnt({k-i})")
            for j in range(4):
                r = RW + 16*p + 4*i + j; x = XF + 8*i + 2*j
                a(f"v_dot2_f32_bf16 v{x}, v{r}, s34, v{x}\nv_dot2_f32_bf16 v{x+1}, v{r}, s35, v{x+1}")
    def gety():
        for j in range(16): a(f"v_accvgpr_read_b32 v{LO+j}, a{aY+j}")
        unpack(a, YF, LO, 16)
    gety()
    we = c.opt.get('w_early', 0)
    wait(c, vFL, M_TH, drain=we)
    stamp(c, "waitP")
    ldp(0); ldp(1)
    if we:
        for l in g1_rw(0) + g1_rw(1): a(l)
    addp(0, 7); addp(1, 3)
    a(f"{st}:")
    ln_stats(c, 0)
    for j in range(16): a(norm(TT+2*j, XF+2*j))
    a(f"s_cmp_lg_u32 s{sLAY}, 0\ns_cbranch_scc1 {cm}\n{st2}:")
    ok = c.lab("boot")
    yf = c.opt.get('yflag', 2)
    if c.opt.get('sty'): stamp(c); a("s_waitcnt vmcnt(0)"); stamp(c)
    boot = lambda ok: f"v_cmp_eq_u32 vcc, 0, v248\ns_cbranch_vccz {ok}\n" + poll(c, "s[88:91]", 249, "0", "", 1) + f"{ok}:"
    if yf == 2:
        y1 = c.lab("lny"); y2 = c.lab("lnz")
        a(f"s_cmp_lt_u32 s{sTB}, {4 if c.opt.get('y_st', 2) < 6 else 0}\ns_cbranch_scc1 {y1}\ns_lshl_b32 s51, s{sW}, 13\nv_lshl_add_u32 v250, v{vLANE}, 7, s51")
        a(boot(ok)); a(poll(c, SRD_WS, 250, f"s{sFB}", "", 3))
        a(f"s_branch {y2}\n{y1}:\ns_cmp_lg_u32 s{sW}, 0\ns_cbranch_scc1 {y2}")
        a(boot(c.lab("boot"))); a(poll(c, SRD_WS, 250, f"s{sFB}", "", 2, x4=True))
        a(f"{y2}:\n" + ("s_waitcnt vmcnt(0)\n" if we else "") + "s_barrier")
    else:
        a(f"s_lshr_b32 s51, s{sTB}, 2\ns_add_u32 s51, s51, 2")
        wait(c, 250, "", every=not yf, x4=yf, thr="s51", pre=boot(ok))
    stamp(c, "waitY")
    for i in range(4):
        for k in range(2):
            r = RW + 4*i + 2*k
            a(f"buffer_load_dwordx2 v[{r}:{r+1}], v1, {SRD_WS}, s33 offen offset:{(i&1)*2048 + k*128} sc1")
        if i == 1: a("s_add_u32 s33, s33, 4096")
    if we:
        for l in g1_rw(0) + g1_rw(1): a(l)
    if eo == 1:
        e1 = c.lab("lne"); e2 = c.lab("lnf")
        a(f"s_cmp_lt_u32 s{sTB}, 4\ns_cbranch_scc1 {e1}")
    for i in range(4):
        a(f"s_waitcnt vmcnt({6-2*i})")
        unpack(a, YF+8*i, RW+4*i, 4)
    if eo == 1:
        a(f"s_branch {cm}\n{e1}:\ns_barrier")
        side1()
        a(f"s_waitcnt vmcnt({4*c.opt.get('w_sy', 4) + n1}) lgkmcnt(0)")
        unpack(a, YF, RW, 16)
    if eo == 2:
        a(f"s_cmp_ge_u32 s{sTB}, 4\ns_cbranch_scc1 {cm}")
        side1()
        a("s_waitcnt lgkmcnt(0)")
    a(f"{cm}:")
    stamp(c, "ln in")
    for j in range(16):
        x = XF + 2*j
        a(f"v_pk_fma_f32 v[{x}:{x+1}], v[{TT+2*j}:{TT+2*j+1}], v[{YF+2*j}:{YF+2*j+1}], v[{x}:{x+1}]")
    if n1 < 7 and not c.opt.get('pk_g1', 1):
        s3 = c.lab("lnt")
        a(f"s_cmp_lg_u32 s{sLAY}, 0\ns_cbranch_scc1 {s3}")
        for k in range(n1, c.opt.get('pk_n2', 7)): a(repack_store(k))
        a(f"{s3}:")
    ln_stats(c, 256)
    for j in range(16):
        a(norm(TT+2*j, XF+2*j))
        a(f"v_cvt_pk_bf16_f32 v{YF+j}, v{TT+2*j}, v{TT+2*j+1}")
        if j % 4 == 3:
            a(f"buffer_store_dwordx4 v[{YF+j-3}:{YF+j}], v25, {SRD_WS}, s37 offen sc1\ns_add_u32 s37, s37, 32768")
    z = c.lab("lnq")
    a(f"""
    {f"s_cmp_lg_u32 s{sW}, 3" if c.opt.get('st1', 1) else ""}
    {f"s_cbranch_scc1 {z}" if c.opt.get('st1', 1) else ""}
    s_lshl_b32 s35, s{sG8}, 7
    s_add_u32 s35, s35, {LY.XR}
    v_lshlrev_b32 v4, 3, v{vLANE}
    s_mov_b64 exec, 0xffff
    buffer_store_dwordx2 v[28:29], v4, {SRD_WS}, s35 offen sc1
    s_mov_b64 exec, -1
    {z}:
    """)
    stamp(c, "xn out")
    if c.opt.get('w2_sx', 1) and not we:
        if w0: a("s_waitcnt vmcnt(5)\ns_barrier")
        for l in g1_rw(0) + g1_rw(1): a(l)
        a("s_waitcnt lgkmcnt(0)")
    signal(c)
    stamp(c, "sigX")
    dn = c.lab("lnd")
    a(f"s_cmp_lg_u32 s{sLAY}, 0\ns_cbranch_scc1 {dn}")
    for i in range(5 - len(c.opt.get('t_pos', [0]*3)) - c.opt.get('t_s0', 2)): a(TOUCH2)
    for slot in range(c.opt.get('w_sy', 4), 4): w_stage(a, slot)
    for j in range(16): a(f"v_cvt_pk_bf16_f32 v{LO+j}, v{XF+2*j}, v{XF+2*j+1}")
    for j in range(16): a(f"v_accvgpr_write_b32 a{aX+j}, v{LO+j}\nv_accvgpr_write_b32 a{aY+j}, v{RW+j}")
    a(f"{dn}:")
```

```python
from fcore import *
import fg2p
ACC1 = 32
def g1_acc(t, j): return ACC1 + (t*7 + j)*4
def g1_xf(k, t): return 112 + (t*2 + k)*4
def g1_wf(slot, j): return slot*28 + j*4
aPK = 176; LDS_PK = LDS_RED + 1024
g1_vXA = [8, 9]; g1_vWA = [[10,11,12,13],[14,15,16,17]]; g1_vDW = [19,20,21,22]; g1_vPF = [18, 23]
def g1_dx(slot):
    return [f"s_add_u32 m0, s42, {slot*STAGE}"] + [f"buffer_load_dwordx4 v{vL16}, {SRD_WS}, s40 offen offset:{1024*i} {LY.sc} lds" for i in range(4)] + ["s_add_u32 s40, s40, 16384"]
def g1_dw(slot):
    return [f"s_add_u32 m0, s43, {slot*STAGE}"] + [f"buffer_load_dwordx4 v{g1_vDW[i]}, {SRD_W}, s41 offen offset:{1024*i} lds" for i in range(4)] + [f"s_add_u32 s41, s41, {32*7168}"]
def g1_rw(slot):
    h = slot >> 1; so = (slot & 1)*STAGE; W = []
    for j in range(7):
        va = g1_vWA[h][j % 3] if j < 6 else g1_vWA[h][3]
        off = so + (UOFF if 3 <= j < 6 else 0); r = g1_wf(slot, j)
        W.append(f"ds_read_b64_tr_b16 a[{r}:{r+1}], v{va} offset:{off}")
        W.append(f"ds_read_b64_tr_b16 a[{r+2}:{r+3}], v{va} offset:{off+1024}")
    return W
def g1_rx(h, t):
    return [f"ds_read_b128 a[{g1_xf(k,t)}:{g1_xf(k,t)+3}], v{g1_vXA[h]} offset:{k*STAGE+t*1024}" for k in range(2)]
def w_stage(a, slot):
    o = g1_dw(slot); a(o[0]); a("s_nop 0")
    for l in o[1:]: a(l)

def g1_waddr(a):
    vDW = g1_vDW
    a(f"""
    s_and_b32 s44, s{sW}, 1
    s_lshr_b32 s45, s{sW}, 1
    s_and_b32 s46, s{sM}, 1
    s_mul_i32 s41, s44, {16*7168}
    s_mul_i32 s33, s{sM}, 224
    s_add_u32 s41, s41, s33
    s_lshl_b32 s33, s46, 5
    s_sub_u32 s41, s41, s33
    s_mov_b32 s92, s41
    s_mul_i32 s43, s45, {UOFF}
    s_lshl_b32 s33, s44, 12
    s_add_u32 s43, s43, s33
    s_add_u32 s43, s43, 16384
    v_lshrrev_b32 v1, 4, v{vLANE}          ; q
    v_bfe_u32 v4, v{vLANE}, 1, 3
    v_xor_b32 v4, v4, v1
    v_and_b32 v5, 1, v{vLANE}
    v_lshlrev_b32 v5, 4, v5
    v_mul_u32_u24 v6, 7168, v1
    v_add_u32 v6, v6, v5
    v_lshl_add_u32 v{vDW[0]}, v4, 5, v6
    v_xor_b32 v4, 4, v4
    v_lshl_add_u32 v{vDW[2]}, v4, 5, v6
    v_add_u32 v{vDW[1]}, {4*7168-1024}, v{vDW[0]}
    v_add_u32 v{vDW[3]}, {3*(4*7168-1024)}, v{vDW[2]}
    v_add_u32 v{vDW[2]}, {2*(4*7168-1024)}, v{vDW[2]}
    """)

def g1_pre(c):
    a = c.a; vDW = g1_vDW; vWA = g1_vWA; vXA = g1_vXA
    a(f"v_lshrrev_b32 v1, 4, v{vLANE}")
    a(f"""
    s_lshl_b32 s42, s{sW}, 12
    s_lshl_b32 s40, s{sTB}, 19
    s_add_u32 s40, s40, s42
    s_add_u32 s40, s40, s{sLB}
    s_lshl_b32 s33, s45, 13
    v_add_u32 v{vXA[0]}, s33, v{vL16}
    v_add_u32 v{vXA[1]}, {2*STAGE}, v{vXA[0]}
    v_bfe_u32 v4, v{vLANE}, 2, 2           ; r4
    v_and_b32 v5, 1, v1
    v_lshl_or_b32 v5, v5, 2, v4            ; sigma
    v_lshl_add_u32 v6, v1, 3, v4
    v_lshlrev_b32 v6, 8, v6
    v_add_u32 v6, 16384, v6
    v_and_b32 v7, 3, v{vLANE}
    v_lshl_add_u32 v1, v7, 3, v6
    s_lshl_b32 s33, s44, 2
    s_add_u32 s33, s33, s46
    """)
    for p in range(3):
        a(f"s_add_u32 s34, s33, {p}\nv_xor_b32 v4, s34, v5\nv_lshl_add_u32 v{vWA[0][p]}, v4, 5, v1")
    a(f"""
    s_add_u32 s34, s46, 3
    v_xor_b32 v4, s34, v5
    v_lshl_add_u32 v6, v4, 5, v6
    v_and_b32 v4, 1, v7
    v_lshl_add_u32 v6, v4, 3, v6
    v_lshrrev_b32 v4, 1, v7
    v_mul_u32_u24 v4, {UOFF}, v4
    s_lshl_b32 s34, s44, 4
    v_add3_u32 v{vWA[0][3]}, v6, v4, s34
    """)
    for p in range(4): a(f"v_add_u32 v{vWA[1][p]}, {2*STAGE}, v{vWA[0][p]}")
    d = c.opt.get('pf_dist', 2)
    who = c.opt.get('pf_who', 1)
    a(f"s_sub_u32 s34, s{sLAY}, 1")
    if who:
        a(f"""
        s_add_u32 s35, s{sM}, 1
        s_bfe_u32 s35, s35, 0x10001
        s_sub_u32 s35, s35, 1
        s_and_b32 s34, s34, s35
        s_bfe_u32 s36, s2, 0x20003
        s_bfe_u32 s35, s2, 0x20006
        s_lshl_b32 s35, s35, 2
        s_add_u32 s36, s36, s35
        """)
    else: a("s_lshr_b32 s36, s2, 3")
    a(f"""
    s_lshl_b32 s33, s36, 1
    s_add_u32 s33, s33, s44
    s_lshl_b32 s33, s33, 1
    s_and_b32 s35, s2, 1
    s_add_u32 s33, s33, s35
    s_mul_i32 s33, s33, {7168 << who}
    s_lshr_b32 s35, s{sM}, 3
    s_mul_i32 s35, s35, 1792
    s_add_u32 s33, s33, s35
    s_add_u32 s33, s33, {320*7168}
    v_lshlrev_b32 v4, 7, v{vLANE}
    v_cmp_lt_u32 vcc, 13, v{vLANE}
    v_add_u32 v5, s33, v4
    v_add_u32 v6, {7168-14*128}, v5
    v_cndmask_b32 v5, v5, v6, vcc
    s_and_b32 s33, s34, {14 << who}
    v_cmp_gt_u32 vcc, s33, v{vLANE}
    v_bfrev_b32 v6, 1
    s_nop 0
    v_cndmask_b32 v{g1_vPF[0]}, v6, v5, vcc
    """)

def g1_main(c):
    a = c.a; acc = g1_acc
    w2 = c.opt.get('w2_sx', 1)
    if w2: w_stage(a, 0); w_stage(a, 1)
    else:
        for l in g1_rw(0) + g1_rw(1): a(l)
    a(f"""
    s_lshl_b32 s59, s{sTB}, 3
    s_lshl_b32 s33, s45, 2
    s_add_u32 s59, s59, s33
    s_mul_i32 s59, s59, 229376
    s_lshr_b32 s33, s{sM}, 4
    s_mul_i32 s33, s33, {56*2048}
    s_add_u32 s59, s59, s33
    s_add_u32 s59, s59, s{sLB}
    s_add_u32 s59, s59, {L_H}
    s_lshl_b32 s34, s46, 1
    s_add_u32 s34, s34, s44                ; wv
    s_mov_b32 s53, s59
    s_mov_b32 s52, s59
    s_and_b32 s36, s{sM}, 15
    s_lshl_b32 s33, s36, 1
    s_add_u32 s33, s33, s44
    s_lshl_b32 s33, s33, 11
    v_add_u32 v24, s33, v{vL16}
    v_and_b32 v4, 15, v{vLANE}
    v_lshlrev_b32 v4, 4, v4
    v_lshrrev_b32 v5, 5, v{vLANE}
    v_lshl_add_u32 v4, v5, 10, v4
    v_bfe_u32 v5, v{vLANE}, 4, 1
    s_add_u32 s33, s36, 32
    s_lshl_b32 s33, s33, 11
    s_lshl_b32 s35, s44, 9
    s_add_u32 s33, s33, s35
    v_lshl_add_u32 v25, v5, 8, v4
    v_add_u32 v25, s33, v25
    s_lshl_b32 s33, s34, 8
    s_lshr_b32 s36, s36, 1
    s_lshl_b32 s36, s36, 11
    s_add_u32 s33, s33, s36
    s_add_u32 s33, s33, {48*2048}
    v_mul_u32_u24 v5, 229376, v5
    v_add3_u32 v26, v4, v5, s33
    """)
    a(f"""
    s_lshr_b32 s33, s{sM}, 4
    s_lshl_b32 s33, s33, 2
    s_add_u32 s33, s33, s{sW}
    s_lshl_b32 s34, s{sM}, 1
    s_add_u32 s34, s34, 10
    v_and_b32 v5, 7, v{vLANE}
    v_add_u32 v5, s34, v5
    v_and_b32 v5, 15, v5
    v_bfe_u32 v7, v{vLANE}, 3, 1
    v_lshl_add_u32 v5, v7, 4, v5
    v_mov_b32 v7, s33
    v_cmp_gt_u32 vcc, 16, v{vLANE}
    v_lshlrev_b32 v5, 3, v5
    s_nop 0
    v_cndmask_b32 v7, 4, v7, vcc
    v_add_lshl_u32 v23, v5, v7, 7
    s_mov_b32 s47, 6
    """)
    ct = c.opt.get('ct', 0)
    if ct: a(code_touch(c, None, 28))
    l2n = c.opt.get('l2n', 0); l2w = c.opt.get('l2w', 32)
    if l2n:
        a(f"""
        s_and_b32 s33, s{sM}, 7
        s_lshl_b32 s33, s33, 1
        s_lshr_b32 s34, s{sM}, 4
        s_add_u32 s33, s33, s34
        s_mul_i32 s33, s33, {56*8192}
        s_and_b32 s34, s{sTB}, 3
        s_lshl_b32 s34, s34, 2
        s_add_u32 s34, s34, s{sW}
        s_mul_i32 s34, s34, {l2w*128}
        s_add_u32 s33, s33, s34
        s_add_u32 s48, s33, {fg2p.WS_WDP + 65536 - (6-l2n)*l2w*2048}
        v_min_u32 v1, {l2w-1}, v{vLANE}
        v_lshlrev_b32 v1, 7, v1
        s_mov_b64 s[24:25], s[12:13]
        """)
    fast = c.opt.get('fast', 1) and w2
    if fast:
        a(f"""
        s_lshl_b32 s33, s45, 13
        s_mul_i32 s34, s44, {STAGE}
        s_add_u32 s34, s34, s33
        s_lshl_b32 s35, s44, 14
        s_add_u32 s33, s33, s35
        s_sub_u32 s35, s40, s42
        s_add_u32 s33, s33, s35
        s_add_u32 s35, s33, 4096
        s_add_u32 s40, s40, 32768
        """)
    co = c.opt.get('co1', 0)
    if co:
        a(f"""
        s_and_b32 s36, s{sM}, 7
        s_lshl_b32 s36, s36, 2
        s_add_u32 s36, s36, s{sW}
        s_mul_i32 s36, s36, {co*128}
        s_sub_u32 s37, s40, s42
        s_add_u32 s36, s36, s37
        s_sub_u32 s36, s36, 32768
        v_min_u32 v1, {co-1}, v{vLANE}
        v_lshlrev_b32 v1, 7, v1
        """)
    if c.opt.get('pk_g1', 1): a(f"v_lshrrev_b32 v1, 5, v{vLANE}\nv_bfe_u32 v4, v{vLANE}, 3, 2\nv_and_b32 v5, 0x70, v{vL16}\nv_lshl_add_u32 v5, v4, 11, v5\nv_mov_b32 v6, v219\ns_lshl_b32 s49, s{sLAY}, 4\ns_add_u32 s49, s49, 1")
    if c.opt.get('iw2', 1): hop2(c)
    wait(c, vFL, M_ALL)
    stamp(c, "waitX")
    if fast:
        for h in range(2):
            a(f"s_add_u32 m0, s34, {4096*h}\ns_nop 0")
            for i in range(4):
                a(f"buffer_load_dwordx4 v{vL16}, {SRD_WS}, s{33+2*h} offen offset:{1024*i} {LY.sc} lds")
                if co and (h, i) == (0, 1): a(f"s_barrier\nbuffer_load_dword v27, v1, {SRD_WS}, s36 offen sc1")
        a(g1_dx(2)[0])
        a(f"s_waitcnt vmcnt({7 if co else 6})\ns_barrier")
        for t in range(2):
            for l in g1_rx(0, t): a(l)
    else:
        for slot in range(4):
            o = g1_dx(slot); a(o[0]); a("s_nop 0")
            for l in o[1:]: a(l)
        a("s_waitcnt vmcnt(8)\ns_barrier")
        for t in range(8):
            for l in g1_rx(0, t): a(l)
    stamp(c, "g1 go")
    kin = c.opt.get('g1_kin', 1)
    def mseq(jo):
        out = []
        for t in range(8):
            js = jo if t % 2 == 0 else jo[::-1]
            if kin: out += [(t, j, k) for i, j in enumerate(js) for k in ((0, 1) if i % 2 == 0 or kin == 2 else (1, 0))]
            else: out += [(t, j, 0) for j in js] + [(t, j, 1) for j in js[::-1]]
        return out
    sch = c.opt.get('g1_sch', 0)
    def sstep(s, loop, gx=(), first=False, sh=0, auto=None, more=(0, 0), now=False):
        a = c.a
        gaps = [[] for _ in range(112)]
        BA, BB = c.opt.get('ba', 7), 63
        if first and fast:
            for h in range(2):
                o = g1_dx(2 + h)
                if h or c.ts: gaps[max(16*h-1, 0)].append(o[0])
                for i in range(4): gaps[16*h + 4*i + 1].append(o[1+i])
                gaps[16*h+14].append(o[5])
            gaps[12].append("s_waitcnt vmcnt(3) lgkmcnt(0)"); gaps[12].append("s_barrier")
            for t in range(2, 8):
                r = g1_rx(0, t); gaps[9+2*t].append(r[0]); gaps[10+2*t].append(r[1])
            gaps[27].append("s_waitcnt lgkmcnt(10)")
            gaps[33].append("s_waitcnt lgkmcnt(0)"); gaps[33].append("s_barrier")
            for k, l in enumerate(g1_rw(2) + g1_rw(3)): gaps[[2,3,4,6,7,8][k] if k < 6 else 28 + k].append(l)
        else:
            gaps[BA-1].append(f"s_waitcnt vmcnt({17 + more[0] if loop else 0}) lgkmcnt(0)"); gaps[BA].append("s_barrier")
            for k, l in enumerate(g1_rw(2*(s^1)) + g1_rw(2*(s^1)+1)): gaps[BA + 1 + (-sh) % 3 + ((k*3)//2 if sch == 0 else k)].append(l)
        for t in range(8):
            g = max(BB + 2 + 3*t if sch == 0 else BB + 1 + 2*t, 14*t + 13)
            r = g1_rx(s ^ 1, t)
            if t == 7: gaps[110].append(r[c.lastk ^ 1]); gaps[111].append(r[c.lastk])
            else: gaps[g].append(r[0]); gaps[g+1].append(r[1])
        if loop:
            gaps[BB-1].append(f"s_waitcnt vmcnt({(7 if fast else 8 if w2 else 13) if first else 16 + more[1] if s else 17 + more[1]}) lgkmcnt(0)"); gaps[BB].append("s_barrier")
            px = [[16,22,28,34,40,46,52,58], [37,40,43,46,49,52,55,58], [37,40,43,46,49,52,55,58]][sch]
            pw = [c.opt.get('pw', [67,72,77,82,87,92,97,102]), [75,78,81,86,89,92,95,100], [75,79,86,90,94,100,104,108]][sch]
            px = [p - sh for p in px]; pw = [p + sh for p in pw]
            if auto and c.opt.get('pk_plan', 3) == 3:
                x0, xd, wd = c.opt.get('pk_sp', (30, 4, 4))
                px = [x0 + xd*i for i in range(8)]; pw = [66 + wd*i for i in range(8)]
            if first and fast: px = [35, 39, 43, 47, 51, 55, 59, 64]; pw = [69, 74, 79, 85, 90, 95, 100, 105]
            if first and not w2:
                px = [44, 48, 52, 56, 60, 66, 70, 74]; pw = [79, 83, 87, 91, 95, 99, 103, 107]
                for h in range(2):
                    o = g1_dw(h); p = [10 + 16*h + 4*i for i in range(4)]
                    gaps[p[0]-1].append(o[0])
                    for i in range(4): gaps[p[i]].append(o[1+i])
                    gaps[p[3]+1].append(o[5])
            for h in range(2):
                for o, p in ((g1_dx(2*s + h), px[4*h:]), (g1_dw(2*(s^1) + h), pw[4*h:]))[:1 if now else 2]:
                    gaps[p[0]-1].append(o[0])
                    for i in range(4): gaps[p[i]].append(o[1+i])
                    gaps[p[3]+1].append(o[5])
        for g, l in gx: gaps[g].append(l)
        if auto:
            hist, nn = auto
            for g in range(112):
                for i, l in enumerate(gaps[g]):
                    if l.startswith("s_waitcnt vmcnt"):
                        tag = ('w', nn+1) if g < 32 else ('x', nn+1)
                        last = max([k for k, e in enumerate(hist) if e == tag or (g >= 32 and e == ('p', nn-1))], default=-1)
                        gaps[g][i] = f"s_waitcnt vmcnt({len(hist) - 1 - last}) lgkmcnt(0)"
                    elif l.startswith("buffer_"): hist.append(('x', nn+2) if "s40 offen" in l else ('w', nn+3) if "s41 offen" in l else ('p', nn) if SRD_WD in l or (nn == 5 and "store" in l and c.opt.get('pk_plan', 3) == 3) else ('o', 0))
        ab = c.opt.get('abl', '')
        if loop and not first:
            def keep(l):
                if 'b' in ab and l == "s_barrier": return False
                if 'x' in ab and "s40 offen" in l: return False
                if 'w' in ab and "s41 offen" in l: return False
                if 'p' in ab and "v27" in l: return False
                if 'r' in ab and "ds_read" in l: return False
                if 's' in ab and l.startswith("s_add_u32"): return False
                if 'c' in ab and l.startswith("s_waitcnt"): return False
                return True
            gaps = [[l for l in g if keep(l)] for g in gaps]
        if c.opt.get('stss') and not first: stamp(c)
        a(f"s_waitcnt lgkmcnt({14 if first and not fast else 2})")
        seen = set()
        for n, (t, j, k) in enumerate(mseq(list(range(7)))):
            cc = acc(t, j); w = g1_wf(2*s + k, j); x = g1_xf(k, t)
            src = "0" if first and cc not in seen else f"v[{cc}:{cc+3}]"
            seen.add(cc)
            a(f"{MF} v[{cc}:{cc+3}], a[{w}:{w+3}], a[{x}:{x+3}], {src}")
            for l in gaps[n]: a(l)
    c.lastk = mseq(list(range(7)))[-1][2]
    pe = c.opt.get('pk_end', 0) and c.opt.get('pk_g1', 1)
    def pkend(s, x, full):
        g = (106 if s else 105) + x
        L = [(79, f"v_lshl_add_u32 v4, v1, s{64+s}, v5"), (80, f"s_and_b32 s50, s{64+s}, 0xffffff80"), (81, f"s_cmp_lg_u32 s{64+s}, 0\ns_cselect_b32 s18, {D*F*2}, 0"),
             (g-1, f"s_add_u32 m0, s72, {s*4096}"), (g, f"buffer_load_dwordx4 v4, {SRD_WD}, s50 offen {c.opt.get('pk_aux', 'nt')} lds")]
        if full: L += [(4, f"s_cmp_lg_u32 s{74+s}, 0\ns_cselect_b32 s26, s14, 0"), (g+2, f"buffer_store_dwordx4 a[{aPK}:{aPK+3}], v{vL16}, {SRD_T}, s{74+s} offen sc1"),
                       (59, f"ds_read_b64_tr_b16 a[{aPK}:{aPK+1}], v6 offset:{s*4096}"), (59, f"ds_read_b64_tr_b16 a[{aPK+2}:{aPK+3}], v6 offset:{s*4096+512}")]
        return L
    sstep(0, True, [(101, "s_mov_b64 s[24:25], s[12:13]"), (110, f"s_cmp_eq_u32 s{sLAY}, 0")] + (pkend(0, 3, False) if pe else []), first=True)
    o = c.lab("g1c"); b = c.lab("g1d")
    c.ool.append(f"{o}:\n" + poll(c, SRD_WS, 23, f"s{sFB}", "", 4 + c.opt.get('pk_g1', 1)) + f"s_branch {b}")
    chk = [(0, f"v_cmp_gt_u32 vcc, {4 + c.opt.get('pk_g1', 1)}, v7"), (5, f"s_cbranch_vccnz {o}\n{b}:")]
    shifts = c.opt.get('stag', [0, 3, 0, 3])
    cps = sorted(set(shifts)); mids = {x: c.lab("g1m") for x in cps}; done = c.lab("g1z")
    pk = c.opt.get('pk_g1', 1)
    lps = {x: c.lab("g1l") for x in cps}
    def pfx(x): return [(105 + x, f"buffer_load_dword v27, v{g1_vPF[0]}, {SRD_W}, 0 offen"), (106 + x, f"v_add_u32 v{g1_vPF[0]}, {128*7168}, v{g1_vPF[0]}")]
    def dispatch(m):
        for w in range(3):
            if shifts[w] != shifts[3]: c.a(f"s_cmp_eq_u32 s{sW}, {w}\ns_cbranch_scc1 {m[shifts[w]]}")
        c.a(f"s_branch {m[shifts[3]]}")
    if pk:
        o = c.lab("g1k"); a(f"s_cbranch_scc1 {o}")
        c.a = Asm(); midA = {x: c.lab("g1a") for x in cps}
        dispatch(midA)
        gd, gs = c.opt.get('pk_g', ({0: 10, 3: 8}, {0: 13, 3: 16}))
        def pko(s, x):
            e = 1 - s
            return [(0, f"v_lshl_add_u32 v4, v1, s{64+e}, v5"), (1, f"s_and_b32 s50, s{64+e}, 0xffffff80"), (1, f"s_add_u32 m0, s72, {s*4096}"),
                    (3, f"s_cmp_lg_u32 s{64+e}, 0\ns_cselect_b32 s18, {D*F*2}, 0"), (4, f"s_cmp_lg_u32 s{74+e}, 0\ns_cselect_b32 s26, s14, 0"),
                    (gd[x], f"buffer_load_dwordx4 v4, {SRD_WD}, s50 offen {c.opt.get('pk_aux', 'nt')} lds"),
                    (gs[x], f"buffer_store_dwordx4 a[{aPK}:{aPK+3}], v{vL16}, {SRD_T}, s{74+e} offen sc1"),
                    (93, f"ds_read_b64_tr_b16 a[{aPK}:{aPK+1}], v6 offset:{(s^1)*4096}"), (94, f"ds_read_b64_tr_b16 a[{aPK+2}:{aPK+3}], v6 offset:{(s^1)*4096+512}")]
        if pe:
            def pko(s, x): return pkend(s, x, True)
        rotn = [f"s_mov_b64 s[{r}:{r+1}], s[{r+2}:{r+3}]" for r in (64, 66, 68, 74, 76, 78, 80)] + ["s_mov_b64 s[70:71], 0"]
        for x in cps:
            lpA = c.lab("g1b")
            c.a(f"{lpA}:")
            if pe:
                sstep(0, True, list(zip([0, 0, 1, 1, 2, 2, 3, 3], rotn)) + [(5, "s_sub_u32 s47, s47, 1")] + pko(0, x), sh=x, more=(2, 2))
                c.a(f"{midA[x]}:")
                sstep(1, True, [(g-1, l) for g, l in pfx(x)] + pko(1, x) + [(110, "s_cmp_lg_u32 s47, 2")], sh=x, more=(2, 1))
            else:
                sstep(0, True, [(2, "s_sub_u32 s47, s47, 1")] + pko(0, x) + list(zip([50, 51, 53, 54, 56, 57, 60, 61], rotn)), sh=x, more=(2, 2))
                c.a(f"{midA[x]}:")
                sstep(1, True, pko(1, x) + pfx(x) + [(110, "s_cmp_lg_u32 s47, 2")], sh=x, more=(2, 2))
            c.a(f"s_cbranch_scc1 {lpA}\ns_branch {lps[x]}")
        t = c.a.text(); c.a = a
        c.ool.append(f"{o}:\n{t}")
    p13 = c.opt.get('p13', 1)
    def pre_ld(n, g0, ds):
        o = fg2p.g2_ldw(c, n)
        return [(g0-1, f"s_add_u32 s35, s51, {n*16384}"), (g0, o[0])] + [(g0+1+ds*i, o[1+i].replace("s40", "s35")) for i in range(4)]
    if p13:
        dispatch(mids)
        for x in cps:
            o = c.lab("g1s"); b = c.lab("g1t")
            c.ool.append(f"{o}:\ns_add_u32 s{sPH}, s{sPH}, 1\ns_lshl_b32 s33, s{sW}, 29\nv_mov_b32 v5, s{sPH}\nv_mov_b32 v4, s33\nbuffer_store_dword v5, v4, {SRD_WS}, s{sFL} offen sc1\ns_branch {b}")
            a(f"{mids[x]}:")
            sstep(1, True, pfx(x), sh=x)
            a(f"{lps[x]}:")
            sstep(0, True, [(2, "s_sub_u32 s47, s47, 1"), (61, "s_cmp_eq_u32 s47, s49"), (64, f"s_cbranch_scc1 {o}\n{b}:"), (110, "s_cmp_lg_u32 s47, 0")], sh=x)
            a(f"s_cbranch_scc1 {mids[x]}")
            if x != cps[-1]: a(f"s_branch {done}")
        a(f"{done}:")
        gx = [(10, f"buffer_load_dword v7, v23, {SRD_WS}, s{sFB} offen sc1"), (62, chk[0][1]), (62, chk[1][1])]
        for k, l in enumerate(fg2p.g2_pre1(c)): gx.append(([0, 1, 2, 3, 4, 5, 50, 51, 53, 54, 55, 56, 57][k], l.replace("s40", "s51")))
        if ct & 4: gx.append((107, "global_load_dword v27, v[28:29], off"))
        fr = c.opt.get('far', 0)
        pk27 = lambda g0, d: [(g, l.replace(f"s54, {27*16384}", f"s54, {fg2p.LDS_PK}")) for g, l in pre_ld(27, g0, d)]
        if fr: sstep(1, True, gx + pre_ld(1, 65, 4) + pre_ld(3, 81, 4) + pk27(96, 4), more=(0, -8), now=True)
        else: sstep(1, True, gx + pre_ld(1, 66, 5) + pre_ld(3, 86, 5), more=(0, -8), now=True)
        gx = [(1, f"s_add_u32 s40, s51, {(4 + c.opt.get('far', 0))*16384}")]
    else:
        dispatch(mids)
        for x in cps:
            lp = lps[x]; ex = []
            if pk:
                o = c.lab("g1s"); b = c.lab("g1t")
                c.ool.append(f"{o}:\ns_add_u32 s{sPH}, s{sPH}, 1\ns_lshl_b32 s33, s{sW}, 29\nv_mov_b32 v5, s{sPH}\nv_mov_b32 v4, s33\nbuffer_store_dword v5, v4, {SRD_WS}, s{sFL} offen sc1\ns_branch {b}")
                ex = [(61, "s_cmp_eq_u32 s47, s49"), (64, f"s_cbranch_scc1 {o}\n{b}:")]
            a(f"{lp}:")
            sstep(0, True, [(2, "s_sub_u32 s47, s47, 1"), (3, "s_cmp_eq_u32 s47, 0\ns_cselect_b32 s26, s14, 0"),
                            (10, f"buffer_load_dword v7, v23, {SRD_T}, s{sFB} offen sc1")] + ex, sh=x)
            a(f"{mids[x]}:")
            sstep(1, True, [(3, "s_cmp_eq_u32 s47, 0\ns_cselect_b32 s10, 0, s10")] + pfx(x) + [(110, "s_cmp_lg_u32 s47, 0")], sh=x)
            a(f"s_cbranch_scc1 {lp}")
            if x != cps[-1]: a(f"s_branch {done}")
        a(f"{done}:")
        def pk_ld(n, g0, ds):
            o = fg2p.g2_ldw(c, n)
            return [(g0, o[0])] + [(g0+1+ds*i, o[1+i]) for i in range(4)] + [(g0+2+ds*3, o[5])]
        gx = [(0, f"s_mov_b32 s10, {D*F*2}")]
        if ct & 4: gx.append((10, "global_load_dword v27, v[28:29], off"))
        for k, l in enumerate(fg2p.g2_pre1(c)): gx.append((1 + k//2, l))
        if not l2n: gx += chk
    nd = c.opt.get('defer', 6)
    T0 = 8 - nd
    def x15(k, t): return g1_xf(k, t) if t < T0 else aPK + ((t - T0)*2 + k)*4
    if nd:
        seq = []
        for t in range(8):
            js = list(range(7)) if t < T0 else [0, 3, 1, 4]
            if t % 2: js = js[::-1]
            seq += [(t, j, k) for i, j in enumerate(js) for k in ((0, 1) if i % 2 == 0 else (1, 0))]
        N = len(seq); gaps = [[] for _ in range(N)]
        gaps[6].append(f"s_waitcnt vmcnt({8 + (4 if fr else 0) if p13 else 0}) lgkmcnt(0)"); gaps[7].append("s_barrier")
        sp = (N - 14) // 16
        if p13 and fr:
            gx += pre_ld(0, 9, 4) + pre_ld(2, 25, 4) + [(40, "s_waitcnt lgkmcnt(0)"), (41, "s_barrier")]
            for i in range(fr): gx += pre_ld(4 + i, 43 + 16*i, 4)
        elif p13:
            d = c.opt.get('sp14', 5)
            gx += pre_ld(0, 10, d) + pre_ld(2, 10 + 4*d, d)
            if c.opt.get('g2_pre', 1): gx += [(g, l.replace(f"s54, {27*16384}", f"s54, {fg2p.LDS_PK}")) for g, l in pre_ld(27, 10 + 8*d, d)]
        else:
            for n in range(4): gx += pk_ld(n, 11 + 4*sp*n, sp)
        busy = {g for g, l in gx if l.startswith("buffer")}
        free = [g for g in range(8, N - 6) if g not in busy]
        R = g1_rw(2) + g1_rw(3) + [f"ds_read_b128 a[{x15(k,t)}:{x15(k,t)+3}], v{g1_vXA[1]} offset:{k*STAGE+t*1024}" for t in list(range(T0, 8)) + list(range(T0)) for k in range(2)]
        if p13 and fr: free = [g for g in range(8, 36)]
        for i, l in enumerate(R): gaps[free[i*len(free)//len(R)]].append(l)
        assert T0 == 0 or free[(28 + 2*nd)*len(free)//len(R)] >= 14*T0
        for g, l in gx: gaps[g].append(l)
        a("s_waitcnt lgkmcnt(2)")
        for n, (t, j, k) in enumerate(seq):
            cc = acc(t, j); w = g1_wf(k, j); x = g1_xf(k, t)
            a(f"{MF} v[{cc}:{cc+3}], a[{w}:{w+3}], a[{x}:{x+3}], v[{cc}:{cc+3}]")
            for l in gaps[n]: a(l)
    else:
        for n in range(4): gx += pk_ld(n, 15 + 24*n, 6)
        sstep(0, False, gx)
    stamp(c, "g1 loop")
    def tail(st):
        a = c.a
        hz = Hz(a)
        ops = []
        early = c.opt.get('early', 1)
        if early: seq = [(t, j) for t in range(8) for j in (0, 3, 1, 4)] + [(t, j) for t in range(8) for j in (2, 5, 6)]
        else: seq = [(t, j) for t in range(8) for j in (0, 3, 1, 4, 2, 5, 6)]
        mseq2 = []
        for i, (t, j) in enumerate(seq):
            ks = [0, 1, 2, 3] if t >= T0 and j in (2, 5, 6) else [2, 3]
            mseq2 += [(t, j, k) for k in (ks if i % 2 == 0 else ks[::-1])]
        mx = c.opt.get('mixd', 2)
        if mx:
            D = [(t, j) for t in range(T0, 8) for j in (2, 5, 6)]; mseq2 = []; used = set()
            for t in range(8):
                mseq2 += [(t, j, k) for i, j in enumerate((0, 3, 1, 4)) for k in ((2, 3) if i % 2 == 0 else (3, 2))]
                for _ in range(mx if t < 7 else 0):
                    if D: d = D.pop(0); used.add(d); mseq2 += [d + (0,), d + (1,)]
            for i, (t, j) in enumerate(seq[32:]):
                ks = [0, 1, 2, 3] if t >= T0 and (t, j) not in used else [2, 3]
                mseq2 += [(t, j, k) for k in (ks if i % 2 == 0 else ks[::-1])]
        rd = {(t, j): n for n, (t, j, k) in enumerate(mseq2)}
        for t in range(8):
            g0, g1_ = acc(t,0), acc(t,1); d = acc(t, 3)
            for r in range(4): ops.append((rd[t,3], o_mul(g0+r, g0+r, acc(t,3)+r)))
            ops += [(rd[t,3], o_cvt(d, g0)), (rd[t,3], o_cvt(d+1, g0+2))]
            for r in range(4): ops.append((rd[t,4], o_mul(g1_+r, g1_+r, acc(t,4)+r)))
            ops += [(rd[t,4], o_cvt(d+2, g1_)), (rd[t,4], o_cvt(d+3, g1_+2))]
            ops.append((rd[t,4], o_st(f"buffer_store_dwordx4 v[{d}:{d+3}], v24, {SRD_WS}, s59 offen offset:{(t&1)*1024} {st}", d)))
            if t & 1: ops.append((rd[t,4], o_s("s_add_u32 s59, s59, 229376")))
            g2 = acc(t, 2)
            for r in range(4): ops.append((rd[t,5], o_mul(g2+r, g2+r, acc(t,5)+r)))
            b = acc(t & ~1, 5) + 2*(t & 1)
            ops += [(rd[t,5], o_cvt(b, g2)), (rd[t,5], o_cvt(b+1, g2+2))]
            if t & 1:
                b = acc(t & ~1, 5); o0, o1 = acc(t-1, 6), acc(t, 6)
                ops += [(rd[t,5], o_sw(32, b, b+2)), (rd[t,5], o_sw(32, b+1, b+3))]
                ops.append((rd[t,5], o_st(f"buffer_store_dwordx4 v[{b}:{b+3}], v25, {SRD_WS}, s53 offen {st}", b)))
                for r in range(4): ops.append((rd[t,6], o_sw(32, o0+r, o1+r)))
                for r in range(4): ops.append((rd[t,6], o_mul(o0+r, o0+r, o1+r)))
                od = acc(t & ~3, 2) + ((t >> 1) & 1)*2
                ops += [(rd[t,6], o_cvt(od, o0)), (rd[t,6], o_cvt(od+1, o0+2))]
                if t & 3 == 3:
                    od = acc(t & ~3, 2)
                    ops += [(rd[t,6], o_sw(16, od, od+2)), (rd[t,6], o_sw(16, od+1, od+3))]
                    ops.append((rd[t,6], o_st(f"buffer_store_dwordx4 v[{od}:{od+3}], v26, {SRD_WS}, s52 offen {st}", od)))
                    ops.append((rd[t,6], o_s("s_add_u32 s52, s52, 458752")))
                ops.append((rd[t,5], o_s("s_add_u32 s53, s53, 229376")))
        ops.sort(key=lambda o: o[0])
        hold = c.opt.get('hold', 5)
        hz.raw(f"s_waitcnt lgkmcnt({0 if nd else 2})")
        far = 0; f0, fd = c.opt.get('far_p', (74, 4))
        FAR = [e for i in range(far) for e in pre_ld(4 + i, f0 + 4*fd*i, fd)]
        held = []; nsig = c.opt.get('nsig', 12); NS = len(mseq2) - nsig
        late = lambda o: hold and o[1][0] in ('store', 'salu') and o[0] > rd[7 - hold, 6] if hold < 8 else o[1][0] in ('store', 'salu') and o[0] > rd[7, 4]
        for n, (t, j, k) in enumerate(mseq2):
            if n == 12 and not nd: hz.raw("s_waitcnt lgkmcnt(0)")
            cc = acc(t, j); w = g1_wf(k, j); x = x15(k & 1, t) if k >= 2 else g1_xf(k, t)
            hz.mfma(f"{MF} v[{cc}:{cc+3}], a[{w}:{w+3}], a[{x}:{x+3}], v[{cc}:{cc+3}]", cc)
            if far and n == 2: hz.raw("s_barrier")
            fl = [l for g, l in FAR if g == n]
            if fl:
                for l in fl: hz.raw(l)
                continue
            if nsig and n >= NS - 3:
                if n == NS - 3: hz.raw(f"s_add_u32 s{sPH}, s{sPH}, 1"); hz.raw(f"s_lshl_b32 s33, s{sW}, 29"); continue
                if n == NS - 2: hz.raw(f"v_mov_b32 v5, s{sPH}"); hz.raw("v_mov_b32 v4, s33"); continue
                if n == NS - 1:
                    hz.raw(f"s_waitcnt vmcnt({4*far + 6 - sum(o[1][0] == 'store' for o in held + ops)})"); hz.raw("s_barrier"); continue
                if n == NS:
                    hz.raw(f"buffer_store_dword v5, v4, {SRD_WS}, s{sFL} offen sc1"); continue
                if held and (n - NS) % c.opt.get('rel', 5) == 2:
                    hz.op(held.pop(0)[1])
                    if held and held[0][1][0] == 'salu': hz.op(held.pop(0)[1])
                    continue
            fill(hz, ops, n, 2, late)
            while ops and ops[0][0] <= n and late(ops[0]): held.append(ops.pop(0))
        ops = held + ops
        stamp(c, "g1 mm")
        if early:
            left = sum(o[1][0] == 'store' for o in ops)
            if not nsig: signal(c, vm=6 - left); hz.n += 6
            stamp(c, "sigH")
            for _, o in ops: hz.op(o)
            stamp(c)
        else:
            for _, o in ops: hz.op(o)
            stamp(c)
            signal(c)
            stamp(c, "sigH")

    dual(c, 0, tail)
```

```python
from fcore import *
G2_ACC, G2_H, G2_W, G2_RX, G2_RES = 32, 96, 160, 160, 224
g2_vRA = 8; g2_vH = [17, 18]; g2_vO = 24
WS_WDP = 74*MB
def g2_acc(t, ct): return G2_ACC + (t*8 + ct)*4
def g2_h(n, k, t): return G2_H + ((n*2 + k)*2 + t)*4
def g2_w(k, ct): return G2_W + (ct*2 + k)*4
def wsrc(c): return SRD_T2
LDS_PK = LDS_RED + 1024
def g2_ldw(c, n):
    return [f"s_add_u32 m0, s54, {n*16384}"] + [f"buffer_load_dwordx4 v{vL16}, {wsrc(c)}, s40 offen offset:{1024*i} {LY.sc} lds" for i in range(4)] + ["s_add_u32 s40, s40, 16384"]
def g2_ldh(n):
    return [f"buffer_load_dwordx4 v[{g2_h(n,k,t)}:{g2_h(n,k,t)+3}], v{g2_vH[t]}, {SRD_WS}, s55 offen offset:{k*2048} {LY.h}" for k in range(2) for t in range(2)] + ["s_add_u32 s55, s55, 4096"]
def g2_rd(n, k, ct):
    r = g2_w(k, ct)
    return f"ds_read_b128 v[{r}:{r+3}], v{g2_vRA} offset:{n*16384 + k*8192 + ct*1024}"

def g2_ldlast(c):
    return [f"s_add_u32 m0, s54, {LDS_PK}", f"s_add_u32 s35, s40, {23*16384}"] + [f"buffer_load_dwordx4 v{vL16}, {wsrc(c)}, s35 offen offset:{1024*i} {LY.sc} lds" for i in range(4)]
def g2_pre1(c):
    a = Asm()
    a(f"""
    s_lshr_b32 s57, s{sM}, 4                 ; kh
    s_lshl_b32 s54, s{sW}, 12                ; m0 base = w*4096
    s_and_b32 s35, s{sM}, 7
    s_lshl_b32 s35, s35, 1
    s_add_u32 s35, s35, s57
    s_mul_i32 s40, s35, {56*8192}
    s_mul_i32 s35, s57, {c.opt.get('shift', 0)*16384}
    s_add_u32 s40, s40, s35
    s_add_u32 s40, s40, s54
    s_add_u32 s40, s40, {WS_WDP}
    s_add_u32 s54, s54, 256
    s_mov_b64 s[28:29], s[12:13]
    s_mov_b32 s30, s14
    """)
    return [l.strip() for l in a.lines]

def g2_pre(c):
    a = c.a
    a(f"""
    s_xor_b32 s54, s54, 0x10000
    v_add_u32 v{g2_vRA}, 256, v{vL16}
    v_add_u32 v12, {LDS_PK + 256 if c.opt.get('g2_pre', 1) else 0x10100}, v{vL16}
    s_lshl_b32 s58, s{sTB}, 3
    s_bfe_u32 s35, s{sM}, 0x10003
    s_lshl_b32 s35, s35, 2
    s_add_u32 s58, s58, s35
    s_add_u32 s58, s58, s{sW}
    s_mul_i32 s55, s58, 229376
    s_mul_i32 s36, s57, {(56 + 2*c.opt.get('shift', 0))*2048}
    s_add_u32 s55, s55, s36
    s_add_u32 s55, s55, s{sLB}
    s_add_u32 s55, s55, {L_H}
    s_lshl_b32 s35, s57, 10
    v_add_u32 v{g2_vH[0]}, s35, v{vL16}
    v_xor_b32 v{g2_vH[1]}, 1024, v{g2_vH[0]}
    """)

def g2_main(c):
    a = c.a
    for ct in range(8):
        for k in range(2): a(g2_rd(0, k, ct))
    for i in range(32): a(f"v_mov_b64 v[{G2_ACC+2*i}:{G2_ACC+2*i+1}], 0")
    a(f"""
    s_lshl_b32 s39, s58, 1
    s_add_u32 s39, s39, s57
    s_lshl_b32 s39, s39, 15
    s_and_b32 s35, s{sM}, 7
    v_and_b32 v6, 15, v{vLANE}
    v_and_b32 v7, 48, v{vLANE}
    v_lshl_add_u32 v{g2_vO}, v6, 11, v7
    s_lshl_b32 s36, s35, 12
    s_add_u32 s36, s36, s39
    s_lshl_b32 s35, s35, 8
    s_add_u32 s39, s39, s35
    s_lshl_b32 s35, s{sLAY}, 31
    v_or_b32 v26, s35, v{vL16}
    v_xor_b32 v27, 0x80000000, v26
    s_lshl_b32 s33, s{sTB}, 19
    s_and_b32 s35, s{sM}, 7
    s_lshl_b32 s35, s35, 16
    s_add_u32 s33, s33, s35
    s_bfe_u32 s35, s39, 0x4000f
    s_lshl_b32 s35, s35, 10
    s_add_u32 s33, s33, s35
    s_add_u32 s33, s33, {LY.L1}
    s_lshr_b32 s38, s39, 15
    s_lshl_b32 s38, s38, 8
    s_add_u32 s38, s38, {LY.XR}
    v_lshlrev_b32 v7, 4, v6
    v_and_b32 v7, 0x80, v7
    v_lshl_add_u32 v25, v6, 3, v7
    v_and_b32 v7, 0x80000000, v27
    v_or_b32 v25, v25, v7
    s_add_u32 s34, s36, {LY.EX}
    s_lshl_b32 s35, s57, 22
    s_add_u32 s35, s35, {LY.P}
    s_cmp_eq_u32 s{sLAY}, 0
    s_cselect_b32 s35, s35, {LY.EX}
    s_xor_b32 s37, s36, 0x8000
    s_add_u32 s36, s36, s35
    s_add_u32 s37, s37, s35
    """)
    a(f"""
    v_and_b32 v4, 7, v{vLANE}
    v_bfe_u32 v5, v{vLANE}, 3, 1
    v_lshlrev_b32 v4, 5, v4
    v_lshl_or_b32 v4, v5, 1, v4
    s_and_b32 s35, s2, 0x1d
    v_or_b32 v4, s35, v4
    v_lshlrev_b32 v9, 7, v4
    {f"s_cmp_eq_u32 s57, 0" if c.opt.get('shift', 0) else ""}
    {f"s_cselect_b64 vcc, -1, 0" if c.opt.get('shift', 0) else ""}
    {f"v_cndmask_b32 v9, v9, v{vFL}, vcc" if c.opt.get('shift', 0) else ""}
    """)
    co = c.opt.get('co2', 0)
    if co:
        a(f"""
        s_and_b32 s42, s{sM}, 7
        s_mul_i32 s42, s42, {co*128}
        s_add_u32 s42, s42, s55
        s_add_u32 s42, s42, 4096
        v_min_u32 v10, {co-1}, v{vLANE}
        v_lshlrev_b32 v10, 7, v10
        """)
    l = c.lab("wt")
    a(f"s_cmp_lg_u32 s{sW}, 0\ns_cbranch_scc1 {l}")
    a(poll(c, SRD_WS, vFL, f"s{sFB}", M_KH, f"s{sPH}"))
    a(f"{l}:")
    a("s_waitcnt vmcnt(0)\ns_barrier")
    stamp(c, "waitH")
    for n in range(3):
        for l in g2_ldh(n): a(l)
        if co and n == 0: a(f"s_barrier\nbuffer_load_dword v11, v10, {SRD_WS}, s42 offen sc1")
    l = c.lab("sg")
    a(f"""
    s_add_u32 s{sPH}, s{sPH}, 1
    v_mov_b32 v4, 0
    v_mov_b32 v5, s{sPH}
    s_cmp_lg_u32 s{sW}, 0
    s_waitcnt vmcnt({9 if co else 8})
    {"s_branch" if 's' in c.opt.get('y', '') else "s_cbranch_scc1"} {l}
    s_mov_b64 exec, 1
    buffer_store_dword v5, v4, {SRD_WS}, s{sFL} offen sc1
    s_mov_b64 exec, -1
    {l}:
    """)
    stamp(c, "g2 go")
    M = [(ct, k) for ct in range(8) for k in range(4)]
    shift = c.opt.get('shift', 0); mg = [26]; pre = c.opt.get('g2_pre', 1); far = c.opt.get('far', 0); peel = c.opt.get('peel', 1) or far
    def mrd(i):
        ct, k = M[i]; p = (mg[0] + (k >> 1)) % 8
        if pre and k >= 2: p = 4
        return f"ds_read_b128 a[{4*i}:{4*i+3}], v{g2_vRA if p < 4 else 12} offset:{(p & 3)*16384 + (k & 1)*8192 + ct*1024}"
    kin = c.opt.get('g2_kin', 1)
    def sstep(n, ldh, ldw, vm, extra=(), merge=False, sh=0):
        a = c.a
        gaps = [[] for _ in range(32)]
        if n == 3: gaps[1].append(f"v_xor_b32 v{g2_vRA}, 0x10000, v{g2_vRA}")
        for ct in range(8):
            if merge: r = [mrd(2*ct), mrd(2*ct+1)]
            else: r = [g2_rd((n+1) % 4, 1 if kin else 0, ct), g2_rd((n+1) % 4, 0 if kin else 1, ct)]
            gaps[4*ct+2].append(r[0]); gaps[4*ct+3].append(r[1])
        if ldh:
            o = g2_ldh((n+3) % 4)
            for i in range(4): gaps[1+4*i+sh].append(o[i])
            gaps[14+sh].append(o[4])
        if ldw:
            o = g2_ldw(c, (n + far) % 4)
            gaps[16].append(o[0])
            for i in range(4): gaps[17+4*i+sh].append(o[1+i])
            gaps[min(30+sh, 31)].append(o[5])
        for g, l in extra: gaps[g].append(l)
        for g in (7, 15, 23): gaps[g].append("s_waitcnt lgkmcnt(12)")
        a(f"s_waitcnt vmcnt({vm}) lgkmcnt(12)")
        for g in range(32):
            ct = g >> 2
            t, k = [(0,0),(0,1),(1,1),(1,0)][g & 3] if kin else [(0,0),(1,0),(1,1),(0,1)][g & 3]
            if ct & 1: t ^= 1
            cc = g2_acc(t, ct)
            a(f"{MF} v[{cc}:{cc+3}], v[{g2_w(k,ct)}:{g2_w(k,ct)+3}], v[{g2_h(n,k,t)}:{g2_h(n,k,t)+3}], v[{cc}:{cc+3}]")
            if g == 0: a("s_barrier")
            for l in gaps[g]: a(l)
    a(f"s_mov_b32 s56, 6\ns_mov_b32 s41, 1\ns_lshl_b32 s42, s{sW}, 3\ns_add_u32 s42, s42, 3\n{'s_add_u32 s42, s42, s57' if shift else ''}\ns_xor_b32 s48, s57, 1\ns_lshl_b32 s48, s48, 4\nv_mov_b32 v7, 0\ns_mov_b64 s[24:25], s[12:13]")
    st2 = c.opt.get('stag2', 0); done = c.lab("g2z"); loops = [c.lab("g2loop"), c.lab("g2loop")]
    if st2: a(f"s_bitcmp1_b32 s{sW}, 0\ns_cbranch_scc1 {loops[1]}")
    for cp in range(2 if st2 else 1):
        sh = st2*cp; loop = loops[cp]
        a(f"{loop}:")
        o = c.lab("g2f"); b = c.lab("g2b")
        c.ool.append(f"{o}:\ns_cmp_eq_u32 s56, 6\ns_waitcnt vmcnt(12)\ns_cbranch_scc1 {b}\n" + poll(c, SRD_WS, 9, f"s{sFB}", "", f"s{sPH}") + f"s_branch {b}")
        X = [[], [], [], []]
        X[3 - far].append((20, "s_xor_b32 s54, s54, 0x10000"))
        off = 3 - far
        if pre and not peel: X[off].append((10, f"s_cmp_eq_u32 s56, {1 if off == 0 else 0}\ns_cselect_b32 s30, 0, s30"))
        sstep(0, True, True, 16, [(24, "v_cmp_gt_u32 vcc, s41, v7"), (29+sh, f"s_cbranch_vccnz {o}\n{b}:")] + X[0], sh=sh)
        sstep(1, True, True, 16, [(0, "s_sub_u32 s56, s56, 1"), (4, f"s_cmp_eq_u32 s56, s42\ns_cselect_b32 s41, s{sPH}, 0"), (8, "s_cselect_b32 s26, s14, 0")] +
                                 ([(31, f"buffer_load_dword v7, v9, {SRD_T}, s{sFB} offen sc1")] if cp == 0 else []) + X[1], sh=sh)
        sstep(2, True, True, 17 - cp, X[2], sh=sh)
        sstep(3, True, True, 17 - cp, X[3] + [(min(30+sh, 31), f"s_cmp_lg_u32 s56, {1 if peel else 0}")], sh=sh)
        a(f"s_cbranch_scc1 {loop}")
        if st2 and cp == 0: a(f"s_branch {done}")
    a(f"{done}:")
    hist = []
    if peel:
        for i in range(16, 20): hist += [('h', i+3)]*4 + [('w', i+4+far)]*4 + ([('f', 0)] if i == 17 else [])
        def allow(need): return len(hist) - 1 - max([k for k, e in enumerate(hist) if e in need], default=-1)
        for i in range(20, 24):
            ldw = i + 4 + far <= (26 if pre else 27)
            sstep(i % 4, True, ldw, allow([('h', i), ('w', i+1)]))
            hist += [('h', i+3)]*4 + ([('w', i+4+far)]*4 if ldw else [])
    import fg1k
    fin = c.lab("g2fin")
    def tail(R):
        a = c.a; st = "sc1"
        last = 24 + R - 1; mg[0] = last - 1
        hist = []
        for i in range(20, 24): hist += [('h', i+3)]*4 + [('w', i+4)]*4 + ([('f', 0)] if i == 21 else [])
        def allowed(need): return len(hist) - 1 - max(k for k, e in enumerate(hist) if e in need)
        for i in range(24, last - 1):
            merge = (i == last - 2); ex = []
            if merge:
                ex = [(0, f"s_add_u32 s41, s92, {64*7168}")]
                for h in range(2):
                    o = fg1k.g1_dw(2 + h)
                    ex += [(16*h, o[0])] + [(16*h + 1 + 4*i_, o[1+i_]) for i_ in range(4)] + [(16*h + 14, o[5])]
            need = [('h', i), ('w', i+1)] + ([('w', last)] if merge else [])
            sstep(i % 4, i + 3 <= last, i + 4 <= last, allowed(need), ex, merge=merge)
            hist += ([('h', i+3)]*4 if i + 3 <= last else []) + ([('w', i+4)]*4 if i + 4 <= last else []) + ([('n', 0)]*8 if merge else [])
        a(f"s_waitcnt vmcnt({allowed([('h', last)])})")
        hz = Hz(a); ops = []
        for r in range(G2_W, G2_W+64): hz.mf[r] = -6
        n2 = len(M)
        for p in range(4):
            ops.append((p, ('salu', f"buffer_load_dwordx4 v[{G2_RES+4*p}:{G2_RES+4*p+3}], v27, {SRD_WS}, s33 offen {LY.sc}", [], [])))
            ops.append((p, ('salu', "s_add_u32 s33, s33, 16384", [], [])))
        ops.append((3, ('salu', f"buffer_load_dwordx2 v[28:29], v25, {SRD_WS}, s38 offen sc1", [], [])))
        for ti, t in enumerate((1, 0)):
            for p in range(4):
                rdy = ti*n2 + 8*(p+1) - 1
                c0, c1 = g2_acc(t, 2*p), g2_acc(t, 2*p+1); e = G2_RX + 16*ti + 4*p
                ops += [(rdy-4, o_cvt(e, c0)), (rdy-4, o_cvt(e+1, c0+2)), (rdy, o_cvt(e+2, c1)), (rdy, o_cvt(e+3, c1+2)),
                        (rdy, o_st(f"buffer_store_dwordx4 v[{e}:{e+3}], v{vL16 if t else 26}, {SRD_WS}, s{36+t} offen offset:{p*1024} {st}", e))]
        n = 0
        for ti, t in enumerate((1, 0)):
            for i, (ct, k) in enumerate(M):
                if ti == 0 and i % 4 == 0: hz.raw(f"s_waitcnt lgkmcnt({min(12, n2-4-i)})")
                cc = g2_acc(t, ct); h = g2_h((mg[0] + (k >> 1)) % 4, k & 1, t)
                hz.mfma(f"{MF} v[{cc}:{cc+3}], a[{4*i}:{4*i+3}], v[{h}:{h+3}], v[{cc}:{cc+3}]", cc)
                per = 2
                if ti == 0 and i + 16 < n2:
                    hz.raw(mrd(i+16)); per = 1
                fill(hz, ops, n, per)
                n += 1
        stamp(c, "g2 mm")
        assert all(o[0] >= n2 for o in ops)
        pe = c.opt.get('p_early', 0)
        hz.raw(f"s_cmp_lg_u32 s{sLAY}, 0"); hz.raw(f"s_cbranch_scc1 {fin}")
        for _, o in ops: hz.op(o)
        stamp(c, "p out")

    def tail2(lay):
        a = c.a; mg[0] = 26
        ex = []
        if lay == 0:
            W = fg1k.g1_dw(2) + fg1k.g1_dw(3)
            ex = [(12, f"s_add_u32 s41, s92, {64*7168}"), (16, W[0])] + [(17 + 4*i, W[1+i]) for i in range(4)] + [(30, W[5])]; nv = 4
        else:
            R_ = [f"buffer_load_dwordx4 v[{G2_RES+4*p}:{G2_RES+4*p+3}], v{vL16}, {SRD_WS}, s33 offen {LY.sc}" for p in range(4)]
            ex = [(17 + 4*p, R_[p]) for p in range(4)] + [(18 + 4*p, "s_add_u32 s33, s33, 16384") for p in range(3)] + [(31, f"buffer_load_dwordx2 v[28:29], v25, {SRD_WS}, s38 offen sc1")]; nv = 5
        sstep(0, True, False, allow([('h', 24), ('w', 25)]) if peel else 17, ex)
        hz = Hz(a); ops = []
        E = [[240 + 4*p for p in range(4)], [G2_H + 4*p for p in range(4)]]
        seq = [(1, ct, 25, k) for ct in range(8) for k in ((0, 1) if ct % 2 == 0 else (1, 0))]
        kk = lambda ct, n: list(range(n)) if ct % 2 == 0 else list(range(n-1, -1, -1))
        seq += [(1, ct, 26 + (k >> 1), k & 1) for ct in range(8) for k in kk(ct, 4)]
        seq += [(0, ct, 25 + (k >> 1), k & 1) for ct in range(8) for k in kk(ct, 6)]
        rdy = {}
        for n, (t, ct, ss, k) in enumerate(seq): rdy[t, ct] = n
        for ti, t in enumerate((1, 0) if lay == 0 else (1,)):
            for p in range(4):
                c0, c1 = g2_acc(t, 2*p), g2_acc(t, 2*p+1); e = E[ti][p]; r0, r1 = rdy[t, 2*p], rdy[t, 2*p+1]
                ops += [(r0, o_cvt(e, c0)), (r0, o_cvt(e+1, c0+2)), (r1, o_cvt(e+2, c1)), (r1, o_cvt(e+3, c1+2)),
                        (r1, o_st(f"buffer_store_dwordx4 v[{e}:{e+3}], v{vL16}, {SRD_WS}, s{36+t} offen offset:{p*1024} sc1", e))]
        for n, (t, ct, ss, k) in enumerate(seq):
            if n == 0: hz.raw(f"s_waitcnt vmcnt({(8 if peel and pre else 4) + nv}) lgkmcnt(12)")
            elif n < 16 and n % 4 == 0: hz.raw("s_waitcnt lgkmcnt(12)")
            elif n == 16: hz.raw(f"s_waitcnt vmcnt({nv + (4 if lay == 0 else 0)}) lgkmcnt(12)")
            elif n < 48 and n % 4 == 0: hz.raw(f"s_waitcnt lgkmcnt({min(12, 44 - n)})")
            cc = g2_acc(t, ct); h = g2_h(ss % 4, k, t)
            i = ct*4 + (ss - 26)*2 + k
            w = f"v[{g2_w(k,ct)}:{g2_w(k,ct)+3}]" if ss == 25 else f"a[{4*i}:{4*i+3}]"
            hz.mfma(f"{MF} v[{cc}:{cc+3}], {w}, v[{h}:{h+3}], v[{cc}:{cc+3}]", cc)
            per = 2
            if n == 0: hz.raw("s_barrier")
            if n < 32: hz.raw(mrd(n)); per = 1
            if lay == 0 and n < 16:
                if n == 1: hz.raw(W[6])
                if n % 4 == 2: hz.raw(W[7 + n//4])
                if n == 15: hz.raw(W[11])
            fill(hz, ops, n, per)
        stamp(c, "g2 mm")
        for _, o in ops: hz.op(o)
        if lay == 0: stamp(c, "p out")
    if c.opt.get('tail2', 1):
        o = c.lab("g2e")
        a(f"s_cmp_lg_u32 s{sLAY}, 0\ns_cbranch_scc1 {o}")
        tail2(0)
        a(f"s_mov_b32 s{sLAY}, 1\ns_mov_b32 s{sLB}, {LY.L1}\ns_branch {c.name}_layer\n{o}:")
        tail2(1)
    else: a(f"s_cmp_lg_u32 s{sLAY}, 0\ns_cselect_b32 s10, 0, s10")
    if c.opt.get('tail2', 1): pass
    elif shift:
        o = c.lab("g2e"); b = c.lab("g2j")
        a(f"s_cmp_eq_u32 s57, 0\ns_cbranch_scc1 {o}")
        tail(4 - shift)
        a(f"{b}:")
        c.a = Asm(); tail(4 + shift); t = c.a.text(); c.a = a
        c.ool.append(f"{o}:\n{t}s_branch {b}")
    else: tail(4)
    if not c.opt.get('tail2', 1): a(f"s_mov_b32 s{sLAY}, 1\ns_mov_b32 s{sLB}, {LY.L1}\ns_branch {c.name}_layer")
    a(f"""
    {fin}:
    s_mov_b32 s32, 0x3f80
    s_mov_b32 s35, 0x3f800000
    """)
    signal(c)
    stamp(c, "sigE")
    a("v_rcp_f32 v28, v28\ns_nop 0\nv_mul_f32 v29, -v29, v28")
    for j in range(16):
        x = G2_ACC + 2*j
        unpack(a, 4, G2_RES + j, 1)
        a(f"v_pk_fma_f32 v[4:5], v[4:5], v[28:29], v[28:29] op_sel:[0,0,1] op_sel_hi:[1,0,1]")
        a(f"v_pk_add_f32 v[{x}:{x+1}], v[{x}:{x+1}], v[4:5]")
    tr = c.opt.get('out_tr', 1)
    if tr:
        a(f"""
        s_mul_i32 s33, s{sW}, {16*272}
        v_and_b32 v4, 15, v{vLANE}
        v_lshrrev_b32 v5, 4, v{vLANE}
        v_mul_u32_u24 v6, 272, v4
        v_lshl_add_u32 v6, v5, 4, v6
        v_add_u32 v10, s33, v6
        v_mul_u32_u24 v6, 272, v5
        v_lshl_add_u32 v6, v4, 4, v6
        v_add_u32 v11, s33, v6
        v_lshlrev_b32 v4, 4, v4
        v_lshl_add_u32 v{g2_vO}, v5, 11, v4
        """)
    wait(c, vFL, M_PAIR)
    stamp(c, "waitE")
    for p in range(4):
        a(f"buffer_load_dwordx4 v[{G2_RX+4*p}:{G2_RX+4*p+3}], v{vL16}, {SRD_WS}, s34 offen offset:{p*1024} sc1")
    for p in range(4):
        c0 = g2_acc(0, 2*p)
        a(f"s_waitcnt vmcnt({3-p if tr else 3})")
        for i in range(4):
            a(f"v_dot2_f32_bf16 v{c0+2*i}, v{G2_RX+4*p+i}, s32, v{c0+2*i}\nv_dot2_f32_bf16 v{c0+2*i+1}, v{G2_RX+4*p+i}, s35, v{c0+2*i+1}")
        r = G2_RES + 4*p
        a("s_nop 0")
        for i in range(4): a(f"v_cvt_pk_bf16_f32 v{r+i}, v{c0+2*i}, v{c0+2*i+1}")
        if tr: a(f"ds_write_b128 v10, v[{r}:{r+3}] offset:{p*64}")
        else: a(f"buffer_store_dwordx4 v[{r}:{r+3}], v{g2_vO}, {SRD_OUT}, s39 offen offset:{p*64} {c.opt.get('out_aux', 'nt')}")
    if tr:
        for i in range(4): a(f"ds_read_b128 v[{G2_RX+4*i}:{G2_RX+4*i+3}], v11 offset:{i*4*272}")
        for i in range(4):
            a(f"s_waitcnt lgkmcnt({3-i})")
            a(f"buffer_store_dwordx4 v[{G2_RX+4*i}:{G2_RX+4*i+3}], v{g2_vO}, {SRD_OUT}, s39 offen {c.opt.get('out_aux', 'nt')}\ns_add_u32 s39, s39, 8192")
    stamp(c, "out")
    if c.ts:
        a("s_waitcnt vmcnt(0)"); stamp(c, "end")
```

```python
from fcore import *
G2_ACC, G2_H, G2_W, G2_RX, G2_RES = 32, 96, 160, 160, 224
g2_vRA = 8; g2_vH = [17, 18]; g2_vO = 24
WS_WDP = 74*MB
def g2_acc(t, ct): return G2_ACC + (t*8 + ct)*4
def g2_h(n, k, t): return G2_H + ((n*2 + k)*2 + t)*4
def g2_w(k, ct): return G2_W + (ct*2 + k)*4
def wsrc(c): return SRD_T2
LDS_PK = LDS_RED + 1024
def g2_ldw(c, n):
    return [f"s_add_u32 m0, s54, {n*16384}"] + [f"buffer_load_dwordx4 v{vL16}, {wsrc(c)}, s40 offen offset:{1024*i} {LY.sc} lds" for i in range(4)] + ["s_add_u32 s40, s40, 16384"]
def g2_ldh(n):
    return [f"buffer_load_dwordx4 v[{g2_h(n,k,t)}:{g2_h(n,k,t)+3}], v{g2_vH[t]}, {SRD_WS}, s55 offen offset:{k*2048} {LY.h}" for k in range(2) for t in range(2)] + ["s_add_u32 s55, s55, 4096"]
def g2_rd(n, k, ct):
    r = g2_w(k, ct)
    return f"ds_read_b128 v[{r}:{r+3}], v{g2_vRA} offset:{n*16384 + k*8192 + ct*1024}"

def g2_ldlast(c):
    return [f"s_add_u32 m0, s54, {LDS_PK}", f"s_add_u32 s35, s40, {23*16384}"] + [f"buffer_load_dwordx4 v{vL16}, {wsrc(c)}, s35 offen offset:{1024*i} {LY.sc} lds" for i in range(4)]
def g2_pre1(c):
    a = Asm()
    a(f"""
    s_lshr_b32 s57, s{sM}, 4                 ; kh
    s_lshl_b32 s54, s{sW}, 12                ; m0 base = w*4096
    s_and_b32 s35, s{sM}, 7
    s_lshl_b32 s35, s35, 1
    s_add_u32 s35, s35, s57
    s_mul_i32 s40, s35, {56*8192}
    s_mul_i32 s35, s57, {c.opt.get('shift', 0)*16384}
    s_add_u32 s40, s40, s35
    s_add_u32 s40, s40, s54
    s_add_u32 s40, s40, {WS_WDP}
    s_add_u32 s54, s54, 256
    s_mov_b64 s[28:29], s[12:13]
    s_mov_b32 s30, s14
    """)
    return [l.strip() for l in a.lines]

def g2_pre(c):
    a = c.a
    a(f"""
    s_xor_b32 s54, s54, 0x10000
    v_add_u32 v{g2_vRA}, 256, v{vL16}
    v_add_u32 v12, {LDS_PK + 256 if c.opt.get('g2_pre', 1) else 0x10100}, v{vL16}
    s_lshl_b32 s58, s{sTB}, 3
    s_bfe_u32 s35, s{sM}, 0x10003
    s_lshl_b32 s35, s35, 2
    s_add_u32 s58, s58, s35
    s_add_u32 s58, s58, s{sW}
    s_mul_i32 s55, s58, 229376
    s_mul_i32 s36, s57, {(56 + 2*c.opt.get('shift', 0))*2048}
    s_add_u32 s55, s55, s36
    s_add_u32 s55, s55, s{sLB}
    s_add_u32 s55, s55, {L_H}
    s_lshl_b32 s35, s57, 10
    v_add_u32 v{g2_vH[0]}, s35, v{vL16}
    v_xor_b32 v{g2_vH[1]}, 1024, v{g2_vH[0]}
    """)

def g2_main(c):
    a = c.a
    for ct in range(8):
        for k in range(2): a(g2_rd(0, k, ct))
    for i in range(32): a(f"v_mov_b64 v[{G2_ACC+2*i}:{G2_ACC+2*i+1}], 0")
    a(f"""
    s_lshl_b32 s39, s58, 1
    s_add_u32 s39, s39, s57
    s_lshl_b32 s39, s39, 15
    s_and_b32 s35, s{sM}, 7
    v_and_b32 v6, 15, v{vLANE}
    v_and_b32 v7, 48, v{vLANE}
    v_lshl_add_u32 v{g2_vO}, v6, 11, v7
    s_lshl_b32 s36, s35, 12
    s_add_u32 s36, s36, s39
    s_lshl_b32 s35, s35, 8
    s_add_u32 s39, s39, s35
    s_lshl_b32 s35, s{sLAY}, 31
    v_or_b32 v26, s35, v{vL16}
    v_xor_b32 v27, 0x80000000, v26
    s_lshl_b32 s33, s{sTB}, 19
    s_and_b32 s35, s{sM}, 7
    s_lshl_b32 s35, s35, 16
    s_add_u32 s33, s33, s35
    s_bfe_u32 s35, s39, 0x4000f
    s_lshl_b32 s35, s35, 10
    s_add_u32 s33, s33, s35
    s_add_u32 s33, s33, {LY.L1}
    s_lshr_b32 s38, s39, 15
    s_lshl_b32 s38, s38, 8
    s_add_u32 s38, s38, {LY.XR}
    v_lshlrev_b32 v7, 4, v6
    v_and_b32 v7, 0x80, v7
    v_lshl_add_u32 v25, v6, 3, v7
    v_and_b32 v7, 0x80000000, v27
    v_or_b32 v25, v25, v7
    s_add_u32 s34, s36, {LY.EX}
    s_lshl_b32 s35, s57, 22
    s_add_u32 s35, s35, {LY.P}
    s_cmp_eq_u32 s{sLAY}, 0
    s_cselect_b32 s35, s35, {LY.EX}
    s_xor_b32 s37, s36, 0x8000
    s_add_u32 s36, s36, s35
    s_add_u32 s37, s37, s35
    """)
    a(f"""
    v_and_b32 v4, 7, v{vLANE}
    v_bfe_u32 v5, v{vLANE}, 3, 1
    v_lshlrev_b32 v4, 5, v4
    v_lshl_or_b32 v4, v5, 1, v4
    s_and_b32 s35, s2, 0x1d
    v_or_b32 v4, s35, v4
    v_lshlrev_b32 v9, 7, v4
    {f"s_cmp_eq_u32 s57, 0" if c.opt.get('shift', 0) else ""}
    {f"s_cselect_b64 vcc, -1, 0" if c.opt.get('shift', 0) else ""}
    {f"v_cndmask_b32 v9, v9, v{vFL}, vcc" if c.opt.get('shift', 0) else ""}
    """)
    co = c.opt.get('co2', 0)
    if co:
        a(f"""
        s_and_b32 s42, s{sM}, 7
        s_mul_i32 s42, s42, {co*128}
        s_add_u32 s42, s42, s55
        s_add_u32 s42, s42, 4096
        v_min_u32 v10, {co-1}, v{vLANE}
        v_lshlrev_b32 v10, 7, v10
        """)
    l = c.lab("wt")
    a(f"s_cmp_lg_u32 s{sW}, 0\ns_cbranch_scc1 {l}")
    a(poll(c, SRD_WS, vFL, f"s{sFB}", M_KH, f"s{sPH}"))
    a(f"{l}:")
    a("s_waitcnt vmcnt(0)\ns_barrier")
    stamp(c, "waitH")
    for n in range(3):
        for l in g2_ldh(n): a(l)
        if co and n == 0: a(f"s_barrier\nbuffer_load_dword v11, v10, {SRD_WS}, s42 offen sc1")
    l = c.lab("sg")
    a(f"""
    s_add_u32 s{sPH}, s{sPH}, 1
    v_mov_b32 v4, 0
    v_mov_b32 v5, s{sPH}
    s_cmp_lg_u32 s{sW}, 0
    s_waitcnt vmcnt({9 if co else 8})
    {"s_branch" if 's' in c.opt.get('y', '') else "s_cbranch_scc1"} {l}
    s_mov_b64 exec, 1
    buffer_store_dword v5, v4, {SRD_WS}, s{sFL} offen sc1
    s_mov_b64 exec, -1
    {l}:
    """)
    stamp(c, "g2 go")
    M = [(ct, k) for ct in range(8) for k in range(4)]
    shift = c.opt.get('shift', 0); mg = [26]; pre = c.opt.get('g2_pre', 1); far = c.opt.get('far', 0); peel = c.opt.get('peel', 1) or far
    def mrd(i):
        ct, k = M[i]; p = (mg[0] + (k >> 1)) % 8
        if pre and k >= 2: p = 4
        return f"ds_read_b128 a[{4*i}:{4*i+3}], v{g2_vRA if p < 4 else 12} offset:{(p & 3)*16384 + (k & 1)*8192 + ct*1024}"
    kin = c.opt.get('g2_kin', 1)
    def sstep(n, ldh, ldw, vm, extra=(), merge=False, sh=0):
        a = c.a
        gaps = [[] for _ in range(32)]
        if n == 3: gaps[1].append(f"v_xor_b32 v{g2_vRA}, 0x10000, v{g2_vRA}")
        for ct in range(8):
            if merge: r = [mrd(2*ct), mrd(2*ct+1)]
            else: r = [g2_rd((n+1) % 4, 1 if kin else 0, ct), g2_rd((n+1) % 4, 0 if kin else 1, ct)]
            gaps[4*ct+2].append(r[0]); gaps[4*ct+3].append(r[1])
        if ldh:
            o = g2_ldh((n+3) % 4)
            for i in range(4): gaps[1+4*i+sh].append(o[i])
            gaps[14+sh].append(o[4])
        if ldw:
            o = g2_ldw(c, (n + far) % 4)
            gaps[16].append(o[0])
            for i in range(4): gaps[17+4*i+sh].append(o[1+i])
            gaps[min(30+sh, 31)].append(o[5])
        for g, l in extra: gaps[g].append(l)
        for g in (7, 15, 23): gaps[g].append("s_waitcnt lgkmcnt(12)")
        a(f"s_waitcnt vmcnt({vm}) lgkmcnt(12)")
        for g in range(32):
            ct = g >> 2
            t, k = [(0,0),(0,1),(1,1),(1,0)][g & 3] if kin else [(0,0),(1,0),(1,1),(0,1)][g & 3]
            if ct & 1: t ^= 1
            cc = g2_acc(t, ct)
            a(f"{MF} v[{cc}:{cc+3}], v[{g2_w(k,ct)}:{g2_w(k,ct)+3}], v[{g2_h(n,k,t)}:{g2_h(n,k,t)+3}], v[{cc}:{cc+3}]")
            if g == 0: a("s_barrier")
            for l in gaps[g]: a(l)
    if c.opt.get('g2_unroll', 0):
        a(f"s_cmp_eq_u32 s{sW}, 0\ns_cselect_b32 s41, s{sPH}, 0\ns_lshl_b32 s35, s{sW}, 29\nv_or_b32 v9, s35, v9")
        o = c.lab("g2f"); b = c.lab("g2b")
        c.ool.append(f"{o}:\n" + poll(c, SRD_WS, 9, f"s{sFB}", "", f"s{sPH}") + f"s_branch {b}")
        hist = [('h', 0)]*4 + [('h', 1)]*4 + [('h', 2)]*4
        def allow(need): return len(hist) - 1 - max([k for k, e in enumerate(hist) if e in need], default=-1)
        for i in range(24):
            ldw = i + 4 + far <= (26 if pre else 27); ex = []
            if i % 4 == 3 - far: ex.append((20, "s_xor_b32 s54, s54, 0x10000"))
            if i == 9: ex.append((31, f"buffer_load_dword v7, v9, {SRD_WS}, s{sFB} offen sc1"))
            if i == 12: ex += [(24, "v_cmp_gt_u32 vcc, s41, v7"), (28, f"s_cbranch_vccnz {o}\n{b}:")]
            sstep(i % 4, True, ldw, allow([('h', i), ('w', i+1)] + ([('f', 0)] if i == 12 else [])), ex)
            hist += [('h', i+3)]*4 + ([('w', i+4+far)]*4 if ldw else []) + ([('f', 0)] if i == 9 else [])
    else:
        a(f"s_mov_b32 s56, 6\ns_mov_b32 s41, 1\ns_lshl_b32 s42, s{sW}, 3\ns_add_u32 s42, s42, 3\n{'s_add_u32 s42, s42, s57' if shift else ''}\ns_xor_b32 s48, s57, 1\ns_lshl_b32 s48, s48, 4\nv_mov_b32 v7, 0\ns_mov_b64 s[24:25], s[12:13]")
        st2 = c.opt.get('stag2', 0); done = c.lab("g2z"); loops = [c.lab("g2loop"), c.lab("g2loop")]
        if st2: a(f"s_bitcmp1_b32 s{sW}, 0\ns_cbranch_scc1 {loops[1]}")
        for cp in range(2 if st2 else 1):
            sh = st2*cp; loop = loops[cp]
            a(f"{loop}:")
            o = c.lab("g2f"); b = c.lab("g2b")
            c.ool.append(f"{o}:\ns_cmp_eq_u32 s56, 6\ns_waitcnt vmcnt(12)\ns_cbranch_scc1 {b}\n" + poll(c, SRD_WS, 9, f"s{sFB}", "", f"s{sPH}") + f"s_branch {b}")
            X = [[], [], [], []]
            X[3 - far].append((20, "s_xor_b32 s54, s54, 0x10000"))
            off = 3 - far
            if pre and not peel: X[off].append((10, f"s_cmp_eq_u32 s56, {1 if off == 0 else 0}\ns_cselect_b32 s30, 0, s30"))
            sstep(0, True, True, 16, [(24, "v_cmp_gt_u32 vcc, s41, v7"), (29+sh, f"s_cbranch_vccnz {o}\n{b}:")] + X[0], sh=sh)
            sstep(1, True, True, 16, [(0, "s_sub_u32 s56, s56, 1"), (4, f"s_cmp_eq_u32 s56, s42\ns_cselect_b32 s41, s{sPH}, 0"), (8, "s_cselect_b32 s26, s14, 0")] +
                                     ([(31, f"buffer_load_dword v7, v9, {SRD_T}, s{sFB} offen sc1")] if cp == 0 else []) + X[1], sh=sh)
            sstep(2, True, True, 17 - cp, X[2], sh=sh)
            sstep(3, True, True, 17 - cp, X[3] + [(min(30+sh, 31), f"s_cmp_lg_u32 s56, {1 if peel else 0}")], sh=sh)
            a(f"s_cbranch_scc1 {loop}")
            if st2 and cp == 0: a(f"s_branch {done}")
        a(f"{done}:")
        hist = []
        if peel:
            for i in range(16, 20): hist += [('h', i+3)]*4 + [('w', i+4+far)]*4 + ([('f', 0)] if i == 17 else [])
            def allow(need): return len(hist) - 1 - max([k for k, e in enumerate(hist) if e in need], default=-1)
            for i in range(20, 23 if c.opt.get('w01', 0) else 24):
                ldw = i + 4 + far <= (26 if pre else 27)
                sstep(i % 4, True, ldw, allow([('h', i), ('w', i+1)]))
                hist += [('h', i+3)]*4 + ([('w', i+4+far)]*4 if ldw else [])
    import fg1k
    fin = c.lab("g2fin")
    def tail(R):
        a = c.a; st = "sc1"
        last = 24 + R - 1; mg[0] = last - 1
        hist = []
        for i in range(20, 24): hist += [('h', i+3)]*4 + [('w', i+4)]*4 + ([('f', 0)] if i == 21 else [])
        def allowed(need): return len(hist) - 1 - max(k for k, e in enumerate(hist) if e in need)
        for i in range(24, last - 1):
            merge = (i == last - 2); ex = []
            if merge:
                ex = [(0, f"s_add_u32 s41, s92, {64*7168}")]
                for h in range(2):
                    o = fg1k.g1_dw(2 + h)
                    ex += [(16*h, o[0])] + [(16*h + 1 + 4*i_, o[1+i_]) for i_ in range(4)] + [(16*h + 14, o[5])]
            need = [('h', i), ('w', i+1)] + ([('w', last)] if merge else [])
            sstep(i % 4, i + 3 <= last, i + 4 <= last, allowed(need), ex, merge=merge)
            hist += ([('h', i+3)]*4 if i + 3 <= last else []) + ([('w', i+4)]*4 if i + 4 <= last else []) + ([('n', 0)]*8 if merge else [])
        a(f"s_waitcnt vmcnt({allowed([('h', last)])})")
        hz = Hz(a); ops = []
        for r in range(G2_W, G2_W+64): hz.mf[r] = -6
        n2 = len(M)
        for p in range(4):
            ops.append((p, ('salu', f"buffer_load_dwordx4 v[{G2_RES+4*p}:{G2_RES+4*p+3}], v27, {SRD_WS}, s33 offen {LY.sc}", [], [])))
            ops.append((p, ('salu', "s_add_u32 s33, s33, 16384", [], [])))
        ops.append((3, ('salu', f"buffer_load_dwordx2 v[28:29], v25, {SRD_WS}, s38 offen sc1", [], [])))
        for ti, t in enumerate((1, 0)):
            for p in range(4):
                rdy = ti*n2 + 8*(p+1) - 1
                c0, c1 = g2_acc(t, 2*p), g2_acc(t, 2*p+1); e = G2_RX + 16*ti + 4*p
                ops += [(rdy-4, o_cvt(e, c0)), (rdy-4, o_cvt(e+1, c0+2)), (rdy, o_cvt(e+2, c1)), (rdy, o_cvt(e+3, c1+2)),
                        (rdy, o_st(f"buffer_store_dwordx4 v[{e}:{e+3}], v{vL16 if t else 26}, {SRD_WS}, s{36+t} offen offset:{p*1024} {st}", e))]
        n = 0
        for ti, t in enumerate((1, 0)):
            for i, (ct, k) in enumerate(M):
                if ti == 0 and i % 4 == 0: hz.raw(f"s_waitcnt lgkmcnt({min(12, n2-4-i)})")
                cc = g2_acc(t, ct); h = g2_h((mg[0] + (k >> 1)) % 4, k & 1, t)
                hz.mfma(f"{MF} v[{cc}:{cc+3}], a[{4*i}:{4*i+3}], v[{h}:{h+3}], v[{cc}:{cc+3}]", cc)
                per = 2
                if ti == 0 and i + 16 < n2:
                    hz.raw(mrd(i+16)); per = 1
                fill(hz, ops, n, per)
                n += 1
        stamp(c, "g2 mm")
        assert all(o[0] >= n2 for o in ops)
        pe = c.opt.get('p_early', 0)
        hz.raw(f"s_cmp_lg_u32 s{sLAY}, 0"); hz.raw(f"s_cbranch_scc1 {fin}")
        for _, o in ops: hz.op(o)
        stamp(c, "p out")

    def tail2(lay):
        a = c.a; mg[0] = 26
        ex = []; w01 = c.opt.get('w01', 0); n0 = len(hist)
        if w01:
            W = fg1k.g1_dw(1)
            if lay == 0: ex = [(12, f"s_add_u32 s41, s92, {32*7168}"), (16, W[0])] + [(17 + 4*i, W[1+i]) for i in range(4)]
            sstep(3, True, False, allow([('h', 23), ('w', 24)]), ex)
            hist.extend([('h', 26)]*4 + ([('n', 0)]*4 if lay == 0 else []))
        if lay == 0:
            W = fg1k.g1_dw(2) + fg1k.g1_dw(3)
            ex = [(12, f"s_add_u32 s41, s92, {64*7168}"), (16, W[0])] + [(17 + 4*i, W[1+i]) for i in range(4)] + [(30, W[5])]; nv = 4
        else:
            R_ = [f"buffer_load_dwordx4 v[{G2_RES+4*p}:{G2_RES+4*p+3}], v{vL16}, {SRD_WS}, s33 offen {LY.sc}" for p in range(4)]
            ex = [(17 + 4*p, R_[p]) for p in range(4)] + [(18 + 4*p, "s_add_u32 s33, s33, 16384") for p in range(3)] + [(31, f"buffer_load_dwordx2 v[28:29], v25, {SRD_WS}, s38 offen sc1")]; nv = 5
        sstep(0, True, False, allow([('h', 24), ('w', 25)]) if peel else 17, ex)
        xtra = 4 if w01 and lay == 0 else 0
        del hist[n0:]
        pe = c.opt.get('p_early', 0) if lay == 0 else 0
        hz = Hz(a); ops = []
        E = [[240 + 4*p for p in range(4)], [G2_H + 4*p for p in range(4)]]
        seq = [(1, ct, 25, k) for ct in range(8) for k in ((0, 1) if ct % 2 == 0 else (1, 0))]
        kk = lambda ct, n: list(range(n)) if ct % 2 == 0 else list(range(n-1, -1, -1))
        seq += [(1, ct, 26 + (k >> 1), k & 1) for ct in range(8) for k in kk(ct, 4)]
        seq += [(0, ct, 25 + (k >> 1), k & 1) for ct in range(8) for k in kk(ct, 6)]
        rdy = {}
        for n, (t, ct, ss, k) in enumerate(seq): rdy[t, ct] = n
        for ti, t in enumerate((1, 0) if lay == 0 else (1,)):
            for p in range(4):
                c0, c1 = g2_acc(t, 2*p), g2_acc(t, 2*p+1); e = E[ti][p]; r0, r1 = rdy[t, 2*p], rdy[t, 2*p+1]
                ops += [(r0, o_cvt(e, c0)), (r0, o_cvt(e+1, c0+2)), (r1, o_cvt(e+2, c1)), (r1, o_cvt(e+3, c1+2)),
                        (r1, o_st(f"buffer_store_dwordx4 v[{e}:{e+3}], v{vL16}, {SRD_WS}, s{36+t} offen offset:{p*1024} sc1", e))]
        for n, (t, ct, ss, k) in enumerate(seq):
            if n == 0: hz.raw(f"s_waitcnt vmcnt({(8 if peel and pre else 4) + nv + xtra}) lgkmcnt(12)")
            elif n < 16 and n % 4 == 0: hz.raw("s_waitcnt lgkmcnt(12)")
            elif n == 16: hz.raw(f"s_waitcnt vmcnt({nv + (4 if lay == 0 else 0)}) lgkmcnt(12)")
            elif n < 48 and n % 4 == 0: hz.raw(f"s_waitcnt lgkmcnt({min(12, 44 - n)})")
            cc = g2_acc(t, ct); h = g2_h(ss % 4, k, t)
            i = ct*4 + (ss - 26)*2 + k
            w = f"v[{g2_w(k,ct)}:{g2_w(k,ct)+3}]" if ss == 25 else f"a[{4*i}:{4*i+3}]"
            hz.mfma(f"{MF} v[{cc}:{cc+3}], {w}, v[{h}:{h+3}], v[{cc}:{cc+3}]", cc)
            per = 2
            if n == 0: hz.raw("s_barrier")
            if n < 32: hz.raw(mrd(n)); per = 1
            if lay == 0 and n < 16:
                if n == 1: hz.raw(W[6])
                if n % 4 == 2: hz.raw(W[7 + n//4])
                if n == 15: hz.raw(W[11])
            if pe:
                NS = len(seq) - pe
                if n == 2: hz.raw(f"s_add_u32 s{sPH}, s{sPH}, 1")
                if n == 3: hz.raw(f"s_lshl_b32 s33, s{sW}, 29")
                if n == 4: hz.raw(f"v_mov_b32 v5, s{sPH}")
                if n == 5: hz.raw("v_mov_b32 v4, s33")
                if n == NS - 1: hz.raw(f"s_waitcnt vmcnt({4 - sum(o[1][0] == 'store' for o in ops)})"); hz.raw("s_barrier"); continue
                if n == NS: hz.raw(f"buffer_store_dword v5, v4, {SRD_WS}, s{sFL} offen sc1"); continue
            fill(hz, ops, n, per)
        stamp(c, "g2 mm")
        for _, o in ops: hz.op(o)
        if lay == 0: stamp(c, "p out")
    if c.opt.get('tail2', 1):
        o = c.lab("g2e")
        a(f"s_cmp_lg_u32 s{sLAY}, 0\ns_cbranch_scc1 {o}")
        tail2(0)
        a(f"s_mov_b32 s{sLAY}, 1\ns_mov_b32 s{sLB}, {LY.L1}\ns_branch {c.name}_layer\n{o}:")
        tail2(1)
    else: a(f"s_cmp_lg_u32 s{sLAY}, 0\ns_cselect_b32 s10, 0, s10")
    if c.opt.get('tail2', 1): pass
    elif shift:
        o = c.lab("g2e"); b = c.lab("g2j")
        a(f"s_cmp_eq_u32 s57, 0\ns_cbranch_scc1 {o}")
        tail(4 - shift)
        a(f"{b}:")
        c.a = Asm(); tail(4 + shift); t = c.a.text(); c.a = a
        c.ool.append(f"{o}:\n{t}s_branch {b}")
    else: tail(4)
    if not c.opt.get('tail2', 1): a(f"s_mov_b32 s{sLAY}, 1\ns_mov_b32 s{sLB}, {LY.L1}\ns_branch {c.name}_layer")
    a(f"""
    {fin}:
    s_mov_b32 s32, 0x3f80
    s_mov_b32 s35, 0x3f800000
    """)
    signal(c)
    stamp(c, "sigE")
    a("v_rcp_f32 v28, v28\ns_nop 0\nv_mul_f32 v29, -v29, v28")
    for j in range(16):
        x = G2_ACC + 2*j
        unpack(a, 4, G2_RES + j, 1)
        a(f"v_pk_fma_f32 v[4:5], v[4:5], v[28:29], v[28:29] op_sel:[0,0,1] op_sel_hi:[1,0,1]")
        a(f"v_pk_add_f32 v[{x}:{x+1}], v[{x}:{x+1}], v[4:5]")
    tr = c.opt.get('out_tr', 1)
    if tr:
        a(f"""
        s_mul_i32 s33, s{sW}, {16*272}
        v_and_b32 v4, 15, v{vLANE}
        v_lshrrev_b32 v5, 4, v{vLANE}
        v_mul_u32_u24 v6, 272, v4
        v_lshl_add_u32 v6, v5, 4, v6
        v_add_u32 v10, s33, v6
        v_mul_u32_u24 v6, 272, v5
        v_lshl_add_u32 v6, v4, 4, v6
        v_add_u32 v11, s33, v6
        v_lshlrev_b32 v4, 4, v4
        v_lshl_add_u32 v{g2_vO}, v5, 11, v4
        """)
    wait(c, vFL, M_PAIR)
    stamp(c, "waitE")
    for p in range(4):
        a(f"buffer_load_dwordx4 v[{G2_RX+4*p}:{G2_RX+4*p+3}], v{vL16}, {SRD_WS}, s34 offen offset:{p*1024} sc1")
    for p in range(4):
        c0 = g2_acc(0, 2*p)
        a(f"s_waitcnt vmcnt({3-p if tr else 3})")
        for i in range(4):
            a(f"v_dot2_f32_bf16 v{c0+2*i}, v{G2_RX+4*p+i}, s32, v{c0+2*i}\nv_dot2_f32_bf16 v{c0+2*i+1}, v{G2_RX+4*p+i}, s35, v{c0+2*i+1}")
        r = G2_RES + 4*p
        a("s_nop 0")
        for i in range(4): a(f"v_cvt_pk_bf16_f32 v{r+i}, v{c0+2*i}, v{c0+2*i+1}")
        if tr: a(f"ds_write_b128 v10, v[{r}:{r+3}] offset:{p*64}")
        else: a(f"buffer_store_dwordx4 v[{r}:{r+3}], v{g2_vO}, {SRD_OUT}, s39 offen offset:{p*64} {c.opt.get('out_aux', 'nt')}")
    if tr:
        for i in range(4): a(f"ds_read_b128 v[{G2_RX+4*i}:{G2_RX+4*i+3}], v11 offset:{i*4*272}")
        for i in range(4):
            a(f"s_waitcnt lgkmcnt({3-i})")
            a(f"buffer_store_dwordx4 v[{G2_RX+4*i}:{G2_RX+4*i+3}], v{g2_vO}, {SRD_OUT}, s39 offen {c.opt.get('out_aux', 'nt')}\ns_add_u32 s39, s39, 8192")
    stamp(c, "out")
    if c.ts:
        a("s_waitcnt vmcnt(0)"); stamp(c, "end")
```

```python
from fcore import *
from ffront import vQ, repack, repack_store, TOUCH2
from fg1k import g1_dw, g1_rw
XF, YF, RW, LO, TT = 32, 64, 96, 128, 160
def ln_stats(c, off, vm=''):
    a = c.a
    a(f"v_pk_add_f32 v[28:29], v[{XF}:{XF+1}], v[{XF+2}:{XF+3}]")
    a(f"v_pk_mul_f32 v[6:7], v[{XF}:{XF+1}], v[{XF}:{XF+1}]")
    a(f"v_pk_fma_f32 v[6:7], v[{XF+2}:{XF+3}], v[{XF+2}:{XF+3}], v[6:7]")
    for i in range(2, 16):
        a(f"v_pk_add_f32 v[28:29], v[28:29], v[{XF+2*i}:{XF+2*i+1}]")
        a(f"v_pk_fma_f32 v[6:7], v[{XF+2*i}:{XF+2*i+1}], v[{XF+2*i}:{XF+2*i+1}], v[6:7]")
    a(f"""
    v_add_f32 v28, v28, v29
    v_add_f32 v29, v6, v7
    s_nop 1
    v_permlane32_swap_b32 v28, v29
    v_add_f32 v28, v28, v29
    v_mov_b32 v29, v28
    s_nop 1
    v_permlane16_swap_b32 v28, v29
    v_add_f32 v28, v28, v29
    s_nop 1
    v_add_f32_dpp v28, v28, v28 row_ror:8 row_mask:0xf bank_mask:0xf
    ds_write_b32 v26, v28 offset:{off}
    s_waitcnt {vm}lgkmcnt(0)
    s_barrier
    ds_read_b128 v[4:7], v27 offset:{off}
    ds_read_b128 v[{LO+16}:{LO+19}], v27 offset:{off+128}
    s_waitcnt lgkmcnt(1)
    v_pk_add_f32 v[4:5], v[4:5], v[6:7]
    v_add_f32 v29, v4, v5
    v_mul_f32 v29, 0x3a800000, v29
    s_waitcnt lgkmcnt(0)
    v_pk_add_f32 v[6:7], v[{LO+16}:{LO+17}], v[{LO+18}:{LO+19}]
    v_add_f32 v28, v6, v7
    v_mul_f32 v28, 0x3a800000, v28
    v_fma_f32 v28, -v29, v29, v28
    v_max_f32 v28, 0, v28
    """)
    if c.opt.get('mimic', 0):
        a(f"""
        v_cvt_pk_bf16_f32 v29, v29, v28
        v_and_b32 v28, s{sMASK}, v29
        v_lshlrev_b32 v29, 16, v29
        v_add_f32 v28, 0x3727c5ac, v28
        v_cvt_pk_bf16_f32 v28, v28, v28
        v_and_b32 v28, s{sMASK}, v28
        v_sqrt_f32 v28, v28
        s_nop 0
        v_cvt_pk_bf16_f32 v28, v28, v28
        v_and_b32 v28, s{sMASK}, v28
        v_rcp_f32 v28, v28
        """)
    else:
        a("v_add_f32 v28, 0x3727c5ac, v28\nv_rsq_f32 v28, v28")
    a("s_nop 0\nv_mul_f32 v29, -v29, v28")
def norm(d, x): return f"v_pk_fma_f32 v[{d}:{d+1}], v[{x}:{x+1}], v[28:29], v[28:29] op_sel:[0,0,1] op_sel_hi:[1,0,1]"
def w_stage(a, slot):
    o = g1_dw(slot); a(o[0]); a("s_nop 0")
    for l in o[1:]: a(l)

def ln_phase(c):
    a = c.a
    l1 = c.lab("ln1"); st = c.lab("lnst"); cm = c.lab("lncm")
    a(f"""
    v_and_b32 v4, 7, v{vLANE}              ; tok
    v_lshrrev_b32 v5, 3, v{vLANE}          ; c
    v_lshlrev_b32 v6, 8, v5
    v_lshl_add_u32 v24, v4, 4, v6
    v_lshl_add_u32 v1, v4, 3, v6
    v_and_b32 v6, 0x3ff, v24
    v_lshrrev_b32 v7, 2, v5
    v_lshl_add_u32 v25, v7, 14, v6
    v_lshlrev_b32 v27, 4, v4
    v_add_u32 v27, {LDS_RED}, v27
    s_lshl_b32 s33, s{sW}, 2
    v_lshl_add_u32 v26, v7, 7, v27
    v_add_u32 v26, s33, v26
    s_lshr_b32 s33, s{sG8}, 1
    s_lshl_b32 s33, s33, 15
    s_lshl_b32 s34, s{sW}, 13
    s_add_u32 s33, s33, s34
    s_and_b32 s34, s{sG8}, 1
    s_lshl_b32 s35, s34, 6
    s_add_u32 s33, s33, s35                ; Y offset
    s_add_u32 s36, s33, s35                ; B16 offset
    s_add_u32 s33, s33, {WS_Y}
    s_lshl_b32 s37, s{sTB}, 19
    s_lshl_b32 s35, s{sW}, 17
    s_add_u32 s37, s37, s35
    s_bfe_u32 s35, s{sG8}, 0x40001
    s_lshl_b32 s35, s35, 10
    s_add_u32 s37, s37, s35
    s_lshl_b32 s35, s34, 7
    s_add_u32 s37, s37, s35
    s_add_u32 s37, s37, s{sLB}
    s_cmp_lg_u32 s{sLAY}, 0
    s_cbranch_scc1 {l1}
    """)
    n1 = 0 if c.opt.get('pk_g1', 1) else c.opt.get('pk_n1', 3)
    unpack(a, XF, vQ, 16)
    signal(c, sfl=85 if c.opt.get('yflag', 2) < 2 else sFL); stamp(c, "sigY")
    eo = c.opt.get('e_ord', 0)
    if eo: a(f"s_cmp_lt_u32 s{sTB}, 4\ns_cbranch_scc1 {st}")
    def side1():
        for slot in range(c.opt.get('w_sy', 4)): w_stage(a, slot)
        if c.opt.get('sty'): stamp(c)
        repack(c, n1)
        if c.opt.get('sty'): stamp(c)
    st2 = c.lab("lns2")
    if c.opt.get('ilv', 1):
        amain = c.a
        c.a = a = Asm(); ln_stats(c, 0)
        for j in range(16): a(norm(TT+2*j, XF+2*j))
        V = [l.strip() for l in a.lines]
        c.a = a = amain
        if c.opt.get('ilv', 1) == 2: repack(c, n1); a("s_waitcnt lgkmcnt(0)")
        Dm = []
        for slot in range(c.opt.get('w_sy', 4)):
            o = g1_dw(slot); Dm += [[o[0], "s_nop 0", o[1]], [o[2]], [o[3]], [o[4], o[5]]]
        lead = c.opt.get('ilv_lead', 4); step = len(V) // max(len(Dm) - lead, 1)
        for d in Dm[:lead]:
            for l in d: a(l)
        Dm = Dm[lead:]
        for k, l in enumerate(V):
            a(l)
            if k % step == step - 1 and Dm:
                for l in Dm.pop(0): a(l)
        assert not Dm
        if c.opt.get('ilv', 1) == 1: repack(c, n1); a("s_waitcnt lgkmcnt(0)")
        a(f"s_branch {st2}")
        if c.opt.get('iw', 2048): a(".p2align 12\niw_base:")
        a(f"{l1}:")
    else:
        side1()
        a(f"s_branch {st}")
        if c.opt.get('iw', 2048): a(".p2align 12\niw_base:")
        a(f"{l1}:")
    for j in range(16): a(f"v_accvgpr_read_b32 v{LO+j}, a{aX+j}")
    unpack(a, XF, LO, 16)
    w0 = eo; pe = c.opt.get('p_early', 0); w01 = c.opt.get('w01', 0); wl = c.opt.get('w0_late', 0)
    a(f"""
    s_bfe_u32 s39, s{sG8}, 0x10001
    s_xor_b32 s39, s39, 1
    s_lshl_b32 s38, s39, 22
    s_add_u32 s38, s38, s36
    s_xor_b32 s50, s38, {4*MB}
    s_add_u32 s38, s38, {LY.P}
    s_add_u32 s50, s50, {LY.P}
    s_lshl_b32 s39, s39, 4
    s_and_b32 s34, s{sM}, 8
    s_add_u32 s39, s39, s34
    s_mov_b32 s51, s{sPH}
    s_mov_b32 s34, 0x3f80
    s_mov_b32 s35, 0x3f800000
    """)
    signal(c); stamp(c, "sigP")
    def w_first():
        a("s_mov_b32 s41, s92")
        w_stage(a, 0)
        if not w01: w_stage(a, 1)
        a(f"s_add_u32 s41, s92, {128*7168}")
    def ldp(p):
        for i in range(4):
            r = RW + 16*p + 4*i
            a(f"buffer_load_dwordx4 v[{r}:{r+3}], v24, {SRD_WS}, s{[38, 50][p]} offen offset:{(i&1)*2048} {c.opt.get('ld_aux', 'sc1')}")
            if i == 1: a(f"s_add_u32 s{[38, 50][p]}, s{[38, 50][p]}, 4096")
    def addp(p, k, D=()):
        D = list(D)
        for i in range(4):
            a(f"s_waitcnt vmcnt({k-i})")
            for j in range(4):
                r = RW + 16*p + 4*i + j; x = XF + 8*i + 2*j
                a(f"v_dot2_f32_bf16 v{x}, v{r}, s34, v{x}\nv_dot2_f32_bf16 v{x+1}, v{r}, s35, v{x+1}")
    def gety():
        for j in range(16): a(f"v_accvgpr_read_b32 v{LO+j}, a{aY+j}")
        unpack(a, YF, LO, 16)
    we = 0
    if pe:
        if wl == 0: w_first()
        wait(c, vFL, "s_lshl_b32 exec_lo, 0xff, s39\ns_mov_b32 exec_hi, 0", thr="s51")
        ldp(0)
        if wl == 1: w_first()
        gety()
        wait(c, vFL, "s_xor_b32 s39, s39, 16\ns_lshl_b32 exec_lo, 0xff, s39\ns_mov_b32 exec_hi, 0")
        stamp(c, "waitP")
        ldp(1); addp(0, 7); addp(1, 3)
    else:
        w_first(); gety()
        wait(c, vFL, M_TH)
        stamp(c, "waitP")
        ldp(0); ldp(1); addp(0, 7); addp(1, 3)
    a(f"{st}:")
    ln_stats(c, 0)
    for j in range(16): a(norm(TT+2*j, XF+2*j))
    a(f"s_cmp_lg_u32 s{sLAY}, 0\ns_cbranch_scc1 {cm}\n{st2}:")
    ok = c.lab("boot")
    yf = c.opt.get('yflag', 2)
    if c.opt.get('sty'): stamp(c); a("s_waitcnt vmcnt(0)"); stamp(c)
    boot = lambda ok: f"v_cmp_eq_u32 vcc, 0, v248\ns_cbranch_vccz {ok}\n" + poll(c, "s[88:91]", 249, "0", "", 1) + f"{ok}:"
    if yf == 2:
        y1 = c.lab("lny"); y2 = c.lab("lnz")
        a(f"s_cmp_lt_u32 s{sTB}, {4 if c.opt.get('y_st', 2) < 6 else 0}\ns_cbranch_scc1 {y1}\ns_lshl_b32 s51, s{sW}, 13\nv_lshl_add_u32 v250, v{vLANE}, 7, s51")
        a(boot(ok)); a(poll(c, SRD_WS, 250, f"s{sFB}", "", 3))
        a(f"s_branch {y2}\n{y1}:\ns_cmp_lg_u32 s{sW}, 0\ns_cbranch_scc1 {y2}")
        a(boot(c.lab("boot"))); a(poll(c, SRD_WS, 250, f"s{sFB}", "", 2, x4=True))
        a(f"{y2}:\n" + ("s_waitcnt vmcnt(0)\n" if we else "") + "s_barrier")
    else:
        a(f"s_lshr_b32 s51, s{sTB}, 2\ns_add_u32 s51, s51, 2")
        wait(c, 250, "", every=not yf, x4=yf, thr="s51", pre=boot(ok))
    stamp(c, "waitY")
    for i in range(4):
        for k in range(2):
            r = RW + 4*i + 2*k
            a(f"buffer_load_dwordx2 v[{r}:{r+1}], v1, {SRD_WS}, s33 offen offset:{(i&1)*2048 + k*128} sc1")
        if i == 1: a("s_add_u32 s33, s33, 4096")
    if we:
        for l in g1_rw(0) + g1_rw(1): a(l)
    if eo == 1:
        e1 = c.lab("lne"); e2 = c.lab("lnf")
        a(f"s_cmp_lt_u32 s{sTB}, 4\ns_cbranch_scc1 {e1}")
    for i in range(4):
        a(f"s_waitcnt vmcnt({6-2*i})")
        unpack(a, YF+8*i, RW+4*i, 4)
    if eo == 1:
        a(f"s_branch {cm}\n{e1}:\ns_barrier")
        side1()
        a(f"s_waitcnt vmcnt({4*c.opt.get('w_sy', 4) + n1}) lgkmcnt(0)")
        unpack(a, YF, RW, 16)
    if eo == 2:
        a(f"s_cmp_ge_u32 s{sTB}, 4\ns_cbranch_scc1 {cm}")
        side1()
        a("s_waitcnt lgkmcnt(0)")
    a(f"{cm}:")
    stamp(c, "ln in")
    for j in range(16):
        x = XF + 2*j
        a(f"v_pk_fma_f32 v[{x}:{x+1}], v[{TT+2*j}:{TT+2*j+1}], v[{YF+2*j}:{YF+2*j+1}], v[{x}:{x+1}]")
    if n1 < 7 and not c.opt.get('pk_g1', 1):
        s3 = c.lab("lnt")
        a(f"s_cmp_lg_u32 s{sLAY}, 0\ns_cbranch_scc1 {s3}")
        for k in range(n1, c.opt.get('pk_n2', 7)): a(repack_store(k))
        a(f"{s3}:")
    ln_stats(c, 256)
    for j in range(16):
        a(norm(TT+2*j, XF+2*j))
        a(f"v_cvt_pk_bf16_f32 v{YF+j}, v{TT+2*j}, v{TT+2*j+1}")
        if j % 4 == 3:
            a(f"buffer_store_dwordx4 v[{YF+j-3}:{YF+j}], v25, {SRD_WS}, s37 offen sc1\ns_add_u32 s37, s37, 32768")
    z = c.lab("lnq")
    a(f"""
    {f"s_cmp_lg_u32 s{sW}, 3" if c.opt.get('st1', 1) else ""}
    {f"s_cbranch_scc1 {z}" if c.opt.get('st1', 1) else ""}
    s_lshl_b32 s35, s{sG8}, 7
    s_add_u32 s35, s35, {LY.XR}
    v_lshlrev_b32 v4, 3, v{vLANE}
    s_mov_b64 exec, 0xffff
    buffer_store_dwordx2 v[28:29], v4, {SRD_WS}, s35 offen sc1
    s_mov_b64 exec, -1
    {z}:
    """)
    stamp(c, "xn out")
    if c.opt.get('w2_sx', 1) and not we:
        if w0: a("s_waitcnt vmcnt(5)\ns_barrier")
        for l in g1_rw(0) + g1_rw(1): a(l)
        a("s_waitcnt lgkmcnt(0)")
    signal(c)
    stamp(c, "sigX")
    dn = c.lab("lnd")
    a(f"s_cmp_lg_u32 s{sLAY}, 0\ns_cbranch_scc1 {dn}")
    for i in range(5 - len(c.opt.get('t_pos', [0]*3)) - c.opt.get('t_s0', 2)): a(TOUCH2)
    for slot in range(c.opt.get('w_sy', 4), 4): w_stage(a, slot)
    for j in range(16): a(f"v_cvt_pk_bf16_f32 v{LO+j}, v{XF+2*j}, v{XF+2*j+1}")
    for j in range(16): a(f"v_accvgpr_write_b32 a{aX+j}, v{LO+j}\nv_accvgpr_write_b32 a{aY+j}, v{RW+j}")
    a(f"{dn}:")
```

```python
from fcore import *
import fg1k
LDS_PK = LDS_RED + 1024
WS_WDP = 74*MB
CW = STAGE; C_O = 4192; C_U = 8320
A_LDS = LDS_PK
K_LDS = 16384
vQ = 232
def front(c):
    a = c.a; opt = c.opt
    K = 32; V = 60; TP = 76; KF = 92; TF = 148; T = 180; O = KF + 16
    ACC = 32; FA = 64; FB = 128; AD = 252
    vA = [225, 226, 227, 228]; vB = 26; vE = 27; vF0 = 28; vQA = 29; vSW, vSR, vY, vPF = 212, 213, 214, 224
    def fa(s, i): return FA + (s*8 + i)*4
    def fb(s, i): return FB + (s*8 + i)*4
    head = opt.get('head', 0)
    if head:
        z = c.lab("nz")
        a(f"""
        s_bfe_u32 s34, s2, 0x40003             ; cbk
        s_lshl_b32 s33, s2, 1
        s_lshr_b32 s35, s2, 7
        s_add_u32 s33, s33, s35
        s_add_u32 s33, s33, s34
        s_and_b32 s33, s33, 15                 ; tokblk
        s_lshl_b32 s35, s33, 11
        s_add_u32 s35, s35, s34
        s_lshl_b32 s35, s35, 7
        v_and_b32 v4, 7, v0                    ; cg
        v_lshrrev_b32 v7, 3, v{vLANE}
        v_lshl_add_u32 v6, v1, 5, v7
        v_lshl_add_u32 v6, v6, 7, v4
        v_lshl_add_u32 v9, v6, 4, s35
        s_mul_i32 s52, s{sW}, {STAGE}
        s_add_u32 m0, s52, {K_LDS + 2048}
        s_mov_b32 s26, {S*D*2}
        s_mov_b32 s27, 0x20000
        s_movk_i32 s53, {16384-1024}
        s_lshl_b32 s54, s53, 1
        s_add_u32 s55, s54, s53
        s_waitcnt lgkmcnt(0)
        s_mov_b64 s[24:25], s[66:67]
        """)
        for i in range(4): a(f"buffer_load_dwordx4 v9, {SRD_T}, {['0','s53','s54','s55'][i]} offen offset:{1024*i} nt lds")
        a(f"""
        v_cmp_lt_u32 vcc, 4, v7
        v_subrev_u32 v8, 16384, v9
        v_bfrev_b32 v6, 1
        s_add_u32 s52, s52, {K_LDS}
        s_add_u32 m0, s52, 1024
        v_cndmask_b32 v8, v6, v8, vcc          ; k rows -3..-1
        buffer_load_dwordx4 v8, {SRD_T}, 0 offen nt lds
        """)
        prolog1(c)
        a(f"""
        s_mov_b32 m0, s52
        s_lshl_b32 s36, s34, 9
        v_add_u32 v10, s36, v{vL16}
        s_mov_b64 s[88:89], s[70:71]
        s_movk_i32 s90, {D*8}
        s_mov_b32 s91, s27
        buffer_load_dwordx4 v10, s[88:91], 0 offen lds
        v_lshrrev_b32 v5, 3, v0
        v_lshl_add_u32 v6, v5, 9, v4
        v_lshl_add_u32 v11, v6, 4, s35
        v_add_u32 v12, 4096, v11
        s_mov_b64 s[28:29], s[68:69]
        s_mov_b64 s[30:31], s[26:27]
        v_mov_b64 v[16:17], 0
        v_mov_b64 v[18:19], 0
        s_or_b32 s48, s33, s{sW}
        s_cbranch_scc1 {z}
        s_lshl_b32 s46, s34, 10
        s_add_u32 s46, s46, {WS_FL}
        s_add_u32 s47, s46, {128*128}
        buffer_store_dwordx4 v[16:19], v{vL16}, {SRD_WS}, s46 offen sc1
        buffer_store_dwordx4 v[16:19], v{vL16}, {SRD_WS}, s47 offen sc1
        {z}:
        s_barrier
        """)
        for i in range(4): a(f"buffer_load_dwordx4 v[{V+4*i}:{V+4*i+3}], v{11+(i>>1)}, {SRD_T2}, 0 offen offset:{2048*(i&1)} nt")
        a(code_touch(c, 251, 6))
        a("s_lshl_b32 s49, s34, 2\ns_add_u32 s49, s49, 64")
    else:
        z = c.lab("nz")
        a(f"""
        v_and_b32 v4, 7, v0                    ; cg
        v_lshrrev_b32 v5, 3, v0
        s_and_b32 s33, s2, 7
        s_lshr_b32 s34, s2, 3
        s_lshr_b32 s35, s34, 4
        s_and_b32 s34, s34, 15                 ; cbk
        s_lshl_b32 s33, s33, 1
        s_add_u32 s33, s33, s35
        s_add_u32 s33, s33, s34
        s_and_b32 s33, s33, 15                 ; tokblk
        s_lshl_b32 s35, s33, 18
        s_lshl_b32 s36, s34, 7
        s_add_u32 s35, s35, s36
        v_lshlrev_b32 v6, 13, v5
        v_lshl_add_u32 v6, v4, 4, v6
        v_add_u32 v11, s35, v6
        v_add_u32 v12, 4096, v11
        v_lshrrev_b32 v7, 3, v{vLANE}
        v_lshlrev_b32 v6, 11, v7
        v_lshl_add_u32 v6, v4, 4, v6
        s_lshl_b32 s36, s{sW}, 16
        s_add_u32 s35, s35, s36
        v_add_u32 v9, s35, v6
        v_cmp_lt_u32 vcc, 4, v7
        v_subrev_u32 v8, 16384, v9
        v_bfrev_b32 v6, 1
        s_mul_i32 s52, s{sW}, {STAGE}
        v_cndmask_b32 v8, v6, v8, vcc          ; k rows -3..-1
        s_add_u32 s52, s52, {K_LDS}
        s_mov_b32 m0, s52
        s_mov_b32 s53, {16384-1024}
        s_mov_b32 s54, {2*(16384-1024)}
        s_mov_b32 s55, {3*(16384-1024)}
        s_lshl_b32 s36, s34, 9
        v_add_u32 v10, s36, v{vL16}
        v_mov_b64 v[16:17], 0
        v_mov_b64 v[18:19], 0
        s_mov_b32 s90, {D*8}
        s_mov_b32 s91, 0x20000
        s_mov_b32 s26, {S*D*2}
        s_mov_b32 s27, 0x20000
        s_mov_b32 s30, {S*D*2}
        s_mov_b32 s31, 0x20000
        s_lshl_b32 s46, s34, 10
        s_add_u32 s46, s46, {WS_FL}
        s_add_u32 s47, s46, {128*128}
        s_or_b32 s48, s33, s{sW}
        s_waitcnt lgkmcnt(0)
        s_mov_b64 s[88:89], s[70:71]
        s_mov_b64 s[24:25], s[66:67]
        s_mov_b64 s[28:29], s[68:69]
        s_cbranch_scc1 {z}
        buffer_store_dwordx4 v[16:19], v{vL16}, {SRD_WS}, s46 offen sc1
        buffer_store_dwordx4 v[16:19], v{vL16}, {SRD_WS}, s47 offen sc1
        {z}:
        buffer_load_dwordx4 v10, s[88:91], 0 offen lds
        s_add_u32 m0, s52, 1024
        s_lshl_b32 s49, s34, 2
        buffer_load_dwordx4 v8, {SRD_T}, 0 offen nt lds
        s_add_u32 m0, s52, 2048
        s_add_u32 s49, s49, 64
        """)
        for i in range(4): a(f"buffer_load_dwordx4 v9, {SRD_T}, {['0','s53','s54','s55'][i]} offen offset:{1024*i} nt lds")
        if opt.get('kbar', 1): a("s_barrier")
        for i in range(4): a(f"buffer_load_dwordx4 v[{V+4*i}:{V+4*i+3}], v{11+(i>>1)}, {SRD_T2}, 0 offen offset:{2048*(i&1)} nt")
    NX = 1 if head else 0
    if opt.get('sta'): stamp(c)
    if opt.get('pf_code', 2) == 1:
        NX = 1
        a(f"""
        s_lshr_b32 s37, s2, 3
        s_lshl_b32 s37, s37, 2
        s_add_u32 s37, s37, s{sW}
        v_and_b32 v6, 1, v0
        v_lshl_add_u32 v6, s37, 1, v6
        v_lshlrev_b32 v6, 7, v6
        s_getpc_b64 s[50:51]
        {c.name[:6]}_pc:
        v_min_u32 v6, {c.name}_last-{c.name[:6]}_pc, v6
        v_mov_b32 v7, s51
        v_add_co_u32 v6, vcc, s50, v6
        s_nop 1
        v_addc_co_u32 v7, vcc, 0, v7, vcc
        global_load_dword v251, v[6:7], off
        """)
    if opt.get('tlb', 0):
        NX += 1
        sh = opt['tlb']
        a(f"""
        s_lshr_b32 s37, s2, 3
        s_cmp_lt_u32 s37, 16
        s_cselect_b64 s[40:41], s[82:83], s[84:85]
        s_cselect_b32 s42, {D*F*2}, s26
        s_cmp_eq_u32 s{sW}, 1
        s_cselect_b64 s[40:41], s[78:79], s[40:41]
        s_cselect_b32 s42, {D*F*2}, s42
        s_cmp_eq_u32 s{sW}, 3
        s_cselect_b64 s[40:41], s[80:81], s[40:41]
        s_cselect_b32 s42, {D*F*2}, s42
        s_cmp_eq_u32 s{sW}, 0
        s_cselect_b64 s[40:41], s[12:13], s[40:41]
        s_cselect_b32 s42, {WS_USED}, s42
        s_cselect_b32 s38, 31, 15
        s_mov_b32 s43, 0x20000
        s_and_b32 s37, s37, s38
        s_add_u32 s38, s38, 1
        v_min_u32 v6, {(1 << (26 - sh)) - 1}, v{vLANE}
        v_mul_u32_u24 v6, s38, v6
        v_add_lshl_u32 v6, v6, s37, {sh}
        buffer_load_dword v251, v6, s[40:43], 0 offen nt
        """)
    z = c.lab("nz")
    lead = lambda w: f"""s_cmp_lg_u32 s48, 0
    s_cbranch_scc1 {z}
    v_mov_b32 v20, 1
    {w}
    s_mov_b64 exec, 1
    buffer_store_dword v20, v16, s[88:91], s49 offen sc1
    s_mov_b64 exec, -1
    {z}:"""
    a(f"""
    s_mov_b64 s[88:89], s[86:87]
    s_mov_b32 s90, 256
    {"" if head else lead(f"s_waitcnt vmcnt({10+NX})")}
    s_lshl_b32 s41, s34, 4
    s_add_u32 s41, s41, s33
    s_lshl_b32 s42, s41, 2
    s_add_u32 s42, s42, s{sW}              ; channel d
    s_lshr_b32 s44, s42, 1
    s_lshl_b32 s44, s44, 2
    s_load_dword s45, s[74:75], s44
    s_mul_i32 s47, s{sW}, {CW}
    s_mov_b64 s[24:25], s[72:73]
    s_mov_b64 s[28:29], s[64:65]
    """)
    prolog2(c)
    if opt.get('q_lds', 0):
        qa = f"""v_lshl_add_u32 v6, v4, 9, v6
        v_lshrrev_b32 v7, 1, v4
        v_lshl_add_u32 v6, v7, 5, v6
        v_add_u32 v215, s52, v6
        v_lshrrev_b32 v7, 5, v{vLANE}
        v_and_b32 v6, 0x1f0, v{vL16}
        v_lshl_add_u32 v{vQA}, v7, 11, v6"""
    else: qa = f"v_lshl_add_u32 v{vQA}, v4, 11, v6"
    if opt.get('t_x', 0):
        wt = f"""s_lshr_b32 s58, s2, 3
        s_lshl_b32 s58, s58, 1
        s_and_b32 s38, s{sW}, 1
        s_add_u32 s58, s58, s38
        s_mul_i32 s58, s58, 7168
        s_lshr_b32 s38, s{sM}, 3
        s_mul_i32 s38, s38, 1792
        s_add_u32 s58, s58, s38
        s_mov_b32 s83, s58
        v_min_u32 v6, 13, v{vLANE}
        v_lshlrev_b32 v{vPF}, 7, v6"""
    else:
        wt = f"""s_lshl_b32 s58, s2, 1
        s_and_b32 s38, s{sW}, 1
        s_add_u32 s58, s58, s38
        s_mul_i32 s58, s58, {7*128}
        v_min_u32 v6, 6, v{vLANE}
        v_lshlrev_b32 v{vPF}, 7, v6"""
    if opt.get('yflag', 1):
        yf = f"""v_lshrrev_b32 v6, 1, v{vLANE}
        v_and_b32 v7, 16, v{vL16}
        v_lshl_add_u32 v6, v6, 10, v7
        v_add_u32 v250, 64, v6
        s_lshr_b32 s85, s2, 3
        s_lshl_b32 s85, s85, 10
        s_and_b32 s37, s2, 7
        s_lshl_b32 s37, s37, 2
        s_add_u32 s85, s85, s37
        s_add_u32 s85, s85, {WS_FL + 64}"""
    else: yf = f"v_lshlrev_b32 v250, 7, v0\ns_mov_b32 s85, s{sFL}"
    t1 = opt.get('t1', 35)
    rot = "s_lshr_b32 s38, s2, 3\n"
    for k in range(7):
        rot += f"""s_and_b32 s39, s38, 15
        s_lshl_b32 s39, s39, 7
        s_add_u32 s{64+k}, s{64+k}, s39
        s_bfe_u32 s39, s38, 0x30001
        s_mul_i32 s39, s39, {112*8192}
        s_add_u32 s{76+k}, s59, s39
        s_and_b32 s39, s38, 1
        s_lshl_b32 s39, s39, 12
        s_add_u32 s{76+k}, s{76+k}, s39
        s_lshl_b32 s39, s32, {15 if k < 4 else 14 if k < 6 else 13}
        s_add_u32 s39, s39, {(k if k < 4 else 28 + k if k < 6 else 48)*8192}
        s_add_u32 s{76+k}, s{76+k}, s39
        s_add_u32 s38, s38, {opt.get('pk_rot', 1)}
        """
    a(f"""
    s_lshl_b32 s84, s42, 12
    v_lshrrev_b32 v7, 3, v{vLANE}
    v_lshlrev_b32 v7, 9, v7
    v_lshl_add_u32 v7, v4, 4, v7
    v_add_u32 v10, s52, v7
    v_lshl_add_u32 v21, v4, 6, s52
    v_mul_u32_u24 v6, 2064, v4
    v_sub_u32 v7, 31, v5
    v_lshl_add_u32 v6, v7, 3, v6
    v_add_u32 v13, {A_LDS}, v6
    v_lshrrev_b32 v7, 7, v0
    v_add_u32 v7, v7, v0
    v_lshlrev_b32 v7, 4, v7
    v_add_u32 v14, {A_LDS}, v7
    v_lshrrev_b32 v6, 4, v0
    v_and_b32 v7, 15, v0
    v_lshl_add_u32 v249, v7, 2, 64
    v_lshlrev_b32 v7, 4, v7
    v_lshl_add_u32 v15, v6, 12, v7         ; u^T store
    s_lshl_b32 s36, s34, 18
    s_sub_u32 s37, 15, s33
    s_lshl_b32 s37, s37, 8
    s_add_u32 s36, s36, s37
    s_add_u32 s36, s36, {WS_UT}
    v_lshrrev_b32 v5, 3, v{vLANE}
    v_lshl_add_u32 v6, v5, 7, v4
    v_lshlrev_b32 v6, 7, v6
    s_lshl_b32 s37, s34, 10
    v_add_u32 v{vF0}, s37, v6
    {yf}
    v_and_b32 v6, 3, v5
    v_lshlrev_b32 v7, 5, v4
    v_lshl_or_b32 v6, v6, 1, v7
    s_and_b32 s37, s2, 0x19
    v_or_b32 v6, s37, v6
    v_lshlrev_b32 v{vFL}, 7, v6
    v_lshlrev_b32 v6, 4, v5
    {qa}
    s_lshl_b32 s56, s{sG8}, 14
    s_lshl_b32 s38, s{sW}, 9
    s_add_u32 s56, s56, s38
    v_lshlrev_b32 v6, 4, v4
    v_lshl_add_u32 v{vY}, v5, 15, v6
    s_lshl_b32 s57, s{sW}, 19
    s_lshl_b32 s38, s41, 7
    s_add_u32 s57, s57, s38
    s_add_u32 s57, s57, {WS_Y}
    v_bfe_u32 v6, v{vLANE}, 1, 2
    v_mul_u32_u24 v6, 160, v6
    v_lshl_add_u32 v6, v5, 3, v6
    v_and_b32 v7, 1, v{vLANE}
    v_lshl_add_u32 v6, v7, 2, v6
    s_mul_i32 s37, s{sW}, 640
    v_add_u32 v{vSR}, s37, v6
    v_add_u32 v229, {2*CW}, v{vSR}
    v_min_u32 v6, 33, v{vLANE}
    v_lshlrev_b32 v6, 4, v6
    v_cmp_lt_u32 vcc, 1, v{vLANE}
    v_mov_b32 v7, {C_O-32-32}
    v_mov_b32 v5, {C_U+4096-64}
    v_cndmask_b32 v7, 0, v7, vcc
    v_cmp_lt_u32 vcc, 3, v{vLANE}
    v_add_u32 v{vE}, s47, v{vL16}
    v_and_b32 v4, 15, v{vLANE}             ; b
    v_cndmask_b32 v7, v7, v5, vcc
    v_add3_u32 v6, v6, v7, s47
    ds_write_b128 v6, v[16:19]
    v_lshrrev_b32 v5, 4, v{vLANE}          ; q
    v_add_u32 v6, 1, v4
    v_lshrrev_b32 v6, 1, v6
    v_lshl_add_u32 v6, v5, 2, v6
    v_lshlrev_b32 v6, 2, v6
    v_and_b32 v7, 1, v4
    v_xor_b32 v7, 1, v7
    v_mul_u32_u24 v7, {C_O-28}, v7
    v_add3_u32 v{vA[0]}, v6, v7, s47
    v_add_u32 v{vA[1]}, 1024, v{vA[0]}
    v_add_u32 v{vA[2]}, 2048, v{vA[0]}
    v_add_u32 v{vA[3]}, 3072, v{vA[0]}
    v_lshlrev_b32 v6, 5, v4
    v_lshlrev_b32 v7, 4, v5
    v_sub_u32 v6, v7, v6
    s_add_u32 s37, s47, {C_U + 2*(S-16) - 512*7}
    v_add_u32 v{vB}, s37, v6
    v_mul_u32_u24 v6, 160, v5
    v_lshl_add_u32 v6, v4, 3, v6
    v_add_u32 v{vSW}, s47, v6
    {wt}
    v_lshl_add_u32 v6, v5, 3, v4
    v_sub_u32 v6, 15, v6
    v_and_b32 v7, 1, v6
    v_lshlrev_b32 v7, 4, v7
    v_ashrrev_i32 v6, 1, v6
    s_and_b32 s37, s42, 1
    s_lshl_b32 s37, s37, 4
    s_waitcnt lgkmcnt(0)
    s_lshr_b32 s45, s45, s37
    s_and_b32 s45, s45, 0xffff
    v_lshlrev_b32 v7, v7, s45
    """)
    for i in range(4):
        a(f"v_cmp_eq_u32 vcc, {i}, v6\ns_nop 1\nv_cndmask_b32 v{AD+i}, 0, v7, vcc")
    amain = a; a = Asm()
    a(f"""
    s_and_b32 s37, s2, 7
    s_lshl_b32 s37, s37, 1
    s_lshr_b32 s38, s2, 7
    s_add_u32 s37, s37, s38                ; P
    s_mul_i32 s38, s37, {224*2048}
    s_lshr_b32 s59, s37, 3
    s_mul_i32 s59, s59, {56*8192}
    s_and_b32 s32, s37, 7
    s_lshl_b32 s39, s{sW}, 10
    s_add_u32 s59, s59, s39
    s_add_u32 s59, s59, {WS_WDP}
    s_and_b32 s35, s{sW}, 1
    s_lshr_b32 s37, s{sW}, 1
    s_lshl_b32 s39, s{sW}, 13
    s_add_u32 s64, s39, s38
    s_add_u32 s65, s64, {64*2048}
    s_add_u32 s66, s64, {112*2048}
    s_add_u32 s67, s64, {176*2048}
    s_lshl_b32 s39, s37, 17
    s_lshl_b32 s68, s35, 13
    s_add_u32 s39, s39, s68
    s_add_u32 s39, s39, s38
    s_add_u32 s68, s39, {32*2048}
    s_add_u32 s69, s39, {144*2048}
    s_mul_i32 s39, s37, {112*2048}
    s_lshl_b32 s70, s35, 14
    s_add_u32 s39, s39, s70
    s_add_u32 s39, s39, s38
    s_add_u32 s70, s39, {48*2048}
    {rot}
    s_lshl_b32 s71, s{sW}, 10
    s_add_u32 s71, s71, {LDS_PK}
    v_lshrrev_b32 v6, 5, v{vLANE}
    v_bfe_u32 v7, v{vLANE}, 3, 2
    v_and_b32 v216, 0x70, v{vL16}
    v_lshl_add_u32 v7, v7, 11, v216
    v_lshl_add_u32 v216, v6, 15, v7
    v_lshl_add_u32 v217, v6, 14, v7
    v_lshl_add_u32 v218, v6, 13, v7
    v_bfe_u32 v6, v{vLANE}, 2, 2
    v_lshrrev_b32 v5, 4, v{vLANE}
    v_lshl_add_u32 v6, v5, 3, v6
    v_and_b32 v7, 0x30, v{vL16}
    v_lshl_add_u32 v6, v6, 7, v7
    s_lshl_b32 s37, s37, 6
    s_lshl_b32 s35, s35, 3
    s_add_u32 s37, s37, s35
    s_add_u32 s37, s37, {LDS_PK}
    v_add_u32 v219, s37, v6
    """)
    if opt.get('pk_g1', 1):
        for k in range(7): a(f"s_add_u32 s{64+k}, s{64+k}, {15 if k < 4 else 14 if k < 6 else 13}")
        a("s_mov_b32 s72, s71\ns_mov_b32 s83, 0\ns_mov_b32 s71, 0\ns_mov_b64 s[74:75], 0")
    fg1k.g1_waddr(a)
    later = a.text(); a = amain
    if opt.get('iw', 2048) and opt.get('iwf', 1):
        a(f"s_cmp_lg_u32 s{sW}, {opt.get('iwf', 1) - 1}\ns_cbranch_scc1 iw_fret\ns_mov_b64 exec, 0\ns_branch iw_f0\niw_fret:\ns_mov_b64 exec, -1")
    stamp(c, "setup")
    a(f"s_waitcnt vmcnt({(4 if head else 9)+NX})")
    for i in range(4): a(f"ds_read_b128 v[{TP+4*i}:{TP+4*i+3}], v21 offset:{16*i}")
    if head:
        for i in range(7): a(f"ds_read_b128 v[{K+4*i}:{K+4*i+3}], v10 offset:{1024+(5+i)*128}")
        a(lead(""))
    for ch in range(8):
        if ch % 2 == 0: a(f"s_waitcnt lgkmcnt({3-ch//2+(7 if head else 0)})")
        for h in range(2):
            r = TP + 2*ch + h
            a(f"v_lshlrev_b32 v{TF+(2*h)*8+ch}, 16, v{r}\nv_and_b32 v{TF+(2*h+1)*8+ch}, s{sMASK}, v{r}")
    ep = opt.get('e_pos', 3)
    eld = "s_add_u32 m0, s47, 32\ns_nop 0\n" + "".join(f"buffer_load_dwordx4 v{vL16}, {SRD_T}, s84 offen offset:{1024*i} nt lds\n" for i in range(4))
    if ep == -3: a("s_barrier")
    if ep <= -2: a(eld); NX += 4
    if not head: a(f"s_waitcnt vmcnt({4+NX})")
    if opt.get('sta'): stamp(c)
    if ep == -1: a(eld); NX += 4
    if not head:
        for i in range(7): a(f"ds_read_b128 v[{K+4*i}:{K+4*i+3}], v10 offset:{1024+(5+i)*128}")
    for i in range(7):
        a(f"s_waitcnt lgkmcnt({6-i})")
        unpack(a, KF+8*i, K+4*i, 4)
    for t in range(4):
        for tap in range(4):
            for p in range(4):
                d = T + 8*t + 2*p; kk = KF + 8*(t+3-tap) + 2*p; w = TF + 8*tap + 2*p
                if tap == 0: a(f"v_pk_mul_f32 v[{d}:{d+1}], v[{kk}:{kk+1}], v[{w}:{w+1}]")
                else: a(f"v_pk_fma_f32 v[{d}:{d+1}], v[{kk}:{kk+1}], v[{w}:{w+1}], v[{d}:{d+1}]")
    if opt.get('sta'): stamp(c)
    for t in range(4):
        a(f"s_waitcnt vmcnt({3-t+NX})")
        if opt.get('sta') and t == 3: stamp(c)
        if t == ep: a(eld); NX += 4
        unpack(a, KF, V+4*t, 4)
        for p in range(4):
            d = T + 8*t + 2*p
            a(f"v_pk_mul_f32 v[{d}:{d+1}], v[{d}:{d+1}], v[{KF+2*p}:{KF+2*p+1}]")
    for ch in range(8):
        a(f"v_cvt_pk_bf16_f32 v{O+2*ch}, v{T+24+ch}, v{T+16+ch}\nv_cvt_pk_bf16_f32 v{O+2*ch+1}, v{T+8+ch}, v{T+ch}")
        a(f"ds_write_b64 v13, v[{O+2*ch}:{O+2*ch+1}] offset:{256*ch}")
    a("s_waitcnt lgkmcnt(0)\ns_barrier")
    stamp(c, "A done")
    for i in range(4): a(f"ds_read_b128 v[{K+4*i}:{K+4*i+3}], v14 offset:{i*2*2064}")
    for i in range(4):
        a(f"s_waitcnt lgkmcnt({3-i})")
        a(f"buffer_store_dwordx4 v[{K+4*i}:{K+4*i+3}], v15, {SRD_WS}, s36 offen sc1")
        a(f"s_add_u32 s36, s36, {16*4096}")
    a(f"buffer_load_dword v20, v16, s[88:91], s49 offen sc1")
    wa = opt.get('wa', ''); nwa = 0
    qld = [f"buffer_load_dwordx4 v[{vQ+4*i}:{vQ+4*i+3}], v{vQA}, {SRD_T2}, s56 offen offset:{128*i} {opt.get('q_aux', 'nt')}" for i in range(4)]
    qlds = opt.get('q_lds', 0)
    if qlds: qld = [f"s_add_u32 m0, s52, {1056*i}\ns_add_u32 s37, s56, {4096*i}\nbuffer_load_dwordx4 v{vQA}, {SRD_T2}, s37 offen nt lds" for i in range(4)]
    tld = f"buffer_load_dword v251, v{vPF}, {SRD_W}, s58 offen"
    if 'q' in wa:
        for l in qld: a(l)
        nwa += 4
    if 't' in wa: a(tld); nwa += 1
    if opt.get('sta'): stamp(c)
    if ep == 9: a(eld)
    else: a(f"s_waitcnt vmcnt({5+nwa})")
    if opt.get('sta'): stamp(c)
    if ep == 9:
        ok = c.lab("boot")
        signal(c, vm=4, pre=f"v_cmp_ne_u32 vcc, 0, v20\ns_cbranch_vccnz {ok}\n" + poll(c, "s[88:91]", 4, "s49", "", 1) + f"{ok}:")
        stamp(c, "sig0")
        for i in range(opt.get('t_s0', 2)): a(tld); a(f"s_add_u32 s58, s58, {64*7168}")
        a(later); a(f"s_waitcnt vmcnt({opt.get('t_s0', 2)})")
    HK = 96
    for i in range(4):
        a(f"ds_read_b128 v[{HK+4*i}:{HK+4*i+3}], v{vE} offset:{32+1024*i}\nds_read_b32 v{HK+16+i}, v{vE} offset:{28+1024*i}")
    for i in range(4):
        r = HK + 4*i; o = 160 + 4*i
        a(f"s_waitcnt lgkmcnt({6-i})")
        a(f"v_alignbit_b32 v{o}, v{r}, v{HK+16+i}, 16")
        for j in range(1, 4): a(f"v_alignbit_b32 v{o+j}, v{r+j}, v{r+j-1}, 16")
        a(f"ds_write_b128 v{vE}, v[{o}:{o+3}] offset:{C_O+1024*i}")
    def opA(j, i): return f"a[{(j*4+i)*4}:{(j*4+i)*4+3}]" if i < 4 else f"v[{fa(j&1,i)}:{fa(j&1,i)+3}]"
    def opB(j, i): return f"a[{128+(j*4+i)*4}:{128+(j*4+i)*4+3}]" if i < 4 else f"v[{fb(j&1,i)}:{fb(j&1,i)+3}]"
    def rdA(j, i):
        o = (i & 1)*128 + 16*j; p, r = ("a", (j*4+i)*4) if i < 4 else ("v", fa(j&1, i))
        return [f"ds_read2_b32 {p}[{r}:{r+1}], v{vA[i>>1]} offset0:{o} offset1:{o+1}", f"ds_read2_b32 {p}[{r+2}:{r+3}], v{vA[i>>1]} offset0:{o+2} offset1:{o+3}"]
    def rdB(j, i): return f"ds_read_b128 {opB(j, i)}, v{vB} offset:{512*(7-i)+64*j}"
    def rd2(j): return [rdB(j, i) for i in range(4, 8)] + [l for i in range(4, 8) for l in rdA(j, i)]
    if ep != 9:
        ok = c.lab("boot")
        signal(c, vm=nwa, pre=f"v_cmp_ne_u32 vcc, 0, v20\ns_cbranch_vccnz {ok}\n" + poll(c, "s[88:91]", 4, "s49", "", 1) + f"{ok}:")
        stamp(c, "sig0")
    else: later = ""
    tf = opt.get('t_first', 1) if ep != 9 else 3
    def ts0():
        for i in range(opt.get('t_s0', 2)): a(tld); a(f"s_add_u32 s58, s58, {64*7168}")
    if tf == 1: ts0()
    if 'Q' in wa:
        for l in qld: a(l)
    if tf == 2: ts0()
    LA = [l for j in range(8) for i in range(4) for l in rdA(j, i)]
    LL = [l for l in later.split("\n") if l.strip() and not l.strip().startswith(";")]
    for k, l in enumerate(LL):
        a(l)
        if k % 2 == 0 and LA: a(LA.pop(0))
    for l in LA: a(l)
    pkl = lambda k: [f"s_add_u32 m0, s71, {4096*k}", f"buffer_load_dwordx4 v{216 if k < 4 else 217 if k < 6 else 218}, {SRD_WD}, s{64+k} offen {opt.get('pk_aux', 'nt')} lds"]
    ns0 = opt.get('pk_s0', 0)
    for k in range(ns0): a(pkl(k)[0]); a("s_nop 0"); a(pkl(k)[1])
    if not tf: ts0()
    a(f"""
    s_add_u32 s84, s84, {WS_UT}
    s_lshl_b32 s37, s{sW}, 29
    v_mov_b32 v230, s37
    v_mov_b32 v231, 2
    """)
    if opt.get('iw', 2048):
        a(f"""
        s_cmp_eq_u32 s{sW}, 0
        s_cbranch_scc1 iw_ret
        s_mov_b64 exec, 0
        s_cmp_eq_u32 s{sW}, 1
        s_cbranch_scc1 iw_c0
        s_cmp_eq_u32 s{sW}, 2
        s_cbranch_scc1 iw_c1
        s_branch iw_c2
        iw_ret:
        s_mov_b64 exec, -1
        """)
    wait(c, vF0, "s_mov_b64 exec, 0xffff")
    stamp(c, "wait0")
    a(f"s_add_u32 m0, s47, {C_U}\ns_mov_b32 s38, 0x05040100")
    for i in (3, 2, 1, 0):
        a(f"buffer_load_dwordx4 v{vL16}, {SRD_WS}, s84 offen offset:{1024*i} sc1 lds")
    a("s_mov_b32 s39, 0x07060302\ns_waitcnt vmcnt(3)")
    a(rdB(0, 0)); a(rdB(0, 1)); a("s_waitcnt vmcnt(2)"); a(rdB(0, 2)); a(rdB(0, 3))
    for i in range(4): a(rdB(1, i))
    stamp(c, "ur")
    side = {}
    def put(pos, l): side.setdefault(pos, []).append(l)
    for i, p in enumerate(opt.get('t_pos', [170, 205, 240])):
        put(p, tld); put(p+1, f"s_add_u32 s58, s58, {64*7168}")
    p = opt.get('q_pos', 20)
    if 'q' not in wa.lower():
        for l in qld: put(p, l); p += opt.get('q_dp', 40)
    p = opt.get('pk_pos', 6)
    for k in range(ns0, 0 if opt.get('pk_g1', 1) else 7):
        put(p-1, f"s_add_u32 m0, s71, {4096*k}")
        put(p, f"buffer_load_dwordx4 v{216 if k < 4 else 217 if k < 6 else 218}, {SRD_WD}, s{64+k} offen {opt.get('pk_aux', 'nt')} lds"); p += opt.get('pk_dp', 40)
    if qlds:
        for i in range(4): put(80 + 26*4 + 14 + i, f"ds_read_b128 v[{vQ+4*i}:{vQ+4*i+3}], v215 offset:{128*i}")
    put(251, f"buffer_load_dword v248, v249, s[88:91], 0 offen sc1")
    STG = 12992; SR, SO = FA, FB
    def stage_rd(off): return [f"ds_read_b32 v{SR+4*g+ch}, v{vSR if ch < 2 else 229} offset:{(ch&1)*CW + off + g*64}" for g in range(2) for ch in range(4)]
    def stage_st(g):
        r = SR + 4*g; o = SO + 4*g
        return [f"v_perm_b32 v{o}, v{r+1}, v{r}, s38", f"v_perm_b32 v{o+1}, v{r+3}, v{r+2}, s38", f"v_perm_b32 v{o+2}, v{r+1}, v{r}, s39", f"v_perm_b32 v{o+3}, v{r+3}, v{r+2}, s39",
                f"buffer_store_dwordx4 v[{o}:{o+3}], v{vY}, {SRD_WS}, s57 offen sc1", f"s_add_u32 s57, s57, {(8 if g == 0 else 56)*32768}"]
    hz = Hz(a); ops = []; pos = 0; nvm = [0]
    def emit(l):
        if l.startswith("buffer_") or l.startswith("global_"): nvm[0] += 1
        hz.raw(l)
    def mm(n, A, B, zero=False):
        cc = ACC + 4*n
        hz.mfma(f"{MF} v[{cc}:{cc+3}], {A}, {B}, " + ("0" if zero else f"v[{cc}:{cc+3}]"), cc)
    def out_ops(n, k, off):
        cc = ACC + 4*n
        return [(k, o_cvt(cc, cc)), (k, o_cvt(cc+1, cc+2)), (k, ('salu', f"ds_write_b64 v{vSW}, v[{cc}:{cc+1}] offset:{off + 640*(n & 3)}", [], []))]
    ADs = f"v[{AD}:{AD+3}]"
    for n in range(4):
        hz.raw(f"s_waitcnt lgkmcnt({7-n})"); mm(n, ADs, opB(0, n), True)
    for j in range(8):
        if j: hz.raw(f"s_waitcnt lgkmcnt({4 if j < 7 else 6})")
        if j == 2: hz.raw(f"s_waitcnt vmcnt({nvm[0]})")
        R = [rdB(j+2, i) for i in range(4)] if j < 6 else rd2(0)[6*(j-6):6*(j-5)]
        for k, (n, i) in enumerate([(n, i) for n in range(4) for i in range(n+1)]):
            mm(n, opA(j, i), opB(j, n-i))
            if k < len(R): hz.raw(R[k])
            for l in side.get(pos, []): emit(l)
            pos += 1
    sigj = opt.get('y_sig', 7); ys = opt.get('y_st', 2)
    if ys >= 6: sigj = 99
    for j in range(8):
        hz.raw("s_waitcnt lgkmcnt(0)" if j != sigj else f"s_waitcnt vmcnt({nvm[0] - mark}) lgkmcnt(0)")
        if j == 0:
            for n in range(4, 8): mm(n, ADs, opB(0, n), True)
            for n in range(4): ops += out_ops(n, 0, STG)
        R = rd2(j+1) if j < 7 else []
        if j == ys - 1: R = R + stage_rd(STG)
        if j == ys: R = R + stage_st(0) + stage_st(1)
        for k, (n, i) in enumerate([(n, i) for n in range(4, 8) for i in range(n+1)]):
            mm(n, opA(j, i), opB(j, n-i))
            if k == 0 and j in (1, sigj): hz.raw("s_barrier")
            if k == 1 and j == sigj: emit(f"buffer_store_dword v231, v230, {SRD_WS}, s85 offen sc1")
            if k < len(R):
                emit(R[k])
                if R[k].startswith("buffer_store"): mark = nvm[0]
            for l in side.get(pos, []): emit(l)
            if j == 7 and n == i: ops += out_ops(n, k, 0)
            if j in (0, 7): fill(hz, ops, k, 1 if k < len(R) else 2)
            pos += 1
        if j == 0: assert not ops
    stamp(c, "conv")
    for _, o in ops: hz.op(o)
    a(f"s_add_u32 s{sPH}, s{sPH}, 1\ns_waitcnt lgkmcnt(0)\ns_barrier")
    for l in stage_rd(0): a(l)
    for g in range(2):
        a(f"s_waitcnt lgkmcnt({4-4*g})")
        for l in stage_st(g): a(l)
    stamp(c, "y out")

TOUCH2 = f"buffer_load_dword v251, v224, {SRD_W}, s58 offen\ns_add_u32 s58, s58, {64*7168}"
PKR = [192, 196, 200, 204, 208, 212, 220]
def repack_store(k): return f"buffer_store_dwordx4 v[{PKR[k]}:{PKR[k]+3}], v{vL16}, {SRD_WS}, s{76+k} offen sc1"
def repack(c, n):
    if c.opt.get('pk_g1', 1): return
    a = c.a
    for k in range(7):
        r = PKR[k]
        a(f"ds_read_b64_tr_b16 v[{r}:{r+1}], v219 offset:{4096*k}\nds_read_b64_tr_b16 v[{r+2}:{r+3}], v219 offset:{4096*k+512}")
    for k in range(n):
        a(f"s_waitcnt lgkmcnt({12-2*k})"); a(repack_store(k))
```
